```python
import torch

def _softmax(x, axis=-1):
    return torch.softmax(x, dim=axis)
def _gelu(x):
    return torch.nn.functional.gelu(x, approximate="tanh")
def _silu(x):
    return torch.nn.functional.silu(x)
def _sigmoid(x):
    return torch.sigmoid(x)
def _layernorm(x, axis=-1, eps=1e-5):
    m = x.mean(dim=axis, keepdim=True)
    v = x.var(dim=axis, keepdim=True, unbiased=False)
    return (x - m) / torch.sqrt(v + eps)
def _scatter_add(tgt, idx, src, axis=0):
    return tgt.clone().index_add_(axis, idx, src)
def _segment_sum(src, seg, n):
    out = torch.zeros((n,) + src.shape[1:], dtype=src.dtype)
    return out.index_add_(0, seg, src)
def _pad(x, pw):
    flat = tuple(v for pair in reversed(pw) for v in pair)
    return torch.nn.functional.pad(x, flat)

kernel_name = 'concat_heads__grouped_kv_mqa__linear_attn_block__prompt'

def setup_inputs():

    _w = (lambda a: (lambda t: t.to(torch.bfloat16) if t.is_floating_point() else t)(torch.as_tensor(a)))
    def _A_setup():
        B, S, D, H = 1, 2048, 512, 32
        Dh = D // H
        return {
            "x": _w((lambda *s: torch.randn(*s, dtype=torch.bfloat16) * 0.05)(B, S, D)),
            "wq": _w((lambda *s: torch.randn(*s, dtype=torch.bfloat16) * 1.6)(D, H * Dh)),
            "wk": _w((lambda *s: torch.randn(*s, dtype=torch.bfloat16) * 1.6)(D, Dh)),
            "wv": _w((lambda *s: torch.randn(*s, dtype=torch.bfloat16) * 0.05)(D, Dh)),
            "wo": _w((lambda *s: torch.randn(*s, dtype=torch.bfloat16) * 0.05)(H * Dh, D)),
        }
    _A_in = _A_setup()

    def _B_setup():
        B, S, D = 1, 2048, 512
        return {
            "x": _w((lambda *s: torch.randn(*s, dtype=torch.bfloat16) * 0.05)(B, S, D)),
            "wqkv": _w((lambda *s: torch.randn(*s, dtype=torch.bfloat16) * 0.8)(D, 3 * D)),
            "wo": _w((lambda *s: torch.randn(*s, dtype=torch.bfloat16) * 0.05)(D, D)),
        }
    _B_in = _B_setup()

    return {
        "A_x": _A_in["x"],
        "A_wq": _A_in["wq"],
        "A_wk": _A_in["wk"],
        "A_wv": _A_in["wv"],
        "A_wo": _A_in["wo"],
        "B_x": _B_in["x"],
        "B_wqkv": _B_in["wqkv"],
        "B_wo": _B_in["wo"],
    }

def reference(A_x, A_wq, A_wk, A_wv, A_wo, B_x, B_wqkv, B_wo):
    def _A_ref(x, wq, wk, wv, wo):
        B, S, D = x.shape
        H = 32
        Dh = D // H
        q = (lambda x, *d: x.permute(*d))((x @ wq).reshape(B, S, H, Dh), 0, 2, 1, 3)
        k = x @ wk
        v = x @ wv
        scores = torch.einsum("bhqd,bkd->bhqk", q, k) * (Dh ** -0.5)
        p = _softmax(scores, axis=-1)
        o = torch.einsum("bhqk,bkd->bhqd", p, v)
        return (lambda x, *d: x.permute(*d))(o, 0, 2, 1, 3).reshape(B, S, H * Dh) @ wo

    def _B_ref(x, wqkv, wo):
        B, S, D = x.shape
        H = 32; Dh = D // H
        qkv = (lambda x, *d: x.permute(*d))((x @ wqkv).reshape(B, S, 3, H, Dh), 2, 0, 3, 1, 4)
        q, k, v = qkv[0], qkv[1], qkv[2]
        phi = lambda t: torch.where(t > 0, t + 1, torch.exp(t)) + 1e-6
        pq, pk = phi(q), phi(k)
        kv = torch.einsum("bhsd,bhse->bhde", pk, v)
        z = torch.einsum("bhsd->bhd", pk)
        num = torch.einsum("bhqd,bhde->bhqe", pq, kv)
        den = torch.einsum("bhqd,bhd->bhq", pq, z)[..., None] + 1e-6
        o = num / den
        return (lambda x, *d: x.permute(*d))(o, 0, 2, 1, 3).reshape(B, S, D) @ wo

    a = _A_ref(A_x, A_wq, A_wk, A_wv, A_wo)
    b = _B_ref(B_x, B_wqkv, B_wo)
    return torch.concatenate([a, b], axis=-1)
```

```python
class Asm:
    def __init__(self):
        self.lines = []
        self.uid = 0
    def __call__(self, s=""):
        for ln in s.split("\n"):
            ln = ln.strip()
            if not ln: continue
            if ln.endswith(":") or ln.startswith("."):
                self.lines.append(ln)
            else:
                self.lines.append("    " + ln)
    def c(self, s):
        self.lines.append("    ; " + s)
    def label(self, base):
        self.uid += 1
        return f"L_{base}_{self.uid}"
    def text(self):
        return "\n".join(self.lines) + "\n"

def v(a, n=1):
    return f"v{a}" if n == 1 else f"v[{a}:{a+n-1}]"
def s(a, n=1):
    return f"s{a}" if n == 1 else f"s[{a}:{a+n-1}]"
```

```python
import sys, struct
from asmlib import *

NAME = "concat_heads__grouped_kv_mqa__linear_attn_block__prompt"
def f32(x): return "0x%08x" % struct.unpack("<I", struct.pack("<f", x))[0]
LOG2E = 1.4426950408889634

WS_G   = 0x0
WS_F1  = 0x8000
WS_F3  = 0x10000
WS_RED = 0x18000
WS_KV  = 0x20000
WS_F2  = 0x60000
WS_F4  = 0x80000
WS_F5  = 0xa0000
WS_OA  = 0x100000
WS_OB  = 0x300000
WS_PART= 0x500000
WS_STAMP = 0x800000
KVREC = 640
KVTILE = 4*KVREC
L_X   = 0
L_W   = 0x10000
L_WKV = 0x20000
L_MISC= 0x24000
L_SYNC= L_MISC + 0x3f00
LDS_BYTES = 0x28000
SPIN_MAX = 200000

S_AX, S_WQ, S_WK, S_WV, S_AWO, S_BX, S_WQKV, S_BWO = 8, 10, 12, 14, 16, 18, 20, 22
S_OUT, S_WS = 24, 26
S_W, S_G, S_J, S_C, S_TAG, S_XCD, S_KC0 = 28, 29, 30, 31, 32, 33, 34
S_EPOCH = 35
T = 36
S_ST = 64

class Gen:
    def __init__(self, stamps=False, opts=None):
        self.a = Asm()
        self.stamps = stamps
        self.o = opts or {}
    def stamp(self, i):
        if self.stamps:
            self.a(f"s_memrealtime {s(S_ST+2*i,2)}")
    def dma(self, vtmp, voff, soff, base, sm0):
        a = self.a
        a(f"v_add_u32 {v(vtmp)}, {s(soff)}, {v(voff)}")
        a(f"s_mov_b32 m0, {s(sm0)}")
        a("s_nop 0")
        a(f"global_load_lds_dwordx4 {v(vtmp)}, {s(base,2)}")
    def poll(self, vaddr, offs, vt):
        a = self.a
        Lp, Ld = a.label("poll"), a.label("polld")
        a(f"s_mov_b32 {s(T+10)}, 0")
        a(f"{Lp}:")
        for i, o in enumerate(offs):
            a(f"global_load_dword {v(vt+i)}, {v(vaddr)}, {s(S_WS,2)} offset:{o} sc1")
        a("s_waitcnt vmcnt(0)")
        for i in range(len(offs)):
            if i == 0:
                a(f"v_cmp_ne_u32 vcc, {s(S_TAG)}, {v(vt)}")
            else:
                a(f"v_cmp_ne_u32 {s(T+12,2)}, {s(S_TAG)}, {v(vt+i)}")
                a(f"s_or_b64 vcc, vcc, {s(T+12,2)}")
        a(f"s_add_u32 {s(T+10)}, {s(T+10)}, 1")
        a(f"s_cmp_eq_u64 vcc, 0")
        a(f"s_cbranch_scc1 {Ld}")
        a("s_sleep 2")
        a(f"s_cmp_lt_u32 {s(T+10)}, {SPIN_MAX}")
        a(f"s_cbranch_scc1 {Lp}")
        a(f"{Ld}:")
    def flag(self, base, vt, sidx=S_C, vm=0):
        a = self.a
        a(f"s_lshl_b32 {s(T+10)}, {s(sidx)}, 7")
        a(f"s_add_u32 {s(T+10)}, {s(T+10)}, {base}")
        a(f"v_mov_b32 {v(vt)}, {s(T+10)}")
        a(f"v_mov_b32 {v(vt+1)}, {s(S_TAG)}")
        a(f"s_waitcnt vmcnt({vm})")
        a("s_mov_b64 exec, 1")
        a(f"global_store_dword {v(vt)}, {v(vt+1)}, {s(S_WS,2)} sc1")
        a("s_mov_b64 exec, -1")
    def softbar(self, vslot, vall, vt):
        a = self.a
        Lp, Ld = a.label("sb"), a.label("sbd")
        a(f"s_add_u32 {s(S_EPOCH)}, {s(S_EPOCH)}, 1")
        a(f"v_mov_b32 {v(vt)}, {s(S_EPOCH)}")
        a(f"ds_write_b32 {v(vslot)}, {v(vt)}")
        a(f"s_mov_b32 {s(T+10)}, 0")
        a(f"{Lp}:")
        a(f"ds_read_b32 {v(vt)}, {v(vall)}")
        a("s_waitcnt lgkmcnt(0)")
        a(f"v_cmp_gt_u32 vcc, {s(S_EPOCH)}, {v(vt)}")
        a(f"s_add_u32 {s(T+10)}, {s(T+10)}, 1")
        a(f"s_cmp_eq_u64 vcc, 0")
        a(f"s_cbranch_scc1 {Ld}")
        a("s_sleep 1")
        a(f"s_cmp_lt_u32 {s(T+10)}, {SPIN_MAX*4}")
        a(f"s_cbranch_scc1 {Lp}")
        a(f"{Ld}:")

    def entry(self):
        a = self.a
        a(f"""
        s_cmp_ge_u32 s2, 256
        s_cbranch_scc1 L_end
        """)
        self.stamp(0)
        a(f"""
        s_load_dwordx16 s[8:23], s[0:1], 0
        s_load_dwordx2 {s(S_OUT,2)}, s[0:1], 64
        s_load_dwordx2 {s(S_WS,2)}, s[0:1], 80
        v_lshrrev_b32 v1, 6, v0
        v_and_b32 v0, 63, v0
        v_readfirstlane_b32 {s(S_W)}, v1
        s_and_b32 {s(S_XCD)}, s2, 7
        s_lshr_b32 {s(T)}, s2, 6
        s_lshl_b32 {s(S_G)}, {s(S_XCD)}, 2
        s_add_u32 {s(S_G)}, {s(S_G)}, {s(T)}
        s_lshr_b32 {s(S_J)}, s2, 3
        s_and_b32 {s(S_J)}, {s(S_J)}, 7
        s_lshl_b32 {s(S_C)}, {s(S_G)}, 3
        s_add_u32 {s(S_C)}, {s(S_C)}, {s(S_J)}
        s_lshl_b32 {s(T)}, {s(T)}, 1
        s_add_u32 {s(S_KC0)}, {s(T)}, {s(S_J)}
        s_and_b32 {s(S_KC0)}, {s(S_KC0)}, 7
        s_mov_b32 {s(S_EPOCH)}, 0
        """)
        a(f"""
        v_lshrrev_b32 v5, 3, v0
        v_lshlrev_b32 v2, 10, v5
        v_and_b32 v6, 7, v0
        v_lshrrev_b32 v7, 4, v0
        v_xor_b32 v6, v6, v7
        v_lshl_add_u32 v2, v6, 4, v2
        v_bfe_u32 v5, v0, 2, 3
        v_and_b32 v6, 3, v0
        v_lshlrev_b32 v6, 4, v6
        v_lshrrev_b32 v7, 5, v0
        v_lshl_add_u32 v6, v7, 6, v6
        v_lshl_add_u32 v3, v5, 10, v6
        v_lshlrev_b32 v4, 4, v0
        """)
        a(f"""
        v_mul_u32_u24 v8, 3072, v5
        v_add_u32 v8, v8, v6
        s_waitcnt lgkmcnt(0)
        s_load_dword {s(S_TAG)}, {s(S_WS,2)}, {WS_G}
        """)
        self.stamp(1)

    def head_dma(self):
        a = self.a
        a.c("---- head DMA: stage 0 = what the K/V producer needs")
        a(f"""
        s_add_u32 {s(T)}, {s(S_KC0)}, {s(S_W)}
        s_and_b32 {s(T)}, {s(T)}, 7
        s_and_b32 {s(T+1)}, {s(S_J)}, 6
        s_lshl_b32 {s(T+2)}, {s(S_G)}, 16
        s_lshl_b32 {s(T+3)}, {s(T+1)}, 13
        s_add_u32 {s(T+3)}, {s(T+3)}, {s(T+2)}
        s_lshl_b32 {s(T+4)}, {s(T)}, 7
        s_add_u32 {s(T+3)}, {s(T+3)}, {s(T+4)}
        s_lshl_b32 {s(T+4)}, {s(S_W)}, 13
        s_lshl_b32 {s(T+5)}, {s(T+1)}, 10
        s_add_u32 {s(T+4)}, {s(T+4)}, {s(T+5)}
        v_xor_b32 v9, 64, v2
        """)
        self.dma(10, 2, T+3, S_AX, T+4)
        a(f"s_add_u32 {s(T+3)}, {s(T+3)}, 8192")
        a(f"s_add_u32 {s(T+4)}, {s(T+4)}, 1024")
        self.dma(10, 9, T+3, S_AX, T+4)
        a(f"""
        s_bitcmp1_b32 {s(S_J)}, 0
        s_cselect_b32 {s(T+6)}, {s(S_WV)}, {s(S_WK)}
        s_cselect_b32 {s(T+7)}, {s(S_WV+1)}, {s(S_WK+1)}
        s_lshl_b32 {s(T+3)}, {s(T)}, 11
        s_lshl_b32 {s(T+4)}, {s(S_W)}, 11
        s_add_u32 {s(T+4)}, {s(T+4)}, {L_WKV}
        """)
        self.dma(10, 4, T+3, T+6, T+4)
        a(f"global_load_lds_dwordx4 v10, {s(T+6,2)} offset:1024")
        a(f"""
        s_lshr_b32 {s(T+8)}, {s(S_W)}, 2
        s_lshl_b32 {s(T+9)}, {s(T+8)}, 6
        v_xor_b32 v9, {s(T+9)}, v2
        """)
    def head_stage(self, st):
        a = self.a
        a.c(f"---- head DMA stage {st+1}")
        a(f"""
        s_lshr_b32 {s(T)}, {s(S_W)}, 1
        s_add_u32 {s(T)}, {s(T)}, {4*st}
        s_add_u32 {s(T)}, {s(T)}, {s(S_KC0)}
        s_and_b32 {s(T)}, {s(T)}, 7
        s_lshl_b32 {s(T+3)}, {s(T)}, 16
        s_and_b32 {s(T+4)}, {s(S_W)}, 1
        s_lshl_b32 {s(T+4)}, {s(T+4)}, 15
        s_add_u32 {s(T+3)}, {s(T+3)}, {s(T+4)}
        s_lshl_b32 {s(T+4)}, {s(S_J)}, 7
        s_add_u32 {s(T+3)}, {s(T+3)}, {s(T+4)}
        s_lshl_b32 {s(T+4)}, {s(S_W)}, 12
        s_add_u32 {s(T+4)}, {s(T+4)}, {L_W + st*32768}
        """)
        for u in range(4):
            self.dma(10, 3, T+3, S_WQ, T+4)
            if u < 3:
                a(f"s_add_u32 {s(T+3)}, {s(T+3)}, 8192")
                a(f"s_add_u32 {s(T+4)}, {s(T+4)}, 1024")
        a(f"""
        s_and_b32 {s(T+5)}, {s(S_W)}, 3
        s_add_u32 {s(T+5)}, {s(T+5)}, {4*st}
        s_add_u32 {s(T)}, {s(T+5)}, {s(S_KC0)}
        s_and_b32 {s(T)}, {s(T)}, 7
        s_lshl_b32 {s(T)}, {s(T)}, 7
        s_add_u32 {s(T)}, {s(T)}, {s(T+2)}
        s_lshl_b32 {s(T+5)}, {s(T+5)}, 13
        """)
        for u in range(3):
            a(f"""
            s_add_u32 {s(T+4)}, {s(T+1)}, {2+2*u}
            s_and_b32 {s(T+4)}, {s(T+4)}, 7
            s_add_u32 {s(T+4)}, {s(T+4)}, {s(T+8)}
            s_lshl_b32 {s(T+3)}, {s(T+4)}, 13
            s_add_u32 {s(T+3)}, {s(T+3)}, {s(T)}
            s_lshl_b32 {s(T+4)}, {s(T+4)}, 10
            s_add_u32 {s(T+4)}, {s(T+4)}, {s(T+5)}
            """)
            self.dma(10, 9, T+3, S_AX, T+4)

    def xfrag_addr(self, dst, sblk, vt):
        a = self.a
        a(f"""
        v_and_b32 {v(vt)}, 31, v0
        v_lshlrev_b32 {v(vt+1)}, 7, {v(vt)}
        s_lshl_b32 {s(T)}, {s(sblk)}, 12
        v_add_u32 {v(vt+1)}, {s(T)}, {v(vt+1)}
        v_bfe_u32 {v(vt)}, v0, 1, 3
        v_lshrrev_b32 {v(vt+2)}, 5, v0
        v_xor_b32 {v(vt)}, {v(vt)}, {v(vt+2)}
        v_lshl_add_u32 {v(dst)}, {v(vt)}, 4, {v(vt+1)}
        v_xor_b32 {v(dst+1)}, 32, {v(dst)}
        v_xor_b32 {v(dst+2)}, 64, {v(dst)}
        v_xor_b32 {v(dst+3)}, 0x60, {v(dst)}
        """)
    def wfrag_addr(self, dst, sblk, base, hbshift, vt):
        a = self.a
        a(f"""
        v_bfe_u32 {v(vt)}, v0, 2, 2
        v_lshlrev_b32 {v(vt)}, 6, {v(vt)}
        v_bfe_u32 {v(vt+1)}, v0, 4, 1
        v_lshl_add_u32 {v(vt)}, {v(vt+1)}, 5, {v(vt)}
        v_and_b32 {v(vt+1)}, 3, v0
        v_lshl_add_u32 {v(vt)}, {v(vt+1)}, 3, {v(vt)}
        v_lshrrev_b32 {v(vt+1)}, 5, v0
        v_lshl_add_u32 {v(vt)}, {v(vt+1)}, {hbshift}, {v(vt)}
        """)
        if sblk is not None:
            a(f"""
            s_lshl_b32 {s(T)}, {s(sblk)}, 9
            s_add_u32 {s(T)}, {s(T)}, {base}
            v_add_u32 {v(dst)}, {s(T)}, {v(vt)}
            """)
        else:
            a(f"v_add_u32 {v(dst)}, {base}, {v(vt)}")

    def kv_producer(self):
        a = self.a
        a.c("---- K/V producer (wave 4): 16 rows x 16 cols, K=512")
        a(f"""
        v_and_b32 v12, 15, v0
        v_and_b32 v13, 3, v0
        v_bfe_u32 v14, v0, 2, 1
        v_lshl_add_u32 v13, v14, 3, v13
        v_bfe_u32 v14, v0, 3, 1
        v_lshl_add_u32 v13, v14, 2, v13
        s_bitcmp1_b32 {s(S_J)}, 0
        s_cselect_b64 vcc, -1, 0
        v_cndmask_b32 v12, v12, v13, vcc
        v_lshrrev_b32 v14, 4, v0
        v_lshrrev_b32 v13, 1, v12
        v_xor_b32 v13, v13, v14
        v_lshlrev_b32 v12, 7, v12
        v_lshl_add_u32 v12, v13, 4, v12
        s_and_b32 {s(T)}, {s(S_J)}, 6
        s_lshl_b32 {s(T)}, {s(T)}, 10
        v_add_u32 v12, {s(T)}, v12
        v_xor_b32 v13, 64, v12
        v_bfe_u32 v15, v0, 2, 2
        v_lshl_add_u32 v15, v14, 3, v15
        v_lshlrev_b32 v15, 5, v15
        v_and_b32 v16, 3, v0
        v_lshl_add_u32 v15, v16, 3, v15
        v_add_u32 v15, {L_WKV}, v15
        """)
    def kv_compute(self):
        a = self.a
        XF, WF = 64, 128
        def rd(t):
            a(f"ds_read_b128 {v(XF+4*t,4)}, {v(12+(t&1))} offset:{(t//2)*8192}")
            a(f"ds_read_b64_tr_b16 {v(WF+4*t,2)}, v15 offset:{t*1024}")
            a(f"ds_read_b64_tr_b16 {v(WF+4*t+2,2)}, v15 offset:{t*1024+128}")
        LV, LD = a.label("kvv"), a.label("kvd")
        a(f"s_bitcmp1_b32 {s(S_J)}, 0")
        a(f"s_cbranch_scc1 {LV}")
        for isv in (0, 1):
            if isv: a(f"{LV}:")
            D = 4
            for t in range(D): rd(t)
            for t in range(16):
                if t + D < 16:
                    rd(t + D); n = 3*D
                else:
                    n = 3*(15 - t)
                a(f"s_waitcnt lgkmcnt({n})")
                x, w = v(XF+4*t,4), v(WF+4*t,4)
                A, B = (x, w) if isv else (w, x)
                a(f"v_mfma_f32_16x16x32_bf16 v[20:23], {A}, {B}, {'0' if t == 0 else 'v[20:23]'}")
            if not isv:
                a(f"s_mov_b32 {s(T)}, {f32(0.25*LOG2E)}")
                a(f"s_branch {LD}")
            else:
                a(f"s_mov_b32 {s(T)}, 1.0")
        a(f"{LD}:")
        a(f"""
        s_mul_i32 {s(T+1)}, {s(S_C)}, {KVREC}
        s_add_u32 {s(T+1)}, {s(T+1)}, {WS_KV}
        v_add_u32 v17, {s(T+1)}, v4
        v_mov_b32 v26, 0x3f803f80
        v_mov_b32 v27, 0x3f803f80
        s_nop 2
        v_mul_f32 v20, {s(T)}, v20
        v_mul_f32 v21, {s(T)}, v21
        v_mul_f32 v22, {s(T)}, v22
        v_mul_f32 v23, {s(T)}, v23
        v_cvt_pk_bf16_f32 v24, v20, v21
        v_cvt_pk_bf16_f32 v25, v22, v23
        s_nop 1
        v_permlane32_swap_b32 v24, v26
        v_permlane32_swap_b32 v25, v27
        s_mov_b32 exec_hi, 1
        global_store_dwordx4 v17, v[24:27], {s(S_WS,2)} sc1
        s_mov_b32 exec_hi, -1
        """)

    def qproj(self, half):
        a = self.a
        XA, WA = 12, 16
        XF, WF = 64, 128
        D = 4
        def rd(t):
            i = t % 16
            a(f"ds_read_b128 {v(XF+4*i,4)}, {v(XA+(t&3))} offset:{(t//4)*8192}")
            a(f"ds_read_b64_tr_b16 {v(WF+4*i,2)}, {v(WA)} offset:{t*2048}")
            a(f"ds_read_b64_tr_b16 {v(WF+4*i+2,2)}, {v(WA)} offset:{t*2048+256}")
        t0 = 16*half
        for t in range(D): rd(t0+t)
        for t in range(16):
            if t + D < 16:
                rd(t0+t+D); n = 3*D
            else:
                n = 3*(15 - t)
            a(f"s_waitcnt lgkmcnt({n})")
            a(f"v_mfma_f32_32x32x16_bf16 v[32:47], {v(WF+4*t,4)}, {v(XF+4*t,4)}, {'0' if (t0+t) == 0 else 'v[32:47]'}")

    RQ, RO, RS, RKV = 16, 64, 128, 192
    RIDX, RKA, RVA = 10, 11, 12
    def attn(self):
        a = self.a
        RQ, RO, RS, RKV, RIDX, RKA, RVA = self.RQ, self.RO, self.RS, self.RKV, self.RIDX, self.RKA, self.RVA
        SB, SOFF, SCNT = T+14, T+16, T+17
        def K(u): return v(RKV+12*u, 4)
        def V(u, h): return v(RKV+12*u+4+4*h, 4)
        def addr_ops():
            return [f"s_add_u32 {s(SB)}, {s(S_WS)}, {s(SOFF)}",
                    f"s_addc_u32 {s(SB+1)}, {s(S_WS+1)}, 0",
                    f"s_add_u32 {s(SOFF)}, {s(SOFF)}, {2*KVTILE}",
                    f"s_cmp_ge_u32 {s(SOFF)}, {WS_KV+64*KVTILE}",
                    f"s_cselect_b32 {s(T+18)}, {64*KVTILE}, 0",
                    f"s_sub_u32 {s(SOFF)}, {s(SOFF)}, {s(T+18)}"]
        def ld(u, k):
            if k == 0: return f"global_load_dwordx4 {K(u)}, {v(RKA)}, {s(SB,2)} sc1"
            return f"global_load_dwordx4 {V(u,k-1)}, {v(RVA)}, {s(SB,2)} offset:{KVREC+(k-1)*2*KVREC} sc1"
        a.c("---- attention prologue")
        for u in range(3):
            for x in addr_ops(): a(x)
            for k in range(3): a(ld(u, k))
        a(f"s_waitcnt lgkmcnt(0)")
        a(f"s_mov_b32 {s(SCNT)}, 8")
        a(f"s_waitcnt vmcnt(6)")
        self.stamp(6)
        a(f"v_mfma_f32_32x32x16_bf16 {v(RS,16)}, {K(0)}, {v(RQ,4)}, 0")
        a("s_nop 7")
        a("s_nop 2")
        L = a.label("attn")
        a(".p2align 6")
        a(f"{L}:")
        for u in range(4):
            for b in range(4):
                fill = [[], [], []]
                if b == 0:
                    ops = addr_ops()
                    fill[0] = ops[0:1]; fill[1] = ops[1:3]; fill[2] = ops[3:5]
                if b == 1:
                    fill[0] = addr_ops()[5:6]; fill[1] = [ld((u+3) % 4, 0)]; fill[2] = [ld((u+3) % 4, 1)]
                if b == 2:
                    fill[1] = [ld((u+3) % 4, 2)]; fill[2] = ["s_waitcnt vmcnt(6)"]
                if b == 3 and u == 3:
                    fill[1] = [f"s_sub_u32 {s(SCNT)}, {s(SCNT)}, 1", f"s_cmp_lg_u32 {s(SCNT)}, 0"]
                nu, nb = (u, b+1) if b < 3 else ((u+1) % 4, 0)
                pu, pb = (u, b-1) if b > 0 else ((u-1) % 4, 3)
                S = RS + 16*b
                a(f"v_mfma_f32_32x32x16_bf16 {v(RS+16*nb,16)}, {K(nu)}, {v(RQ+4*nb,4)}, 0")
                for x in fill[0]: a(x)
                for i in range(0, 3): a(f"v_exp_f32 {v(S+i)}, {v(S+i)}")
                a(f"v_smfmac_f32_32x32x32_bf16 {v(RO+16*pb,16)}, {V(pu,1)}, {v(RS+16*pb+8,8)}, {v(RIDX)}")
                for x in fill[1]: a(x)
                for i in range(3, 10): a(f"v_exp_f32 {v(S+i)}, {v(S+i)}")
                a(f"v_smfmac_f32_32x32x32_bf16 {v(RO+16*b,16)}, {V(u,0)}, {v(S,8)}, {v(RIDX)}")
                for x in fill[2]: a(x)
                for i in range(10, 16): a(f"v_exp_f32 {v(S+i)}, {v(S+i)}")
        a(f"s_cbranch_scc1 {L}")
        a("s_nop 0")
        a(f"v_smfmac_f32_32x32x32_bf16 {v(RO+48,16)}, {V(3,1)}, {v(RS+48+8,8)}, {v(RIDX)}")

    def attn_fallback(self, Lret):
        a = self.a
        RQ, RO, RS, RKV, RIDX, RKA, RVA = self.RQ, self.RO, self.RS, self.RKV, self.RIDX, self.RKA, self.RVA
        SB, SCNT = T+14, T+17
        NM = RS + 32
        a("L_fallback:")
        a("s_waitcnt vmcnt(0)")
        a(f"v_mov_b32 {v(RKV+20)}, 0xff800000")
        a(f"v_mov_b32 {v(RKV+21)}, 0xff800000")
        for ps in (0, 1):
            L = a.label("fb")
            a(f"""
            s_add_u32 {s(SB)}, {s(S_WS)}, {WS_KV}
            s_addc_u32 {s(SB+1)}, {s(S_WS+1)}, 0
            s_mov_b32 {s(SCNT)}, 64
            {L}:
            global_load_dwordx4 {v(RKV,4)}, {v(RKA)}, {s(SB,2)} sc1
            """)
            if ps:
                a(f"global_load_dwordx4 {v(RKV+4,4)}, {v(RVA)}, {s(SB,2)} offset:{KVREC} sc1")
                a(f"global_load_dwordx4 {v(RKV+8,4)}, {v(RVA)}, {s(SB,2)} offset:{3*KVREC} sc1")
            a(f"""
            s_add_u32 {s(SB)}, {s(SB)}, {KVTILE}
            s_addc_u32 {s(SB+1)}, {s(SB+1)}, 0
            s_waitcnt vmcnt(0)
            """)
            for b in range(2):
                c = v(NM+16*b, 16) if ps else "0"
                a(f"v_mfma_f32_32x32x16_bf16 {v(RS+16*b,16)}, {v(RKV,4)}, {v(RQ+4*b,4)}, {c}")
            a("s_nop 7")
            a("s_nop 4")
            for b in range(2):
                S = RS + 16*b
                if not ps:
                    for i in range(0, 16, 2):
                        a(f"v_max3_f32 {v(RKV+20+b)}, {v(S+i)}, {v(S+i+1)}, {v(RKV+20+b)}")
                else:
                    for i in range(16): a(f"v_exp_f32 {v(S+i)}, {v(S+i)}")
                    a("s_nop 1")
                    a(f"v_smfmac_f32_32x32x32_bf16 {v(RO+16*b,16)}, {v(RKV+4,4)}, {v(S,8)}, {v(RIDX)}")
                    a(f"v_smfmac_f32_32x32x32_bf16 {v(RO+16*b,16)}, {v(RKV+8,4)}, {v(S+8,8)}, {v(RIDX)}")
            a(f"""
            s_sub_u32 {s(SCNT)}, {s(SCNT)}, 1
            s_cmp_lg_u32 {s(SCNT)}, 0
            s_cbranch_scc1 {L}
            """)
            if not ps:
                for b in range(2):
                    m = RKV+20+b
                    a(f"""
                    v_mov_b32 {v(RKV+22)}, {v(m)}
                    s_nop 1
                    v_permlane32_swap_b32 {v(m)}, {v(RKV+22)}
                    s_nop 1
                    v_max_f32 {v(m)}, {v(m)}, {v(RKV+22)}
                    """)
                    for i in range(16): a(f"v_sub_f32 {v(NM+16*b+i)}, 0, {v(m)}")
                for i in range(32): a(f"v_mov_b32 {v(RO+i)}, 0")
        a("s_nop 7")
        a("s_nop 4")
        a(f"s_branch {Lret}")

    def outproj_load(self, SIMG):
        a = self.a
        for u in range(16):
            if u and u % 4 == 0:
                a(f"s_add_u32 {s(SIMG)}, {s(SIMG)}, 4096")
                a(f"s_addc_u32 {s(SIMG+1)}, {s(SIMG+1)}, 0")
            a(f"global_load_dwordx4 {v(32+4*u,4)}, v4, {s(SIMG,2)} offset:{(u%4)*1024} sc1")
    def outproj_wfrags(self, vW):
        a = self.a
        for u in range(16):
            for nb in range(2):
                for sx in range(2):
                    a(f"ds_read_b64_tr_b16 {v(128+8*u+4*nb+2*sx,2)}, {v(vW)} offset:{(2*u+sx)*1024+nb*512}")
    def outproj_mma(self):
        a = self.a
        a("s_waitcnt lgkmcnt(0)")
        for u in range(16):
            a(f"s_waitcnt vmcnt({15-u})")
            for nb in range(2):
                acc = v(96+16*nb, 16)
                a(f"v_mfma_f32_32x32x16_bf16 {acc}, {v(128+8*u+4*nb,4)}, {v(32+4*u,4)}, {'0' if u == 0 else acc}")


    def oflag(self, base):
        a = self.a
        a(f"""
        s_lshl_b32 {s(T)}, {s(S_C)}, 2
        s_and_b32 {s(T+1)}, {s(S_W)}, 3
        s_add_u32 {s(T)}, {s(T)}, {s(T+1)}
        """)
        self.flag(base, 20, sidx=T)
    def opoll(self, base):
        a = self.a
        QB, KH = T+20, T+21
        a(f"""
        s_lshl_b32 {s(T)}, {s(S_G)}, 5
        s_lshl_b32 {s(T+1)}, {s(KH)}, 4
        s_add_u32 {s(T)}, {s(T)}, {s(T+1)}
        s_lshl_b32 {s(T+1)}, {s(QB)}, 1
        s_add_u32 {s(T)}, {s(T)}, {s(T+1)}
        s_lshl_b32 {s(T)}, {s(T)}, 7
        s_add_u32 {s(T)}, {s(T)}, {base}
        v_and_b32 v22, 1, v0
        v_bfe_u32 v23, v0, 1, 2
        v_lshl_add_u32 v22, v23, 2, v22
        v_lshl_add_u32 v22, v22, 7, {s(T)}
        """)
        self.poll(22, [0], 23)
    def oflag_and_poll(self, base):
        self.oflag(base)
        self.opoll(base)

    def group(self, base, soff, m0, vregs, step):
        a = self.a
        a(f"s_add_u32 {s(T+2)}, {s(base)}, {s(soff)}")
        a(f"s_addc_u32 {s(T+3)}, {s(base+1)}, 0")
        for i in range(4):
            a(f"s_add_u32 m0, {s(m0[0])}, {m0[1] + i*step}")
            a("s_nop 0")
            a(f"global_load_lds_dwordx4 {v(vregs+i)}, {s(T+2,2)}")

    def phi(self, R, n):
        a = self.a
        TMP = 80
        a(f"s_mov_b32 {s(T)}, {f32(LOG2E)}")
        a(f"s_mov_b32 {s(T+1)}, {f32(1e-6)}")
        a(f"v_mov_b32 v20, {f32(-1e-6*LOG2E)}")
        for i in range(n): a(f"v_fma_f32 {v(TMP+i)}, {v(R+i)}, {s(T)}, v20")
        for i in range(n): a(f"v_exp_f32 {v(TMP+i)}, {v(TMP+i)} clamp")
        for i in range(n): a(f"v_max_f32 {v(R+i)}, {s(T+1)}, {v(R+i)}")
        for i in range(0, n, 2): a(f"v_pk_add_f32 {v(R+i,2)}, {v(R+i,2)}, {v(TMP+i,2)}")
        for i in range(0, n, 2): a(f"v_cvt_pk_bf16_f32 {v(R+i//2)}, {v(R+i)}, {v(R+i+1)}")

    def roleB(self):
        a = self.a
        RB, HP, WB = T+20, T+21, T+19
        SXM, SWM = T+16, T+17
        VX, VW, VO = 24, 28, 240
        AK, AV, AQ = 32, 48, 64
        XF, WF = 96, 128
        a(f"""
        s_and_b32 {s(WB)}, {s(S_W)}, 3
        s_lshr_b32 {s(RB)}, {s(WB)}, 1
        s_and_b32 {s(HP)}, {s(WB)}, 1
        """)
        L1, L2, L3 = a.label("b"), a.label("b"), a.label("b")
        a(f"s_cmp_lg_u32 {s(S_W)}, 4")
        a(f"s_cbranch_scc1 {L1}")
        self.kv_producer()
        a(f"{L1}:")
        a("s_waitcnt vmcnt(7) lgkmcnt(0)")
        a(f"s_add_u32 {s(S_TAG)}, {s(S_TAG)}, 0x9e3779b9")
        a("s_barrier")
        self.stamp(2)
        a(f"s_cmp_lg_u32 {s(S_W)}, 4")
        a(f"s_cbranch_scc1 {L2}")
        self.kv_compute()
        self.stamp(12)
        a(f"s_and_b32 {s(T+1)}, {s(S_J)}, 6")
        a(f"{L2}:")
        self.head_stage(1)
        a(f"s_cmp_lg_u32 {s(S_W)}, 4")
        a(f"s_cbranch_scc1 {L3}")
        self.flag(WS_F1, 28, vm=7)
        self.stamp(13)
        a(f"{L3}:")
        a("s_waitcnt vmcnt(7)")
        a("s_barrier")
        self.xfrag_addr(12, RB, 20)
        self.wfrag_addr(16, HP, L_W, 10, 20)
        a(f"""
        v_add_u32 v17, 0x10000, v16
        s_lshl_b32 {s(T)}, {s(RB)}, 6
        v_xor_b32 {v(VX)}, {s(T)}, v2
        """)
        for i in range(1, 4):
            a(f"v_add_u32 {v(VX+i)}, {16384*i}, {v(VX)}")
            a(f"v_add_u32 {v(VW+i)}, {24576*i}, v8")
            a(f"v_add_u32 {v(VO+i)}, {8192*i}, v3")
        a(f"""
        v_mov_b32 {v(VW)}, v8
        v_mov_b32 {v(VO)}, v3
        s_lshl_b32 {s(SXM)}, {s(HP)}, 13
        s_lshl_b32 {s(T)}, {s(RB)}, 10
        s_add_u32 {s(SXM)}, {s(SXM)}, {s(T)}
        s_lshl_b32 {s(SWM)}, {s(WB)}, 12
        """)
        for i in range(16):
            a(f"v_mov_b32 {v(AK+i)}, {f32(1e-6)}")
            a(f"v_mov_b32 {v(AQ+i)}, {f32(1e-6)}")
        a("s_waitcnt vmcnt(0)")
        a("s_barrier")
        self.stamp(3)
        L4 = a.label("b")
        a(f"s_cmp_lg_u32 {s(S_W)}, 5")
        a(f"s_cbranch_scc1 {L4}")
        a(f"v_lshlrev_b32 v20, 9, v0")
        a(f"v_add_u32 v20, {WS_F1}, v20")
        self.poll(20, [0, 128, 256, 384], 80)
        a(f"""
        s_cmp_lg_u32 s2, 0
        s_cbranch_scc1 {L4}
        v_mov_b32 v20, {WS_G}
        v_mov_b32 v21, {s(S_TAG)}
        s_mov_b64 exec, 1
        global_store_dword v20, v21, {s(S_WS,2)} sc1
        s_mov_b64 exec, -1
        s_waitcnt vmcnt(0)
        {L4}:
        """)
        self.stamp(4)
        a("s_barrier")
        self.stamp(5)
        def xg(u):
            a(f"""
            s_add_u32 {s(T)}, {s(S_KC0)}, {s(HP)}
            s_add_u32 {s(T)}, {s(T)}, {2*u}
            s_and_b32 {s(T)}, {s(T)}, 7
            s_lshl_b32 {s(T)}, {s(T)}, 7
            s_add_u32 {s(T)}, {s(T)}, {s(T+14)}
            """)
            self.group(S_BX, T, (SXM, L_X + u*16384), VX, 2048)
        def wg(p, u, slot):
            a(f"""
            s_add_u32 {s(T)}, {s(S_KC0)}, {s(RB)}
            s_add_u32 {s(T)}, {s(T)}, {2*u}
            s_and_b32 {s(T)}, {s(T)}, 7
            s_mul_i32 {s(T)}, {s(T)}, {64*3072}
            s_add_u32 {s(T)}, {s(T)}, {s(T+15)}
            s_add_u32 {s(T)}, {s(T)}, {p*1024}
            """)
            self.group(S_WQKV, T, (SWM, L_W + slot*16384), VW, 1024)
        a(f"""
        s_lshl_b32 {s(T+14)}, {s(S_G)}, 16
        s_lshl_b32 {s(T)}, {s(RB)}, 13
        s_add_u32 {s(T+14)}, {s(T+14)}, {s(T)}
        s_mul_i32 {s(T+15)}, {s(HP)}, {32*3072}
        s_lshl_b32 {s(T)}, {s(S_J)}, 7
        s_add_u32 {s(T+15)}, {s(T+15)}, {s(T)}
        """)
        def waddr(slot, off):
            o = slot*16384 + off
            return ("v17", o - 65536) if o >= 65536 else ("v16", o)
        def quarter(u, slots, accs, xfirst):
            D = 2 if len(slots) == 2 else 4
            per = 1 + 2*len(slots)
            def rd(t):
                i = t % 4 if len(slots) == 2 else t
                a(f"ds_read_b128 {v(XF+4*i,4)}, {v(12+(t&3))} offset:{(2*u+t//4)*8192}")
                for k, sl in enumerate(slots):
                    for sx in range(2):
                        r, o = waddr(sl, t*2048 + sx*256)
                        a(f"ds_read_b64_tr_b16 {v(WF+8*i+4*k+2*sx,2)}, {r} offset:{o}")
            for t in range(D): rd(t)
            for t in range(8):
                if t + D < 8:
                    rd(t+D); n = per*D
                else:
                    n = per*(7-t)
                a(f"s_waitcnt lgkmcnt({n})")
                i = t % 4 if len(slots) == 2 else t
                for k, acc in enumerate(accs):
                    x, w = v(XF+4*i,4), v(WF+8*i+4*k,4)
                    A, B = (x, w) if xfirst else (w, x)
                    c = "0" if (acc == AV and u == 0 and t == 0) else v(acc,16)
                    a(f"v_mfma_f32_32x32x16_bf16 {v(acc,16)}, {A}, {B}, {c}")
        def sync(vm):
            if vm is not None: a(f"s_waitcnt vmcnt({vm})")
            a("s_setprio 3")
            self.softbar(5, 6, 20)
            a("s_setprio 0")
        a.c("---- B: k,v projections")
        xg(0); wg(1,0,0); wg(2,0,1); xg(1); wg(1,1,2); wg(2,1,3); xg(2); wg(1,2,4); xg(3)
        sync(24)
        self.stamp(6)
        quarter(0, [0,1], [AK,AV], True)
        sync(12)
        wg(2,2,0); wg(1,3,1)
        quarter(1, [2,3], [AK,AV], True)
        sync(4)
        wg(2,3,2); wg(0,0,3)
        quarter(2, [4,0], [AK,AV], True)
        sync(4)
        wg(0,1,4); wg(0,2,0)
        quarter(3, [1,2], [AK,AV], True)
        sync(None)
        wg(0,3,1)
        a.c("---- B: phi(k), partial state")
        a("s_setprio 3")
        self.phi(AK, 16)
        X, Y = XF, XF+8
        for i in range(16): a(f"v_mov_b32 {v(X+i)}, 0x3f803f80")
        a("s_mov_b32 exec_lo, 0xffff")
        a("s_mov_b32 exec_hi, 0xffff")
        for i in range(8): a(f"v_cvt_pk_bf16_f32 {v(X+i)}, {v(AV+2*i)}, {v(AV+2*i+1)}")
        a("s_not_b64 exec, exec")
        for i in range(8): a(f"v_cvt_pk_bf16_f32 {v(Y+i)}, {v(AV+2*i)}, {v(AV+2*i+1)}")
        a("s_mov_b64 exec, -1")
        D0, D1 = WF, WF+16
        a(f"""
        s_nop 1
        v_mfma_f32_32x32x16_bf16 {v(D0,16)}, {v(AK,4)}, {v(X,4)}, 0
        v_mfma_f32_32x32x16_bf16 {v(D1,16)}, {v(AK,4)}, {v(Y,4)}, 0
        v_mfma_f32_32x32x16_bf16 {v(D0,16)}, {v(AK+4,4)}, {v(X+4,4)}, {v(D0,16)}
        v_mfma_f32_32x32x16_bf16 {v(D1,16)}, {v(AK+4,4)}, {v(Y+4,4)}, {v(D1,16)}
        s_lshl_b32 {s(T)}, {s(WB)}, 11
        s_add_u32 {s(T)}, {s(T)}, {L_W+2*16384}
        v_add_u32 v18, {s(T)}, v4
        v_xor_b32 v19, 4096, v18
        s_lshl_b32 {s(T+4)}, {s(S_J)}, 2
        s_lshl_b32 {s(T)}, {s(HP)}, 1
        s_add_u32 {s(T+4)}, {s(T+4)}, {s(T)}
        s_add_u32 {s(T+4)}, {s(T+4)}, {s(RB)}
        s_lshl_b32 {s(T+4)}, {s(T+4)}, 5
        s_add_u32 {s(T+4)}, {s(T+4)}, {s(S_G)}
        s_lshl_b32 {s(T)}, {s(T+4)}, 11
        s_add_u32 {s(T)}, {s(T)}, {WS_PART}
        v_add_u32 v21, {s(T)}, v4
        s_cmp_eq_u32 {s(RB)}, 0
        """)
        LK, LJ = a.label("k1"), a.label("kj")
        a(f"""
        s_cbranch_scc0 {LK}
        ds_write_b128 v18, {v(D1+8,4)}
        ds_write_b128 v18, {v(D1+12,4)} offset:1024
        s_branch {LJ}
        {LK}:
        ds_write_b128 v18, {v(D0,4)}
        ds_write_b128 v18, {v(D0+4,4)} offset:1024
        s_nop 1
        """)
        for i in range(8): a(f"v_mov_b32 {v(D0+i)}, {v(D1+8+i)}")
        a(f"{LJ}:")
        a("s_waitcnt vmcnt(0) lgkmcnt(0)")
        self.softbar(5, 6, 20)
        a(f"""
        ds_read_b128 {v(D0+8,4)}, v19
        ds_read_b128 {v(D0+12,4)}, v19 offset:1024
        s_waitcnt lgkmcnt(0)
        """)
        for i in range(0, 8, 2): a(f"v_pk_add_f32 {v(AK+i,2)}, {v(D0+i,2)}, {v(D0+8+i,2)}")
        a(f"global_store_dwordx4 v21, {v(AK,4)}, {s(S_WS,2)} sc1")
        a(f"global_store_dwordx4 v21, {v(AK+4,4)}, {s(S_WS,2)} offset:1024 sc1")
        a("s_setprio 0")
        a.c("---- B: q projection")
        quarter(0, [3], [AQ], False)
        a("s_setprio 3")
        self.flag(WS_F2, 20, sidx=T+4)
        a("s_setprio 0")
        self.stamp(7)
        quarter(1, [4], [AQ], False)
        quarter(2, [0], [AQ], False)
        quarter(3, [1], [AQ], False)
        sync(None)
        a.c("---- B: stage both output-projection weight slices")
        a(f"""
        s_lshl_b32 {s(T+14)}, {s(WB)}, 17
        s_lshl_b32 {s(T)}, {s(S_J)}, 7
        s_add_u32 {s(T+14)}, {s(T+14)}, {s(T)}
        s_lshl_b32 {s(SWM)}, {s(WB)}, 14
        """)
        for q in range(4):
            self.group(S_BWO, T+14, (SWM, L_W + q*4096), VO, 1024)
            self.group(S_AWO, T+14, (SWM, L_X + q*4096), VO, 1024)
            if q < 3: a(f"s_add_u32 {s(T+14)}, {s(T+14)}, 32768")
        a("s_setprio 3")
        self.phi(AQ, 16)
        a.c("---- B: slice reduction of the state (one wave per CU)")
        LR = a.label("nr")
        a(f"""
        s_and_b32 {s(T)}, {s(S_G)}, 3
        s_cmp_lg_u32 {s(T)}, {s(WB)}
        s_cbranch_scc1 {LR}
        s_lshl_b32 {s(T+4)}, {s(S_J)}, 2
        s_lshr_b32 {s(T)}, {s(S_G)}, 3
        s_add_u32 {s(T+4)}, {s(T+4)}, {s(T)}
        s_lshl_b32 {s(T)}, {s(T+4)}, 12
        s_add_u32 {s(T)}, {s(T)}, {WS_F2}
        v_and_b32 v20, 31, v0
        v_lshl_add_u32 v20, v20, 7, {s(T)}
        """)
        self.poll(20, [0], 21)
        a(f"""
        s_and_b32 {s(T+5)}, {s(S_G)}, 7
        s_lshl_b32 {s(T+5)}, {s(T+5)}, 7
        s_lshl_b32 {s(T)}, {s(T+4)}, 16
        s_add_u32 {s(T)}, {s(T)}, {s(T+5)}
        s_add_u32 {s(T)}, {s(T)}, {WS_PART}
        s_add_u32 {s(T+2)}, {s(S_WS)}, {s(T)}
        s_addc_u32 {s(T+3)}, {s(S_WS+1)}, 0
        v_and_b32 v20, 15, v0
        v_lshlrev_b32 v20, 3, v20
        v_lshrrev_b32 v21, 4, v0
        v_lshl_add_u32 v20, v21, 10, v20
        """)
        for i in range(16):
            a(f"global_load_dwordx2 {v(XF+2*i,2)}, v20, {s(T+2,2)} sc1")
            if i < 15:
                a(f"s_add_u32 {s(T+2)}, {s(T+2)}, 4096")
                a(f"s_addc_u32 {s(T+3)}, {s(T+3)}, 0")
        a(f"""
        s_lshl_b32 {s(T)}, {s(T+4)}, 10
        s_add_u32 {s(T)}, {s(T)}, {s(T+5)}
        s_add_u32 {s(T)}, {s(T)}, {WS_RED}
        v_bfe_u32 v21, v0, 1, 3
        v_lshl_add_u32 v21, v21, 4, {s(T)}
        v_bfe_u32 v22, v0, 4, 1
        v_lshl_add_u32 v21, v22, 3, v21
        v_and_b32 v22, 1, v0
        v_lshl_add_u32 v21, v22, 2, v21
        s_waitcnt vmcnt(0)
        """)
        n = 16
        while n > 1:
            n //= 2
            for i in range(n): a(f"v_pk_add_f32 {v(XF+2*i,2)}, {v(XF+2*i,2)}, {v(XF+2*(i+n),2)}")
        a(f"""
        s_nop 1
        v_permlane32_swap_b32 {v(XF)}, {v(XF+2)}
        v_permlane32_swap_b32 {v(XF+1)}, {v(XF+3)}
        s_nop 1
        v_pk_add_f32 {v(XF,2)}, {v(XF,2)}, {v(XF+2,2)}
        s_nop 0
        v_cvt_pk_bf16_f32 {v(XF)}, {v(XF)}, {v(XF+1)}
        s_mov_b32 exec_hi, 0
        global_store_dword v21, {v(XF)}, {s(S_WS,2)} sc1
        s_mov_b32 exec_hi, -1
        """)
        self.flag(WS_F3, 22)
        a(f"{LR}:")
        self.stamp(8)
        a.c("---- B: normalised linear attention output")
        a(f"""
        s_lshl_b32 {s(T)}, {s(HP)}, 7
        s_add_u32 {s(T)}, {s(T)}, {s(S_J)}
        s_lshl_b32 {s(T)}, {s(T)}, 7
        s_add_u32 {s(T)}, {s(T)}, {WS_F3}
        v_and_b32 v20, 15, v0
        v_lshl_add_u32 v20, v20, 10, {s(T)}
        """)
        self.poll(20, [0], 21)
        a(f"""
        s_lshl_b32 {s(T+1)}, {s(S_J)}, 1
        s_add_u32 {s(T+1)}, {s(T+1)}, {s(HP)}
        s_lshl_b32 {s(T+1)}, {s(T+1)}, 11
        s_add_u32 {s(T)}, {s(T+1)}, {WS_RED}
        v_add_u32 v20, {s(T)}, v4
        global_load_dwordx4 {v(XF,4)}, v20, {s(S_WS,2)} sc1
        global_load_dwordx4 {v(XF+4,4)}, v20, {s(S_WS,2)} offset:1024 sc1
        s_lshl_b32 {s(T)}, {s(S_G)}, 1
        s_add_u32 {s(T)}, {s(T)}, {s(RB)}
        s_lshl_b32 {s(T)}, {s(T)}, 15
        s_add_u32 {s(T)}, {s(T)}, {WS_OB}
        s_add_u32 {s(T+1)}, {s(T+1)}, {s(T)}
        v_add_u32 v13, {s(T+1)}, v4
        s_lshl_b32 {s(T+1)}, {s(HP)}, 14
        s_add_u32 {s(T)}, {s(T)}, {s(T+1)}
        s_add_u32 {s(T+22)}, {s(S_WS)}, {s(T)}
        s_addc_u32 {s(T+23)}, {s(S_WS+1)}, 0
        s_waitcnt vmcnt(0)
        v_mfma_f32_32x32x16_bf16 {v(D0,16)}, {v(XF,4)}, {v(AQ,4)}, 0
        v_mfma_f32_32x32x16_bf16 {v(D1,16)}, {v(XF+4,4)}, {v(AQ+4,4)}, 0
        s_nop 7
        s_nop 3
        v_add_f32 {v(D0+8)}, {f32(1e-6)}, {v(D0+8)}
        v_add_f32 {v(D1)}, {f32(1e-6)}, {v(D1)}
        v_rcp_f32 {v(D0+8)}, {v(D0+8)}
        v_rcp_f32 {v(D1)}, {v(D1)}
        """)
        for b in range(2):
            N, R = (D0, D0+8) if b == 0 else (D1+8, D1)
            for i in range(8): a(f"v_mul_f32 {v(N+i)}, {v(N+i)}, {v(R)}")
            for i in range(4): a(f"v_cvt_pk_bf16_f32 {v(XF+4*b+i)}, {v(N+2*i)}, {v(N+2*i+1)}")
            a(f"global_store_dwordx4 v13, {v(XF+4*b,4)}, {s(S_WS,2)} offset:{1024*b} sc1")
        self.oflag(WS_F4)
        self.wfrag_addr(16, None, L_W, 8, 20)
        a(f"s_lshl_b32 {s(T)}, {s(HP)}, 15")
        a(f"v_add_u32 v16, {s(T)}, v16")
        self.outproj_wperm(16)
        self.softbar(5, 6, 20)
        self.outproj_wfrags(16)
        self.opoll(WS_F4)
        self.outproj_load(T+22)
        a(f"s_mov_b32 {s(T+19)}, 1024")
        a(f"s_mov_b32 {s(T+18)}, {L_W}")
        a("s_setprio 0")
        a("s_waitcnt lgkmcnt(0)")
        self.stamp(9)
        a("s_barrier")
        a("s_barrier")

    def build(self):
        a = self.a
        RQ, RO, RS, RKV, RIDX, RKA, RVA = self.RQ, self.RO, self.RS, self.RKV, self.RIDX, self.RKA, self.RVA
        self.entry()
        self.head_dma()
        self.head_stage(0)
        a(f"""
        s_lshl_b32 {s(T)}, {s(S_W)}, 2
        s_add_u32 {s(T)}, {s(T)}, {L_SYNC}
        v_mov_b32 v5, {s(T)}
        v_mov_b32 v11, 0
        ds_write_b32 v5, v11
        s_and_b32 {s(T)}, {s(S_W)}, 4
        s_lshl_b32 {s(T)}, {s(T)}, 2
        s_add_u32 {s(T)}, {s(T)}, {L_SYNC}
        v_and_b32 v6, 3, v0
        v_lshl_add_u32 v6, v6, 2, {s(T)}
        s_cmp_ge_u32 {s(S_W)}, 4
        s_cbranch_scc1 L_roleB
        """)
        a(f"""
        s_lshr_b32 {s(T+20)}, {s(S_W)}, 1
        s_and_b32 {s(T+21)}, {s(S_W)}, 1
        """)
        QB, FB = T+20, T+21
        self.xfrag_addr(12, QB, 20)
        self.wfrag_addr(16, FB, L_W, 10, 20)
        a("s_waitcnt vmcnt(7) lgkmcnt(0)")
        a(f"s_add_u32 {s(S_TAG)}, {s(S_TAG)}, 0x9e3779b9")
        a("s_barrier")
        self.stamp(2)
        self.head_stage(1)
        a("s_waitcnt vmcnt(7)")
        a("s_barrier")
        self.qproj(0)
        a("s_waitcnt vmcnt(0)")
        a("s_barrier")
        self.stamp(3)
        self.qproj(1)
        a(f"""
        v_and_b32 v20, 15, v0
        v_lshlrev_b32 v20, 4, v20
        v_lshrrev_b32 v21, 5, v0
        v_lshl_add_u32 v20, v21, 8, v20
        v_bfe_u32 v21, v0, 4, 1
        v_mul_u32_u24 v22, {2*KVREC}, v21
        v_add_u32 {v(RKA)}, v20, v22
        v_cmp_eq_u32 vcc, 0, v21
        v_mov_b32 v22, 512
        v_mov_b32 {v(RIDX)}, 0xdddd
        v_cndmask_b32 {v(RVA)}, v22, v20, vcc
        s_lshl_b32 {s(T)}, {s(S_W)}, 11
        s_add_u32 {s(T)}, {s(T)}, {L_MISC}
        v_add_u32 v13, {s(T)}, v4
        v_xor_b32 v14, 2048, v13
        s_lshl_b32 {s(T+16)}, {s(S_XCD)}, 3
        s_add_u32 {s(T+16)}, {s(T+16)}, {s(FB)}
        s_mul_i32 {s(T+16)}, {s(T+16)}, {KVTILE}
        s_add_u32 {s(T+16)}, {s(T+16)}, {WS_KV}
        """)
        for i in range(8):
            a(f"v_cvt_pk_bf16_f32 {v(RQ+i)}, {v(32+2*i)}, {v(33+2*i)}")
        a(f"ds_write_b128 v13, {v(RQ,4)}")
        a(f"ds_write_b128 v13, {v(RQ+4,4)} offset:1024")
        for i in range(64): a(f"v_mov_b32 {v(RO+i)}, 0")
        for i in range(8): a(f"v_mov_b32 {v(RS+48+8+i)}, 0")
        for i in range(4): a(f"v_mov_b32 {v(RKV+36+8+i)}, 0")
        a("s_waitcnt lgkmcnt(0)")
        self.stamp(4)
        a("s_barrier")
        self.stamp(5)
        a(f"ds_read_b128 {v(RQ+8,4)}, v14")
        a(f"ds_read_b128 {v(RQ+12,4)}, v14 offset:1024")
        self.attn()
        self.stamp(7)
        a.c("---- pair reduction of the two key halves")
        a(f"""
        s_lshl_b32 {s(T)}, {s(S_W)}, 12
        s_add_u32 {s(T)}, {s(T)}, {L_WKV}
        v_add_u32 v13, {s(T)}, v4
        v_xor_b32 v14, 4096, v13
        s_lshl_b32 {s(T)}, {s(S_W)}, 9
        s_add_u32 {s(T)}, {s(T)}, {L_MISC}
        v_lshl_add_u32 v15, v0, 2, {s(T)}
        v_xor_b32 v9, 512, v15
        s_barrier
        ds_write_b128 v13, {v(RO+32,4)}
        ds_write_b128 v13, {v(RO+36,4)} offset:1024
        ds_write_b32 v15, {v(RO+40)}
        s_nop 0
        ds_write_b128 v13, {v(RO+48,4)} offset:2048
        ds_write_b128 v13, {v(RO+52,4)} offset:3072
        ds_write_b32 v15, {v(RO+56)} offset:256
        s_waitcnt vmcnt(0) lgkmcnt(0)
        s_barrier
        ds_read_b128 {v(RO+32,4)}, v14
        ds_read_b128 {v(RO+36,4)}, v14 offset:1024
        ds_read_b32 {v(RO+40)}, v9
        ds_read_b128 {v(RO+48,4)}, v14 offset:2048
        ds_read_b128 {v(RO+52,4)}, v14 offset:3072
        ds_read_b32 {v(RO+56)}, v9 offset:256
        """)
        a(f"""
        s_lshl_b32 {s(T)}, {s(S_G)}, 1
        s_add_u32 {s(T)}, {s(T)}, {s(QB)}
        s_lshl_b32 {s(T)}, {s(T)}, 15
        s_add_u32 {s(T)}, {s(T)}, {WS_OA}
        s_lshl_b32 {s(T+1)}, {s(S_J)}, 1
        s_add_u32 {s(T+1)}, {s(T+1)}, {s(FB)}
        s_lshl_b32 {s(T+1)}, {s(T+1)}, 11
        s_add_u32 {s(T+1)}, {s(T+1)}, {s(T)}
        v_add_u32 v13, {s(T+1)}, v4
        s_lshl_b32 {s(T+1)}, {s(FB)}, 14
        s_add_u32 {s(T)}, {s(T)}, {s(T+1)}
        s_add_u32 {s(T+22)}, {s(S_WS)}, {s(T)}
        s_addc_u32 {s(T+23)}, {s(S_WS+1)}, 0
        s_mov_b32 {s(T+2)}, {f32(2.0**-20)}
        s_mov_b32 {s(T+3)}, {f32(2.0**100)}
        s_waitcnt lgkmcnt(0)
        """)
        for b in range(2):
            for i in range(0, 8, 2):
                a(f"v_pk_add_f32 {v(RO+16*b+i,2)}, {v(RO+16*b+i,2)}, {v(RO+32+16*b+i,2)}")
            a(f"v_add_f32 {v(RO+16*b+8)}, {v(RO+16*b+8)}, {v(RO+32+16*b+8)}")
        a.c("---- is the zero shift safe for every row? else redo with the true max")
        a(f"""
        v_pk_add_f32 {v(RO+32,2)}, {v(RO,2)}, {v(RO+2,2)}
        v_pk_add_f32 {v(RO+34,2)}, {v(RO+4,2)}, {v(RO+6,2)}
        v_pk_add_f32 {v(RO+36,2)}, {v(RO+16,2)}, {v(RO+18,2)}
        v_pk_add_f32 {v(RO+38,2)}, {v(RO+20,2)}, {v(RO+22,2)}
        v_pk_add_f32 {v(RO+32,2)}, {v(RO+32,2)}, {v(RO+34,2)}
        v_pk_add_f32 {v(RO+36,2)}, {v(RO+36,2)}, {v(RO+38,2)}
        v_cmp_le_f32 {s(T+4,2)}, {s(T+2)}, {v(RO+8)}
        v_pk_add_f32 {v(RO+32,2)}, {v(RO+32,2)}, {v(RO+36,2)}
        v_cmp_le_f32 {s(T+6,2)}, {s(T+2)}, {v(RO+24)}
        v_add_f32 {v(RO+32)}, {v(RO+32)}, {v(RO+33)}
        v_add_f32 {v(RO+33)}, {v(RO+8)}, {v(RO+24)}
        v_fma_f32 {v(RO+32)}, {v(RO+32)}, 0, {v(RO+33)}
        v_cmp_ge_f32 vcc, {s(T+3)}, {v(RO+32)}
        s_and_b64 {s(T+4,2)}, {s(T+4,2)}, {s(T+6,2)}
        s_and_b64 vcc, vcc, {s(T+4,2)}
        s_cmp_eq_u64 vcc, -1
        s_cbranch_scc0 L_fallback
        L_norm:
        v_rcp_f32 {v(RO+9)}, {v(RO+8)}
        v_rcp_f32 {v(RO+25)}, {v(RO+24)}
        """)
        for b in range(2):
            for i in range(8):
                a(f"v_mul_f32 {v(RO+16*b+i)}, {v(RO+16*b+i)}, {v(RO+16*b+9)}")
            for i in range(4):
                a(f"v_cvt_pk_bf16_f32 {v(RO+32+4*b+i)}, {v(RO+16*b+2*i)}, {v(RO+16*b+2*i+1)}")
            a(f"global_store_dwordx4 v13, {v(RO+32+4*b,4)}, {s(S_WS,2)} offset:{1024*b} sc1")
        self.stamp(8)
        self.wfrag_addr(16, None, L_X, 8, 20)
        a(f"s_lshl_b32 {s(T)}, {s(FB)}, 15")
        a(f"v_add_u32 v16, {s(T)}, v16")
        self.outproj_wperm(16)
        self.outproj_wfrags(16)
        self.oflag_and_poll(WS_F5)
        self.stamp(9)
        self.outproj_load(T+22)
        a(f"s_mov_b32 {s(T+19)}, 0")
        a(f"s_mov_b32 {s(T+18)}, {L_W+0x4000}")
        a("s_branch L_outproj")
        a("L_roleB:")
        self.roleB()
        a("L_outproj:")
        self.outproj_mma()
        self.stamp(10)
        self.outproj_store()
        self.finish()
        self.attn_fallback("L_norm")
        return self.wrap()

    def outproj_wperm(self, vW):
        a = self.a
        a(f"""
        v_and_b32 v20, 3, v0
        v_bfe_u32 v21, v0, 4, 1
        v_lshl_add_u32 v20, v21, 2, v20
        v_and_b32 v21, 1, v20
        v_lshrrev_b32 v22, 1, v20
        v_lshl_add_u32 v21, v21, 2, v22
        v_sub_u32 v21, v21, v20
        v_lshl_add_u32 {v(vW)}, v21, 3, {v(vW)}
        """)

    def outproj_store(self):
        a = self.a
        QB, KH = T+20, T+21
        LK, LJ = a.label("k1"), a.label("kj")
        a(f"""
        s_and_b32 {s(T)}, {s(S_W)}, 3
        s_lshl_b32 {s(T)}, {s(T)}, 12
        s_add_u32 {s(T)}, {s(T)}, {s(T+18)}
        """)
        a(f"""
        v_add_u32 v13, {s(T)}, v4
        v_xor_b32 v14, 4096, v13
        s_lshl_b32 {s(T)}, {s(S_G)}, 6
        s_lshl_b32 {s(T+1)}, {s(QB)}, 5
        s_add_u32 {s(T)}, {s(T)}, {s(T+1)}
        s_lshl_b32 {s(T)}, {s(T)}, 11
        s_lshl_b32 {s(T+1)}, {s(S_J)}, 7
        s_add_u32 {s(T)}, {s(T)}, {s(T+1)}
        s_lshl_b32 {s(T+1)}, {s(KH)}, 6
        s_add_u32 {s(T)}, {s(T)}, {s(T+1)}
        s_add_u32 {s(T)}, {s(T)}, {s(T+19)}
        v_and_b32 v20, 31, v0
        v_lshlrev_b32 v20, 11, v20
        v_lshrrev_b32 v21, 5, v0
        v_lshl_add_u32 v20, v21, 5, v20
        v_add_u32 v15, {s(T)}, v20
        s_cmp_eq_u32 {s(KH)}, 0
        s_cbranch_scc0 {LK}
        """)
        for i in range(4): a(f"ds_write_b128 v13, {v(112+4*i,4)} offset:{1024*i}")
        a(f"s_branch {LJ}")
        a(f"{LK}:")
        for i in range(4): a(f"ds_write_b128 v13, {v(96+4*i,4)} offset:{1024*i}")
        a("s_nop 1")
        for i in range(16): a(f"v_mov_b32 {v(96+i)}, {v(112+i)}")
        a(f"{LJ}:")
        a("s_waitcnt lgkmcnt(0)")
        self.softbar(5, 6, 20)
        for i in range(4): a(f"ds_read_b128 {v(112+4*i,4)}, v14 offset:{1024*i}")
        a("s_waitcnt lgkmcnt(0)")
        for i in range(0, 16, 2): a(f"v_pk_add_f32 {v(96+i,2)}, {v(96+i,2)}, {v(112+i,2)}")
        for i in range(8): a(f"v_cvt_pk_bf16_f32 {v(112+i)}, {v(96+2*i)}, {v(97+2*i)}")
        a(f"global_store_dwordx4 v15, v[112:115], {s(S_OUT,2)}")
        a(f"global_store_dwordx4 v15, v[116:119], {s(S_OUT,2)} offset:16")

    def finish(self):
        a = self.a
        if self.stamps:
            a("s_waitcnt vmcnt(0)")
            self.stamp(11)
            a(f"""
            s_waitcnt lgkmcnt(0)
            s_lshl_b32 {s(T)}, s2, 3
            s_add_u32 {s(T)}, {s(T)}, {s(S_W)}
            s_lshl_b32 {s(T)}, {s(T)}, 6
            s_add_u32 {s(T)}, {s(T)}, {WS_STAMP}
            v_mov_b32 v20, {s(T)}
            """)
            for i in range(16): a(f"v_mov_b32 {v(32+i)}, {s(S_ST+2*i)}")
            for i in range(4): a(f"global_store_dwordx4 v20, {v(32+4*i,4)}, {s(S_WS,2)} offset:{16*i}")
        a("L_end:")
        a("s_endpgm")

    def wrap(self):
        hdr = open("cdna_kernels/%s.s.ref" % NAME).read().split("; Override launch")[0]
        return hdr + f"""; Override launch geometry by editing the next line (default: block=256,
; grid=ceil(out_elems/256), lds=0). Harness parses it; keep it on one line.
; @launch grid=(256,1,1) block=(512,1,1) lds={LDS_BYTES}
.amdgcn_target "amdgcn-amd-amdhsa--gfx950"
.text
.globl {NAME}_kernel
.p2align 8
.type {NAME}_kernel,@function
{NAME}_kernel:
""" + self.a.text() + f""".section .rodata,"a"
.p2align 6
.amdhsa_kernel {NAME}_kernel
  .amdhsa_next_free_vgpr 256
  .amdhsa_next_free_sgpr 102
  .amdhsa_accum_offset 256
  .amdhsa_group_segment_fixed_size 0
  .amdhsa_kernarg_size 88
  .amdhsa_user_sgpr_count 2
  .amdhsa_user_sgpr_kernarg_segment_ptr 1
  .amdhsa_system_sgpr_workgroup_id_x 1
  .amdhsa_dx10_clamp 0
.end_amdhsa_kernel
"""

if __name__ == "__main__":
    out = sys.argv[1]
    stamps = "--stamps" in sys.argv
    open(out, "w").write(Gen(stamps=stamps).build())
```

```python
import sys, struct
from asmlib import *

NAME = "concat_heads__grouped_kv_mqa__linear_attn_block__prompt"
def f32(x): return "0x%08x" % struct.unpack("<I", struct.pack("<f", x))[0]
LOG2E = 1.4426950408889634

WS_G   = 0x0
WS_F1  = 0x8000
WS_F3  = 0x10000
WS_RED = 0x18000
WS_KV  = 0x20000
WS_F2  = 0x60000
WS_F4  = 0x80000
WS_OA  = 0x100000
WS_OB  = 0x300000
WS_PART= 0x500000
WS_STAMP = 0x800000
KVREC = 640
KVTILE = 4*KVREC
L_X   = 0
L_W   = 0x10000
L_WKV = 0x20000
L_MISC= 0x24000
L_SYNC= L_MISC + 0x3f00
LDS_BYTES = 0x28000
SPIN_MAX = 200000

S_AX, S_WQ, S_WK, S_WV, S_AWO, S_BX, S_WQKV, S_BWO = 8, 10, 12, 14, 16, 18, 20, 22
S_OUT, S_WS = 24, 26
S_W, S_G, S_J, S_C, S_TAG, S_XCD, S_KC0, S_EPOCH = 28, 29, 30, 31, 32, 33, 34, 35
T = 36
S_HI, S_LO, S_W3 = 50, 51, 52
S_IMG = 54
S_OUTB = 56
S_EX = 58
S_PEND = 59
U = 4
S_ST = 64
V_L16, V_SLOT, V_ALL, V_TAG, V_ZERO = 4, 5, 6, 7, 1

class Gen:
    def __init__(self, stamps=False, opts=None):
        self.a = Asm()
        self.stamps = stamps
        self.o = opts or {}
        self.inB = False
    def stamp(self, i, grp=None):
        if grp != self.o.get("stg") and (grp or (self.inB and self.o.get("stg") and i not in (0, 13))): return
        if self.stamps:
            self.a(f"s_memrealtime {s(S_ST+2*i,2)}")
            cyc = self.o.get("cyc", (6, 7))
            if i in cyc:
                self.a(f"s_memtime {s(S_ST+2*(14+list(cyc).index(i)),2)}")
    def add64(self, dst, base, off):
        self.a(f"s_add_u32 {s(dst)}, {s(base)}, {off}")
        self.a(f"s_addc_u32 {s(dst+1)}, {s(base+1)}, 0")
    def dma(self, vreg, pair, m0s, m0i, off=0):
        return [f"s_add_u32 m0, {s(m0s)}, {m0i}", "s_nop 0",
                f"global_load_lds_dwordx4 {v(vreg)}, {s(pair,2)}" + (f" offset:{off}" if off else "")]
    def emit(self, L):
        for x in L: self.a(x)
    def poll(self, vaddr, pair, offs, vt, sleep=2):
        a = self.a
        Lp, Ld = a.label("poll"), a.label("polld")
        a(f"s_mov_b32 {s(T+10)}, 0")
        a(f"{Lp}:")
        for i, o in enumerate(offs):
            a(f"global_load_dword {v(vt+i)}, {v(vaddr)}, {s(pair,2)} offset:{o} sc1")
        a("s_waitcnt vmcnt(0)")
        for i in range(len(offs)):
            if i == 0:
                a(f"v_cmp_ne_u32 vcc, {s(S_TAG)}, {v(vt)}")
            else:
                a(f"v_cmp_ne_u32 {s(T+12,2)}, {s(S_TAG)}, {v(vt+i)}")
                a(f"s_or_b64 vcc, vcc, {s(T+12,2)}")
        a(f"s_add_u32 {s(T+10)}, {s(T+10)}, 1")
        a(f"s_cmp_eq_u64 vcc, 0")
        a(f"s_cbranch_scc1 {Ld}")
        if sleep: a(f"s_sleep {sleep}")
        a(f"s_cmp_lt_u32 {s(T+10)}, {SPIN_MAX}")
        a(f"s_cbranch_scc1 {Lp}")
        a(f"{Ld}:")
    def flag(self, base, sidx, vm=0):
        a = self.a
        a(f"s_lshl_b32 {s(T+10)}, {s(sidx)}, 7")
        a(f"s_add_u32 {s(T+10)}, {s(T+10)}, {base}")
        self.add64(T+12, S_WS, s(T+10))
        a(f"s_waitcnt vmcnt({vm})")
        a("s_mov_b64 exec, 1")
        a(f"global_store_dword {v(V_ZERO)}, {v(V_TAG)}, {s(T+12,2)} sc1")
        a("s_mov_b64 exec, -1")
    def arrive(self, vt):
        a = self.a
        a(f"s_add_u32 {s(S_EPOCH)}, {s(S_EPOCH)}, 1")
        a(f"v_mov_b32 {v(vt)}, {s(S_EPOCH)}")
        a(f"ds_write_b32 {v(V_SLOT)}, {v(vt)}")
    def await_(self, vt, vaddr=V_ALL, val=None, off=0, sleep=1):
        a = self.a
        Lp, Ld = a.label("sb"), a.label("sbd")
        a(f"s_mov_b32 {s(T+10)}, 0")
        a(f"{Lp}:")
        a(f"ds_read_b32 {v(vt)}, {v(vaddr)} offset:{off}")
        a("s_waitcnt lgkmcnt(0)")
        a(f"v_cmp_gt_u32 vcc, {val or s(S_EPOCH)}, {v(vt)}")
        a(f"s_add_u32 {s(T+10)}, {s(T+10)}, 1")
        a(f"s_cmp_eq_u64 vcc, 0")
        a(f"s_cbranch_scc1 {Ld}")
        if sleep: a(f"s_sleep {sleep}")
        a(f"s_cmp_lt_u32 {s(T+10)}, {SPIN_MAX*8}")
        a(f"s_cbranch_scc1 {Lp}")
        a(f"{Ld}:")
    def softbar(self, vt, sleep=1):
        self.arrive(vt); self.await_(vt, sleep=sleep)

    def entry(self):
        a = self.a
        a(f"""
        s_cmp_ge_u32 s2, 256
        s_cbranch_scc1 L_end
        """)
        self.stamp(0)
        a(f"""
        s_load_dwordx16 s[8:23], s[0:1], 0
        s_load_dwordx2 {s(S_OUT,2)}, s[0:1], 64
        s_load_dwordx2 {s(S_WS,2)}, s[0:1], 80
        v_lshrrev_b32 v1, 6, v0
        v_and_b32 v0, 63, v0
        v_readfirstlane_b32 {s(S_W)}, v1
        s_and_b32 {s(S_XCD)}, s2, 7
        s_lshr_b32 {s(T)}, s2, 6
        s_lshl_b32 {s(S_G)}, {s(S_XCD)}, 2
        s_add_u32 {s(S_G)}, {s(S_G)}, {s(T)}
        s_lshr_b32 {s(S_J)}, s2, 3
        s_and_b32 {s(S_J)}, {s(S_J)}, 7
        s_lshl_b32 {s(S_C)}, {s(S_G)}, 3
        s_add_u32 {s(S_C)}, {s(S_C)}, {s(S_J)}
        s_lshl_b32 {s(T)}, {s(T)}, 1
        s_add_u32 {s(S_KC0)}, {s(T)}, {s(S_J)}
        s_and_b32 {s(S_KC0)}, {s(S_KC0)}, {7 if self.o.get('rot', 1) else 0}
        s_mov_b32 {s(S_EPOCH)}, 0
        s_and_b32 {s(S_W3)}, {s(S_W)}, 3
        s_lshr_b32 {s(S_HI)}, {s(S_W3)}, 1
        s_and_b32 {s(S_LO)}, {s(S_W)}, 1
        v_mov_b32 {v(V_ZERO)}, 0
        v_lshlrev_b32 {v(V_L16)}, 4, v0
        v_lshlrev_b32 v9, 2, v0
        v_add_u32 v9, {L_SYNC}, v9
        ds_write_b32 v9, {v(V_ZERO)}
        """)
        a(f"""
        v_lshrrev_b32 v8, 3, v0
        v_lshlrev_b32 v2, 10, v8
        v_and_b32 v9, 7, v0
        v_lshrrev_b32 v10, 4, v0
        v_xor_b32 v9, v9, v10
        v_lshl_add_u32 v2, v9, 4, v2
        s_lshl_b32 {s(T)}, {s(S_W)}, 2
        s_add_u32 {s(T)}, {s(T)}, {L_SYNC}
        v_mov_b32 {v(V_SLOT)}, {s(T)}
        s_and_b32 {s(T)}, {s(T)}, -16
        v_and_b32 v9, 3, v0
        v_lshl_add_u32 {v(V_ALL)}, v9, 2, {s(T)}
        v_bfe_u32 v8, v0, 2, 3
        v_lshlrev_b32 v9, 4, v9
        v_lshrrev_b32 v10, 5, v0
        v_lshl_add_u32 v9, v10, 6, v9
        v_lshl_add_u32 v3, v8, 10, v9
        s_cmp_ge_u32 {s(S_W)}, 4
        s_cbranch_scc1 L_roleB
        """)

    def xfrag_addr(self, dst, sblk, vt):
        self.a(f"""
        v_and_b32 {v(vt)}, 31, v0
        v_lshlrev_b32 {v(vt+1)}, 7, {v(vt)}
        s_lshl_b32 {s(T)}, {s(sblk)}, 12
        v_add_u32 {v(vt+1)}, {s(T)}, {v(vt+1)}
        v_bfe_u32 {v(vt)}, v0, 1, 3
        v_lshrrev_b32 {v(vt+2)}, 5, v0
        v_xor_b32 {v(vt)}, {v(vt)}, {v(vt+2)}
        v_lshl_add_u32 {v(dst)}, {v(vt)}, 4, {v(vt+1)}
        v_xor_b32 {v(dst+1)}, 32, {v(dst)}
        v_xor_b32 {v(dst+2)}, 64, {v(dst)}
        v_xor_b32 {v(dst+3)}, 0x60, {v(dst)}
        """)
    def wfrag_addr(self, dst, vt):
        self.a(f"""
        v_bfe_u32 {v(vt)}, v0, 2, 2
        v_lshlrev_b32 {v(vt)}, 6, {v(vt)}
        v_bfe_u32 {v(vt+1)}, v0, 4, 1
        v_lshl_add_u32 {v(vt)}, {v(vt+1)}, 5, {v(vt)}
        v_and_b32 {v(vt+1)}, 3, v0
        v_lshl_add_u32 {v(vt)}, {v(vt+1)}, 3, {v(vt)}
        v_lshrrev_b32 {v(vt+1)}, 5, v0
        v_lshl_add_u32 {v(vt)}, {v(vt+1)}, 10, {v(vt)}
        s_lshl_b32 {s(T)}, {s(S_LO)}, 9
        s_add_u32 {s(T)}, {s(T)}, {L_W}
        v_add_u32 {v(dst)}, {s(T)}, {v(vt)}
        """)
    V_WO, V_EXW, V_EXR, V_OUT, V_IMG = 8, 9, 3, 2, 13
    def tail_addr(self, lbase, loshift, ownimg, colbytes, vt):
        a = self.a
        a(f"""
        v_bfe_u32 {v(vt)}, v0, 2, 2
        v_lshlrev_b32 {v(vt)}, 6, {v(vt)}
        v_lshrrev_b32 {v(vt+1)}, 5, v0
        v_lshl_add_u32 {v(vt)}, {v(vt+1)}, 8, {v(vt)}
        v_and_b32 {v(vt+2)}, 1, v0
        v_lshl_add_u32 {v(vt)}, {v(vt+2)}, 5, {v(vt)}
        v_bfe_u32 {v(vt+2)}, v0, 1, 1
        v_lshl_add_u32 {v(vt)}, {v(vt+2)}, 3, {v(vt)}
        v_bfe_u32 {v(vt+2)}, v0, 4, 1
        v_lshl_add_u32 {v(vt)}, {v(vt+2)}, 4, {v(vt)}
        s_lshl_b32 {s(T)}, {s(S_LO)}, {loshift}
        s_add_u32 {s(T)}, {s(T)}, {lbase}
        v_add_u32 {v(self.V_WO)}, {s(T)}, {v(vt)}
        s_lshl_b32 {s(T)}, {s(S_W3)}, 12
        s_add_u32 {s(T)}, {s(T)}, {L_WKV}
        v_add_u32 {v(self.V_EXW)}, {s(T)}, {v(V_L16)}
        v_xor_b32 {v(self.V_EXR)}, 4096, {v(self.V_EXW)}
        v_and_b32 {v(vt)}, 31, v0
        v_lshlrev_b32 {v(vt)}, 11, {v(vt)}
        v_lshl_add_u32 {v(self.V_OUT)}, {v(vt+1)}, 5, {v(vt)}
        s_lshl_b32 {s(T)}, {s(S_G)}, 1
        s_add_u32 {s(T)}, {s(T)}, {s(S_HI)}
        s_lshl_b32 {s(T+1)}, {s(T)}, 16
        s_lshl_b32 {s(T+2)}, {s(S_J)}, 1
        s_add_u32 {s(T+2)}, {s(T+2)}, {s(S_LO)}
        s_lshl_b32 {s(T+3)}, {s(T+2)}, 6
        s_add_u32 {s(T+1)}, {s(T+1)}, {s(T+3)}
        s_add_u32 {s(T+1)}, {s(T+1)}, {colbytes}
        """)
        self.add64(S_OUTB, S_OUT, s(T+1))
        a(f"""
        s_lshl_b32 {s(T)}, {s(T)}, 15
        s_lshl_b32 {s(T+2)}, {s(T+2)}, 11
        s_add_u32 {s(T+2)}, {s(T+2)}, {s(T)}
        s_add_u32 {s(T+2)}, {s(T+2)}, {ownimg}
        v_add_u32 {v(self.V_IMG)}, {s(T+2)}, {v(V_L16)}
        s_lshl_b32 {s(T+1)}, {s(S_LO)}, 14
        s_add_u32 {s(T)}, {s(T)}, {s(T+1)}
        s_add_u32 {s(T)}, {s(T)}, {WS_OA}
        """)
        self.add64(S_IMG, S_WS, s(T))

    RQ, RO, RS, RKV = 16, 64, 128, 192
    RIDX, RKA, RVA = 10, 11, 12
    def head_A(self):
        a = self.a
        RQ, RO, RS, RKV, RIDX, RKA, RVA = self.RQ, self.RO, self.RS, self.RKV, self.RIDX, self.RKA, self.RVA
        XA, WA = 248, 252
        a.c("=========================== role A ===========================")
        a.c("---- what the K/V producer needs goes first")
        a(f"""
        v_xor_b32 v10, 64, v2
        v_add_u32 v10, 8192, v10
        s_and_b32 {s(T+1)}, {s(S_J)}, 6
        s_lshl_b32 {s(T+6)}, {s(S_G)}, 16
        s_lshl_b32 {s(T+2)}, {s(T+1)}, 13
        s_add_u32 {s(T+6)}, {s(T+6)}, {s(T+2)}
        s_lshl_b32 {s(T+7)}, {s(S_W)}, 14
        s_lshl_b32 {s(T+2)}, {s(T+1)}, 10
        s_add_u32 {s(T+7)}, {s(T+7)}, {s(T+2)}
        s_lshl_b32 {s(T+8)}, {s(S_W)}, 12
        s_lshl_b32 {s(T+9)}, {s(S_W)}, 1
        s_add_u32 {s(T+9)}, {s(T+9)}, {s(S_KC0)}
        s_mov_b32 {s(S_EPOCH)}, 7
        s_waitcnt lgkmcnt(0)
        """)
        self.stamp(1)
        a(f"""
        s_bitcmp1_b32 {s(S_J)}, 0
        s_cselect_b32 {s(S_WK)}, {s(S_WV)}, {s(S_WK)}
        s_cselect_b32 {s(S_WK+1)}, {s(S_WV+1)}, {s(S_WK+1)}
        """)
        for i in range(2):
            a(f"""
            s_add_u32 {s(T)}, {s(T+9)}, {i}
            s_and_b32 {s(T)}, {s(T)}, 7
            s_lshl_b32 {s(T+1)}, {s(T)}, 7
            s_add_u32 {s(T+1)}, {s(T+1)}, {s(T+6)}
            """)
            self.add64(T+2, S_AX, s(T+1))
            a(f"s_lshl_b32 {s(T)}, {s(T)}, 11")
            self.add64(T+4, S_WK, s(T))
            self.emit(self.dma(2, T+2, T+7, L_X + i*8192))
            self.emit(self.dma(10, T+2, T+7, L_X + i*8192 + 1024))
            self.emit(self.dma(V_L16, T+4, T+8, L_WKV + i*2048))
            a(f"global_load_lds_dwordx4 {v(V_L16)}, {s(T+4,2)} offset:1024")
        a("s_barrier")
        XF, WF = RS, RS+32
        def quarter(q):
            D = 4
            def rd(t):
                a(f"ds_read_b128 {v(XF+4*t,4)}, {v(XA+(t&3))} offset:{(2*q+t//4)*8192}")
                a(f"ds_read_b64_tr_b16 {v(WF+4*t,2)}, {v(WA)} offset:{(8*q+t)*2048}")
                a(f"ds_read_b64_tr_b16 {v(WF+4*t+2,2)}, {v(WA)} offset:{(8*q+t)*2048+256}")
            for t in range(D): rd(t)
            for t in range(8):
                if t + D < 8:
                    rd(t+D); n = 3*D
                else:
                    n = 3*(7 - t)
                a(f"s_waitcnt lgkmcnt({n})")
                a(f"v_mfma_f32_32x32x16_bf16 v[32:47], {v(WF+4*t,4)}, {v(XF+4*t,4)}, {'0' if (q, t) == (0, 0) else 'v[32:47]'}")
        self.xfrag_addr(XA, S_HI, 20)
        self.wfrag_addr(WA, 20)
        for i in range(0, 64, 2): a(f"v_mov_b64 {v(RO+i,2)}, 0")
        for i in range(0, 4, 2): a(f"v_mov_b64 {v(RKV+36+8+i,2)}, 0")
        a(f"""
        v_and_b32 v20, 15, v0
        v_lshlrev_b32 v20, 4, v20
        v_lshrrev_b32 v21, 5, v0
        v_lshl_add_u32 v20, v21, 8, v20
        v_bfe_u32 v21, v0, 4, 1
        v_mul_u32_u24 v22, {2*KVREC}, v21
        v_add_u32 {v(RKA)}, v20, v22
        v_cmp_eq_u32 vcc, 0, v21
        v_and_b32 v22, 11, v0
        v_min_u32 v22, 1, v22
        v_lshlrev_b32 v22, 4, v22
        v_add_u32 v22, 512, v22
        v_mov_b32 {v(RIDX)}, 0xdddd
        v_cndmask_b32 {v(RVA)}, v22, v20, vcc
        s_lshl_b32 {s(T)}, {s(S_W)}, 9
        s_add_u32 {s(T)}, {s(T)}, {L_MISC}
        v_lshl_add_u32 v48, v0, 2, {s(T)}
        v_xor_b32 v49, 512, v48
        v_and_b32 v51, 4, v0
        v_lshl_add_u32 v52, v51, 2, {v(V_ALL)}
        v_lshl_add_u32 v51, v51, 4, {v(V_ALL)}
        s_lshl_b32 {s(T)}, {s(S_HI)}, 15
        v_add_u32 v14, {s(T)}, {v(V_L16)}
        """)
        self.tail_addr(L_W, 9, WS_OA, 1024, 20)
        a(f"""
        s_add_u32 {s(U+2)}, {s(S_XCD)}, 1
        s_and_b32 {s(U+2)}, {s(U+2)}, 7
        s_lshl_b32 {s(U+2)}, {s(U+2)}, 3
        s_add_u32 {s(U+2)}, {s(U+2)}, {s(S_LO)}
        s_mul_i32 {s(U+2)}, {s(U+2)}, {KVTILE}
        s_add_u32 {s(U+2)}, {s(U+2)}, {WS_KV}
        s_waitcnt vmcnt(0)
        """)
        self.arrive(20)
        for q in range(4):
            self.await_(20, vaddr=52, val=str(q+1), sleep=0)
            if q == 0: self.stamp(2)
            if q == 3: self.stamp(3)
            quarter(q)
        for i in range(0, 8, 2): a(f"v_mov_b64 {v(RS+48+8+i,2)}, 0")
        a("s_nop 7")
        for i in range(8):
            a(f"v_cvt_pk_bf16_f32 {v(RQ+i)}, {v(32+2*i)}, {v(33+2*i)}")
        a(f"ds_write_b128 {v(self.V_EXW)}, {v(RQ,4)}")
        a(f"ds_write_b128 {v(self.V_EXW)}, {v(RQ+4,4)} offset:1024")
        a("s_waitcnt lgkmcnt(0)")
        self.stamp(4)
        a("s_barrier")
        self.stamp(5)

    def attn(self):
        a = self.a
        RQ, RO, RS, RKV, RIDX, RKA, RVA = self.RQ, self.RO, self.RS, self.RKV, self.RIDX, self.RKA, self.RVA
        SB, SOFF, SCNT, SPASS = T, U+2, U+3, U
        def K(u): return v(RKV+12*u, 4)
        def V(u, h): return v(RKV+12*u+4+4*h, 4)
        def addr_ops():
            return [f"s_add_u32 {s(SB)}, {s(S_WS)}, {s(SOFF)}",
                    f"s_addc_u32 {s(SB+1)}, {s(S_WS+1)}, 0",
                    f"s_add_u32 {s(SOFF)}, {s(SOFF)}, {2*KVTILE}",
                    f"s_cmp_ge_u32 {s(SOFF)}, {WS_KV+64*KVTILE}",
                    f"s_cselect_b32 {s(T+2)}, {64*KVTILE}, 0",
                    f"s_sub_u32 {s(SOFF)}, {s(SOFF)}, {s(T+2)}"]
        def ld(u, k):
            if k == 0: return f"global_load_dwordx4 {K(u)}, {v(RKA)}, {s(SB,2)} sc1"
            return f"global_load_dwordx4 {V(u,k-1)}, {v(RVA)}, {s(SB,2)} offset:{KVREC+(k-1)*2*KVREC} sc1"
        a.c("---- attention")
        a(f"s_setprio {self.o.get('aprio', 1)}")
        for u in range(3):
            for x in addr_ops(): a(x)
            for k in range(3): a(ld(u, k))
        a(f"ds_read_b128 {v(RQ+8,4)}, {v(self.V_EXR)}")
        a(f"ds_read_b128 {v(RQ+12,4)}, {v(self.V_EXR)} offset:1024")
        self.arrive(50)
        a(f"s_mov_b32 {s(SCNT)}, 1")
        a(f"s_mov_b32 {s(SPASS)}, 0")
        a(f"s_waitcnt vmcnt(6) lgkmcnt(0)")
        self.stamp(6)
        a(f"v_mfma_f32_32x32x16_bf16 {v(RS,16)}, {K(0)}, {v(RQ,4)}, 0")
        a("s_nop 7")
        a("s_nop 2")
        L, LD = a.label("attn"), a.label("attnd")
        a(".p2align 6")
        a(f"{L}:")
        p2, p1 = self.o.get("pos", (3, 10))
        for u in range(4):
            for b in range(4):
                fill = [[], [], []]
                if b == 0:
                    ops = addr_ops()
                    fill[0] = ops[0:1]; fill[1] = ops[1:3]; fill[2] = ops[3:5]
                if b == 1:
                    fill[0] = addr_ops()[5:6]; fill[1] = [ld((u+3) % 4, 0)]; fill[2] = [ld((u+3) % 4, 1)]
                if b == 2:
                    fill[1] = [ld((u+3) % 4, 2)]; fill[2] = ["s_waitcnt vmcnt(6)"]
                if b == 3 and u == 3:
                    fill[1] = [f"s_sub_u32 {s(SCNT)}, {s(SCNT)}, 1", f"s_cmp_lg_u32 {s(SCNT)}, 0"]
                nu, nb = (u, b+1) if b < 3 else ((u+1) % 4, 0)
                pu, pb = (u, b-1) if b > 0 else ((u-1) % 4, 3)
                S = RS + 16*b
                a(f"v_mfma_f32_32x32x16_bf16 {v(RS+16*nb,16)}, {K(nu)}, {v(RQ+4*nb,4)}, 0")
                for x in fill[0]: a(x)
                for i in range(0, p2): a(f"v_exp_f32 {v(S+i)}, {v(S+i)}")
                a(f"v_smfmac_f32_32x32x32_bf16 {v(RO+16*pb,16)}, {V(pu,1)}, {v(RS+16*pb+8,8)}, {v(RIDX)}")
                for x in fill[1]: a(x)
                for i in range(p2, p1): a(f"v_exp_f32 {v(S+i)}, {v(S+i)}")
                a(f"v_smfmac_f32_32x32x32_bf16 {v(RO+16*b,16)}, {V(u,0)}, {v(S,8)}, {v(RIDX)}")
                for x in fill[2]: a(x)
                for i in range(p1, 16): a(f"v_exp_f32 {v(S+i)}, {v(S+i)}")
        a(f"s_cbranch_scc1 {L}")
        a(f"s_cmp_lg_u32 {s(SPASS)}, 0")
        a(f"s_cbranch_scc1 {LD}")
        a.c("the remaining key tiles must have been published before they are fetched")
        self.await_(50, vaddr=51)
        a(f"s_mov_b32 {s(SPASS)}, 1")
        a(f"s_mov_b32 {s(SCNT)}, 7")
        a(f"s_branch {L}")
        a(f"{LD}:")
        a(f"v_smfmac_f32_32x32x32_bf16 {v(RO+48,16)}, {V(3,1)}, {v(RS+48+8,8)}, {v(RIDX)}")

    def tail_A(self):
        a = self.a
        RQ, RO = self.RQ, self.RO
        self.stamp(7)
        a.c("---- pair reduction of the two key halves")
        a(f"""
        ds_write_b128 {v(self.V_EXW)}, {v(RO+32,4)}
        ds_write_b128 {v(self.V_EXW)}, {v(RO+36,4)} offset:1024
        ds_write_b32 v48, {v(RO+40)}
        s_mov_b32 {s(T+2)}, {f32(2.0**-20)}
        s_mov_b32 {s(T+3)}, {f32(2.0**100)}
        s_nop 6
        ds_write_b128 {v(self.V_EXW)}, {v(RO+48,4)} offset:2048
        ds_write_b128 {v(self.V_EXW)}, {v(RO+52,4)} offset:3072
        ds_write_b32 v48, {v(RO+56)} offset:256
        s_waitcnt vmcnt(0) lgkmcnt(0)
        s_barrier
        {f"s_memrealtime {s(S_ST+2*11,2)}" if self.stamps else ""}
        ds_read_b32 {v(RO+40)}, v49
        ds_read_b32 {v(RO+56)}, v49 offset:256
        ds_read_b128 {v(RO+32,4)}, {v(self.V_EXR)}
        ds_read_b128 {v(RO+36,4)}, {v(self.V_EXR)} offset:1024
        ds_read_b128 {v(RO+48,4)}, {v(self.V_EXR)} offset:2048
        ds_read_b128 {v(RO+52,4)}, {v(self.V_EXR)} offset:3072
        s_waitcnt lgkmcnt(4)
        v_add_f32 {v(RO+8)}, {v(RO+8)}, {v(RO+40)}
        v_add_f32 {v(RO+24)}, {v(RO+24)}, {v(RO+56)}
        v_cmp_le_f32 {s(T+4,2)}, {s(T+2)}, {v(RO+8)}
        v_cmp_le_f32 {s(T+6,2)}, {s(T+2)}, {v(RO+24)}
        v_add_f32 {v(RO+41)}, {v(RO+8)}, {v(RO+24)}
        s_waitcnt lgkmcnt(0)
        """)
        for b in range(2):
            for i in range(0, 8, 2):
                a(f"v_pk_add_f32 {v(RO+16*b+i,2)}, {v(RO+16*b+i,2)}, {v(RO+32+16*b+i,2)}")
        a.c("---- the zero shift is kept only if every row sum is in range and every sum is finite")
        a(f"""
        v_pk_add_f32 {v(RO+32,2)}, {v(RO,2)}, {v(RO+2,2)}
        v_pk_add_f32 {v(RO+34,2)}, {v(RO+4,2)}, {v(RO+6,2)}
        v_pk_add_f32 {v(RO+36,2)}, {v(RO+16,2)}, {v(RO+18,2)}
        v_pk_add_f32 {v(RO+38,2)}, {v(RO+20,2)}, {v(RO+22,2)}
        v_pk_add_f32 {v(RO+32,2)}, {v(RO+32,2)}, {v(RO+34,2)}
        v_pk_add_f32 {v(RO+36,2)}, {v(RO+36,2)}, {v(RO+38,2)}
        s_and_b64 {s(T+4,2)}, {s(T+4,2)}, {s(T+6,2)}
        v_pk_add_f32 {v(RO+32,2)}, {v(RO+32,2)}, {v(RO+36,2)}
        v_fma_f32 {v(RO+41)}, {v(RO+32)}, 0, {v(RO+41)}
        v_fma_f32 {v(RO+41)}, {v(RO+33)}, 0, {v(RO+41)}
        v_cmp_ge_f32 vcc, {s(T+3)}, {v(RO+41)}
        s_and_b64 vcc, vcc, {s(T+4,2)}
        s_cmp_eq_u64 vcc, -1
        s_cbranch_scc0 L_fallback
        L_norm:
        """)
        self.normalize([(RO, RO+8), (RO+16, RO+24)], 24)
        self.stamp(8)
        a.c("---- the linear-attention half of the output projection fills the hand-off wait")
        a("s_setprio 0")
        XF, WF, ACC = 128, 160, 96
        D = 4
        def rd(u):
            i = u % 8
            a(f"ds_read_b128 {v(XF+4*i,4)}, v14 offset:{u*1024}")
            for sx in range(2):
                a(f"ds_read_b64_tr_b16 {v(WF+4*i+2*sx,2)}, {v(self.V_WO)} offset:{(2*u+sx)*1024}")
        for u in range(D): rd(u)
        for u in range(32):
            if u + D < 32:
                rd(u+D); n = 3*D
            else:
                n = 3*(31-u)
            if u == self.o.get("y2", 12):
                a("s_waitcnt vmcnt(0)")
                a("s_barrier")
                self.stamp(9)
            a(f"s_waitcnt lgkmcnt({n})")
            i = u % 8
            a(f"v_mfma_f32_32x32x16_bf16 {v(ACC,16)}, {v(WF+4*i,4)}, {v(XF+4*i,4)}, {'0' if u == 0 else v(ACC,16)}")
        self.stamp(10)
        a("s_nop 7")
        a("s_nop 3")
        for h in range(2):
            for i in range(4*h, 4*h+4): a(f"v_cvt_pk_bf16_f32 {v(32+i)}, {v(ACC+2*i)}, {v(ACC+2*i+1)}")
            a(f"global_store_dwordx4 {v(self.V_OUT)}, {v(32+4*h,4)}, {s(S_OUTB,2)} offset:{16*h} {self.o.get('ost','')}")
        a("s_branch L_fin")

    def normalize(self, blocks, P, guard=True):
        a = self.a
        for N, R in blocks: a(f"v_rcp_f32 {v(R)}, {v(R)}")
        for b, (N, R) in enumerate(blocks):
            for i in range(0, 8, 2):
                a(f"v_pk_mul_f32 {v(N+i,2)}, {v(N+i,2)}, {v(R,2)} op_sel_hi:[1,0]")
            for i in range(4):
                a(f"v_cvt_pk_bf16_f32 {v(P+4*b+i)}, {v(N+2*i)}, {v(N+2*i+1)}")
            if guard: a(f"v_min_u32 {v(P+4*b)}, -2, {v(P+4*b)}")
            a(f"global_store_dwordx4 {v(self.V_IMG)}, {v(P+4*b,4)}, {s(S_WS,2)} offset:{1024*b} sc1")

    def attn_fallback(self, Lret):
        a = self.a
        RQ, RO, RS, RKV, RIDX, RKA, RVA = self.RQ, self.RO, self.RS, self.RKV, self.RIDX, self.RKA, self.RVA
        SB, SCNT = T, U+3
        NM = RS + 32
        a("L_fallback:")
        a(f"v_mov_b32 {v(RKV+20)}, 0xff800000")
        a(f"v_mov_b32 {v(RKV+21)}, 0xff800000")
        for ps in (0, 1):
            L = a.label("fb")
            self.add64(SB, S_WS, WS_KV)
            a(f"""
            s_mov_b32 {s(SCNT)}, 64
            {L}:
            global_load_dwordx4 {v(RKV,4)}, {v(RKA)}, {s(SB,2)} sc1
            """)
            if ps:
                a(f"global_load_dwordx4 {v(RKV+4,4)}, {v(RVA)}, {s(SB,2)} offset:{KVREC} sc1")
                a(f"global_load_dwordx4 {v(RKV+8,4)}, {v(RVA)}, {s(SB,2)} offset:{3*KVREC} sc1")
            self.add64(SB, SB, KVTILE)
            a("s_waitcnt vmcnt(0)")
            for b in range(2):
                c = v(NM+16*b, 16) if ps else "0"
                a(f"v_mfma_f32_32x32x16_bf16 {v(RS+16*b,16)}, {v(RKV,4)}, {v(RQ+4*b,4)}, {c}")
            a("s_nop 7")
            a("s_nop 4")
            for b in range(2):
                S = RS + 16*b
                if not ps:
                    for i in range(0, 16, 2):
                        a(f"v_max3_f32 {v(RKV+20+b)}, {v(S+i)}, {v(S+i+1)}, {v(RKV+20+b)}")
                else:
                    for i in range(16): a(f"v_exp_f32 {v(S+i)}, {v(S+i)}")
                    a("s_nop 1")
                    a(f"v_smfmac_f32_32x32x32_bf16 {v(RO+16*b,16)}, {v(RKV+4,4)}, {v(S,8)}, {v(RIDX)}")
                    a(f"v_smfmac_f32_32x32x32_bf16 {v(RO+16*b,16)}, {v(RKV+8,4)}, {v(S+8,8)}, {v(RIDX)}")
            a(f"""
            s_sub_u32 {s(SCNT)}, {s(SCNT)}, 1
            s_cmp_lg_u32 {s(SCNT)}, 0
            s_cbranch_scc1 {L}
            """)
            if not ps:
                for b in range(2):
                    m = RKV+20+b
                    a(f"""
                    v_mov_b32 {v(RKV+22)}, {v(m)}
                    s_nop 1
                    v_permlane32_swap_b32 {v(m)}, {v(RKV+22)}
                    s_nop 1
                    v_max_f32 {v(m)}, {v(m)}, {v(RKV+22)}
                    """)
                    for i in range(16): a(f"v_sub_f32 {v(NM+16*b+i)}, 0, {v(m)}")
                for i in range(32): a(f"v_mov_b32 {v(RO+i)}, 0")
        a("s_nop 7")
        a("s_nop 4")
        a(f"s_branch {Lret}")

    def outproj_wfrags(self):
        for u in range(16):
            for nb in range(2):
                for sx in range(2):
                    self.a(f"ds_read_b64_tr_b16 {v(128+8*u+4*nb+2*sx,2)}, {v(self.V_WO)} offset:{(2*u+sx)*1024+nb*512}")
    def gather_loads(self, p):
        self.add64(T, S_IMG, 4096*p)
        for k in range(4):
            self.a(f"global_load_dwordx4 {v(32+16*p+4*k,4)}, {v(V_L16)}, {s(T,2)} offset:{k*1024} sc1")
    def outproj(self):
        a = self.a
        a.c("=========================== output projection ===========================")
        a("L_gather:")
        for p in range(4):
            Ls = a.label("gs")
            a(f"s_bitcmp1_b32 {s(S_PEND)}, {p}")
            a(f"s_cbranch_scc0 {Ls}")
            self.gather_loads(p)
            a(f"{Ls}:")
        a(f"""
        s_cmp_eq_u32 {s(S_PEND)}, 15
        s_cbranch_scc1 L_consume
        s_waitcnt vmcnt(0)
        L_consume:
        s_waitcnt lgkmcnt(0)
        """)
        if self.o.get("tailst"):
            self.stamp(2)
        for p in range(4):
            Ls = a.label("cs")
            I = 32 + 16*p
            a(f"""
            s_bitcmp1_b32 {s(S_PEND)}, {p}
            s_cbranch_scc0 {Ls}
            s_waitcnt vmcnt({4*(3-p)})
            {f"s_memrealtime {s(S_ST+2*(3+p),2)}" if self.o.get("tailst") and p < 3 else ""}
            v_max3_u32 v16, {v(I)}, {v(I+4)}, {v(I+8)}
            v_max_u32 v16, v16, {v(I+12)}
            v_cmp_eq_u32 vcc, -1, v16
            s_cmp_lg_u64 vcc, 0
            s_cbranch_scc1 {Ls}
            s_bitset0_b32 {s(S_PEND)}, {p}
            """)
            for k in range(4):
                u = 4*p + k
                for nb in range(2):
                    acc = v(96+16*nb, 16)
                    a(f"v_mfma_f32_32x32x16_bf16 {acc}, {v(128+8*u+4*nb,4)}, {v(32+4*u,4)}, {acc}")
            a(f"{Ls}:")
        Lx = a.label("gx")
        a(f"""
        s_cmp_eq_u32 {s(S_PEND)}, 0
        s_cbranch_scc1 {Lx}
        s_add_u32 {s(T+9)}, {s(T+9)}, 1
        s_cmp_lt_u32 {s(T+9)}, {SPIN_MAX}
        s_cbranch_scc1 L_gather
        {Lx}:
        """)
        self.stamp(10)
        LK, LJ = a.label("k1"), a.label("kj")
        a(f"""
        s_nop 7
        s_cmp_eq_u32 {s(S_LO)}, 0
        s_cbranch_scc0 {LK}
        """)
        for i in range(4): a(f"ds_write_b128 {v(self.V_EXW)}, {v(112+4*i,4)} offset:{1024*i}")
        self.arrive(16)
        a(f"s_branch {LJ}")
        a(f"{LK}:")
        for i in range(4): a(f"ds_write_b128 {v(self.V_EXW)}, {v(96+4*i,4)} offset:{1024*i}")
        self.arrive(16)
        for i in range(0, 16, 2): a(f"v_mov_b64 {v(96+i,2)}, {v(112+i,2)}")
        a(f"{LJ}:")
        self.await_(16, sleep=0)
        for i in range(4): a(f"ds_read_b128 {v(112+4*i,4)}, {v(self.V_EXR)} offset:{1024*i}")
        for h in range(2):
            a(f"s_waitcnt lgkmcnt({2-2*h})")
            for i in range(8*h, 8*h+8, 2): a(f"v_pk_add_f32 {v(96+i,2)}, {v(96+i,2)}, {v(112+i,2)}")
            for i in range(4*h, 4*h+4): a(f"v_cvt_pk_bf16_f32 {v(32+i)}, {v(96+2*i)}, {v(97+2*i)}")
            a(f"global_store_dwordx4 {v(self.V_OUT)}, {v(32+4*h,4)}, {s(S_OUTB,2)} offset:{16*h} {self.o.get('ost','')}")

    def kv_setup(self):
        self.a(f"""
        v_and_b32 v96, 15, v0
        v_and_b32 v97, 3, v0
        v_bfe_u32 v98, v0, 2, 1
        v_lshl_add_u32 v97, v98, 3, v97
        v_bfe_u32 v98, v0, 3, 1
        v_lshl_add_u32 v97, v98, 2, v97
        s_bitcmp1_b32 {s(S_J)}, 0
        s_cselect_b64 vcc, -1, 0
        s_cselect_b32 {s(T+8)}, 1.0, {f32(0.25*LOG2E)}
        v_cndmask_b32 v96, v96, v97, vcc
        v_lshrrev_b32 v98, 4, v0
        v_lshrrev_b32 v97, 1, v96
        v_xor_b32 v97, v97, v98
        v_lshlrev_b32 v96, 7, v96
        v_lshl_add_u32 v96, v97, 4, v96
        s_and_b32 {s(T)}, {s(S_J)}, 6
        s_lshl_b32 {s(T)}, {s(T)}, 10
        v_add_u32 v96, {s(T)}, v96
        v_xor_b32 v97, 64, v96
        v_bfe_u32 v99, v0, 2, 2
        v_lshl_add_u32 v99, v98, 3, v99
        v_lshlrev_b32 v99, 5, v99
        v_and_b32 v100, 3, v0
        v_lshl_add_u32 v99, v100, 3, v99
        v_add_u32 v99, {L_WKV}, v99
        v_and_b32 v110, 1, v0
        v_add_u32 v110, -1, v110
        v_and_b32 v110, 0x3f803f80, v110
        v_mov_b32 v111, v110
        """)
    def kv_compute(self):
        a = self.a
        XF, WF = 128, 160
        def rd(t):
            a(f"ds_read_b128 {v(XF+4*(t%8),4)}, {v(96+(t&1))} offset:{(t//2)*8192}")
            a(f"ds_read_b64_tr_b16 {v(WF+4*(t%8),2)}, v99 offset:{t*1024}")
            a(f"ds_read_b64_tr_b16 {v(WF+4*(t%8)+2,2)}, v99 offset:{t*1024+128}")
        LV, LD = a.label("kvv"), a.label("kvd")
        D = 4
        for t in range(D): rd(t)
        a(f"s_bitcmp1_b32 {s(S_J)}, 0")
        a(f"s_cbranch_scc1 {LV}")
        for isv in (0, 1):
            if isv: a(f"{LV}:")
            for t in range(16):
                if t + D < 16:
                    rd(t + D); n = 3*D
                else:
                    n = 3*(15 - t)
                a(f"s_waitcnt lgkmcnt({n})")
                x, w = v(XF+4*(t%8),4), v(WF+4*(t%8),4)
                A, B = (x, w) if isv else (w, x)
                a(f"v_mfma_f32_16x16x32_bf16 v[104:107], {A}, {B}, {'0' if t == 0 else 'v[104:107]'}")
            if not isv: a(f"s_branch {LD}")
        a(f"""
        {LD}:
        s_nop 7
        v_pk_mul_f32 v[104:105], v[104:105], {s(T+8,2)} op_sel_hi:[1,0]
        v_pk_mul_f32 v[106:107], v[106:107], {s(T+8,2)} op_sel_hi:[1,0]
        v_cvt_pk_bf16_f32 v108, v104, v105
        v_cvt_pk_bf16_f32 v109, v106, v107
        s_nop 1
        v_permlane32_swap_b32 v108, v110
        v_permlane32_swap_b32 v109, v111
        s_mov_b32 exec_hi, 3
        global_store_dwordx4 v101, v[108:111], {s(S_WS,2)} sc1
        s_mov_b32 exec_hi, -1
        """)

    def phi(self, R):
        a = self.a
        TMP = 80
        a(f"s_mov_b32 {s(T)}, {f32(LOG2E)}")
        a(f"s_mov_b32 {s(T+2)}, {f32(1e-6)}")
        for i in range(0, 16, 2): a(f"v_pk_fma_f32 {v(TMP+i,2)}, {v(R+i,2)}, {s(T,2)}, v[18:19] op_sel_hi:[1,0,0]")
        for i in range(16): a(f"v_exp_f32 {v(TMP+i)}, {v(TMP+i)} clamp")
        for i in range(16): a(f"v_max_f32 {v(R+i)}, {s(T+2)}, {v(R+i)}")
        for i in range(0, 16, 2): a(f"v_pk_add_f32 {v(R+i,2)}, {v(R+i,2)}, {v(TMP+i,2)}")
        for i in range(0, 16, 2): a(f"v_cvt_pk_bf16_f32 {v(R+i//2)}, {v(R+i)}, {v(R+i+1)}")

    def roleB(self):
        a = self.a
        RB, HP, WB = S_HI, S_LO, S_W3
        SXM, SWM, SXO, SWO = U, U+1, U+2, U+3
        VX, VW, VO = 26, 28, 240
        XA, WA = 244, 248
        AK, AV, AQ = 32, 48, 64
        F = (96, 160)
        XF = 96
        X, Y = 224, 232
        V_L128, V_SX, V_RD, V_RST, V_F4, V_L1K = 10, 11, 12, 14, 15, 17
        VL, SL, SLO, SF1 = 80, 96, 60, 62
        HI, LOW = "s_setprio 3", f"s_setprio {self.o.get('bmm', 0)}"
        a.c("=========================== role B ===========================")
        a("L_roleB:")
        self.inB = True
        Lj = a.label("b")
        for u in range(8): a(f"v_add_u32 {v(VL+u)}, {8192*u}, v3")
        a(f"""
        s_lshl_b32 {s(SLO)}, {s(S_J)}, 7
        s_lshl_b32 {s(SL)}, {s(S_LO)}, 13
        s_cmp_lg_u32 {s(S_W)}, 5
        s_cbranch_scc1 {Lj}
        """)
        for u in range(6):
            a(f"""
            s_add_u32 {s(T)}, {s(S_J)}, {2+2*(u//2)}
            s_and_b32 {s(T)}, {s(T)}, 6
            s_add_u32 {s(T)}, {s(T)}, {u%2}
            s_lshl_b32 {s(SL+u)}, {s(T)}, 10
            s_lshl_b32 {s(T)}, {s(T)}, 13
            v_xor_b32 {v(VL+u)}, {64*(u%2)}, v2
            v_add_u32 {v(VL+u)}, {s(T)}, {v(VL+u)}
            """)
        a(f"s_lshl_b32 {s(SLO)}, {s(S_G)}, 16")
        a(f"""
        {Lj}:
        s_waitcnt lgkmcnt(0)
        s_load_dword {s(S_TAG)}, {s(S_WS,2)}, {WS_G}
        """)
        self.stamp(1)
        a("s_barrier")
        def xissue(q):
            for sl in (2*q, 2*q+1):
                a(f"""
                s_add_u32 {s(T)}, {s(S_KC0)}, {sl}
                s_and_b32 {s(T)}, {s(T)}, 7
                s_lshl_b32 {s(T)}, {s(T)}, 7
                s_add_u32 {s(T)}, {s(T)}, {s(SLO)}
                """)
                self.add64(T+2, S_AX, s(T))
                for u in range(6): self.emit(self.dma(VL+u, T+2, SL+u, L_X + sl*8192))
        def wissue(q):
            a(f"""
            s_add_u32 {s(T)}, {s(S_KC0)}, {s(S_LO)}
            s_add_u32 {s(T)}, {s(T)}, {2*q}
            s_and_b32 {s(T)}, {s(T)}, 7
            s_lshl_b32 {s(T)}, {s(T)}, 16
            s_add_u32 {s(T)}, {s(T)}, {s(SLO)}
            """)
            self.add64(T+2, S_WQ, s(T))
            for u in range(8): self.emit(self.dma(VL+u, T+2, SL, L_W + q*16384 + u*1024))
        L4, L5, Lc = a.label("b"), a.label("b"), a.label("b")
        a(f"""
        s_cmp_eq_u32 {s(S_W)}, 4
        s_cbranch_scc1 {L4}
        s_cmp_eq_u32 {s(S_W)}, 5
        s_cbranch_scc1 {L5}
        """)
        wissue(0); wissue(1)
        a(f"s_branch {Lc}")
        a(f"{L5}:")
        xissue(0); xissue(1)
        a(f"s_branch {Lc}")
        a(f"{L4}:")
        a(f"s_mov_b32 {s(S_EPOCH)}, 2")
        self.arrive(20)
        if self.o.get("cpf", 1):
            a.c("pull the kernel's code into this die's L2 ahead of the instruction fetch")
            a(f"""
            s_getpc_b64 {s(T,2)}
            L_pc:
            s_sub_u32 {s(T)}, {s(T)}, L_pc-{NAME}_kernel
            s_subb_u32 {s(T+1)}, {s(T+1)}, 0
            s_lshr_b32 {s(T+2)}, s2, 3
            v_lshl_add_u32 v19, v0, 5, {s(T+2)}
            v_lshlrev_b32 v19, 7, v19
            v_cmp_gt_u32 vcc, L_last-{NAME}_kernel, v19
            s_and_saveexec_b64 {s(T+2,2)}, vcc
            global_load_dword v19, v19, {s(T,2)}
            s_mov_b64 exec, -1
            """)
        self.kv_setup()
        a(f"{Lc}:")
        a.c("---- B-side setup, all in the shadow of the head")
        a(f"""
        v_mov_b32 {v(VX)}, v2
        v_xor_b32 {v(VX+1)}, 64, v2
        v_add_u32 {v(VX+1)}, 8192, {v(VX+1)}
        v_mul_u32_u24 {v(VW)}, 3072, v8
        v_add_u32 {v(VW)}, {v(VW)}, v9
        v_mov_b32 {v(VO)}, v3
        """)
        for i in range(1, 4):
            a(f"v_add_u32 {v(VW+i)}, {24576*i}, {v(VW)}")
            a(f"v_add_u32 {v(VO+i)}, {8192*i}, v3")
        self.xfrag_addr(XA, RB, 20)
        self.wfrag_addr(WA, 20)
        self.tail_addr(L_X, 15, WS_OB, 0, 20)
        a(f"""
        s_lshl_b32 {s(SXM)}, {s(WB)}, 11
        s_lshl_b32 {s(SWM)}, {s(WB)}, 12
        s_lshl_b32 {s(SXO)}, {s(S_G)}, 16
        s_lshl_b32 {s(T)}, {s(WB)}, 14
        s_add_u32 {s(SXO)}, {s(SXO)}, {s(T)}
        s_mul_i32 {s(SWO)}, {s(HP)}, {32*3072}
        s_lshl_b32 {s(T)}, {s(S_J)}, 7
        s_add_u32 {s(SWO)}, {s(SWO)}, {s(T)}
        s_mov_b32 {s(T)}, {f32(1e-6)}
        s_mov_b32 {s(T+1)}, {f32(1e-6)}
        s_mov_b32 {s(T+2)}, 0x3f803f80
        s_mov_b32 {s(T+3)}, 0x3f803f80
        """)
        for i in range(0, 16, 2):
            a(f"v_mov_b64 {v(AK+i,2)}, {s(T,2)}")
            a(f"v_mov_b64 {v(AQ+i,2)}, {s(T,2)}")
            a(f"v_mov_b64 {v(X+i,2)}, {s(T+2,2)}")
        a(f"""
        v_mov_b32 v18, {f32(-1e-6*LOG2E)}
        v_mov_b64 v[252:253], -1
        v_mov_b64 v[254:255], -1
        v_mov_b32 v25, 63
        v_lshlrev_b32 {v(V_L128)}, 7, v0
        s_lshl_b32 {s(T)}, {s(WB)}, 11
        s_add_u32 {s(T)}, {s(T)}, {L_MISC+0x1000}
        v_add_u32 {v(V_SX)}, {s(T)}, {v(V_L16)}
        v_and_b32 v20, 15, v0
        v_lshlrev_b32 {v(V_L1K)}, 10, v20
        v_lshlrev_b32 v20, 3, v20
        v_lshrrev_b32 v21, 4, v0
        v_lshl_add_u32 {v(V_RD)}, v21, 10, v20
        v_bfe_u32 v21, v0, 1, 3
        v_lshlrev_b32 v21, 4, v21
        v_bfe_u32 v22, v0, 4, 1
        v_lshl_add_u32 v21, v22, 3, v21
        v_and_b32 v22, 1, v0
        v_lshl_add_u32 {v(V_RST)}, v22, 2, v21
        v_bfe_u32 v21, v0, 1, 2
        v_lshl_add_u32 v22, v21, 2, v22
        v_lshlrev_b32 {v(V_F4)}, 7, v22
        s_waitcnt lgkmcnt(0)
        s_add_u32 {s(S_TAG)}, {s(S_TAG)}, 0x9e3779b9
        v_mov_b32 {v(V_TAG)}, {s(S_TAG)}
        """)
        self.add64(SF1, S_WS, WS_F1)
        M4, M5, Mc = a.label("b"), a.label("b"), a.label("b")
        a(f"""
        s_cmp_eq_u32 {s(S_W)}, 4
        s_cbranch_scc1 {M4}
        s_cmp_eq_u32 {s(S_W)}, 5
        s_cbranch_scc1 {M5}
        """)
        for (iss, n, lab) in ((wissue, 8, None), (xissue, 12, M5)):
            if lab: a(f"{lab}:")
            for q in range(4):
                a(f"s_waitcnt vmcnt({n if q < 3 else 0})")
                self.arrive(20)
                if q < 2: iss(q+2)
            a(f"s_branch {Mc}")
        a(f"{M4}:")
        a(f"""
        v_add_u32 v21, -16, {v(V_ALL)}
        s_mul_i32 {s(T)}, {s(S_C)}, {KVREC}
        s_add_u32 {s(T)}, {s(T)}, {WS_KV}
        v_add_u32 v101, {s(T)}, {v(V_L16)}
        s_add_u32 {s(T)}, {s(S_XCD)}, 1
        s_lshl_b32 {s(T)}, {s(T)}, 5
        v_add_u32 v22, {s(T)}, v0
        v_and_b32 v22, 255, v22
        v_lshlrev_b32 v22, 7, v22
        """)
        self.await_(20, vaddr=21, val="8", sleep=0)
        self.stamp(2)
        self.kv_compute()
        self.arrive(20)
        self.flag(WS_F1, S_C)
        self.stamp(11)
        self.poll(22, SF1, [0], 23, sleep=0)
        a(f"{Mc}:")
        a(f"s_mov_b32 {s(S_EPOCH)}, 8")
        a(f"s_lshl_b32 {s(T)}, {s(WB)}, 13")
        self.add64(SF1, SF1, s(T))
        self.stamp(4)
        a("s_barrier")
        self.stamp(5)
        a(LOW)
        if self.o.get("noB"):
            a(f"ds_write_b32 {v(V_SLOT)}, v25 offset:48")
            a("s_branch L_Bend")
        vm = []
        def vmwait(label):
            n = len(vm) - 1 - max(i for i, x in enumerate(vm) if x == label)
            a(f"s_waitcnt vmcnt({n})")
            return n
        def loads(st):
            G = []
            slot = L_W + (st % 4)*16384
            if st < 8:
                pre = [f"s_add_u32 {s(T)}, {s(S_KC0)}, {st}",
                       f"s_and_b32 {s(T)}, {s(T)}, 7",
                       f"s_lshl_b32 {s(T+1)}, {s(T)}, 7",
                       f"s_add_u32 {s(T+1)}, {s(T+1)}, {s(SXO)}",
                       f"s_add_u32 {s(T+2)}, {s(S_BX)}, {s(T+1)}",
                       f"s_addc_u32 {s(T+3)}, {s(S_BX+1)}, 0"]
                G.append(pre + self.dma(VX, T+2, SXM, L_X + st*8192))
                G.append(self.dma(VX+1, T+2, SXM, L_X + st*8192 + 1024))
                pre = [f"s_mul_i32 {s(T)}, {s(T)}, {64*3072}",
                       f"s_add_u32 {s(T)}, {s(T)}, {s(SWO)}",
                       f"s_lshl_b32 {s(T+1)}, {s(RB)}, 10",
                       f"s_add_u32 {s(T)}, {s(T)}, {s(T+1)}",
                       f"s_add_u32 {s(T)}, {s(T)}, 1024",
                       f"s_add_u32 {s(T+2)}, {s(S_WQKV)}, {s(T)}",
                       f"s_addc_u32 {s(T+3)}, {s(S_WQKV+1)}, 0"]
                for i in range(4): G.append((pre if i == 0 else []) + self.dma(VW+i, T+2, SWM, slot + i*1024))
            elif st < 12:
                pre = [f"s_add_u32 {s(T)}, {s(S_KC0)}, {s(RB)}",
                       f"s_add_u32 {s(T)}, {s(T)}, {2*(st-8)}",
                       f"s_and_b32 {s(T)}, {s(T)}, 7",
                       f"s_mul_i32 {s(T)}, {s(T)}, {64*3072}",
                       f"s_add_u32 {s(T)}, {s(T)}, {s(SWO)}",
                       f"s_add_u32 {s(T+2)}, {s(S_WQKV)}, {s(T)}",
                       f"s_addc_u32 {s(T+3)}, {s(S_WQKV+1)}, 0"]
                for i in range(4): G.append((pre if i == 0 else []) + self.dma(VW+i, T+2, SWM, slot + i*1024))
            else:
                for (base, L) in ((S_AWO, L_X), (S_BWO, L_W)):
                    pre = [f"s_lshl_b32 {s(T)}, {s(WB)}, 15",
                           f"s_lshl_b32 {s(T+1)}, {s(S_J)}, 7",
                           f"s_add_u32 {s(T)}, {s(T)}, {s(T+1)}",
                           f"s_add_u32 {s(T)}, {s(T)}, {(st-12)*131072}"] if L == L_X else []
                    pre += [f"s_add_u32 {s(T+2)}, {s(base)}, {s(T)}",
                            f"s_addc_u32 {s(T+3)}, {s(base+1)}, 0"]
                    for i in range(4): G.append((pre if i == 0 else []) + self.dma(VO+i, T+2, SWM, L + (st-12)*16384 + i*1024))
            return G
        def put(st, g):
            self.emit(g); vm.append(st)
        def reads(st):
            R = []; B = F[st % 2]; slot = (st % 4)*16384
            if st < 8:
                for t in range(4):
                    R.append(f"ds_read_b128 {v(B+12*t,4)}, {v(XA+t)} offset:{st*8192}")
                    for k in range(2):
                        for sx in range(2):
                            R.append(f"ds_read_b64_tr_b16 {v(B+12*t+4+4*k+2*sx,2)}, {v(WA)} offset:{slot + k*8192 + t*2048 + sx*256}")
            else:
                for t in range(8):
                    R.append(f"ds_read_b128 {v(B+8*t,4)}, {v(XA+(t&3))} offset:{(2*(st-8)+t//4)*8192}")
                    for sx in range(2):
                        R.append(f"ds_read_b64_tr_b16 {v(B+8*t+4+2*sx,2)}, {v(WA)} offset:{slot + t*2048 + sx*256}")
            return R
        def mfmas(st):
            M = []; B = F[st % 2]
            if st < 8:
                for t in range(4):
                    for k, acc in enumerate((AK, AV)):
                        c = "0" if (acc == AV and st == 0 and t == 0) else v(acc,16)
                        M.append(f"v_mfma_f32_32x32x16_bf16 {v(acc,16)}, {v(B+12*t,4)}, {v(B+12*t+4+4*k,4)}, {c}")
            else:
                for t in range(8):
                    M.append(f"v_mfma_f32_32x32x16_bf16 {v(AQ,16)}, {v(B+8*t+4,4)}, {v(B+8*t,4)}, {v(AQ,16)}")
            return M
        def arrive():
            a(HI); self.arrive(20); a(LOW)
        def iteration(i, after=None):
            M = mfmas(i)
            R = reads(i+1) if i < 11 else []
            G = loads(i+4)
            Lok = a.label("ok")
            self.stamp(i+1, "it")
            a(f"ds_read_b32 v21, {v(V_ALL)}")
            a("s_waitcnt lgkmcnt(2)")
            a(M[0])
            a(f"""
            s_waitcnt lgkmcnt(0)
            {HI}
            v_cmp_gt_u32 vcc, {s(S_EPOCH)}, v21
            s_cmp_eq_u64 vcc, 0
            s_cbranch_scc1 {Lok}
            """)
            self.await_(21)
            a(f"{Lok}:")
            a(LOW)
            nr = -(-len(R) // 5); ng = -(-len(G) // 5)
            for k in range(1, 8):
                if k <= 5:
                    for x in R[(k-1)*nr:k*nr]: a(x)
                    for g in G[(k-1)*ng:k*ng]: put(i+4, g)
                if k == 6 and i < 11:
                    if i < 6: self.stamp(2*i+1, "vm")
                    if i + 2 <= 11: vmwait(i+2)
                    if i < 6: self.stamp(2*i+2, "vm")
                    arrive()
                a(M[k])
            if after: after()
        a.c("---- B: k,v projections")
        a("s_sleep 1")
        a(f"global_load_dword v21, {v(V_L128)}, {s(SF1,2)} sc1"); vm.append("poll")
        for st in (0, 1):
            for g in loads(st): put(st, g)
        vmwait("poll")
        Lr = a.label("b")
        a(f"""
        {HI}
        v_cmp_ne_u32 vcc, {s(S_TAG)}, v21
        s_cmp_eq_u64 vcc, 0
        s_cbranch_scc1 {Lr}
        """)
        self.poll(V_L128, SF1, [0], 21)
        a(f"{Lr}:")
        a(f"ds_write_b32 {v(V_SLOT)}, v25 offset:48")
        vmwait(0)
        self.arrive(20)
        for g in loads(2): put(2, g)
        self.await_(21)
        self.stamp(6)
        self.emit(reads(0))
        vmwait(1)
        self.arrive(20)
        a(LOW)
        for g in loads(3): put(3, g)
        for i in range(8): iteration(i)
        a.c("---- B: phi(k), partial state")
        a(f"""
        s_lshl_b32 {s(T+6)}, {s(S_J)}, 2
        s_lshl_b32 {s(T)}, {s(HP)}, 1
        s_add_u32 {s(T+6)}, {s(T+6)}, {s(T)}
        s_add_u32 {s(T+6)}, {s(T+6)}, {s(RB)}
        s_lshl_b32 {s(T+6)}, {s(T+6)}, 5
        s_add_u32 {s(T+6)}, {s(T+6)}, {s(S_G)}
        s_lshl_b32 {s(T)}, {s(T+6)}, 11
        s_add_u32 {s(T)}, {s(T)}, {WS_PART}
        """)
        self.add64(T+4, S_WS, s(T))
        a(HI)
        self.phi(AK)
        a("s_mov_b32 exec_lo, 0xffff")
        a("s_mov_b32 exec_hi, 0xffff")
        for i in range(8): a(f"v_cvt_pk_bf16_f32 {v(X+i)}, {v(AV+2*i)}, {v(AV+2*i+1)}")
        a("s_not_b64 exec, exec")
        for i in range(8): a(f"v_cvt_pk_bf16_f32 {v(Y+i)}, {v(AV+2*i)}, {v(AV+2*i+1)}")
        a("s_mov_b64 exec, -1")
        D0, D1 = F[1], F[1]+16
        LK, LJ, LK2, LJ2 = a.label("k1"), a.label("kj"), a.label("k2"), a.label("kj2")
        a(f"""
        {LOW}
        v_mfma_f32_32x32x16_bf16 {v(D0,16)}, {v(AK,4)}, {v(X,4)}, 0
        v_mfma_f32_32x32x16_bf16 {v(D1,16)}, {v(AK,4)}, {v(Y,4)}, 0
        v_mfma_f32_32x32x16_bf16 {v(D0,16)}, {v(AK+4,4)}, {v(X+4,4)}, {v(D0,16)}
        v_mfma_f32_32x32x16_bf16 {v(D1,16)}, {v(AK+4,4)}, {v(Y+4,4)}, {v(D1,16)}
        s_nop 8
        {HI}
        s_cmp_eq_u32 {s(RB)}, 0
        s_cbranch_scc0 {LK}
        ds_write_b128 {v(V_SX)}, {v(D1+8,4)}
        ds_write_b128 {v(V_SX)}, {v(D1+12,4)} offset:1024
        s_branch {LJ}
        {LK}:
        ds_write_b128 {v(V_SX)}, {v(D0,4)}
        ds_write_b128 {v(V_SX)}, {v(D0+4,4)} offset:1024
        {LJ}:
        """)
        self.softbar(20)
        a(f"""
        s_cmp_eq_u32 {s(RB)}, 0
        s_cbranch_scc0 {LK2}
        ds_read_b128 {v(D1+8,4)}, {v(V_SX)} offset:4096
        ds_read_b128 {v(D1+12,4)}, {v(V_SX)} offset:5120
        s_branch {LJ2}
        {LK2}:
        v_add_u32 {v(V_SX)}, -4096, {v(V_SX)}
        ds_read_b128 {v(D0,4)}, {v(V_SX)}
        ds_read_b128 {v(D0+4,4)}, {v(V_SX)} offset:1024
        {LJ2}:
        s_waitcnt lgkmcnt(0)
        """)
        for i in range(0, 8, 2): a(f"v_pk_add_f32 {v(AK+i,2)}, {v(D0+i,2)}, {v(D1+8+i,2)}")
        a(f"global_store_dwordx4 {v(V_L16)}, {v(AK,4)}, {s(T+4,2)} sc1"); vm.append("part")
        a(f"global_store_dwordx4 {v(V_L16)}, {v(AK+4,4)}, {s(T+4,2)} offset:1024 sc1"); vm.append("part")
        a(LOW)
        self.stamp(3)
        a.c("---- B: q projection")
        def pub():
            n = len(vm) - 1 - max(i for i, x in enumerate(vm) if x == "part")
            self.flag(WS_F2, T+6, vm=n); vm.append("flag")
            self.stamp(7)
            a.c("mark the A-side output images of the matching wave as not yet written")
            a(f"s_sub_u32 {s(T)}, {s(S_WS)}, {WS_OB-WS_OA}")
            a(f"s_subb_u32 {s(T+1)}, {s(S_WS+1)}, 0")
            a(f"global_store_dwordx4 {v(self.V_IMG)}, v[252:255], {s(T,2)} sc1"); vm.append("clr")
            a(f"global_store_dwordx4 {v(self.V_IMG)}, v[252:255], {s(T,2)} offset:1024 sc1"); vm.append("clr")
        iteration(8, pub)
        for i in range(9, 12): iteration(i)
        a("s_nop 8")
        a(HI)
        self.phi(AQ)
        a("s_waitcnt vmcnt(0)")
        self.arrive(20)
        a.c("---- B: slice reduction of the state (one wave per CU)")
        LR = a.label("nr")
        a(f"""
        s_and_b32 {s(T)}, {s(S_G)}, 3
        s_cmp_lg_u32 {s(T)}, {s(WB)}
        s_cbranch_scc1 {LR}
        s_lshl_b32 {s(T+6)}, {s(S_J)}, 2
        s_lshr_b32 {s(T)}, {s(S_G)}, 3
        s_add_u32 {s(T+6)}, {s(T+6)}, {s(T)}
        s_lshl_b32 {s(T)}, {s(T+6)}, 12
        s_add_u32 {s(T)}, {s(T)}, {WS_F2}
        """)
        self.add64(T+4, S_WS, s(T))
        a("s_mov_b32 exec_hi, 0")
        self.poll(V_L128, T+4, [0], 21)
        a(f"""
        s_mov_b32 exec_hi, -1
        s_and_b32 {s(T+7)}, {s(S_G)}, 7
        s_lshl_b32 {s(T+7)}, {s(T+7)}, 7
        s_lshl_b32 {s(T)}, {s(T+6)}, 16
        s_add_u32 {s(T)}, {s(T)}, {s(T+7)}
        s_add_u32 {s(T)}, {s(T)}, {WS_PART}
        """)
        self.add64(T+2, S_WS, s(T))
        for i in range(16):
            a(f"global_load_dwordx2 {v(XF+2*i,2)}, {v(V_RD)}, {s(T+2,2)} sc1")
            if i < 15: self.add64(T+2, T+2, 4096)
        a(f"""
        s_lshl_b32 {s(T)}, {s(T+6)}, 10
        s_add_u32 {s(T)}, {s(T)}, {s(T+7)}
        s_add_u32 {s(T)}, {s(T)}, {WS_RED}
        """)
        self.add64(T+2, S_WS, s(T))
        a("s_waitcnt vmcnt(0)")
        n = 16
        while n > 1:
            n //= 2
            for i in range(n): a(f"v_pk_add_f32 {v(XF+2*i,2)}, {v(XF+2*i,2)}, {v(XF+2*(i+n),2)}")
        a(f"""
        s_nop 1
        v_permlane32_swap_b32 {v(XF)}, {v(XF+2)}
        v_permlane32_swap_b32 {v(XF+1)}, {v(XF+3)}
        s_nop 1
        v_pk_add_f32 {v(XF,2)}, {v(XF,2)}, {v(XF+2,2)}
        s_nop 0
        v_cvt_pk_bf16_f32 {v(XF)}, {v(XF)}, {v(XF+1)}
        s_mov_b32 exec_hi, 0
        global_store_dword {v(V_RST)}, {v(XF)}, {s(T+2,2)} sc1
        s_mov_b32 exec_hi, -1
        """)
        self.flag(WS_F3, S_C)
        a(f"{LR}:")
        self.await_(20)
        self.outproj_wfrags()
        self.arrive(20)
        self.stamp(8)
        a.c("---- B: normalised linear attention output")
        D0, D1 = AK, AV
        a(f"""
        s_lshl_b32 {s(T)}, {s(HP)}, 7
        s_add_u32 {s(T)}, {s(T)}, {s(S_J)}
        s_lshl_b32 {s(T)}, {s(T)}, 7
        s_add_u32 {s(T)}, {s(T)}, {WS_F3}
        """)
        self.add64(T+4, S_WS, s(T))
        self.poll(V_L1K, T+4, [0], 21, sleep=4)
        a(f"""
        s_lshl_b32 {s(T)}, {s(S_J)}, 1
        s_add_u32 {s(T)}, {s(T)}, {s(HP)}
        s_lshl_b32 {s(T)}, {s(T)}, 11
        s_add_u32 {s(T)}, {s(T)}, {WS_RED}
        """)
        self.add64(T+4, S_WS, s(T))
        a(f"""
        global_load_dwordx4 {v(XF,4)}, {v(V_L16)}, {s(T+4,2)} sc1
        global_load_dwordx4 {v(XF+4,4)}, {v(V_L16)}, {s(T+4,2)} offset:1024 sc1
        s_waitcnt vmcnt(0)
        v_mfma_f32_32x32x16_bf16 {v(D0,16)}, {v(XF,4)}, {v(AQ,4)}, 0
        v_mfma_f32_32x32x16_bf16 {v(D1,16)}, {v(XF+4,4)}, {v(AQ+4,4)}, 0
        s_nop 7
        s_nop 3
        v_add_f32 {v(D0+8)}, {f32(1e-6)}, {v(D0+8)}
        v_add_f32 {v(D1)}, {f32(1e-6)}, {v(D1)}
        """)
        self.normalize([(D0, D0+8), (D1+8, D1)], 80, guard=False)
        a(f"""
        s_lshl_b32 {s(T+6)}, {s(S_C)}, 2
        s_add_u32 {s(T+6)}, {s(T+6)}, {s(WB)}
        """)
        self.flag(WS_F4, T+6)
        self.stamp(12)
        a(f"""
        s_lshl_b32 {s(T)}, {s(S_G)}, 5
        s_lshl_b32 {s(T+1)}, {s(HP)}, 4
        s_add_u32 {s(T)}, {s(T)}, {s(T+1)}
        s_lshl_b32 {s(T+1)}, {s(RB)}, 1
        s_add_u32 {s(T)}, {s(T)}, {s(T+1)}
        s_lshl_b32 {s(T)}, {s(T)}, 7
        s_add_u32 {s(T)}, {s(T)}, {WS_F4}
        """)
        self.add64(T+4, S_WS, s(T))
        self.poll(V_F4, T+4, [0], 21, sleep=4)
        self.await_(20)
        a.c("---- B: the group's o_B images go to LDS for the A waves")
        self.add64(T+2, S_IMG, WS_OB-WS_OA)
        a(f"s_lshl_b32 {s(SWM)}, {s(WB)}, 14")
        for p in range(4):
            a(f"s_add_u32 m0, {s(SWM)}, {L_X + p*4096}")
            a("s_nop 0")
            for k in range(4): a(f"global_load_lds_dwordx4 {v(V_L16)}, {s(T+2,2)} offset:{k*1024} sc1")
            if p < 3: self.add64(T+2, T+2, 4096)
        if self.o.get("touch", 1):
            a(f"global_load_dword v21, {v(V_ZERO)}, {s(S_OUTB,2)}")
        a("L_Bend:")
        for i in range(0, 32, 2): a(f"v_mov_b64 {v(96+i,2)}, 0")
        a(f"s_mov_b32 {s(S_PEND)}, 15")
        a(f"s_mov_b32 {s(T+9)}, 0")
        a(HI)
        a("s_waitcnt vmcnt(0) lgkmcnt(0)")
        self.stamp(9)
        a("s_barrier")
        a.c("every wave of the grid has used this launch's tag by now: advance the generation word")
        Lg = a.label("b")
        a(f"""
        s_lshl_b32 {s(T)}, s2, 2
        s_add_u32 {s(T)}, {s(T)}, {s(WB)}
        s_cmp_lg_u32 {s(T)}, 0
        s_cbranch_scc1 {Lg}
        s_mov_b64 exec, 1
        global_store_dword {v(V_ZERO)}, {v(V_TAG)}, {s(S_WS,2)} offset:{WS_G} sc1
        s_mov_b64 exec, -1
        {Lg}:
        s_barrier
        """)

    def finish(self):
        a = self.a
        a("L_fin:")
        if self.stamps:
            a("s_waitcnt vmcnt(0)")
            self.stamp(13)
            a(f"""
            s_waitcnt lgkmcnt(0)
            s_cmp_ge_u32 {s(S_W)}, 4
            s_cselect_b32 {s(S_ST+28)}, {s(T+9)}, {s(S_ST+28)}
            s_lshl_b32 {s(T)}, s2, 3
            s_add_u32 {s(T)}, {s(T)}, {s(S_W)}
            s_lshl_b32 {s(T)}, {s(T)}, 6
            s_add_u32 {s(T)}, {s(T)}, {WS_STAMP}
            v_mov_b32 v20, {s(T)}
            """)
            for i in range(16): a(f"v_mov_b32 {v(32+i)}, {s(S_ST+2*i)}")
            for i in range(4): a(f"global_store_dwordx4 v20, {v(32+4*i,4)}, {s(S_WS,2)} offset:{16*i}")
        a("L_end:")
        a("s_endpgm")

    def build(self):
        self.entry()
        self.head_A()
        self.attn()
        self.tail_A()
        self.roleB()
        self.outproj()
        self.finish()
        self.a("L_last:")
        self.attn_fallback("L_norm")
        return self.wrap()

    def wrap(self):
        hdr = open("cdna_kernels/%s.s.ref" % NAME).read().split("; Override launch")[0]
        return hdr + f"""; Override launch geometry by editing the next line (default: block=256,
; grid=ceil(out_elems/256), lds=0). Harness parses it; keep it on one line.
; @launch grid=(256,1,1) block=(512,1,1) lds={LDS_BYTES}
.amdgcn_target "amdgcn-amd-amdhsa--gfx950"
.text
.globl {NAME}_kernel
.p2align 8
.type {NAME}_kernel,@function
{NAME}_kernel:
""" + self.a.text() + f""".section .rodata,"a"
.p2align 6
.amdhsa_kernel {NAME}_kernel
  .amdhsa_next_free_vgpr 256
  .amdhsa_next_free_sgpr 102
  .amdhsa_accum_offset 256
  .amdhsa_group_segment_fixed_size 0
  .amdhsa_kernarg_size 88
  .amdhsa_user_sgpr_count 2
  .amdhsa_user_sgpr_kernarg_segment_ptr 1
  .amdhsa_system_sgpr_workgroup_id_x 1
  .amdhsa_dx10_clamp 0
.end_amdhsa_kernel
"""

if __name__ == "__main__":
    out = sys.argv[1]
    stamps = "--stamps" in sys.argv
    opts = {}
    for x in sys.argv[2:]:
        if "=" in x:
            k, val = x.split("=", 1); opts[k] = eval(val)
    open(out, "w").write(Gen(stamps=stamps, opts=opts).build())
```

```python
import sys, struct
from asmlib import *

NAME = "concat_heads__grouped_kv_mqa__linear_attn_block__prompt"
def f32(x): return "0x%08x" % struct.unpack("<I", struct.pack("<f", x))[0]
LOG2E = 1.4426950408889634

WS_G   = 0x0
WS_F1  = 0x8000
WS_ACC = 0x10000
WS_KV  = 0x20000
WS_F2  = 0x60000
WS_F4  = 0x80000
WS_OA  = 0x100000
WS_OB  = 0x300000
WS_STAMP = 0x800000
KVREC = 640
KVTILE = 4*KVREC
L_X   = 0
L_W   = 0x10000
L_WKV = 0x20000
L_MISC= 0x24000
L_SYNC= L_MISC + 0x3f00
LDS_BYTES = 0x28000
SPIN_MAX = 200000

S_AX, S_WQ, S_WK, S_WV, S_AWO, S_BX, S_WQKV, S_BWO = 8, 10, 12, 14, 16, 18, 20, 22
S_OUT, S_WS = 24, 26
S_W, S_G, S_J, S_C, S_TAG, S_XCD, S_KC0, S_EPOCH = 28, 29, 30, 31, 32, 33, 34, 35
T = 36
S_HI, S_LO, S_W3 = 50, 51, 52
S_IMG = 54
S_OUTB = 56
S_EX = 58
S_PEND = 59
U = 4
S_ST = 64
V_L16, V_SLOT, V_ALL, V_TAG, V_ZERO = 4, 5, 6, 7, 1

class Gen:
    def __init__(self, stamps=False, opts=None):
        self.a = Asm()
        self.stamps = stamps
        self.o = opts or {}
        self.inB = False
    def stamp(self, i, grp=None):
        if grp != self.o.get("stg") and (grp or (self.inB and self.o.get("stg") and i not in (0, 13))): return
        if self.stamps:
            self.a(f"s_memrealtime {s(S_ST+2*i,2)}")
            cyc = self.o.get("cyc", (6, 7))
            if i in cyc:
                self.a(f"s_memtime {s(S_ST+2*(14+list(cyc).index(i)),2)}")
    def add64(self, dst, base, off):
        self.a(f"s_add_u32 {s(dst)}, {s(base)}, {off}")
        self.a(f"s_addc_u32 {s(dst+1)}, {s(base+1)}, 0")
    def dma(self, vreg, pair, m0s, m0i, off=0):
        return [f"s_add_u32 m0, {s(m0s)}, {m0i}", "s_nop 0",
                f"global_load_lds_dwordx4 {v(vreg)}, {s(pair,2)}" + (f" offset:{off}" if off else "")]
    def emit(self, L):
        for x in L: self.a(x)
    def poll(self, vaddr, pair, offs, vt, sleep=2):
        a = self.a
        Lp, Ld = a.label("poll"), a.label("polld")
        a(f"s_mov_b32 {s(T+10)}, 0")
        a(f"{Lp}:")
        for i, o in enumerate(offs):
            a(f"global_load_dword {v(vt+i)}, {v(vaddr)}, {s(pair,2)} offset:{o} sc1")
        a("s_waitcnt vmcnt(0)")
        for i in range(len(offs)):
            if i == 0:
                a(f"v_cmp_ne_u32 vcc, {s(S_TAG)}, {v(vt)}")
            else:
                a(f"v_cmp_ne_u32 {s(T+12,2)}, {s(S_TAG)}, {v(vt+i)}")
                a(f"s_or_b64 vcc, vcc, {s(T+12,2)}")
        a(f"s_add_u32 {s(T+10)}, {s(T+10)}, 1")
        a(f"s_cmp_eq_u64 vcc, 0")
        a(f"s_cbranch_scc1 {Ld}")
        if sleep: a(f"s_sleep {sleep}")
        a(f"s_cmp_lt_u32 {s(T+10)}, {SPIN_MAX}")
        a(f"s_cbranch_scc1 {Lp}")
        a(f"{Ld}:")
    def check4(self, vt):
        a = self.a
        a(f"v_cmp_ne_u32 vcc, {s(S_TAG)}, {v(vt)}")
        for i in range(1, 4):
            a(f"v_cmp_ne_u32 {s(T+12,2)}, {s(S_TAG)}, {v(vt+i)}")
            a(f"s_or_b64 vcc, vcc, {s(T+12,2)}")
        a(f"s_cmp_eq_u64 vcc, 0")
    def poll4(self, vaddr, pair, vt, sleep):
        a = self.a
        Lp, Ld = a.label("poll"), a.label("polld")
        a(f"s_mov_b32 {s(T+10)}, 0")
        a(f"{Lp}:")
        a(f"global_load_dwordx4 {v(vt,4)}, {v(vaddr)}, {s(pair,2)} sc1")
        a(f"s_add_u32 {s(T+10)}, {s(T+10)}, 1")
        a("s_waitcnt vmcnt(0)")
        self.check4(vt)
        a(f"s_cbranch_scc1 {Ld}")
        if sleep: a(f"s_sleep {sleep}")
        a(f"s_cmp_lt_u32 {s(T+10)}, {SPIN_MAX}")
        a(f"s_cbranch_scc1 {Lp}")
        a(f"{Ld}:")
    def flag(self, base, sidx, vm=0, shift=7):
        a = self.a
        a(f"s_lshl_b32 {s(T+10)}, {s(sidx)}, {shift}")
        a(f"s_add_u32 {s(T+10)}, {s(T+10)}, {base}")
        self.add64(T+12, S_WS, s(T+10))
        if vm is not None: a(f"s_waitcnt vmcnt({vm})")
        a("s_mov_b64 exec, 1")
        a(f"global_store_dword {v(V_ZERO)}, {v(V_TAG)}, {s(T+12,2)} sc1")
        a("s_mov_b64 exec, -1")
    def arrive(self, vt):
        a = self.a
        a(f"s_add_u32 {s(S_EPOCH)}, {s(S_EPOCH)}, 1")
        a(f"v_mov_b32 {v(vt)}, {s(S_EPOCH)}")
        a(f"ds_write_b32 {v(V_SLOT)}, {v(vt)}")
    def await_(self, vt, vaddr=V_ALL, val=None, off=0, sleep=1):
        a = self.a
        Lp, Ld = a.label("sb"), a.label("sbd")
        a(f"s_mov_b32 {s(T+10)}, 0")
        a(f"{Lp}:")
        a(f"ds_read_b32 {v(vt)}, {v(vaddr)} offset:{off}")
        a("s_waitcnt lgkmcnt(0)")
        a(f"v_cmp_gt_u32 vcc, {val or s(S_EPOCH)}, {v(vt)}")
        a(f"s_add_u32 {s(T+10)}, {s(T+10)}, 1")
        a(f"s_cmp_eq_u64 vcc, 0")
        a(f"s_cbranch_scc1 {Ld}")
        if sleep: a(f"s_sleep {sleep}")
        a(f"s_cmp_lt_u32 {s(T+10)}, {SPIN_MAX*8}")
        a(f"s_cbranch_scc1 {Lp}")
        a(f"{Ld}:")
    def softbar(self, vt, sleep=1):
        self.arrive(vt); self.await_(vt, sleep=sleep)

    def entry(self):
        a = self.a
        a(f"""
        s_cmp_ge_u32 s2, 256
        s_cbranch_scc1 L_end
        """)
        self.stamp(0)
        a(f"""
        s_load_dwordx16 s[8:23], s[0:1], 0
        s_load_dwordx2 {s(S_OUT,2)}, s[0:1], 64
        s_load_dwordx2 {s(S_WS,2)}, s[0:1], 80
        v_lshrrev_b32 v1, 6, v0
        v_and_b32 v0, 63, v0
        v_readfirstlane_b32 {s(S_W)}, v1
        s_and_b32 {s(S_XCD)}, s2, 7
        s_lshr_b32 {s(T)}, s2, 6
        s_lshl_b32 {s(S_G)}, {s(S_XCD)}, 2
        s_add_u32 {s(S_G)}, {s(S_G)}, {s(T)}
        s_lshr_b32 {s(S_J)}, s2, 3
        s_and_b32 {s(S_J)}, {s(S_J)}, 7
        s_lshl_b32 {s(S_C)}, {s(S_G)}, 3
        s_add_u32 {s(S_C)}, {s(S_C)}, {s(S_J)}
        s_lshl_b32 {s(T)}, {s(T)}, 1
        s_add_u32 {s(S_KC0)}, {s(T)}, {s(S_J)}
        s_and_b32 {s(S_KC0)}, {s(S_KC0)}, {7 if self.o.get('rot', 1) else 0}
        s_mov_b32 {s(S_EPOCH)}, 0
        s_and_b32 {s(S_W3)}, {s(S_W)}, 3
        s_lshr_b32 {s(S_HI)}, {s(S_W3)}, 1
        s_and_b32 {s(S_LO)}, {s(S_W)}, 1
        v_mov_b32 {v(V_ZERO)}, 0
        v_lshlrev_b32 {v(V_L16)}, 4, v0
        v_lshlrev_b32 v9, 2, v0
        v_add_u32 v9, {L_SYNC}, v9
        ds_write_b32 v9, {v(V_ZERO)}
        """)
        a(f"""
        v_lshrrev_b32 v8, 3, v0
        v_lshlrev_b32 v2, 10, v8
        v_and_b32 v9, 7, v0
        v_lshrrev_b32 v10, 4, v0
        v_xor_b32 v9, v9, v10
        v_lshl_add_u32 v2, v9, 4, v2
        s_lshl_b32 {s(T)}, {s(S_W)}, 2
        s_add_u32 {s(T)}, {s(T)}, {L_SYNC}
        v_mov_b32 {v(V_SLOT)}, {s(T)}
        s_and_b32 {s(T)}, {s(T)}, -16
        v_and_b32 v9, 3, v0
        v_lshl_add_u32 {v(V_ALL)}, v9, 2, {s(T)}
        v_bfe_u32 v8, v0, 2, 3
        v_lshlrev_b32 v9, 4, v9
        v_lshrrev_b32 v10, 5, v0
        v_lshl_add_u32 v9, v10, 6, v9
        v_lshl_add_u32 v3, v8, 10, v9
        s_cmp_ge_u32 {s(S_W)}, 4
        s_cbranch_scc1 L_roleB
        """)

    def xfrag_addr(self, dst, sblk, vt):
        self.a(f"""
        v_and_b32 {v(vt)}, 31, v0
        v_lshlrev_b32 {v(vt+1)}, 7, {v(vt)}
        s_lshl_b32 {s(T)}, {s(sblk)}, 12
        v_add_u32 {v(vt+1)}, {s(T)}, {v(vt+1)}
        v_bfe_u32 {v(vt)}, v0, 1, 3
        v_lshrrev_b32 {v(vt+2)}, 5, v0
        v_xor_b32 {v(vt)}, {v(vt)}, {v(vt+2)}
        v_lshl_add_u32 {v(dst)}, {v(vt)}, 4, {v(vt+1)}
        v_xor_b32 {v(dst+1)}, 32, {v(dst)}
        v_xor_b32 {v(dst+2)}, 64, {v(dst)}
        v_xor_b32 {v(dst+3)}, 0x60, {v(dst)}
        """)
    def wfrag_addr(self, dst, vt):
        self.a(f"""
        v_bfe_u32 {v(vt)}, v0, 2, 2
        v_lshlrev_b32 {v(vt)}, 6, {v(vt)}
        v_bfe_u32 {v(vt+1)}, v0, 4, 1
        v_lshl_add_u32 {v(vt)}, {v(vt+1)}, 5, {v(vt)}
        v_and_b32 {v(vt+1)}, 3, v0
        v_lshl_add_u32 {v(vt)}, {v(vt+1)}, 3, {v(vt)}
        v_lshrrev_b32 {v(vt+1)}, 5, v0
        v_lshl_add_u32 {v(vt)}, {v(vt+1)}, 10, {v(vt)}
        s_lshl_b32 {s(T)}, {s(S_LO)}, 9
        s_add_u32 {s(T)}, {s(T)}, {L_W}
        v_add_u32 {v(dst)}, {s(T)}, {v(vt)}
        """)
    V_WO, V_EXW, V_EXR, V_OUT, V_IMG = 8, 9, 3, 2, 13
    def tail_addr(self, lbase, loshift, ownimg, colbytes, vt):
        a = self.a
        a(f"""
        v_bfe_u32 {v(vt)}, v0, 2, 2
        v_lshlrev_b32 {v(vt)}, 6, {v(vt)}
        v_lshrrev_b32 {v(vt+1)}, 5, v0
        v_lshl_add_u32 {v(vt)}, {v(vt+1)}, 8, {v(vt)}
        v_and_b32 {v(vt+2)}, 1, v0
        v_lshl_add_u32 {v(vt)}, {v(vt+2)}, 5, {v(vt)}
        v_bfe_u32 {v(vt+2)}, v0, 1, 1
        v_lshl_add_u32 {v(vt)}, {v(vt+2)}, 3, {v(vt)}
        v_bfe_u32 {v(vt+2)}, v0, 4, 1
        v_lshl_add_u32 {v(vt)}, {v(vt+2)}, 4, {v(vt)}
        s_lshl_b32 {s(T)}, {s(S_LO)}, {loshift}
        s_add_u32 {s(T)}, {s(T)}, {lbase}
        v_add_u32 {v(self.V_WO)}, {s(T)}, {v(vt)}
        s_lshl_b32 {s(T)}, {s(S_W3)}, 12
        s_add_u32 {s(T)}, {s(T)}, {L_WKV}
        v_add_u32 {v(self.V_EXW)}, {s(T)}, {v(V_L16)}
        v_xor_b32 {v(self.V_EXR)}, 4096, {v(self.V_EXW)}
        v_and_b32 {v(vt)}, 31, v0
        v_lshlrev_b32 {v(vt)}, 11, {v(vt)}
        v_lshl_add_u32 {v(self.V_OUT)}, {v(vt+1)}, 5, {v(vt)}
        s_lshl_b32 {s(T)}, {s(S_G)}, 1
        s_add_u32 {s(T)}, {s(T)}, {s(S_HI)}
        s_lshl_b32 {s(T+1)}, {s(T)}, 16
        s_lshl_b32 {s(T+2)}, {s(S_J)}, 1
        s_add_u32 {s(T+2)}, {s(T+2)}, {s(S_LO)}
        s_lshl_b32 {s(T+3)}, {s(T+2)}, 6
        s_add_u32 {s(T+1)}, {s(T+1)}, {s(T+3)}
        s_add_u32 {s(T+1)}, {s(T+1)}, {colbytes}
        """)
        self.add64(S_OUTB, S_OUT, s(T+1))
        a(f"""
        s_lshl_b32 {s(T)}, {s(T)}, 15
        s_lshl_b32 {s(T+2)}, {s(T+2)}, 11
        s_add_u32 {s(T+2)}, {s(T+2)}, {s(T)}
        s_add_u32 {s(T+2)}, {s(T+2)}, {ownimg}
        v_add_u32 {v(self.V_IMG)}, {s(T+2)}, {v(V_L16)}
        s_lshl_b32 {s(T+1)}, {s(S_LO)}, 14
        s_add_u32 {s(T)}, {s(T)}, {s(T+1)}
        s_add_u32 {s(T)}, {s(T)}, {WS_OA}
        """)
        self.add64(S_IMG, S_WS, s(T))

    RQ, RO, RS, RKV = 16, 64, 128, 192
    RIDX, RKA, RVA = 10, 11, 12
    def head_A(self):
        a = self.a
        RQ, RO, RS, RKV, RIDX, RKA, RVA = self.RQ, self.RO, self.RS, self.RKV, self.RIDX, self.RKA, self.RVA
        XA, WA = 248, 252
        a.c("=========================== role A ===========================")
        a.c("---- what the K/V producer needs goes first")
        a(f"""
        v_xor_b32 v10, 64, v2
        v_add_u32 v10, 8192, v10
        s_and_b32 {s(T+1)}, {s(S_J)}, 6
        s_lshl_b32 {s(T+6)}, {s(S_G)}, 16
        s_lshl_b32 {s(T+2)}, {s(T+1)}, 13
        s_add_u32 {s(T+6)}, {s(T+6)}, {s(T+2)}
        s_lshl_b32 {s(T+7)}, {s(S_W)}, 14
        s_lshl_b32 {s(T+2)}, {s(T+1)}, 10
        s_add_u32 {s(T+7)}, {s(T+7)}, {s(T+2)}
        s_lshl_b32 {s(T+8)}, {s(S_W)}, 12
        s_lshl_b32 {s(T+9)}, {s(S_W)}, 1
        s_add_u32 {s(T+9)}, {s(T+9)}, {s(S_KC0)}
        s_mov_b32 {s(S_EPOCH)}, 7
        s_waitcnt lgkmcnt(0)
        """)
        self.stamp(1)
        a(f"""
        s_bitcmp1_b32 {s(S_J)}, 0
        s_cselect_b32 {s(S_WK)}, {s(S_WV)}, {s(S_WK)}
        s_cselect_b32 {s(S_WK+1)}, {s(S_WV+1)}, {s(S_WK+1)}
        """)
        for i in range(2):
            a(f"""
            s_add_u32 {s(T)}, {s(T+9)}, {i}
            s_and_b32 {s(T)}, {s(T)}, 7
            s_lshl_b32 {s(T+1)}, {s(T)}, 7
            s_add_u32 {s(T+1)}, {s(T+1)}, {s(T+6)}
            """)
            self.add64(T+2, S_AX, s(T+1))
            a(f"s_lshl_b32 {s(T)}, {s(T)}, 11")
            self.add64(T+4, S_WK, s(T))
            self.emit(self.dma(2, T+2, T+7, L_X + i*8192))
            self.emit(self.dma(10, T+2, T+7, L_X + i*8192 + 1024))
            self.emit(self.dma(V_L16, T+4, T+8, L_WKV + i*2048))
            a(f"global_load_lds_dwordx4 {v(V_L16)}, {s(T+4,2)} offset:1024")
        a("s_barrier")
        XF, WF = RS, RS+32
        def rd(t):
            i = t % 8
            a(f"ds_read_b128 {v(XF+4*i,4)}, {v(XA+(t&3))} offset:{(t//4)*8192}")
            a(f"ds_read_b64_tr_b16 {v(WF+4*i,2)}, {v(WA)} offset:{t*2048}")
            a(f"ds_read_b64_tr_b16 {v(WF+4*i+2,2)}, {v(WA)} offset:{t*2048+256}")
        def mm(t):
            i = t % 8
            a(f"v_mfma_f32_32x32x16_bf16 v[32:47], {v(WF+4*i,4)}, {v(XF+4*i,4)}, {'0' if t == 0 else 'v[32:47]'}")
        def qproj():
            self.await_(20, vaddr=52, val="1", sleep=0)
            self.stamp(2)
            for t in range(4): rd(t)
            for q in range(4):
                t0 = 8*q
                for t in range(t0, t0+4):
                    rd(t+4)
                    a("s_waitcnt lgkmcnt(12)")
                    mm(t)
                if q < 3:
                    Lok = a.label("a")
                    a("ds_read_b32 v20, v52")
                    a("s_waitcnt lgkmcnt(10)")
                    mm(t0+4)
                    a("s_waitcnt lgkmcnt(7)")
                    mm(t0+5)
                    a(f"""
                    s_waitcnt lgkmcnt(0)
                    v_cmp_gt_u32 vcc, {q+2}, v20
                    s_cmp_eq_u64 vcc, 0
                    s_cbranch_scc1 {Lok}
                    """)
                    self.await_(20, vaddr=52, val=str(q+2), sleep=0)
                    a(f"{Lok}:")
                    if q == 2: self.stamp(3)
                    rd(t0+8); rd(t0+9)
                    mm(t0+6)
                    rd(t0+10); rd(t0+11)
                    mm(t0+7)
                else:
                    for t in range(t0+4, t0+8):
                        a(f"s_waitcnt lgkmcnt({3*(t0+7-t)})")
                        mm(t)
        self.xfrag_addr(XA, S_HI, 20)
        self.wfrag_addr(WA, 20)
        for i in range(0, 64, 2): a(f"v_mov_b64 {v(RO+i,2)}, 0")
        for i in range(0, 4, 2): a(f"v_mov_b64 {v(RKV+36+8+i,2)}, 0")
        a(f"""
        v_and_b32 v20, 15, v0
        v_lshlrev_b32 v20, 4, v20
        v_lshrrev_b32 v21, 5, v0
        v_lshl_add_u32 v20, v21, 8, v20
        v_bfe_u32 v21, v0, 4, 1
        v_mul_u32_u24 v22, {2*KVREC}, v21
        v_add_u32 {v(RKA)}, v20, v22
        v_cmp_eq_u32 vcc, 0, v21
        v_and_b32 v22, 11, v0
        v_min_u32 v22, 1, v22
        v_lshlrev_b32 v22, 4, v22
        v_add_u32 v22, 512, v22
        v_mov_b32 {v(RIDX)}, 0xdddd
        v_cndmask_b32 {v(RVA)}, v22, v20, vcc
        s_lshl_b32 {s(T)}, {s(S_W)}, 9
        s_add_u32 {s(T)}, {s(T)}, {L_MISC}
        v_lshl_add_u32 v48, v0, 2, {s(T)}
        v_xor_b32 v49, 512, v48
        v_and_b32 v51, 4, v0
        v_lshl_add_u32 v52, v51, 2, {v(V_ALL)}
        v_lshl_add_u32 v51, v51, 4, {v(V_ALL)}
        s_lshl_b32 {s(T)}, {s(S_HI)}, 15
        v_add_u32 v14, {s(T)}, {v(V_L16)}
        """)
        self.tail_addr(L_W, 9, WS_OA, 1024, 20)
        a(f"""
        s_add_u32 {s(U+2)}, {s(S_XCD)}, 1
        s_and_b32 {s(U+2)}, {s(U+2)}, 7
        s_lshl_b32 {s(U+2)}, {s(U+2)}, 3
        s_add_u32 {s(U+2)}, {s(U+2)}, {s(S_LO)}
        s_mul_i32 {s(U+2)}, {s(U+2)}, {KVTILE}
        s_add_u32 {s(U+2)}, {s(U+2)}, {WS_KV}
        s_waitcnt vmcnt(0)
        """)
        self.arrive(20)
        qproj()
        for i in range(0, 8, 2): a(f"v_mov_b64 {v(RS+48+8+i,2)}, 0")
        a("s_nop 7")
        for i in range(8):
            a(f"v_cvt_pk_bf16_f32 {v(RQ+i)}, {v(32+2*i)}, {v(33+2*i)}")
        a(f"ds_write_b128 {v(self.V_EXW)}, {v(RQ,4)}")
        a(f"ds_write_b128 {v(self.V_EXW)}, {v(RQ+4,4)} offset:1024")
        a("s_waitcnt lgkmcnt(0)")
        self.stamp(4)
        a("s_barrier")
        self.stamp(5)

    def attn(self):
        a = self.a
        RQ, RO, RS, RKV, RIDX, RKA, RVA = self.RQ, self.RO, self.RS, self.RKV, self.RIDX, self.RKA, self.RVA
        SB, SOFF, SCNT, SPASS = T, U+2, U+3, U
        def K(u): return v(RKV+12*u, 4)
        def V(u, h): return v(RKV+12*u+4+4*h, 4)
        def addr_ops():
            return [f"s_add_u32 {s(SB)}, {s(S_WS)}, {s(SOFF)}",
                    f"s_addc_u32 {s(SB+1)}, {s(S_WS+1)}, 0",
                    f"s_add_u32 {s(SOFF)}, {s(SOFF)}, {2*KVTILE}",
                    f"s_cmp_ge_u32 {s(SOFF)}, {WS_KV+64*KVTILE}",
                    f"s_cselect_b32 {s(T+2)}, {64*KVTILE}, 0",
                    f"s_sub_u32 {s(SOFF)}, {s(SOFF)}, {s(T+2)}"]
        def ld(u, k):
            if k == 0: return f"global_load_dwordx4 {K(u)}, {v(RKA)}, {s(SB,2)} sc1"
            return f"global_load_dwordx4 {V(u,k-1)}, {v(RVA)}, {s(SB,2)} offset:{KVREC+(k-1)*2*KVREC} sc1"
        a.c("---- attention")
        a(f"s_setprio {self.o.get('aprio', 1)}")
        for u in range(3):
            for x in addr_ops(): a(x)
            for k in range(3): a(ld(u, k))
        a(f"ds_read_b128 {v(RQ+8,4)}, {v(self.V_EXR)}")
        a(f"ds_read_b128 {v(RQ+12,4)}, {v(self.V_EXR)} offset:1024")
        self.arrive(50)
        a(f"s_mov_b32 {s(SCNT)}, 1")
        a(f"s_mov_b32 {s(SPASS)}, 0")
        a(f"s_waitcnt vmcnt(6) lgkmcnt(0)")
        self.stamp(6)
        a(f"v_mfma_f32_32x32x16_bf16 {v(RS,16)}, {K(0)}, {v(RQ,4)}, 0")
        a("s_nop 7")
        a("s_nop 2")
        L, LD = a.label("attn"), a.label("attnd")
        a(".p2align 6")
        a(f"{L}:")
        p2, p1 = self.o.get("pos", (3, 10))
        for u in range(4):
            for b in range(4):
                fill = [[], [], []]
                if b == 0:
                    ops = addr_ops()
                    fill[0] = ops[0:1]; fill[1] = ops[1:3]; fill[2] = ops[3:5]
                if b == 1:
                    fill[0] = addr_ops()[5:6]; fill[1] = [ld((u+3) % 4, 0)]; fill[2] = [ld((u+3) % 4, 1)]
                if b == 2:
                    fill[1] = [ld((u+3) % 4, 2)]; fill[2] = ["s_waitcnt vmcnt(6)"]
                if b == 3 and u == 3:
                    fill[1] = [f"s_sub_u32 {s(SCNT)}, {s(SCNT)}, 1", f"s_cmp_lg_u32 {s(SCNT)}, 0"]
                nu, nb = (u, b+1) if b < 3 else ((u+1) % 4, 0)
                pu, pb = (u, b-1) if b > 0 else ((u-1) % 4, 3)
                S = RS + 16*b
                a(f"v_mfma_f32_32x32x16_bf16 {v(RS+16*nb,16)}, {K(nu)}, {v(RQ+4*nb,4)}, 0")
                for x in fill[0]: a(x)
                for i in range(0, p2): a(f"v_exp_f32 {v(S+i)}, {v(S+i)}")
                a(f"v_smfmac_f32_32x32x32_bf16 {v(RO+16*pb,16)}, {V(pu,1)}, {v(RS+16*pb+8,8)}, {v(RIDX)}")
                for x in fill[1]: a(x)
                for i in range(p2, p1): a(f"v_exp_f32 {v(S+i)}, {v(S+i)}")
                a(f"v_smfmac_f32_32x32x32_bf16 {v(RO+16*b,16)}, {V(u,0)}, {v(S,8)}, {v(RIDX)}")
                for x in fill[2]: a(x)
                for i in range(p1, 16): a(f"v_exp_f32 {v(S+i)}, {v(S+i)}")
        a(f"s_cbranch_scc1 {L}")
        a(f"s_cmp_lg_u32 {s(SPASS)}, 0")
        a(f"s_cbranch_scc1 {LD}")
        a.c("the remaining key tiles must have been published before they are fetched")
        self.await_(50, vaddr=51)
        a(f"s_mov_b32 {s(SPASS)}, 1")
        a(f"s_mov_b32 {s(SCNT)}, 7")
        a(f"s_branch {L}")
        a(f"{LD}:")
        a(f"v_smfmac_f32_32x32x32_bf16 {v(RO+48,16)}, {V(3,1)}, {v(RS+48+8,8)}, {v(RIDX)}")

    def tail_A(self):
        a = self.a
        RQ, RO = self.RQ, self.RO
        self.stamp(7)
        a.c("---- pair reduction of the two key halves")
        a(f"""
        ds_write_b128 {v(self.V_EXW)}, {v(RO+32,4)}
        ds_write_b128 {v(self.V_EXW)}, {v(RO+36,4)} offset:1024
        ds_write_b32 v48, {v(RO+40)}
        s_mov_b32 {s(T+2)}, {f32(2.0**-20)}
        s_mov_b32 {s(T+3)}, {f32(2.0**100)}
        s_nop 6
        ds_write_b128 {v(self.V_EXW)}, {v(RO+48,4)} offset:2048
        ds_write_b128 {v(self.V_EXW)}, {v(RO+52,4)} offset:3072
        ds_write_b32 v48, {v(RO+56)} offset:256
        s_waitcnt vmcnt(0) lgkmcnt(0)
        s_barrier
        {f"s_memrealtime {s(S_ST+2*11,2)}" if self.stamps else ""}
        ds_read_b32 {v(RO+40)}, v49
        ds_read_b32 {v(RO+56)}, v49 offset:256
        ds_read_b128 {v(RO+32,4)}, {v(self.V_EXR)}
        ds_read_b128 {v(RO+36,4)}, {v(self.V_EXR)} offset:1024
        ds_read_b128 {v(RO+48,4)}, {v(self.V_EXR)} offset:2048
        ds_read_b128 {v(RO+52,4)}, {v(self.V_EXR)} offset:3072
        s_waitcnt lgkmcnt(4)
        v_add_f32 {v(RO+8)}, {v(RO+8)}, {v(RO+40)}
        v_add_f32 {v(RO+24)}, {v(RO+24)}, {v(RO+56)}
        v_cmp_le_f32 {s(T+4,2)}, {s(T+2)}, {v(RO+8)}
        v_cmp_le_f32 {s(T+6,2)}, {s(T+2)}, {v(RO+24)}
        v_add_f32 {v(RO+41)}, {v(RO+8)}, {v(RO+24)}
        s_waitcnt lgkmcnt(0)
        """)
        for b in range(2):
            for i in range(0, 8, 2):
                a(f"v_pk_add_f32 {v(RO+16*b+i,2)}, {v(RO+16*b+i,2)}, {v(RO+32+16*b+i,2)}")
        a.c("---- the zero shift is kept only if every row sum is in range and every sum is finite")
        a(f"""
        v_pk_add_f32 {v(RO+32,2)}, {v(RO,2)}, {v(RO+2,2)}
        v_pk_add_f32 {v(RO+34,2)}, {v(RO+4,2)}, {v(RO+6,2)}
        v_pk_add_f32 {v(RO+36,2)}, {v(RO+16,2)}, {v(RO+18,2)}
        v_pk_add_f32 {v(RO+38,2)}, {v(RO+20,2)}, {v(RO+22,2)}
        v_pk_add_f32 {v(RO+32,2)}, {v(RO+32,2)}, {v(RO+34,2)}
        v_pk_add_f32 {v(RO+36,2)}, {v(RO+36,2)}, {v(RO+38,2)}
        s_and_b64 {s(T+4,2)}, {s(T+4,2)}, {s(T+6,2)}
        v_pk_add_f32 {v(RO+32,2)}, {v(RO+32,2)}, {v(RO+36,2)}
        v_fma_f32 {v(RO+41)}, {v(RO+32)}, 0, {v(RO+41)}
        v_fma_f32 {v(RO+41)}, {v(RO+33)}, 0, {v(RO+41)}
        v_cmp_ge_f32 vcc, {s(T+3)}, {v(RO+41)}
        s_and_b64 vcc, vcc, {s(T+4,2)}
        s_cmp_eq_u64 vcc, -1
        s_cbranch_scc0 L_fallback
        L_norm:
        """)
        self.normalize([(RO, RO+8), (RO+16, RO+24)], 24)
        self.stamp(8)
        a.c("---- the linear-attention half of the output projection fills the hand-off wait")
        a("s_setprio 0")
        XF, WF, ACC = 128, 160, 96
        D = 4
        def rd(u):
            i = u % 8
            a(f"ds_read_b128 {v(XF+4*i,4)}, v14 offset:{u*1024}")
            for sx in range(2):
                a(f"ds_read_b64_tr_b16 {v(WF+4*i+2*sx,2)}, {v(self.V_WO)} offset:{(2*u+sx)*1024}")
        for u in range(D): rd(u)
        for u in range(32):
            if u + D < 32:
                rd(u+D); n = 3*D
            else:
                n = 3*(31-u)
            if u == self.o.get("y2", 12):
                a("s_waitcnt vmcnt(0)")
                a("s_barrier")
                self.stamp(9)
            a(f"s_waitcnt lgkmcnt({n})")
            i = u % 8
            a(f"v_mfma_f32_32x32x16_bf16 {v(ACC,16)}, {v(WF+4*i,4)}, {v(XF+4*i,4)}, {'0' if u == 0 else v(ACC,16)}")
        self.stamp(10)
        a("s_nop 7")
        a("s_nop 3")
        for h in range(2):
            for i in range(4*h, 4*h+4): a(f"v_cvt_pk_bf16_f32 {v(32+i)}, {v(ACC+2*i)}, {v(ACC+2*i+1)}")
            a(f"global_store_dwordx4 {v(self.V_OUT)}, {v(32+4*h,4)}, {s(S_OUTB,2)} offset:{16*h} {self.o.get('ost','')}")
        a("s_branch L_fin")

    def normalize(self, blocks, P, guard=True):
        a = self.a
        for N, R in blocks: a(f"v_rcp_f32 {v(R)}, {v(R)}")
        for b, (N, R) in enumerate(blocks):
            for i in range(0, 8, 2):
                a(f"v_pk_mul_f32 {v(N+i,2)}, {v(N+i,2)}, {v(R,2)} op_sel_hi:[1,0]")
            for i in range(4):
                a(f"v_cvt_pk_bf16_f32 {v(P+4*b+i)}, {v(N+2*i)}, {v(N+2*i+1)}")
            if guard: a(f"v_min_u32 {v(P+4*b)}, -2, {v(P+4*b)}")
            a(f"global_store_dwordx4 {v(self.V_IMG)}, {v(P+4*b,4)}, {s(S_WS,2)} offset:{1024*b} sc1")

    def attn_fallback(self, Lret):
        a = self.a
        RQ, RO, RS, RKV, RIDX, RKA, RVA = self.RQ, self.RO, self.RS, self.RKV, self.RIDX, self.RKA, self.RVA
        SB, SCNT = T, U+3
        NM = RS + 32
        a("L_fallback:")
        a(f"v_mov_b32 {v(RKV+20)}, 0xff800000")
        a(f"v_mov_b32 {v(RKV+21)}, 0xff800000")
        for ps in (0, 1):
            L = a.label("fb")
            self.add64(SB, S_WS, WS_KV)
            a(f"""
            s_mov_b32 {s(SCNT)}, 64
            {L}:
            global_load_dwordx4 {v(RKV,4)}, {v(RKA)}, {s(SB,2)} sc1
            """)
            if ps:
                a(f"global_load_dwordx4 {v(RKV+4,4)}, {v(RVA)}, {s(SB,2)} offset:{KVREC} sc1")
                a(f"global_load_dwordx4 {v(RKV+8,4)}, {v(RVA)}, {s(SB,2)} offset:{3*KVREC} sc1")
            self.add64(SB, SB, KVTILE)
            a("s_waitcnt vmcnt(0)")
            for b in range(2):
                c = v(NM+16*b, 16) if ps else "0"
                a(f"v_mfma_f32_32x32x16_bf16 {v(RS+16*b,16)}, {v(RKV,4)}, {v(RQ+4*b,4)}, {c}")
            a("s_nop 7")
            a("s_nop 4")
            for b in range(2):
                S = RS + 16*b
                if not ps:
                    for i in range(0, 16, 2):
                        a(f"v_max3_f32 {v(RKV+20+b)}, {v(S+i)}, {v(S+i+1)}, {v(RKV+20+b)}")
                else:
                    for i in range(16): a(f"v_exp_f32 {v(S+i)}, {v(S+i)}")
                    a("s_nop 1")
                    a(f"v_smfmac_f32_32x32x32_bf16 {v(RO+16*b,16)}, {v(RKV+4,4)}, {v(S,8)}, {v(RIDX)}")
                    a(f"v_smfmac_f32_32x32x32_bf16 {v(RO+16*b,16)}, {v(RKV+8,4)}, {v(S+8,8)}, {v(RIDX)}")
            a(f"""
            s_sub_u32 {s(SCNT)}, {s(SCNT)}, 1
            s_cmp_lg_u32 {s(SCNT)}, 0
            s_cbranch_scc1 {L}
            """)
            if not ps:
                for b in range(2):
                    m = RKV+20+b
                    a(f"""
                    v_mov_b32 {v(RKV+22)}, {v(m)}
                    s_nop 1
                    v_permlane32_swap_b32 {v(m)}, {v(RKV+22)}
                    s_nop 1
                    v_max_f32 {v(m)}, {v(m)}, {v(RKV+22)}
                    """)
                    for i in range(16): a(f"v_sub_f32 {v(NM+16*b+i)}, 0, {v(m)}")
                for i in range(32): a(f"v_mov_b32 {v(RO+i)}, 0")
        a("s_nop 7")
        a("s_nop 4")
        a(f"s_branch {Lret}")

    def outproj_wfrags(self):
        for u in range(16):
            for nb in range(2):
                for sx in range(2):
                    self.a(f"ds_read_b64_tr_b16 {v(128+8*u+4*nb+2*sx,2)}, {v(self.V_WO)} offset:{(2*u+sx)*1024+nb*512}")
    def gather_loads(self, p):
        self.add64(T, S_IMG, 4096*p)
        for k in range(4):
            self.a(f"global_load_dwordx4 {v(32+16*p+4*k,4)}, {v(V_L16)}, {s(T,2)} offset:{k*1024} sc1")
    def outproj(self):
        a = self.a
        a.c("=========================== output projection ===========================")
        a("L_gather:")
        for p in range(4):
            Ls = a.label("gs")
            a(f"s_bitcmp1_b32 {s(S_PEND)}, {p}")
            a(f"s_cbranch_scc0 {Ls}")
            self.gather_loads(p)
            a(f"{Ls}:")
        a(f"""
        s_cmp_eq_u32 {s(S_PEND)}, 15
        s_cbranch_scc1 L_consume
        s_waitcnt vmcnt(0)
        L_consume:
        s_waitcnt lgkmcnt(0)
        """)
        if self.o.get("tailst"):
            self.stamp(2)
        for p in range(4):
            Ls = a.label("cs")
            I = 32 + 16*p
            a(f"""
            s_bitcmp1_b32 {s(S_PEND)}, {p}
            s_cbranch_scc0 {Ls}
            s_waitcnt vmcnt({4*(3-p)})
            {f"s_memrealtime {s(S_ST+2*(3+p),2)}" if self.o.get("tailst") and p < 3 else ""}
            v_max3_u32 v16, {v(I)}, {v(I+4)}, {v(I+8)}
            v_max_u32 v16, v16, {v(I+12)}
            v_cmp_eq_u32 vcc, -1, v16
            s_cmp_lg_u64 vcc, 0
            s_cbranch_scc1 {Ls}
            s_bitset0_b32 {s(S_PEND)}, {p}
            """)
            for k in range(4):
                u = 4*p + k
                for nb in range(2):
                    acc = v(96+16*nb, 16)
                    a(f"v_mfma_f32_32x32x16_bf16 {acc}, {v(128+8*u+4*nb,4)}, {v(32+4*u,4)}, {acc}")
            a(f"{Ls}:")
        Lx = a.label("gx")
        a(f"""
        s_cmp_eq_u32 {s(S_PEND)}, 0
        s_cbranch_scc1 {Lx}
        s_add_u32 {s(T+9)}, {s(T+9)}, 1
        s_cmp_lt_u32 {s(T+9)}, {SPIN_MAX}
        s_cbranch_scc1 L_gather
        {Lx}:
        """)
        self.stamp(10)
        LK, LJ = a.label("k1"), a.label("kj")
        a(f"""
        s_nop 7
        s_cmp_eq_u32 {s(S_LO)}, 0
        s_cbranch_scc0 {LK}
        """)
        for i in range(4): a(f"ds_write_b128 {v(self.V_EXW)}, {v(112+4*i,4)} offset:{1024*i}")
        self.arrive(16)
        a(f"s_branch {LJ}")
        a(f"{LK}:")
        for i in range(4): a(f"ds_write_b128 {v(self.V_EXW)}, {v(96+4*i,4)} offset:{1024*i}")
        self.arrive(16)
        for i in range(0, 16, 2): a(f"v_mov_b64 {v(96+i,2)}, {v(112+i,2)}")
        a(f"{LJ}:")
        self.await_(16, sleep=0)
        for i in range(4): a(f"ds_read_b128 {v(112+4*i,4)}, {v(self.V_EXR)} offset:{1024*i}")
        for h in range(2):
            a(f"s_waitcnt lgkmcnt({2-2*h})")
            for i in range(8*h, 8*h+8, 2): a(f"v_pk_add_f32 {v(96+i,2)}, {v(96+i,2)}, {v(112+i,2)}")
            for i in range(4*h, 4*h+4): a(f"v_cvt_pk_bf16_f32 {v(32+i)}, {v(96+2*i)}, {v(97+2*i)}")
            a(f"global_store_dwordx4 {v(self.V_OUT)}, {v(32+4*h,4)}, {s(S_OUTB,2)} offset:{16*h} {self.o.get('ost','')}")

    def kv_setup(self):
        self.a(f"""
        v_and_b32 v96, 15, v0
        v_and_b32 v97, 3, v0
        v_bfe_u32 v98, v0, 2, 1
        v_lshl_add_u32 v97, v98, 3, v97
        v_bfe_u32 v98, v0, 3, 1
        v_lshl_add_u32 v97, v98, 2, v97
        s_bitcmp1_b32 {s(S_J)}, 0
        s_cselect_b64 vcc, -1, 0
        s_cselect_b32 {s(T+8)}, 1.0, {f32(0.25*LOG2E)}
        v_cndmask_b32 v96, v96, v97, vcc
        v_lshrrev_b32 v98, 4, v0
        v_lshrrev_b32 v97, 1, v96
        v_xor_b32 v97, v97, v98
        v_lshlrev_b32 v96, 7, v96
        v_lshl_add_u32 v96, v97, 4, v96
        s_and_b32 {s(T)}, {s(S_J)}, 6
        s_lshl_b32 {s(T)}, {s(T)}, 10
        v_add_u32 v96, {s(T)}, v96
        v_xor_b32 v97, 64, v96
        v_bfe_u32 v99, v0, 2, 2
        v_lshl_add_u32 v99, v98, 3, v99
        v_lshlrev_b32 v99, 5, v99
        v_and_b32 v100, 3, v0
        v_lshl_add_u32 v99, v100, 3, v99
        v_add_u32 v99, {L_WKV}, v99
        v_and_b32 v110, 1, v0
        v_add_u32 v110, -1, v110
        v_and_b32 v110, 0x3f803f80, v110
        v_mov_b32 v111, v110
        """)
    def kv_compute(self):
        a = self.a
        XF, WF = 128, 160
        def rd(t):
            a(f"ds_read_b128 {v(XF+4*(t%8),4)}, {v(96+(t&1))} offset:{(t//2)*8192}")
            a(f"ds_read_b64_tr_b16 {v(WF+4*(t%8),2)}, v99 offset:{t*1024}")
            a(f"ds_read_b64_tr_b16 {v(WF+4*(t%8)+2,2)}, v99 offset:{t*1024+128}")
        LV, LD = a.label("kvv"), a.label("kvd")
        D = 4
        for t in range(D): rd(t)
        a(f"s_bitcmp1_b32 {s(S_J)}, 0")
        a(f"s_cbranch_scc1 {LV}")
        for isv in (0, 1):
            if isv: a(f"{LV}:")
            for t in range(16):
                if t + D < 16:
                    rd(t + D); n = 3*D
                else:
                    n = 3*(15 - t)
                a(f"s_waitcnt lgkmcnt({n})")
                x, w = v(XF+4*(t%8),4), v(WF+4*(t%8),4)
                A, B = (x, w) if isv else (w, x)
                a(f"v_mfma_f32_16x16x32_bf16 v[104:107], {A}, {B}, {'0' if t == 0 else 'v[104:107]'}")
            if not isv: a(f"s_branch {LD}")
        a(f"""
        {LD}:
        s_nop 7
        v_pk_mul_f32 v[104:105], v[104:105], {s(T+8,2)} op_sel_hi:[1,0]
        v_pk_mul_f32 v[106:107], v[106:107], {s(T+8,2)} op_sel_hi:[1,0]
        v_cvt_pk_bf16_f32 v108, v104, v105
        v_cvt_pk_bf16_f32 v109, v106, v107
        s_nop 1
        v_permlane32_swap_b32 v108, v110
        v_permlane32_swap_b32 v109, v111
        s_mov_b32 exec_hi, 3
        global_store_dwordx4 v101, v[108:111], {s(S_WS,2)} sc1
        s_mov_b32 exec_hi, -1
        """)

    def phi(self, R):
        a = self.a
        TMP = 80
        a(f"s_mov_b32 {s(T)}, {f32(LOG2E)}")
        a(f"s_mov_b32 {s(T+2)}, {f32(1e-6)}")
        for i in range(0, 16, 2): a(f"v_pk_fma_f32 {v(TMP+i,2)}, {v(R+i,2)}, {s(T,2)}, v[18:19] op_sel_hi:[1,0,0]")
        for i in range(16): a(f"v_exp_f32 {v(TMP+i)}, {v(TMP+i)} clamp")
        for i in range(16): a(f"v_max_f32 {v(R+i)}, {s(T+2)}, {v(R+i)}")
        for i in range(0, 16, 2): a(f"v_pk_add_f32 {v(R+i,2)}, {v(R+i,2)}, {v(TMP+i,2)}")
        for i in range(0, 16, 2): a(f"v_cvt_pk_bf16_f32 {v(R+i//2)}, {v(R+i)}, {v(R+i+1)}")

    def roleB(self):
        a = self.a
        RB, HP, WB = S_HI, S_LO, S_W3
        SXM, SWM, SXO, SWO = U, U+1, U+2, U+3
        VX, VW, VO = 26, 28, 240
        XA, WA = 244, 248
        AK, AV, AQ = 32, 48, 64
        F = (96, 160)
        XF = 96
        X, Y = 224, 232
        V_L128, V_SX, V_L4, V_F4 = 10, 11, 12, 15
        VL, SL, SLO, SF1 = 80, 96, 60, 62
        HI, LOW = "s_setprio 3", f"s_setprio {self.o.get('bmm', 0)}"
        a.c("=========================== role B ===========================")
        a("L_roleB:")
        self.inB = True
        Lj = a.label("b")
        for u in range(8): a(f"v_add_u32 {v(VL+u)}, {8192*u}, v3")
        a(f"""
        s_lshl_b32 {s(SLO)}, {s(S_J)}, 7
        s_lshl_b32 {s(SL)}, {s(S_LO)}, 13
        s_cmp_lg_u32 {s(S_W)}, 5
        s_cbranch_scc1 {Lj}
        """)
        for u in range(6):
            a(f"""
            s_add_u32 {s(T)}, {s(S_J)}, {2+2*(u//2)}
            s_and_b32 {s(T)}, {s(T)}, 6
            s_add_u32 {s(T)}, {s(T)}, {u%2}
            s_lshl_b32 {s(SL+u)}, {s(T)}, 10
            s_lshl_b32 {s(T)}, {s(T)}, 13
            v_xor_b32 {v(VL+u)}, {64*(u%2)}, v2
            v_add_u32 {v(VL+u)}, {s(T)}, {v(VL+u)}
            """)
        a(f"s_lshl_b32 {s(SLO)}, {s(S_G)}, 16")
        a(f"""
        {Lj}:
        s_waitcnt lgkmcnt(0)
        s_load_dword {s(S_TAG)}, {s(S_WS,2)}, {WS_G}
        """)
        self.stamp(1)
        a("s_barrier")
        def xissue(q):
            for sl in (2*q, 2*q+1):
                a(f"""
                s_add_u32 {s(T)}, {s(S_KC0)}, {sl}
                s_and_b32 {s(T)}, {s(T)}, 7
                s_lshl_b32 {s(T)}, {s(T)}, 7
                s_add_u32 {s(T)}, {s(T)}, {s(SLO)}
                """)
                self.add64(T+2, S_AX, s(T))
                for u in range(6): self.emit(self.dma(VL+u, T+2, SL+u, L_X + sl*8192))
        def wissue(q):
            a(f"""
            s_add_u32 {s(T)}, {s(S_KC0)}, {s(S_LO)}
            s_add_u32 {s(T)}, {s(T)}, {2*q}
            s_and_b32 {s(T)}, {s(T)}, 7
            s_lshl_b32 {s(T)}, {s(T)}, 16
            s_add_u32 {s(T)}, {s(T)}, {s(SLO)}
            """)
            self.add64(T+2, S_WQ, s(T))
            for u in range(8): self.emit(self.dma(VL+u, T+2, SL, L_W + q*16384 + u*1024))
        a.c("---- B-side setup, all in the shadow of the head")
        a(f"""
        v_mov_b32 {v(VX)}, v2
        v_xor_b32 {v(VX+1)}, 64, v2
        v_add_u32 {v(VX+1)}, 8192, {v(VX+1)}
        v_mul_u32_u24 {v(VW)}, 3072, v8
        v_add_u32 {v(VW)}, {v(VW)}, v9
        v_mov_b32 {v(VO)}, v3
        """)
        for i in range(1, 4):
            a(f"v_add_u32 {v(VW+i)}, {24576*i}, {v(VW)}")
            a(f"v_add_u32 {v(VO+i)}, {8192*i}, v3")
        self.xfrag_addr(XA, RB, 20)
        self.wfrag_addr(WA, 20)
        self.tail_addr(L_X, 15, WS_OB, 0, 20)
        a(f"""
        s_lshl_b32 {s(SXM)}, {s(WB)}, 11
        s_lshl_b32 {s(SWM)}, {s(WB)}, 12
        s_lshl_b32 {s(SXO)}, {s(S_G)}, 16
        s_lshl_b32 {s(T)}, {s(WB)}, 14
        s_add_u32 {s(SXO)}, {s(SXO)}, {s(T)}
        s_mul_i32 {s(SWO)}, {s(HP)}, {32*3072}
        s_lshl_b32 {s(T)}, {s(S_J)}, 7
        s_add_u32 {s(SWO)}, {s(SWO)}, {s(T)}
        s_mov_b32 {s(T)}, {f32(1e-6)}
        s_mov_b32 {s(T+1)}, {f32(1e-6)}
        s_mov_b32 {s(T+2)}, 0x3f803f80
        s_mov_b32 {s(T+3)}, 0x3f803f80
        """)
        for i in range(0, 16, 2):
            a(f"v_mov_b64 {v(AK+i,2)}, {s(T,2)}")
            a(f"v_mov_b64 {v(AQ+i,2)}, {s(T,2)}")
            a(f"v_mov_b64 {v(X+i,2)}, {s(T+2,2)}")
        a(f"""
        v_mov_b32 v18, {f32(-1e-6*LOG2E)}
        v_mov_b64 v[252:253], -1
        v_mov_b64 v[254:255], -1
        v_mov_b32 v25, 63
        v_mul_u32_u24 v250, 12288, v0
        v_lshlrev_b32 v251, 12, v0
        v_lshlrev_b32 {v(V_L128)}, 7, v0
        s_lshl_b32 {s(T)}, {s(WB)}, 11
        s_add_u32 {s(T)}, {s(T)}, {L_MISC+0x1000}
        v_add_u32 {v(V_SX)}, {s(T)}, {v(V_L16)}
        v_lshlrev_b32 {v(V_L4)}, 2, v0
        v_and_b32 v22, 1, v0
        v_bfe_u32 v21, v0, 1, 2
        v_lshl_add_u32 v22, v21, 2, v22
        v_lshlrev_b32 {v(V_F4)}, 7, v22
        """)
        self.add64(SF1, S_WS, WS_F1)
        def tag():
            a(f"""
            s_waitcnt lgkmcnt(0)
            s_add_u32 {s(S_TAG)}, {s(S_TAG)}, 0x9e3779b9
            v_mov_b32 {v(V_TAG)}, {s(S_TAG)}
            """)
        def touch(spec):
            kind, lo, hi = spec
            if kind == "x":
                m = sum(1 << e for e in range(lo, hi)) * 0x01010101
                a(f"s_lshl_b32 {s(T)}, {s(S_C)}, 13")
                self.add64(T+2, S_BX, s(T))
                mlo = mhi = m; vr = V_L128
            else:
                base, rs, col = {"q": (S_WQKV, 3072, 0), "k": (S_WQKV, 3072, 1024), "v": (S_WQKV, 3072, 2048),
                                 "a": (S_AWO, 1024, 0), "b": (S_BWO, 1024, 0)}[kind]
                h = lo // 4
                m = sum(0xffff << (16*(e - 4*h)) for e in range(lo, hi))
                mlo, mhi = m & 0xffffffff, m >> 32
                a(f"""
                s_and_b32 {s(T)}, {s(S_G)}, 3
                s_mul_i32 {s(T)}, {s(T)}, {rs}
                s_lshl_b32 {s(T+1)}, {s(S_J)}, 7
                s_add_u32 {s(T)}, {s(T)}, {s(T+1)}
                s_add_u32 {s(T)}, {s(T)}, {h*256*rs + col}
                """)
                self.add64(T+2, base, s(T))
                vr = 250 if rs == 3072 else 251
            a(f"s_mov_b32 exec_lo, {mlo:#x}")
            a(f"s_mov_b32 exec_hi, {mhi:#x}")
            a(f"global_load_dword v19, {v(vr)}, {s(T+2,2)}")
            a("s_mov_b64 exec, -1")
        def touch_round(specs):
            Le = a.label("t")
            for w, sp in enumerate(specs):
                Ln = a.label("t")
                if w < 3:
                    a(f"s_cmp_lg_u32 {s(WB)}, {w}")
                    a(f"s_cbranch_scc1 {Ln}")
                if sp: touch(sp)
                else: a(f"global_load_dword v19, {v(V_ZERO)}, {s(S_WQKV,2)}")
                if w < 3: a(f"s_branch {Le}")
                a(f"{Ln}:")
            a(f"{Le}:")
        M4, M5, Mc = a.label("b"), a.label("b"), a.label("b")
        a(f"""
        s_cmp_eq_u32 {s(S_W)}, 4
        s_cbranch_scc1 {M4}
        s_cmp_eq_u32 {s(S_W)}, 5
        s_cbranch_scc1 {M5}
        """)
        for (iss, n, lab) in ((wissue, 8, None), (xissue, 12, M5)):
            if lab: a(f"{lab}:")
            iss(0); iss(1)
            for q in range(4):
                a(f"s_waitcnt vmcnt({n if q < 3 else 0})")
                self.arrive(20)
                if q < 2: iss(q+2)
            tag()
            n1 = self.o.get("n1", 0)
            if n1:
                if self.o.get("n1w", 1): self.await_(21, val="4", sleep=0)
                if lab: touch(("x", 0, n1))
                else:
                    Lk = a.label("t")
                    a(f"s_cmp_eq_u32 {s(S_W)}, 6")
                    a(f"s_cbranch_scc1 {Lk}")
                    touch(("v", 0, n1))
                    a(f"s_branch {Mc}")
                    a(f"{Lk}:")
                    touch(("k", 0, n1))
            a(f"s_branch {Mc}")
        a(f"{M4}:")
        a(f"s_mov_b32 {s(S_EPOCH)}, 2")
        self.arrive(20)
        self.kv_setup()
        a(f"""
        v_add_u32 v21, -16, {v(V_ALL)}
        s_mul_i32 {s(T)}, {s(S_C)}, {KVREC}
        s_add_u32 {s(T)}, {s(T)}, {WS_KV}
        v_add_u32 v101, {s(T)}, {v(V_L16)}
        s_add_u32 {s(T)}, {s(S_XCD)}, 1
        s_lshl_b32 {s(T)}, {s(T)}, 3
        v_add_u32 v22, {s(T)}, v0
        v_and_b32 v22, 63, v22
        v_lshlrev_b32 v22, 7, v22
        s_lshr_b32 {s(T+7)}, {s(S_C)}, 2
        s_lshl_b32 {s(T+7)}, {s(T+7)}, 5
        s_and_b32 {s(T)}, {s(S_C)}, 3
        s_add_u32 {s(T+7)}, {s(T+7)}, {s(T)}
        s_lshl_b32 {s(T)}, {s(S_C)}, 8
        s_add_u32 {s(T)}, {s(T)}, {WS_ACC}
        """)
        self.add64(T+2, S_WS, s(T))
        a.c("clear this CU's share of the state accumulators (ordered before the K/V flag)")
        a(f"global_store_dword {v(V_L4)}, {v(V_ZERO)}, {s(T+2,2)} sc1")
        if self.o.get("cpf", 1):
            a.c("pull the kernel's code into this die's L2 ahead of the instruction fetch")
            a(f"""
            s_getpc_b64 {s(T,2)}
            L_pc:
            s_sub_u32 {s(T)}, {s(T)}, L_pc-{NAME}_kernel
            s_subb_u32 {s(T+1)}, {s(T+1)}, 0
            s_lshr_b32 {s(T+2)}, s2, 3
            v_lshl_add_u32 v19, v0, 5, {s(T+2)}
            v_lshlrev_b32 v19, 7, v19
            v_cmp_gt_u32 vcc, L_last-{NAME}_kernel, v19
            s_and_saveexec_b64 {s(T+2,2)}, vcc
            global_load_dword v19, v19, {s(T,2)}
            s_mov_b64 exec, -1
            """)
        tag()
        self.await_(20, vaddr=21, val="8", sleep=0)
        self.stamp(2)
        self.kv_compute()
        self.arrive(20)
        self.flag(WS_F1, T+7, shift=2)
        self.stamp(11)
        if self.o.get("pd", 1): a("s_waitcnt vmcnt(0)")
        a("s_mov_b64 exec, 0xffff")
        self.poll4(22, SF1, 88, sleep=self.o.get("ps1", 1))
        a("s_mov_b64 exec, -1")
        a(f"{Mc}:")
        a(f"s_mov_b32 {s(S_EPOCH)}, 8")
        rb = self.o.get("rotB", 1)
        if rb == 0: a(f"s_mov_b32 {s(S_KC0)}, 0")
        if rb == 2:
            a(f"s_and_b32 {s(S_KC0)}, {s(S_G)}, 3")
            a(f"s_lshl_b32 {s(S_KC0)}, {s(S_KC0)}, 1")
        a(f"s_lshl_b32 {s(T)}, {s(WB)}, 11")
        self.add64(SF1, SF1, s(T))
        self.stamp(4)
        a("s_barrier")
        self.stamp(5)
        a(LOW)
        if self.o.get("noB"):
            a(f"ds_write_b32 {v(V_SLOT)}, v25 offset:48")
            a("s_branch L_Bend")
        vm = []
        def vmwait(label):
            n = len(vm) - 1 - max(i for i, x in enumerate(vm) if x == label)
            a(f"s_waitcnt vmcnt({n})")
            return n
        def loads(st):
            G = []
            slot = L_W + (st % 4)*16384
            if st < 8:
                pre = [f"s_add_u32 {s(T)}, {s(S_KC0)}, {st}",
                       f"s_and_b32 {s(T)}, {s(T)}, 7",
                       f"s_lshl_b32 {s(T+1)}, {s(T)}, 7",
                       f"s_add_u32 {s(T+1)}, {s(T+1)}, {s(SXO)}",
                       f"s_add_u32 {s(T+2)}, {s(S_BX)}, {s(T+1)}",
                       f"s_addc_u32 {s(T+3)}, {s(S_BX+1)}, 0"]
                G.append(pre + self.dma(VX, T+2, SXM, L_X + st*8192))
                G.append(self.dma(VX+1, T+2, SXM, L_X + st*8192 + 1024))
                pre = [f"s_mul_i32 {s(T)}, {s(T)}, {64*3072}",
                       f"s_add_u32 {s(T)}, {s(T)}, {s(SWO)}",
                       f"s_lshl_b32 {s(T+1)}, {s(RB)}, 10",
                       f"s_add_u32 {s(T)}, {s(T)}, {s(T+1)}",
                       f"s_add_u32 {s(T)}, {s(T)}, 1024",
                       f"s_add_u32 {s(T+2)}, {s(S_WQKV)}, {s(T)}",
                       f"s_addc_u32 {s(T+3)}, {s(S_WQKV+1)}, 0"]
                for i in range(4): G.append((pre if i == 0 else []) + self.dma(VW+i, T+2, SWM, slot + i*1024))
            elif st < 12:
                pre = [f"s_add_u32 {s(T)}, {s(S_KC0)}, {s(RB)}",
                       f"s_add_u32 {s(T)}, {s(T)}, {2*(st-8)}",
                       f"s_and_b32 {s(T)}, {s(T)}, 7",
                       f"s_mul_i32 {s(T)}, {s(T)}, {64*3072}",
                       f"s_add_u32 {s(T)}, {s(T)}, {s(SWO)}",
                       f"s_add_u32 {s(T+2)}, {s(S_WQKV)}, {s(T)}",
                       f"s_addc_u32 {s(T+3)}, {s(S_WQKV+1)}, 0"]
                for i in range(4): G.append((pre if i == 0 else []) + self.dma(VW+i, T+2, SWM, slot + i*1024))
            else:
                for (base, L) in ((S_AWO, L_X), (S_BWO, L_W))[:len(self.o.get("wip", "ab"))]:
                    pre = [f"s_lshl_b32 {s(T)}, {s(WB)}, 15",
                           f"s_lshl_b32 {s(T+1)}, {s(S_J)}, 7",
                           f"s_add_u32 {s(T)}, {s(T)}, {s(T+1)}",
                           f"s_add_u32 {s(T)}, {s(T)}, {(st-12)*131072}"] if L == L_X else []
                    pre += [f"s_add_u32 {s(T+2)}, {s(base)}, {s(T)}",
                            f"s_addc_u32 {s(T+3)}, {s(base+1)}, 0"]
                    for i in range(4): G.append((pre if i == 0 else []) + self.dma(VO+i, T+2, SWM, L + (st-12)*16384 + i*1024))
            return G
        def put(st, g):
            thr = self.o.get("thr") if st < 12 else None
            if thr: g = [x if x != "s_nop 0" else f"s_waitcnt vmcnt({thr-1})" for x in g]
            self.emit(g); vm.append(st)
        def reads(st):
            R = []; B = F[st % 2]; slot = (st % 4)*16384
            if st < 8:
                for t in range(4):
                    R.append(f"ds_read_b128 {v(B+12*t,4)}, {v(XA+t)} offset:{st*8192}")
                    for k in range(2):
                        for sx in range(2):
                            R.append(f"ds_read_b64_tr_b16 {v(B+12*t+4+4*k+2*sx,2)}, {v(WA)} offset:{slot + k*8192 + t*2048 + sx*256}")
            else:
                for t in range(8):
                    R.append(f"ds_read_b128 {v(B+8*t,4)}, {v(XA+(t&3))} offset:{(2*(st-8)+t//4)*8192}")
                    for sx in range(2):
                        R.append(f"ds_read_b64_tr_b16 {v(B+8*t+4+2*sx,2)}, {v(WA)} offset:{slot + t*2048 + sx*256}")
            return R
        def mfmas(st):
            M = []; B = F[st % 2]
            if st < 8:
                for t in range(4):
                    for k, acc in enumerate((AK, AV)):
                        c = "0" if (acc == AV and st == 0 and t == 0) else v(acc,16)
                        M.append(f"v_mfma_f32_32x32x16_bf16 {v(acc,16)}, {v(B+12*t,4)}, {v(B+12*t+4+4*k,4)}, {c}")
            else:
                for t in range(8):
                    M.append(f"v_mfma_f32_32x32x16_bf16 {v(AQ,16)}, {v(B+8*t+4,4)}, {v(B+8*t,4)}, {v(AQ,16)}")
            return M
        def arrive():
            a(HI); self.arrive(20); a(LOW)
        def iteration(i, after=None):
            M = mfmas(i)
            R = reads(i+1) if i < 11 else []
            G = [(st, g) for st in self.o.get("sched", {}).get(i, [i+4]) for g in loads(st)]
            Lok = a.label("ok")
            self.stamp(i+1, "it")
            a(f"ds_read_b32 v21, {v(V_ALL)}")
            a("s_waitcnt lgkmcnt(2)")
            a(M[0])
            a(f"""
            s_waitcnt lgkmcnt(0)
            {HI}
            v_cmp_gt_u32 vcc, {s(S_EPOCH)}, v21
            s_cmp_eq_u64 vcc, 0
            s_cbranch_scc1 {Lok}
            """)
            self.await_(21)
            a(f"{Lok}:")
            a(LOW)
            if i == self.o.get("fi", 9) + 1:
                Lf = a.label("b")
                a(f"s_cmp_lg_u32 {s(WB)}, 0")
                a(f"s_cbranch_scc1 {Lf}")
                self.flag(WS_F2, T+6, vm=None)
                a(f"{Lf}:")
                self.stamp(7)
            nr = -(-len(R) // 5); ng = -(-len(G) // 5)
            for k in range(1, 8):
                if k <= 5:
                    for x in R[(k-1)*nr:k*nr]: a(x)
                    for st, g in G[(k-1)*ng:k*ng]: put(st, g)
                if k == 6 and i < 11:
                    if i < 6: self.stamp(2*i+1, "vm")
                    if i == self.o.get("fi", 9): vmwait("part")
                    elif i + 2 <= 11 and i < self.o.get("fi", 9): vmwait(i+2)
                    if i < 6: self.stamp(2*i+2, "vm")
                    arrive()
                a(M[k])
            if i in self.o.get("tr", {}):
                touch_round(self.o["tr"][i]); vm.append("t")
            if after: after()
        a.c("---- B: k,v projections")
        a("s_sleep 1")
        a("s_mov_b64 exec, 0xffff")
        a(f"global_load_dwordx4 v[88:91], {v(V_L128)}, {s(SF1,2)} sc1"); vm.append("poll")
        a("s_mov_b64 exec, -1")
        G0 = [(st, g) for st in (0, 1) for g in loads(st)]
        for st, g in G0[:2]: put(st, g)
        Lr = a.label("b")
        vmwait("poll")
        a(HI)
        a("s_mov_b64 exec, 0xffff")
        self.check4(88)
        a(f"s_cbranch_scc1 {Lr}")
        self.poll4(V_L128, SF1, 88, sleep=4)
        a(f"{Lr}:")
        a("s_mov_b64 exec, -1")
        a(f"ds_write_b32 {v(V_SLOT)}, v25 offset:48")
        a(LOW)
        for st, g in G0[2:]: put(st, g)
        vmwait(0)
        a(HI)
        self.arrive(20)
        pro = self.o.get("pro", 4)
        if pro >= 3:
            for g in loads(2): put(2, g)
        self.await_(21)
        self.stamp(6)
        self.emit(reads(0))
        vmwait(1)
        self.arrive(20)
        a(LOW)
        if pro >= 4:
            for g in loads(3): put(3, g)
        if -1 in self.o.get("tr", {}):
            touch_round(self.o["tr"][-1]); vm.append("t")
        for i in range(8): iteration(i)
        a.c("---- B: phi(k), partial state")
        a(f"""
        s_lshl_b32 {s(T+6)}, {s(S_J)}, 2
        s_lshl_b32 {s(T)}, {s(HP)}, 1
        s_add_u32 {s(T+6)}, {s(T+6)}, {s(T)}
        s_add_u32 {s(T+6)}, {s(T+6)}, {s(RB)}
        s_lshl_b32 {s(T)}, {s(T+6)}, 11
        s_add_u32 {s(T)}, {s(T)}, {WS_ACC}
        s_lshl_b32 {s(T+6)}, {s(S_J)}, 5
        s_add_u32 {s(T+6)}, {s(T+6)}, {s(S_G)}
        """)
        self.add64(T+4, S_WS, s(T))
        a(HI)
        self.phi(AK)
        a("s_mov_b32 exec_lo, 0xffff")
        a("s_mov_b32 exec_hi, 0xffff")
        for i in range(8): a(f"v_cvt_pk_bf16_f32 {v(X+i)}, {v(AV+2*i)}, {v(AV+2*i+1)}")
        a("s_not_b64 exec, exec")
        for i in range(8): a(f"v_cvt_pk_bf16_f32 {v(Y+i)}, {v(AV+2*i)}, {v(AV+2*i+1)}")
        a("s_mov_b64 exec, -1")
        D0, D1 = F[1], F[1]+16
        LK, LJ, LK2, LJ2 = a.label("k1"), a.label("kj"), a.label("k2"), a.label("kj2")
        a(f"""
        {LOW}
        v_mfma_f32_32x32x16_bf16 {v(D0,16)}, {v(AK,4)}, {v(X,4)}, 0
        v_mfma_f32_32x32x16_bf16 {v(D1,16)}, {v(AK,4)}, {v(Y,4)}, 0
        v_mfma_f32_32x32x16_bf16 {v(D0,16)}, {v(AK+4,4)}, {v(X+4,4)}, {v(D0,16)}
        v_mfma_f32_32x32x16_bf16 {v(D1,16)}, {v(AK+4,4)}, {v(Y+4,4)}, {v(D1,16)}
        s_nop 8
        {HI}
        s_cmp_eq_u32 {s(RB)}, 0
        s_cbranch_scc0 {LK}
        ds_write_b128 {v(V_SX)}, {v(D1+8,4)}
        ds_write_b128 {v(V_SX)}, {v(D1+12,4)} offset:1024
        s_branch {LJ}
        {LK}:
        ds_write_b128 {v(V_SX)}, {v(D0,4)}
        ds_write_b128 {v(V_SX)}, {v(D0+4,4)} offset:1024
        {LJ}:
        """)
        self.softbar(20)
        a(f"""
        s_cmp_eq_u32 {s(RB)}, 0
        s_cbranch_scc0 {LK2}
        ds_read_b128 {v(D1+8,4)}, {v(V_SX)} offset:4096
        ds_read_b128 {v(D1+12,4)}, {v(V_SX)} offset:5120
        s_branch {LJ2}
        {LK2}:
        v_add_u32 {v(V_SX)}, -4096, {v(V_SX)}
        ds_read_b128 {v(D0,4)}, {v(V_SX)}
        ds_read_b128 {v(D0+4,4)}, {v(V_SX)} offset:1024
        {LJ2}:
        s_waitcnt lgkmcnt(0)
        """)
        for i in range(0, 8, 2): a(f"v_pk_add_f32 {v(AK+i,2)}, {v(D0+i,2)}, {v(D1+8+i,2)}")
        for i in range(8):
            a(f"global_atomic_add_f32 {v(V_L4)}, {v(AK+i)}, {s(T+4,2)} offset:{256*i} sc1"); vm.append("part")
        a(LOW)
        self.stamp(3)
        a.c("---- B: q projection")
        for i in range(8, 12): iteration(i)
        a.c("mark the A-side output images of the matching wave as not yet written")
        a(f"s_sub_u32 {s(T)}, {s(S_WS)}, {WS_OB-WS_OA}")
        a(f"s_subb_u32 {s(T+1)}, {s(S_WS+1)}, 0")
        a(f"global_store_dwordx4 {v(self.V_IMG)}, v[252:255], {s(T,2)} sc1")
        a(f"global_store_dwordx4 {v(self.V_IMG)}, v[252:255], {s(T,2)} offset:1024 sc1")
        wt = self.o.get("wthr", 4)
        def wo_loads(base, L, mid=None):
            for u in range(4):
                a(f"""
                s_add_u32 {s(T)}, {s(S_G)}, {u}
                s_and_b32 {s(T)}, {s(T)}, 3
                s_lshl_b32 {s(T+7)}, {s(T)}, 14
                s_add_u32 {s(T+7)}, {s(T+7)}, {s(SWM)}
                s_lshl_b32 {s(T)}, {s(T)}, 17
                s_add_u32 {s(T)}, {s(T)}, {s(SWO)}
                """)
                self.add64(T+2, base, s(T))
                for i in range(4):
                    self.emit([x if x != "s_nop 0" else f"s_waitcnt vmcnt({wt-1})" for x in self.dma(VO+i, T+2, T+7, L + i*1024)])
                if mid and u == 0: mid()
        a(f"""
        s_lshl_b32 {s(SWO)}, {s(WB)}, 15
        s_lshl_b32 {s(T)}, {s(S_J)}, 7
        s_add_u32 {s(SWO)}, {s(SWO)}, {s(T)}
        """)
        def phiq():
            a(HI); self.phi(AQ); a(LOW)
        self.stamp(1, "hop")
        if "a" in self.o.get("wip", "ab"):
            a("s_nop 2")
            phiq()
        else: wo_loads(S_AWO, L_X, phiq)
        self.stamp(2, "hop")
        a.c("---- B: the summed state")
        LR = a.label("nr")
        a(f"""
        {HI}
        s_cmp_lg_u32 {s(WB)}, 1
        s_cbranch_scc1 {LR}
        s_lshl_b32 {s(T)}, {s(S_J)}, 12
        s_add_u32 {s(T)}, {s(T)}, {WS_F2}
        """)
        self.add64(T+4, S_WS, s(T))
        a("s_mov_b32 exec_hi, 0")
        self.poll(V_L128, T+4, [0], 21, sleep=8)
        a("s_mov_b32 exec_hi, -1")
        a(f"{LR}:")
        a("s_waitcnt vmcnt(0)")
        self.softbar(20, sleep=2)
        self.stamp(3, "hop")
        self.stamp(8)
        D0, D1 = AK, AV
        a(f"""
        s_lshl_b32 {s(T)}, {s(S_J)}, 1
        s_add_u32 {s(T)}, {s(T)}, {s(HP)}
        s_lshl_b32 {s(T)}, {s(T)}, 12
        s_add_u32 {s(T)}, {s(T)}, {WS_ACC}
        """)
        self.add64(T+4, S_WS, s(T))
        for i in range(16): a(f"global_load_dword {v(XF+i)}, {v(V_L4)}, {s(T+4,2)} offset:{256*i} sc1")
        if "b" not in self.o.get("wip", "ab"):
            for i in range(4): a(f"v_mov_b32 {v(VW+i)}, {v(VO+i)}")
        VO = VW
        self.outproj_wfrags()
        self.arrive(20)
        a("s_waitcnt vmcnt(0)")
        self.stamp(4, "hop")
        for i in range(8): a(f"v_cvt_pk_bf16_f32 {v(XF+i)}, {v(XF+2*i)}, {v(XF+2*i+1)}")
        a(f"""
        s_nop 1
        v_mfma_f32_32x32x16_bf16 {v(D0,16)}, {v(XF,4)}, {v(AQ,4)}, 0
        v_mfma_f32_32x32x16_bf16 {v(D1,16)}, {v(XF+4,4)}, {v(AQ+4,4)}, 0
        s_nop 7
        s_nop 3
        v_add_f32 {v(D0+8)}, {f32(1e-6)}, {v(D0+8)}
        v_add_f32 {v(D1)}, {f32(1e-6)}, {v(D1)}
        """)
        self.normalize([(D0, D0+8), (D1+8, D1)], 80, guard=False)
        a(LOW)
        self.stamp(5, "hop")
        def pub4():
            a(f"""
            s_lshl_b32 {s(T+6)}, {s(S_C)}, 2
            s_add_u32 {s(T+6)}, {s(T+6)}, {s(WB)}
            """)
            self.flag(WS_F4, T+6, vm=0 if "b" in self.o.get("wip", "ab") else 4)
            self.stamp(6, "hop")
            self.stamp(12)
        if "b" in self.o.get("wip", "ab"):
            pub4()
            a("s_waitcnt vmcnt(0)")
        else: wo_loads(S_BWO, L_W, pub4)
        a(f"""
        s_lshl_b32 {s(T)}, {s(S_G)}, 5
        s_lshl_b32 {s(T+1)}, {s(HP)}, 4
        s_add_u32 {s(T)}, {s(T)}, {s(T+1)}
        s_lshl_b32 {s(T+1)}, {s(RB)}, 1
        s_add_u32 {s(T)}, {s(T)}, {s(T+1)}
        s_lshl_b32 {s(T)}, {s(T)}, 7
        s_add_u32 {s(T)}, {s(T)}, {WS_F4}
        """)
        self.add64(T+4, S_WS, s(T))
        self.stamp(7, "hop")
        a(HI)
        a("s_mov_b64 exec, 0xff")
        self.poll(V_F4, T+4, [0], 21, sleep=8)
        a("s_mov_b64 exec, -1")
        self.await_(20)
        self.stamp(8, "hop")
        a.c("---- B: the group's o_B images go to LDS for the A waves")
        a(f"s_lshl_b32 {s(SWM)}, {s(WB)}, 14")
        ot = self.o.get("othr", 6)
        for p in range(4):
            a(f"""
            s_add_u32 {s(T)}, {s(S_J)}, {p}
            s_and_b32 {s(T)}, {s(T)}, 3
            s_lshl_b32 {s(T)}, {s(T)}, 12
            s_add_u32 m0, {s(SWM)}, {s(T)}
            s_add_u32 {s(T)}, {s(T)}, {WS_OB-WS_OA}
            """)
            self.add64(T+2, S_IMG, s(T))
            for k in range(4):
                a(f"s_waitcnt vmcnt({ot-1})")
                a(f"global_load_lds_dwordx4 {v(V_L16)}, {s(T+2,2)} offset:{k*1024} sc1")
        if self.o.get("touch", 1):
            a(f"global_load_dword v21, {v(V_ZERO)}, {s(S_OUTB,2)}")
        a("L_Bend:")
        for i in range(0, 32, 2): a(f"v_mov_b64 {v(96+i,2)}, 0")
        a(f"s_mov_b32 {s(S_PEND)}, 15")
        a(f"s_mov_b32 {s(T+9)}, 0")
        a(HI)
        a("s_waitcnt vmcnt(0) lgkmcnt(0)")
        self.stamp(9)
        self.stamp(9, "hop")
        a("s_barrier")
        a.c("every wave of the grid has used this launch's tag by now: advance the generation word")
        Lg = a.label("b")
        a(f"""
        s_lshl_b32 {s(T)}, s2, 2
        s_add_u32 {s(T)}, {s(T)}, {s(WB)}
        s_cmp_lg_u32 {s(T)}, 0
        s_cbranch_scc1 {Lg}
        s_mov_b64 exec, 1
        global_store_dword {v(V_ZERO)}, {v(V_TAG)}, {s(S_WS,2)} offset:{WS_G} sc1
        s_mov_b64 exec, -1
        {Lg}:
        s_barrier
        """)

    def finish(self):
        a = self.a
        a("L_fin:")
        if self.stamps:
            a("s_waitcnt vmcnt(0)")
            self.stamp(13)
            a(f"""
            s_waitcnt lgkmcnt(0)
            s_cmp_ge_u32 {s(S_W)}, 4
            s_cselect_b32 {s(S_ST+28)}, {s(T+9)}, {s(S_ST+28)}
            s_lshl_b32 {s(T)}, s2, 3
            s_add_u32 {s(T)}, {s(T)}, {s(S_W)}
            s_lshl_b32 {s(T)}, {s(T)}, 6
            s_add_u32 {s(T)}, {s(T)}, {WS_STAMP}
            v_mov_b32 v20, {s(T)}
            """)
            for i in range(16): a(f"v_mov_b32 {v(32+i)}, {s(S_ST+2*i)}")
            for i in range(4): a(f"global_store_dwordx4 v20, {v(32+4*i,4)}, {s(S_WS,2)} offset:{16*i}")
        a("L_end:")
        a("s_endpgm")

    def build(self):
        self.entry()
        self.head_A()
        self.attn()
        self.tail_A()
        self.roleB()
        self.outproj()
        self.finish()
        self.a("L_last:")
        self.attn_fallback("L_norm")
        return self.wrap()

    def wrap(self):
        hdr = open("cdna_kernels/%s.s.ref" % NAME).read().split("; Override launch")[0]
        return hdr + f"""; Override launch geometry by editing the next line (default: block=256,
; grid=ceil(out_elems/256), lds=0). Harness parses it; keep it on one line.
; @launch grid=(256,1,1) block=(512,1,1) lds={LDS_BYTES}
.amdgcn_target "amdgcn-amd-amdhsa--gfx950"
.text
.globl {NAME}_kernel
.p2align 8
.type {NAME}_kernel,@function
{NAME}_kernel:
""" + self.a.text() + f""".section .rodata,"a"
.p2align 6
.amdhsa_kernel {NAME}_kernel
  .amdhsa_next_free_vgpr 256
  .amdhsa_next_free_sgpr 102
  .amdhsa_accum_offset 256
  .amdhsa_group_segment_fixed_size 0
  .amdhsa_kernarg_size 88
  .amdhsa_user_sgpr_count 2
  .amdhsa_user_sgpr_kernarg_segment_ptr 1
  .amdhsa_system_sgpr_workgroup_id_x 1
  .amdhsa_dx10_clamp 0
.end_amdhsa_kernel
"""

if __name__ == "__main__":
    out = sys.argv[1]
    stamps = "--stamps" in sys.argv
    opts = {}
    for x in sys.argv[2:]:
        if "=" in x:
            k, val = x.split("=", 1); opts[k] = eval(val)
    open(out, "w").write(Gen(stamps=stamps, opts=opts).build())
```

```python
import sys, struct
from asmlib import *

NAME = "concat_heads__grouped_kv_mqa__linear_attn_block__prompt"
def f32(x): return "0x%08x" % struct.unpack("<I", struct.pack("<f", x))[0]
LOG2E = 1.4426950408889634

WS_G   = 0x0
WS_F1  = 0x8000
WS_ACC = 0x10000
WS_KV  = 0x20000
WS_F2  = 0x60000
WS_F4  = 0x80000
WS_OA  = 0x100000
WS_OB  = 0x300000
WS_STAMP = 0x800000
KVREC = 640
KVTILE = 4*KVREC
L_X   = 0
L_W   = 0x10000
L_WKV = 0x20000
L_MISC= 0x24000
L_SYNC= L_MISC + 0x3f00
LDS_BYTES = 0x28000
SPIN_MAX = 200000

S_AX, S_WQ, S_WK, S_WV, S_AWO, S_BX, S_WQKV, S_BWO = 8, 10, 12, 14, 16, 18, 20, 22
S_OUT, S_WS = 24, 26
S_W, S_G, S_J, S_C, S_TAG, S_XCD, S_KC0, S_EPOCH = 28, 29, 30, 31, 32, 33, 34, 35
T = 36
S_HI, S_LO, S_W3 = 50, 51, 52
S_IMG = 54
S_OUTB = 56
S_EX = 58
S_PEND = 59
U = 4
S_ST = 64
V_L16, V_SLOT, V_ALL, V_TAG, V_ZERO = 4, 5, 6, 7, 1

class Gen:
    def __init__(self, stamps=False, opts=None):
        self.a = Asm()
        self.stamps = stamps
        self.o = opts or {}
        self.inB = False
    def stamp(self, i, grp=None):
        if grp != self.o.get("stg") and (grp or (self.inB and self.o.get("stg") and i not in (0, 13))): return
        if self.stamps:
            self.a(f"s_memrealtime {s(S_ST+2*i,2)}")
            cyc = self.o.get("cyc", (6, 7))
            if i in cyc:
                self.a(f"s_memtime {s(S_ST+2*(14+list(cyc).index(i)),2)}")
    def add64(self, dst, base, off):
        self.a(f"s_add_u32 {s(dst)}, {s(base)}, {off}")
        self.a(f"s_addc_u32 {s(dst+1)}, {s(base+1)}, 0")
    def dma(self, vreg, pair, m0s, m0i, off=0):
        return [f"s_add_u32 m0, {s(m0s)}, {m0i}", "s_nop 0",
                f"global_load_lds_dwordx4 {v(vreg)}, {s(pair,2)}" + (f" offset:{off}" if off else "")]
    def emit(self, L):
        for x in L: self.a(x)
    def poll(self, vaddr, pair, offs, vt, sleep=2):
        a = self.a
        Lp, Ld = a.label("poll"), a.label("polld")
        a(f"s_mov_b32 {s(T+10)}, 0")
        a(f"{Lp}:")
        for i, o in enumerate(offs):
            a(f"global_load_dword {v(vt+i)}, {v(vaddr)}, {s(pair,2)} offset:{o} sc1")
        a("s_waitcnt vmcnt(0)")
        for i in range(len(offs)):
            if i == 0:
                a(f"v_cmp_ne_u32 vcc, {s(S_TAG)}, {v(vt)}")
            else:
                a(f"v_cmp_ne_u32 {s(T+12,2)}, {s(S_TAG)}, {v(vt+i)}")
                a(f"s_or_b64 vcc, vcc, {s(T+12,2)}")
        a(f"s_add_u32 {s(T+10)}, {s(T+10)}, 1")
        a(f"s_cmp_eq_u64 vcc, 0")
        a(f"s_cbranch_scc1 {Ld}")
        if sleep: a(f"s_sleep {sleep}")
        a(f"s_cmp_lt_u32 {s(T+10)}, {SPIN_MAX}")
        a(f"s_cbranch_scc1 {Lp}")
        a(f"{Ld}:")
    def check4(self, vt):
        a = self.a
        a(f"v_cmp_ne_u32 vcc, {s(S_TAG)}, {v(vt)}")
        for i in range(1, 4):
            a(f"v_cmp_ne_u32 {s(T+12,2)}, {s(S_TAG)}, {v(vt+i)}")
            a(f"s_or_b64 vcc, vcc, {s(T+12,2)}")
        a(f"s_cmp_eq_u64 vcc, 0")
    def poll4(self, vaddr, pair, vt, sleep):
        a = self.a
        Lp, Ld = a.label("poll"), a.label("polld")
        a(f"s_mov_b32 {s(T+10)}, 0")
        a(f"{Lp}:")
        a(f"global_load_dwordx4 {v(vt,4)}, {v(vaddr)}, {s(pair,2)} sc1")
        a(f"s_add_u32 {s(T+10)}, {s(T+10)}, 1")
        a("s_waitcnt vmcnt(0)")
        self.check4(vt)
        a(f"s_cbranch_scc1 {Ld}")
        if sleep: a(f"s_sleep {sleep}")
        a(f"s_cmp_lt_u32 {s(T+10)}, {SPIN_MAX}")
        a(f"s_cbranch_scc1 {Lp}")
        a(f"{Ld}:")
    def flag(self, base, sidx, vm=0, shift=7):
        a = self.a
        a(f"s_lshl_b32 {s(T+10)}, {s(sidx)}, {shift}")
        a(f"s_add_u32 {s(T+10)}, {s(T+10)}, {base}")
        self.add64(T+12, S_WS, s(T+10))
        if vm is not None: a(f"s_waitcnt vmcnt({vm})")
        a("s_mov_b64 exec, 1")
        a(f"global_store_dword {v(V_ZERO)}, {v(V_TAG)}, {s(T+12,2)} sc1")
        a("s_mov_b64 exec, -1")
    def arrive(self, vt):
        a = self.a
        a(f"s_add_u32 {s(S_EPOCH)}, {s(S_EPOCH)}, 1")
        a(f"v_mov_b32 {v(vt)}, {s(S_EPOCH)}")
        a(f"ds_write_b32 {v(V_SLOT)}, {v(vt)}")
    def await_(self, vt, vaddr=V_ALL, val=None, off=0, sleep=1):
        a = self.a
        Lp, Ld = a.label("sb"), a.label("sbd")
        a(f"s_mov_b32 {s(T+10)}, 0")
        a(f"{Lp}:")
        a(f"ds_read_b32 {v(vt)}, {v(vaddr)} offset:{off}")
        a("s_waitcnt lgkmcnt(0)")
        a(f"v_cmp_gt_u32 vcc, {val or s(S_EPOCH)}, {v(vt)}")
        a(f"s_add_u32 {s(T+10)}, {s(T+10)}, 1")
        a(f"s_cmp_eq_u64 vcc, 0")
        a(f"s_cbranch_scc1 {Ld}")
        if sleep: a(f"s_sleep {sleep}")
        a(f"s_cmp_lt_u32 {s(T+10)}, {SPIN_MAX*8}")
        a(f"s_cbranch_scc1 {Lp}")
        a(f"{Ld}:")
    def softbar(self, vt, sleep=1):
        self.arrive(vt); self.await_(vt, sleep=sleep)

    def entry(self):
        a = self.a
        a(f"""
        s_cmp_ge_u32 s2, 256
        s_cbranch_scc1 L_end
        """)
        self.stamp(0)
        if self.o.get("spin"): a("s_memrealtime s[64:65]")
        a(f"""
        s_load_dwordx16 s[8:23], s[0:1], 0
        s_load_dwordx2 {s(S_OUT,2)}, s[0:1], 64
        s_load_dwordx2 {s(S_WS,2)}, s[0:1], 80
        v_lshrrev_b32 v1, 6, v0
        v_and_b32 v0, 63, v0
        v_readfirstlane_b32 {s(S_W)}, v1
        s_and_b32 {s(S_XCD)}, s2, 7
        s_lshr_b32 {s(T)}, s2, 6
        s_lshl_b32 {s(S_G)}, {s(S_XCD)}, 2
        s_add_u32 {s(S_G)}, {s(S_G)}, {s(T)}
        s_lshr_b32 {s(S_J)}, s2, 3
        s_and_b32 {s(S_J)}, {s(S_J)}, 7
        s_lshl_b32 {s(S_C)}, {s(S_G)}, 3
        s_add_u32 {s(S_C)}, {s(S_C)}, {s(S_J)}
        s_lshl_b32 {s(T)}, {s(T)}, 1
        s_add_u32 {s(S_KC0)}, {s(T)}, {s(S_J)}
        s_and_b32 {s(S_KC0)}, {s(S_KC0)}, {7 if self.o.get('rot', 1) else 0}
        s_mov_b32 {s(S_EPOCH)}, 0
        s_and_b32 {s(S_W3)}, {s(S_W)}, 3
        s_lshr_b32 {s(S_HI)}, {s(S_W3)}, 1
        s_and_b32 {s(S_LO)}, {s(S_W)}, 1
        v_mov_b32 {v(V_ZERO)}, 0
        v_lshlrev_b32 {v(V_L16)}, 4, v0
        v_lshlrev_b32 v9, 2, v0
        v_add_u32 v9, {L_SYNC}, v9
        ds_write_b32 v9, {v(V_ZERO)}
        """)
        a(f"""
        v_lshrrev_b32 v8, 3, v0
        v_lshlrev_b32 v2, 10, v8
        v_and_b32 v9, 7, v0
        v_lshrrev_b32 v10, 4, v0
        v_xor_b32 v9, v9, v10
        v_lshl_add_u32 v2, v9, 4, v2
        s_lshl_b32 {s(T)}, {s(S_W)}, 2
        s_add_u32 {s(T)}, {s(T)}, {L_SYNC}
        v_mov_b32 {v(V_SLOT)}, {s(T)}
        s_and_b32 {s(T)}, {s(T)}, -16
        v_and_b32 v9, 3, v0
        v_lshl_add_u32 {v(V_ALL)}, v9, 2, {s(T)}
        v_bfe_u32 v8, v0, 2, 3
        v_lshlrev_b32 v9, 4, v9
        v_lshrrev_b32 v10, 5, v0
        v_lshl_add_u32 v9, v10, 6, v9
        v_lshl_add_u32 v3, v8, 10, v9
        s_cmp_ge_u32 {s(S_W)}, 4
        s_cbranch_scc1 L_roleB
        """)

    def xfrag_addr(self, dst, sblk, vt):
        self.a(f"""
        v_and_b32 {v(vt)}, 31, v0
        v_lshlrev_b32 {v(vt+1)}, 7, {v(vt)}
        s_lshl_b32 {s(T)}, {s(sblk)}, 12
        v_add_u32 {v(vt+1)}, {s(T)}, {v(vt+1)}
        v_bfe_u32 {v(vt)}, v0, 1, 3
        v_lshrrev_b32 {v(vt+2)}, 5, v0
        v_xor_b32 {v(vt)}, {v(vt)}, {v(vt+2)}
        v_lshl_add_u32 {v(dst)}, {v(vt)}, 4, {v(vt+1)}
        v_xor_b32 {v(dst+1)}, 32, {v(dst)}
        v_xor_b32 {v(dst+2)}, 64, {v(dst)}
        v_xor_b32 {v(dst+3)}, 0x60, {v(dst)}
        """)
    def wfrag_addr(self, dst, vt):
        self.a(f"""
        v_bfe_u32 {v(vt)}, v0, 2, 2
        v_lshlrev_b32 {v(vt)}, 6, {v(vt)}
        v_bfe_u32 {v(vt+1)}, v0, 4, 1
        v_lshl_add_u32 {v(vt)}, {v(vt+1)}, 5, {v(vt)}
        v_and_b32 {v(vt+1)}, 3, v0
        v_lshl_add_u32 {v(vt)}, {v(vt+1)}, 3, {v(vt)}
        v_lshrrev_b32 {v(vt+1)}, 5, v0
        v_lshl_add_u32 {v(vt)}, {v(vt+1)}, 10, {v(vt)}
        s_lshl_b32 {s(T)}, {s(S_LO)}, 9
        s_add_u32 {s(T)}, {s(T)}, {L_W}
        v_add_u32 {v(dst)}, {s(T)}, {v(vt)}
        """)
    V_WO, V_EXW, V_EXR, V_OUT, V_IMG = 8, 9, 3, 2, 13
    def tail_addr(self, lbase, loshift, ownimg, colbytes, vt):
        a = self.a
        a(f"""
        v_bfe_u32 {v(vt)}, v0, 2, 2
        v_lshlrev_b32 {v(vt)}, 6, {v(vt)}
        v_lshrrev_b32 {v(vt+1)}, 5, v0
        v_lshl_add_u32 {v(vt)}, {v(vt+1)}, 8, {v(vt)}
        v_and_b32 {v(vt+2)}, 1, v0
        v_lshl_add_u32 {v(vt)}, {v(vt+2)}, 5, {v(vt)}
        v_bfe_u32 {v(vt+2)}, v0, 1, 1
        v_lshl_add_u32 {v(vt)}, {v(vt+2)}, 3, {v(vt)}
        v_bfe_u32 {v(vt+2)}, v0, 4, 1
        v_lshl_add_u32 {v(vt)}, {v(vt+2)}, 4, {v(vt)}
        s_lshl_b32 {s(T)}, {s(S_LO)}, {loshift}
        s_add_u32 {s(T)}, {s(T)}, {lbase}
        v_add_u32 {v(self.V_WO)}, {s(T)}, {v(vt)}
        s_lshl_b32 {s(T)}, {s(S_W3)}, 12
        s_add_u32 {s(T)}, {s(T)}, {L_WKV}
        v_add_u32 {v(self.V_EXW)}, {s(T)}, {v(V_L16)}
        v_xor_b32 {v(self.V_EXR)}, 4096, {v(self.V_EXW)}
        v_and_b32 {v(vt)}, 31, v0
        v_lshlrev_b32 {v(vt)}, 11, {v(vt)}
        v_lshl_add_u32 {v(self.V_OUT)}, {v(vt+1)}, 5, {v(vt)}
        s_lshl_b32 {s(T)}, {s(S_G)}, 1
        s_add_u32 {s(T)}, {s(T)}, {s(S_HI)}
        s_lshl_b32 {s(T+1)}, {s(T)}, 16
        s_lshl_b32 {s(T+2)}, {s(S_J)}, 1
        s_add_u32 {s(T+2)}, {s(T+2)}, {s(S_LO)}
        s_lshl_b32 {s(T+3)}, {s(T+2)}, 6
        s_add_u32 {s(T+1)}, {s(T+1)}, {s(T+3)}
        s_add_u32 {s(T+1)}, {s(T+1)}, {colbytes}
        """)
        self.add64(S_OUTB, S_OUT, s(T+1))
        a(f"""
        s_lshl_b32 {s(T)}, {s(T)}, 15
        s_lshl_b32 {s(T+2)}, {s(T+2)}, 11
        s_add_u32 {s(T+2)}, {s(T+2)}, {s(T)}
        s_add_u32 {s(T+2)}, {s(T+2)}, {ownimg}
        v_add_u32 {v(self.V_IMG)}, {s(T+2)}, {v(V_L16)}
        s_lshl_b32 {s(T+1)}, {s(S_LO)}, 14
        s_add_u32 {s(T)}, {s(T)}, {s(T+1)}
        s_add_u32 {s(T)}, {s(T)}, {WS_OA}
        """)
        self.add64(S_IMG, S_WS, s(T))

    RQ, RO, RS, RKV = 16, 64, 128, 192
    RIDX, RKA, RVA = 10, 11, 12
    def head_A(self):
        a = self.a
        RQ, RO, RS, RKV, RIDX, RKA, RVA = self.RQ, self.RO, self.RS, self.RKV, self.RIDX, self.RKA, self.RVA
        XA, WA = 248, 252
        a.c("=========================== role A ===========================")
        a.c("---- what the K/V producer needs goes first")
        a(f"""
        v_xor_b32 v10, 64, v2
        v_add_u32 v10, 8192, v10
        s_and_b32 {s(T+1)}, {s(S_J)}, 6
        s_lshl_b32 {s(T+6)}, {s(S_G)}, 16
        s_lshl_b32 {s(T+2)}, {s(T+1)}, 13
        s_add_u32 {s(T+6)}, {s(T+6)}, {s(T+2)}
        s_lshl_b32 {s(T+7)}, {s(S_W)}, 14
        s_lshl_b32 {s(T+2)}, {s(T+1)}, 10
        s_add_u32 {s(T+7)}, {s(T+7)}, {s(T+2)}
        s_lshl_b32 {s(T+8)}, {s(S_W)}, 12
        s_lshl_b32 {s(T+9)}, {s(S_W)}, 1
        s_add_u32 {s(T+9)}, {s(T+9)}, {s(S_KC0)}
        s_mov_b32 {s(S_EPOCH)}, 7
        s_waitcnt lgkmcnt(0)
        """)
        self.stamp(1)
        a(f"""
        s_bitcmp1_b32 {s(S_J)}, 0
        s_cselect_b32 {s(S_WK)}, {s(S_WV)}, {s(S_WK)}
        s_cselect_b32 {s(S_WK+1)}, {s(S_WV+1)}, {s(S_WK+1)}
        """)
        for i in range(2):
            a(f"""
            s_add_u32 {s(T)}, {s(T+9)}, {i}
            s_and_b32 {s(T)}, {s(T)}, 7
            s_lshl_b32 {s(T+1)}, {s(T)}, 7
            s_add_u32 {s(T+1)}, {s(T+1)}, {s(T+6)}
            """)
            self.add64(T+2, S_AX, s(T+1))
            a(f"s_lshl_b32 {s(T)}, {s(T)}, 11")
            self.add64(T+4, S_WK, s(T))
            self.emit(self.dma(2, T+2, T+7, L_X + i*8192))
            self.emit(self.dma(10, T+2, T+7, L_X + i*8192 + 1024))
            self.emit(self.dma(V_L16, T+4, T+8, L_WKV + i*2048))
            a(f"global_load_lds_dwordx4 {v(V_L16)}, {s(T+4,2)} offset:1024")
        a("s_barrier")
        XF, WF = RS, RS+32
        def rd(t):
            i = t % 8
            a(f"ds_read_b128 {v(XF+4*i,4)}, {v(XA+(t&3))} offset:{(t//4)*8192}")
            a(f"ds_read_b64_tr_b16 {v(WF+4*i,2)}, {v(WA)} offset:{t*2048}")
            a(f"ds_read_b64_tr_b16 {v(WF+4*i+2,2)}, {v(WA)} offset:{t*2048+256}")
        def mm(t):
            i = t % 8
            a(f"v_mfma_f32_32x32x16_bf16 v[32:47], {v(WF+4*i,4)}, {v(XF+4*i,4)}, {'0' if t == 0 else 'v[32:47]'}")
        def qproj():
            self.await_(20, vaddr=52, val="1", sleep=0)
            self.stamp(2)
            for t in range(4): rd(t)
            for q in range(4):
                t0 = 8*q
                for t in range(t0, t0+4):
                    rd(t+4)
                    a("s_waitcnt lgkmcnt(12)")
                    mm(t)
                if q < 3:
                    Lok = a.label("a")
                    a("ds_read_b32 v20, v52")
                    a("s_waitcnt lgkmcnt(10)")
                    mm(t0+4)
                    a("s_waitcnt lgkmcnt(7)")
                    mm(t0+5)
                    a(f"""
                    s_waitcnt lgkmcnt(0)
                    v_cmp_gt_u32 vcc, {q+2}, v20
                    s_cmp_eq_u64 vcc, 0
                    s_cbranch_scc1 {Lok}
                    """)
                    self.await_(20, vaddr=52, val=str(q+2), sleep=0)
                    a(f"{Lok}:")
                    if q == 2: self.stamp(3)
                    rd(t0+8); rd(t0+9)
                    mm(t0+6)
                    rd(t0+10); rd(t0+11)
                    mm(t0+7)
                else:
                    for t in range(t0+4, t0+8):
                        a(f"s_waitcnt lgkmcnt({3*(t0+7-t)})")
                        mm(t)
        self.xfrag_addr(XA, S_HI, 20)
        self.wfrag_addr(WA, 20)
        for i in range(0, 64, 2): a(f"v_mov_b64 {v(RO+i,2)}, 0")
        for i in range(0, 4, 2): a(f"v_mov_b64 {v(RKV+36+8+i,2)}, 0")
        a(f"""
        v_and_b32 v20, 15, v0
        v_lshlrev_b32 v20, 4, v20
        v_lshrrev_b32 v21, 5, v0
        v_lshl_add_u32 v20, v21, 8, v20
        v_bfe_u32 v21, v0, 4, 1
        v_mul_u32_u24 v22, {2*KVREC}, v21
        v_add_u32 {v(RKA)}, v20, v22
        v_cmp_eq_u32 vcc, 0, v21
        v_and_b32 v22, 11, v0
        v_min_u32 v22, 1, v22
        v_lshlrev_b32 v22, 4, v22
        v_add_u32 v22, 512, v22
        v_mov_b32 {v(RIDX)}, 0xdddd
        v_cndmask_b32 {v(RVA)}, v22, v20, vcc
        s_lshl_b32 {s(T)}, {s(S_W)}, 9
        s_add_u32 {s(T)}, {s(T)}, {L_MISC}
        v_lshl_add_u32 v48, v0, 2, {s(T)}
        v_xor_b32 v49, 512, v48
        v_and_b32 v51, 4, v0
        v_lshl_add_u32 v52, v51, 2, {v(V_ALL)}
        v_lshl_add_u32 v51, v51, 4, {v(V_ALL)}
        s_lshl_b32 {s(T)}, {s(S_HI)}, 15
        v_add_u32 v14, {s(T)}, {v(V_L16)}
        """)
        self.tail_addr(L_W, 9, WS_OA, 1024, 20)
        a(f"""
        s_add_u32 {s(U+2)}, {s(S_XCD)}, 1
        s_and_b32 {s(U+2)}, {s(U+2)}, 7
        s_lshl_b32 {s(U+2)}, {s(U+2)}, 3
        s_add_u32 {s(U+2)}, {s(U+2)}, {s(S_LO)}
        s_mul_i32 {s(U+2)}, {s(U+2)}, {KVTILE}
        s_add_u32 {s(U+2)}, {s(U+2)}, {WS_KV}
        s_waitcnt vmcnt(0)
        """)
        self.arrive(20)
        qproj()
        for i in range(0, 8, 2): a(f"v_mov_b64 {v(RS+48+8+i,2)}, 0")
        a("s_nop 7")
        for i in range(8):
            a(f"v_cvt_pk_bf16_f32 {v(RQ+i)}, {v(32+2*i)}, {v(33+2*i)}")
        a(f"ds_write_b128 {v(self.V_EXW)}, {v(RQ,4)}")
        a(f"ds_write_b128 {v(self.V_EXW)}, {v(RQ+4,4)} offset:1024")
        a("s_waitcnt lgkmcnt(0)")
        self.stamp(4)
        a("s_barrier")
        self.stamp(5)

    def attn(self):
        a = self.a
        RQ, RO, RS, RKV, RIDX, RKA, RVA = self.RQ, self.RO, self.RS, self.RKV, self.RIDX, self.RKA, self.RVA
        SB, SOFF, SCNT, SPASS = T, U+2, U+3, U
        def K(u): return v(RKV+12*u, 4)
        def V(u, h): return v(RKV+12*u+4+4*h, 4)
        def addr_ops():
            return [f"s_add_u32 {s(SB)}, {s(S_WS)}, {s(SOFF)}",
                    f"s_addc_u32 {s(SB+1)}, {s(S_WS+1)}, 0",
                    f"s_add_u32 {s(SOFF)}, {s(SOFF)}, {2*KVTILE}",
                    f"s_cmp_ge_u32 {s(SOFF)}, {WS_KV+64*KVTILE}",
                    f"s_cselect_b32 {s(T+2)}, {64*KVTILE}, 0",
                    f"s_sub_u32 {s(SOFF)}, {s(SOFF)}, {s(T+2)}"]
        def ld(u, k):
            if k == 0: return f"global_load_dwordx4 {K(u)}, {v(RKA)}, {s(SB,2)} sc1"
            return f"global_load_dwordx4 {V(u,k-1)}, {v(RVA)}, {s(SB,2)} offset:{KVREC+(k-1)*2*KVREC} sc1"
        a.c("---- attention")
        a(f"s_setprio {self.o.get('aprio', 1)}")
        for u in range(3):
            for x in addr_ops(): a(x)
            for k in range(3): a(ld(u, k))
        a(f"ds_read_b128 {v(RQ+8,4)}, {v(self.V_EXR)}")
        a(f"ds_read_b128 {v(RQ+12,4)}, {v(self.V_EXR)} offset:1024")
        self.arrive(50)
        a(f"s_mov_b32 {s(SCNT)}, 1")
        a(f"s_mov_b32 {s(SPASS)}, 0")
        a(f"s_waitcnt vmcnt(6) lgkmcnt(0)")
        self.stamp(6)
        a(f"v_mfma_f32_32x32x16_bf16 {v(RS,16)}, {K(0)}, {v(RQ,4)}, 0")
        a("s_nop 7")
        a("s_nop 2")
        L, LD = a.label("attn"), a.label("attnd")
        a(".p2align 6")
        a(f"{L}:")
        p2, p1 = self.o.get("pos", (3, 10))
        for u in range(4):
            for b in range(4):
                fill = [[], [], []]
                if b == 0:
                    ops = addr_ops()
                    fill[0] = ops[0:1]; fill[1] = ops[1:3]; fill[2] = ops[3:5]
                if b == 1:
                    fill[0] = addr_ops()[5:6]; fill[1] = [ld((u+3) % 4, 0)]; fill[2] = [ld((u+3) % 4, 1)]
                if b == 2:
                    fill[1] = [ld((u+3) % 4, 2)]; fill[2] = ["s_waitcnt vmcnt(6)"]
                if b == 3 and u == 3:
                    fill[1] = [f"s_sub_u32 {s(SCNT)}, {s(SCNT)}, 1", f"s_cmp_lg_u32 {s(SCNT)}, 0"]
                nu, nb = (u, b+1) if b < 3 else ((u+1) % 4, 0)
                pu, pb = (u, b-1) if b > 0 else ((u-1) % 4, 3)
                S = RS + 16*b
                a(f"v_mfma_f32_32x32x16_bf16 {v(RS+16*nb,16)}, {K(nu)}, {v(RQ+4*nb,4)}, 0")
                for x in fill[0]: a(x)
                for i in range(0, p2): a(f"v_exp_f32 {v(S+i)}, {v(S+i)}")
                a(f"v_smfmac_f32_32x32x32_bf16 {v(RO+16*pb,16)}, {V(pu,1)}, {v(RS+16*pb+8,8)}, {v(RIDX)}")
                for x in fill[1]: a(x)
                for i in range(p2, p1): a(f"v_exp_f32 {v(S+i)}, {v(S+i)}")
                a(f"v_smfmac_f32_32x32x32_bf16 {v(RO+16*b,16)}, {V(u,0)}, {v(S,8)}, {v(RIDX)}")
                for x in fill[2]: a(x)
                for i in range(p1, 16): a(f"v_exp_f32 {v(S+i)}, {v(S+i)}")
        a(f"s_cbranch_scc1 {L}")
        a(f"s_cmp_lg_u32 {s(SPASS)}, 0")
        a(f"s_cbranch_scc1 {LD}")
        a.c("the remaining key tiles must have been published before they are fetched")
        self.await_(50, vaddr=51)
        a(f"s_mov_b32 {s(SPASS)}, 1")
        a(f"s_mov_b32 {s(SCNT)}, 7")
        a(f"s_branch {L}")
        a(f"{LD}:")
        a(f"v_smfmac_f32_32x32x32_bf16 {v(RO+48,16)}, {V(3,1)}, {v(RS+48+8,8)}, {v(RIDX)}")

    def tail_A(self):
        a = self.a
        RQ, RO = self.RQ, self.RO
        self.stamp(7)
        a.c("---- pair reduction of the two key halves")
        a(f"""
        ds_write_b128 {v(self.V_EXW)}, {v(RO+32,4)}
        ds_write_b128 {v(self.V_EXW)}, {v(RO+36,4)} offset:1024
        ds_write_b32 v48, {v(RO+40)}
        s_mov_b32 {s(T+2)}, {f32(2.0**-20)}
        s_mov_b32 {s(T+3)}, {f32(2.0**100)}
        s_nop 6
        ds_write_b128 {v(self.V_EXW)}, {v(RO+48,4)} offset:2048
        ds_write_b128 {v(self.V_EXW)}, {v(RO+52,4)} offset:3072
        ds_write_b32 v48, {v(RO+56)} offset:256
        s_waitcnt vmcnt(0) lgkmcnt(0)
        s_barrier
        {f"s_memrealtime {s(S_ST+2*11,2)}" if self.stamps else ""}
        ds_read_b32 {v(RO+40)}, v49
        ds_read_b32 {v(RO+56)}, v49 offset:256
        ds_read_b128 {v(RO+32,4)}, {v(self.V_EXR)}
        ds_read_b128 {v(RO+36,4)}, {v(self.V_EXR)} offset:1024
        ds_read_b128 {v(RO+48,4)}, {v(self.V_EXR)} offset:2048
        ds_read_b128 {v(RO+52,4)}, {v(self.V_EXR)} offset:3072
        s_waitcnt lgkmcnt(4)
        v_add_f32 {v(RO+8)}, {v(RO+8)}, {v(RO+40)}
        v_add_f32 {v(RO+24)}, {v(RO+24)}, {v(RO+56)}
        v_cmp_le_f32 {s(T+4,2)}, {s(T+2)}, {v(RO+8)}
        v_cmp_le_f32 {s(T+6,2)}, {s(T+2)}, {v(RO+24)}
        v_add_f32 {v(RO+41)}, {v(RO+8)}, {v(RO+24)}
        s_waitcnt lgkmcnt(0)
        """)
        for b in range(2):
            for i in range(0, 8, 2):
                a(f"v_pk_add_f32 {v(RO+16*b+i,2)}, {v(RO+16*b+i,2)}, {v(RO+32+16*b+i,2)}")
        a.c("---- the zero shift is kept only if every row sum is in range and every sum is finite")
        a(f"""
        v_pk_add_f32 {v(RO+32,2)}, {v(RO,2)}, {v(RO+2,2)}
        v_pk_add_f32 {v(RO+34,2)}, {v(RO+4,2)}, {v(RO+6,2)}
        v_pk_add_f32 {v(RO+36,2)}, {v(RO+16,2)}, {v(RO+18,2)}
        v_pk_add_f32 {v(RO+38,2)}, {v(RO+20,2)}, {v(RO+22,2)}
        v_pk_add_f32 {v(RO+32,2)}, {v(RO+32,2)}, {v(RO+34,2)}
        v_pk_add_f32 {v(RO+36,2)}, {v(RO+36,2)}, {v(RO+38,2)}
        s_and_b64 {s(T+4,2)}, {s(T+4,2)}, {s(T+6,2)}
        v_pk_add_f32 {v(RO+32,2)}, {v(RO+32,2)}, {v(RO+36,2)}
        v_fma_f32 {v(RO+41)}, {v(RO+32)}, 0, {v(RO+41)}
        v_fma_f32 {v(RO+41)}, {v(RO+33)}, 0, {v(RO+41)}
        v_cmp_ge_f32 vcc, {s(T+3)}, {v(RO+41)}
        s_and_b64 vcc, vcc, {s(T+4,2)}
        s_cmp_eq_u64 vcc, -1
        s_cbranch_scc0 L_fallback
        L_norm:
        """)
        self.normalize([(RO, RO+8), (RO+16, RO+24)], 24)
        self.stamp(8)
        a.c("---- the linear-attention half of the output projection fills the hand-off wait")
        a("s_setprio 0")
        XF, WF, ACC = 128, 160, 96
        D = 4
        def rd(u):
            i = u % 8
            a(f"ds_read_b128 {v(XF+4*i,4)}, v14 offset:{u*1024}")
            for sx in range(2):
                a(f"ds_read_b64_tr_b16 {v(WF+4*i+2*sx,2)}, {v(self.V_WO)} offset:{(2*u+sx)*1024}")
        for u in range(D): rd(u)
        for u in range(32):
            if u + D < 32:
                rd(u+D); n = 3*D
            else:
                n = 3*(31-u)
            if u == self.o.get("y2", 12):
                a("s_waitcnt vmcnt(0)")
                a("s_barrier")
                self.stamp(9)
            a(f"s_waitcnt lgkmcnt({n})")
            i = u % 8
            a(f"v_mfma_f32_32x32x16_bf16 {v(ACC,16)}, {v(WF+4*i,4)}, {v(XF+4*i,4)}, {'0' if u == 0 else v(ACC,16)}")
        self.stamp(10)
        a("s_nop 7")
        a("s_nop 3")
        for h in range(2):
            for i in range(4*h, 4*h+4): a(f"v_cvt_pk_bf16_f32 {v(32+i)}, {v(ACC+2*i)}, {v(ACC+2*i+1)}")
            a(f"global_store_dwordx4 {v(self.V_OUT)}, {v(32+4*h,4)}, {s(S_OUTB,2)} offset:{16*h} {self.o.get('ost','')}")
        a("s_branch L_fin")

    def normalize(self, blocks, P, guard=True):
        a = self.a
        for N, R in blocks: a(f"v_rcp_f32 {v(R)}, {v(R)}")
        for b, (N, R) in enumerate(blocks):
            for i in range(0, 8, 2):
                a(f"v_pk_mul_f32 {v(N+i,2)}, {v(N+i,2)}, {v(R,2)} op_sel_hi:[1,0]")
            for i in range(4):
                a(f"v_cvt_pk_bf16_f32 {v(P+4*b+i)}, {v(N+2*i)}, {v(N+2*i+1)}")
            if guard: a(f"v_min_u32 {v(P+4*b)}, -2, {v(P+4*b)}")
            a(f"global_store_dwordx4 {v(self.V_IMG)}, {v(P+4*b,4)}, {s(S_WS,2)} offset:{1024*b} sc1")

    def attn_fallback(self, Lret):
        a = self.a
        RQ, RO, RS, RKV, RIDX, RKA, RVA = self.RQ, self.RO, self.RS, self.RKV, self.RIDX, self.RKA, self.RVA
        SB, SCNT = T, U+3
        NM = RS + 32
        a("L_fallback:")
        a(f"v_mov_b32 {v(RKV+20)}, 0xff800000")
        a(f"v_mov_b32 {v(RKV+21)}, 0xff800000")
        for ps in (0, 1):
            L = a.label("fb")
            self.add64(SB, S_WS, WS_KV)
            a(f"""
            s_mov_b32 {s(SCNT)}, 64
            {L}:
            global_load_dwordx4 {v(RKV,4)}, {v(RKA)}, {s(SB,2)} sc1
            """)
            if ps:
                a(f"global_load_dwordx4 {v(RKV+4,4)}, {v(RVA)}, {s(SB,2)} offset:{KVREC} sc1")
                a(f"global_load_dwordx4 {v(RKV+8,4)}, {v(RVA)}, {s(SB,2)} offset:{3*KVREC} sc1")
            self.add64(SB, SB, KVTILE)
            a("s_waitcnt vmcnt(0)")
            for b in range(2):
                c = v(NM+16*b, 16) if ps else "0"
                a(f"v_mfma_f32_32x32x16_bf16 {v(RS+16*b,16)}, {v(RKV,4)}, {v(RQ+4*b,4)}, {c}")
            a("s_nop 7")
            a("s_nop 4")
            for b in range(2):
                S = RS + 16*b
                if not ps:
                    for i in range(0, 16, 2):
                        a(f"v_max3_f32 {v(RKV+20+b)}, {v(S+i)}, {v(S+i+1)}, {v(RKV+20+b)}")
                else:
                    for i in range(16): a(f"v_exp_f32 {v(S+i)}, {v(S+i)}")
                    a("s_nop 1")
                    a(f"v_smfmac_f32_32x32x32_bf16 {v(RO+16*b,16)}, {v(RKV+4,4)}, {v(S,8)}, {v(RIDX)}")
                    a(f"v_smfmac_f32_32x32x32_bf16 {v(RO+16*b,16)}, {v(RKV+8,4)}, {v(S+8,8)}, {v(RIDX)}")
            a(f"""
            s_sub_u32 {s(SCNT)}, {s(SCNT)}, 1
            s_cmp_lg_u32 {s(SCNT)}, 0
            s_cbranch_scc1 {L}
            """)
            if not ps:
                for b in range(2):
                    m = RKV+20+b
                    a(f"""
                    v_mov_b32 {v(RKV+22)}, {v(m)}
                    s_nop 1
                    v_permlane32_swap_b32 {v(m)}, {v(RKV+22)}
                    s_nop 1
                    v_max_f32 {v(m)}, {v(m)}, {v(RKV+22)}
                    """)
                    for i in range(16): a(f"v_sub_f32 {v(NM+16*b+i)}, 0, {v(m)}")
                for i in range(32): a(f"v_mov_b32 {v(RO+i)}, 0")
        a("s_nop 7")
        a("s_nop 4")
        a(f"s_branch {Lret}")

    def outproj_wfrags(self):
        for u in range(16):
            for nb in range(2):
                for sx in range(2):
                    self.a(f"ds_read_b64_tr_b16 {v(128+8*u+4*nb+2*sx,2)}, {v(self.V_WO)} offset:{(2*u+sx)*1024+nb*512}")
    def gather_loads(self, p):
        self.add64(T, S_IMG, 4096*p)
        for k in range(4):
            self.a(f"global_load_dwordx4 {v(32+16*p+4*k,4)}, {v(V_L16)}, {s(T,2)} offset:{k*1024} sc1")
    def outproj(self):
        a = self.a
        a.c("=========================== output projection ===========================")
        a("L_gather:")
        for p in range(4):
            Ls = a.label("gs")
            a(f"s_bitcmp1_b32 {s(S_PEND)}, {p}")
            a(f"s_cbranch_scc0 {Ls}")
            self.gather_loads(p)
            a(f"{Ls}:")
        a(f"""
        s_cmp_eq_u32 {s(S_PEND)}, 15
        s_cbranch_scc1 L_consume
        s_waitcnt vmcnt(0)
        L_consume:
        s_waitcnt lgkmcnt(0)
        """)
        if self.o.get("tailst"):
            self.stamp(2)
        for p in range(4):
            Ls = a.label("cs")
            I = 32 + 16*p
            a(f"""
            s_bitcmp1_b32 {s(S_PEND)}, {p}
            s_cbranch_scc0 {Ls}
            s_waitcnt vmcnt({4*(3-p)})
            {f"s_memrealtime {s(S_ST+2*(3+p),2)}" if self.o.get("tailst") and p < 3 else ""}
            v_max3_u32 v16, {v(I)}, {v(I+4)}, {v(I+8)}
            v_max_u32 v16, v16, {v(I+12)}
            v_cmp_eq_u32 vcc, -1, v16
            s_cmp_lg_u64 vcc, 0
            s_cbranch_scc1 {Ls}
            s_bitset0_b32 {s(S_PEND)}, {p}
            """)
            for k in range(4):
                u = 4*p + k
                for nb in range(2):
                    acc = v(96+16*nb, 16)
                    a(f"v_mfma_f32_32x32x16_bf16 {acc}, {v(128+8*u+4*nb,4)}, {v(32+4*u,4)}, {acc}")
            a(f"{Ls}:")
        Lx = a.label("gx")
        a(f"""
        s_cmp_eq_u32 {s(S_PEND)}, 0
        s_cbranch_scc1 {Lx}
        s_add_u32 {s(T+9)}, {s(T+9)}, 1
        s_cmp_lt_u32 {s(T+9)}, {SPIN_MAX}
        s_cbranch_scc1 L_gather
        {Lx}:
        """)
        self.stamp(10)
        LK, LJ = a.label("k1"), a.label("kj")
        a(f"""
        s_nop 7
        s_cmp_eq_u32 {s(S_LO)}, 0
        s_cbranch_scc0 {LK}
        """)
        for i in range(4): a(f"ds_write_b128 {v(self.V_EXW)}, {v(112+4*i,4)} offset:{1024*i}")
        self.arrive(16)
        a(f"s_branch {LJ}")
        a(f"{LK}:")
        for i in range(4): a(f"ds_write_b128 {v(self.V_EXW)}, {v(96+4*i,4)} offset:{1024*i}")
        self.arrive(16)
        for i in range(0, 16, 2): a(f"v_mov_b64 {v(96+i,2)}, {v(112+i,2)}")
        a(f"{LJ}:")
        self.await_(16, sleep=0)
        for i in range(4): a(f"ds_read_b128 {v(112+4*i,4)}, {v(self.V_EXR)} offset:{1024*i}")
        for h in range(2):
            a(f"s_waitcnt lgkmcnt({2-2*h})")
            for i in range(8*h, 8*h+8, 2): a(f"v_pk_add_f32 {v(96+i,2)}, {v(96+i,2)}, {v(112+i,2)}")
            for i in range(4*h, 4*h+4): a(f"v_cvt_pk_bf16_f32 {v(32+i)}, {v(96+2*i)}, {v(97+2*i)}")
            a(f"global_store_dwordx4 {v(self.V_OUT)}, {v(32+4*h,4)}, {s(S_OUTB,2)} offset:{16*h} {self.o.get('ost','')}")

    def kv_setup(self):
        self.a(f"""
        v_and_b32 v96, 15, v0
        v_and_b32 v97, 3, v0
        v_bfe_u32 v98, v0, 2, 1
        v_lshl_add_u32 v97, v98, 3, v97
        v_bfe_u32 v98, v0, 3, 1
        v_lshl_add_u32 v97, v98, 2, v97
        s_bitcmp1_b32 {s(S_J)}, 0
        s_cselect_b64 vcc, -1, 0
        s_cselect_b32 {s(T+8)}, 1.0, {f32(0.25*LOG2E)}
        v_cndmask_b32 v96, v96, v97, vcc
        v_lshrrev_b32 v98, 4, v0
        v_lshrrev_b32 v97, 1, v96
        v_xor_b32 v97, v97, v98
        v_lshlrev_b32 v96, 7, v96
        v_lshl_add_u32 v96, v97, 4, v96
        s_and_b32 {s(T)}, {s(S_J)}, 6
        s_lshl_b32 {s(T)}, {s(T)}, 10
        v_add_u32 v96, {s(T)}, v96
        v_xor_b32 v97, 64, v96
        v_bfe_u32 v99, v0, 2, 2
        v_lshl_add_u32 v99, v98, 3, v99
        v_lshlrev_b32 v99, 5, v99
        v_and_b32 v100, 3, v0
        v_lshl_add_u32 v99, v100, 3, v99
        v_add_u32 v99, {L_WKV}, v99
        v_and_b32 v110, 1, v0
        v_add_u32 v110, -1, v110
        v_and_b32 v110, 0x3f803f80, v110
        v_mov_b32 v111, v110
        """)
    def kv_compute(self):
        a = self.a
        XF, WF = 128, 160
        def rd(t):
            a(f"ds_read_b128 {v(XF+4*(t%8),4)}, {v(96+(t&1))} offset:{(t//2)*8192}")
            a(f"ds_read_b64_tr_b16 {v(WF+4*(t%8),2)}, v99 offset:{t*1024}")
            a(f"ds_read_b64_tr_b16 {v(WF+4*(t%8)+2,2)}, v99 offset:{t*1024+128}")
        LV, LD = a.label("kvv"), a.label("kvd")
        D = 4
        for t in range(D): rd(t)
        a(f"s_bitcmp1_b32 {s(S_J)}, 0")
        a(f"s_cbranch_scc1 {LV}")
        for isv in (0, 1):
            if isv: a(f"{LV}:")
            for t in range(16):
                if t + D < 16:
                    rd(t + D); n = 3*D
                else:
                    n = 3*(15 - t)
                a(f"s_waitcnt lgkmcnt({n})")
                x, w = v(XF+4*(t%8),4), v(WF+4*(t%8),4)
                A, B = (x, w) if isv else (w, x)
                a(f"v_mfma_f32_16x16x32_bf16 v[104:107], {A}, {B}, {'0' if t == 0 else 'v[104:107]'}")
            if not isv: a(f"s_branch {LD}")
        a(f"""
        {LD}:
        s_nop 7
        v_pk_mul_f32 v[104:105], v[104:105], {s(T+8,2)} op_sel_hi:[1,0]
        v_pk_mul_f32 v[106:107], v[106:107], {s(T+8,2)} op_sel_hi:[1,0]
        v_cvt_pk_bf16_f32 v108, v104, v105
        v_cvt_pk_bf16_f32 v109, v106, v107
        s_nop 1
        v_permlane32_swap_b32 v108, v110
        v_permlane32_swap_b32 v109, v111
        s_mov_b32 exec_hi, 3
        global_store_dwordx4 v101, v[108:111], {s(S_WS,2)} sc1
        s_mov_b32 exec_hi, -1
        """)

    def phi(self, R):
        a = self.a
        TMP = 80
        a(f"s_mov_b32 {s(T)}, {f32(LOG2E)}")
        a(f"s_mov_b32 {s(T+2)}, {f32(1e-6)}")
        for i in range(0, 16, 2): a(f"v_pk_fma_f32 {v(TMP+i,2)}, {v(R+i,2)}, {s(T,2)}, v[18:19] op_sel_hi:[1,0,0]")
        for i in range(16): a(f"v_exp_f32 {v(TMP+i)}, {v(TMP+i)} clamp")
        for i in range(16): a(f"v_max_f32 {v(R+i)}, {s(T+2)}, {v(R+i)}")
        for i in range(0, 16, 2): a(f"v_pk_add_f32 {v(R+i,2)}, {v(R+i,2)}, {v(TMP+i,2)}")
        for i in range(0, 16, 2): a(f"v_cvt_pk_bf16_f32 {v(R+i//2)}, {v(R+i)}, {v(R+i+1)}")

    def roleB(self):
        a = self.a
        RB, HP, WB = S_HI, S_LO, S_W3
        SXM, SWM, SXO, SWO = U, U+1, U+2, U+3
        VX, VW, VO = 26, 28, 240
        XA, WA = 244, 248
        AK, AV, AQ = 32, 48, 64
        F = (96, 160)
        XF = 96
        X, Y = 224, 232
        V_L128, V_SX, V_L4, V_F4 = 10, 11, 12, 15
        VL, SL, SLO, SF1 = 80, 96, 60, 62
        HI, LOW = "s_setprio 3", f"s_setprio {self.o.get('bmm', 0)}"
        a.c("=========================== role B ===========================")
        a("L_roleB:")
        self.inB = True
        Lj = a.label("b")
        for u in range(8): a(f"v_add_u32 {v(VL+u)}, {8192*u}, v3")
        a(f"""
        s_lshl_b32 {s(SLO)}, {s(S_J)}, 7
        s_lshl_b32 {s(SL)}, {s(S_LO)}, 13
        s_cmp_lg_u32 {s(S_W)}, 5
        s_cbranch_scc1 {Lj}
        """)
        for u in range(6):
            a(f"""
            s_add_u32 {s(T)}, {s(S_J)}, {2+2*(u//2)}
            s_and_b32 {s(T)}, {s(T)}, 6
            s_add_u32 {s(T)}, {s(T)}, {u%2}
            s_lshl_b32 {s(SL+u)}, {s(T)}, 10
            s_lshl_b32 {s(T)}, {s(T)}, 13
            v_xor_b32 {v(VL+u)}, {64*(u%2)}, v2
            v_add_u32 {v(VL+u)}, {s(T)}, {v(VL+u)}
            """)
        a(f"s_lshl_b32 {s(SLO)}, {s(S_G)}, 16")
        a(f"""
        {Lj}:
        s_waitcnt lgkmcnt(0)
        s_load_dword {s(S_TAG)}, {s(S_WS,2)}, {WS_G}
        """)
        self.stamp(1)
        a("s_barrier")
        def xissue(q):
            for sl in (2*q, 2*q+1):
                a(f"""
                s_add_u32 {s(T)}, {s(S_KC0)}, {sl}
                s_and_b32 {s(T)}, {s(T)}, 7
                s_lshl_b32 {s(T)}, {s(T)}, 7
                s_add_u32 {s(T)}, {s(T)}, {s(SLO)}
                """)
                self.add64(T+2, S_AX, s(T))
                for u in range(6): self.emit(self.dma(VL+u, T+2, SL+u, L_X + sl*8192))
        def wissue(q):
            a(f"""
            s_add_u32 {s(T)}, {s(S_KC0)}, {s(S_LO)}
            s_add_u32 {s(T)}, {s(T)}, {2*q}
            s_and_b32 {s(T)}, {s(T)}, 7
            s_lshl_b32 {s(T)}, {s(T)}, 16
            s_add_u32 {s(T)}, {s(T)}, {s(SLO)}
            """)
            self.add64(T+2, S_WQ, s(T))
            for u in range(8): self.emit(self.dma(VL+u, T+2, SL, L_W + q*16384 + u*1024))
        a.c("---- B-side setup, all in the shadow of the head")
        a(f"""
        v_mov_b32 {v(VX)}, v2
        v_xor_b32 {v(VX+1)}, 64, v2
        v_add_u32 {v(VX+1)}, 8192, {v(VX+1)}
        v_mul_u32_u24 {v(VW)}, 3072, v8
        v_add_u32 {v(VW)}, {v(VW)}, v9
        v_mov_b32 {v(VO)}, v3
        """)
        for i in range(1, 4):
            a(f"v_add_u32 {v(VW+i)}, {24576*i}, {v(VW)}")
            a(f"v_add_u32 {v(VO+i)}, {8192*i}, v3")
        self.xfrag_addr(XA, RB, 20)
        self.wfrag_addr(WA, 20)
        self.tail_addr(L_X, 15, WS_OB, 0, 20)
        a(f"""
        s_lshl_b32 {s(SXM)}, {s(WB)}, 11
        s_lshl_b32 {s(SWM)}, {s(WB)}, 12
        s_lshl_b32 {s(SXO)}, {s(S_G)}, 16
        s_lshl_b32 {s(T)}, {s(WB)}, 14
        s_add_u32 {s(SXO)}, {s(SXO)}, {s(T)}
        s_mul_i32 {s(SWO)}, {s(HP)}, {32*3072}
        s_lshl_b32 {s(T)}, {s(S_J)}, 7
        s_add_u32 {s(SWO)}, {s(SWO)}, {s(T)}
        s_mov_b32 {s(T)}, {f32(1e-6)}
        s_mov_b32 {s(T+1)}, {f32(1e-6)}
        s_mov_b32 {s(T+2)}, 0x3f803f80
        s_mov_b32 {s(T+3)}, 0x3f803f80
        """)
        for i in range(0, 16, 2):
            a(f"v_mov_b64 {v(AK+i,2)}, {s(T,2)}")
            a(f"v_mov_b64 {v(AQ+i,2)}, {s(T,2)}")
            a(f"v_mov_b64 {v(X+i,2)}, {s(T+2,2)}")
        a(f"""
        v_mov_b32 v18, {f32(-1e-6*LOG2E)}
        v_mov_b64 v[252:253], -1
        v_mov_b64 v[254:255], -1
        v_mov_b32 v25, 63
        v_mul_u32_u24 v250, 12288, v0
        v_lshlrev_b32 v251, 12, v0
        v_lshlrev_b32 {v(V_L128)}, 7, v0
        s_lshl_b32 {s(T)}, {s(WB)}, 11
        s_add_u32 {s(T)}, {s(T)}, {L_MISC+0x1000}
        v_add_u32 {v(V_SX)}, {s(T)}, {v(V_L16)}
        v_lshlrev_b32 {v(V_L4)}, 2, v0
        v_and_b32 v22, 1, v0
        v_bfe_u32 v21, v0, 1, 2
        v_lshl_add_u32 v22, v21, 2, v22
        v_lshlrev_b32 {v(V_F4)}, 7, v22
        """)
        self.add64(SF1, S_WS, WS_F1)
        def tag():
            a(f"""
            s_waitcnt lgkmcnt(0)
            s_add_u32 {s(S_TAG)}, {s(S_TAG)}, 0x9e3779b9
            v_mov_b32 {v(V_TAG)}, {s(S_TAG)}
            """)
        def touch(spec):
            kind, lo, hi = spec
            if kind == "x":
                m = sum(1 << e for e in range(lo, hi)) * 0x01010101
                a(f"s_lshl_b32 {s(T)}, {s(S_C)}, 13")
                self.add64(T+2, S_BX, s(T))
                mlo = mhi = m; vr = V_L128
            else:
                base, rs, col = {"q": (S_WQKV, 3072, 0), "k": (S_WQKV, 3072, 1024), "v": (S_WQKV, 3072, 2048),
                                 "a": (S_AWO, 1024, 0), "b": (S_BWO, 1024, 0)}[kind]
                h = lo // 4
                m = sum(0xffff << (16*(e - 4*h)) for e in range(lo, hi))
                mlo, mhi = m & 0xffffffff, m >> 32
                a(f"""
                s_and_b32 {s(T)}, {s(S_G)}, 3
                s_mul_i32 {s(T)}, {s(T)}, {rs}
                s_lshl_b32 {s(T+1)}, {s(S_J)}, 7
                s_add_u32 {s(T)}, {s(T)}, {s(T+1)}
                s_add_u32 {s(T)}, {s(T)}, {h*256*rs + col}
                """)
                self.add64(T+2, base, s(T))
                vr = 250 if rs == 3072 else 251
            a(f"s_mov_b32 exec_lo, {mlo:#x}")
            a(f"s_mov_b32 exec_hi, {mhi:#x}")
            a(f"global_load_dword v19, {v(vr)}, {s(T+2,2)}")
            a("s_mov_b64 exec, -1")
        def touch_round(specs):
            Le = a.label("t")
            for w, sp in enumerate(specs):
                Ln = a.label("t")
                if w < 3:
                    a(f"s_cmp_lg_u32 {s(WB)}, {w}")
                    a(f"s_cbranch_scc1 {Ln}")
                if sp: touch(sp)
                else: a(f"global_load_dword v19, {v(V_ZERO)}, {s(S_WQKV,2)}")
                if w < 3: a(f"s_branch {Le}")
                a(f"{Ln}:")
            a(f"{Le}:")
        M4, M5, Mc = a.label("b"), a.label("b"), a.label("b")
        a(f"""
        s_cmp_eq_u32 {s(S_W)}, 4
        s_cbranch_scc1 {M4}
        s_cmp_eq_u32 {s(S_W)}, 5
        s_cbranch_scc1 {M5}
        """)
        for (iss, n, lab) in ((wissue, 8, None), (xissue, 12, M5)):
            if lab: a(f"{lab}:")
            iss(0); iss(1)
            for q in range(4):
                a(f"s_waitcnt vmcnt({n if q < 3 else 0})")
                self.arrive(20)
                if q < 2: iss(q+2)
            tag()
            n1 = self.o.get("n1", 0)
            if n1:
                if self.o.get("n1w", 1): self.await_(21, val="4", sleep=0)
                if lab: touch(("x", 0, n1))
                else:
                    Lk = a.label("t")
                    a(f"s_cmp_eq_u32 {s(S_W)}, 6")
                    a(f"s_cbranch_scc1 {Lk}")
                    touch(("v", 0, n1))
                    a(f"s_branch {Mc}")
                    a(f"{Lk}:")
                    touch(("k", 0, n1))
            a(f"s_branch {Mc}")
        a(f"{M4}:")
        a(f"s_mov_b32 {s(S_EPOCH)}, 2")
        self.arrive(20)
        self.kv_setup()
        a(f"""
        v_add_u32 v21, -16, {v(V_ALL)}
        s_mul_i32 {s(T)}, {s(S_C)}, {KVREC}
        s_add_u32 {s(T)}, {s(T)}, {WS_KV}
        v_add_u32 v101, {s(T)}, {v(V_L16)}
        s_add_u32 {s(T)}, {s(S_XCD)}, 1
        s_lshl_b32 {s(T)}, {s(T)}, 3
        v_add_u32 v22, {s(T)}, v0
        v_and_b32 v22, 63, v22
        v_lshlrev_b32 v22, 7, v22
        s_lshr_b32 {s(T+7)}, {s(S_C)}, 2
        s_lshl_b32 {s(T+7)}, {s(T+7)}, 5
        s_and_b32 {s(T)}, {s(S_C)}, 3
        s_add_u32 {s(T+7)}, {s(T+7)}, {s(T)}
        s_lshl_b32 {s(T)}, {s(S_C)}, 8
        s_add_u32 {s(T)}, {s(T)}, {WS_ACC}
        """)
        self.add64(T+2, S_WS, s(T))
        a.c("clear this CU's share of the state accumulators (ordered before the K/V flag)")
        a(f"global_store_dword {v(V_L4)}, {v(V_ZERO)}, {s(T+2,2)} sc1")
        if self.o.get("cpf", 1):
            a.c("pull the kernel's code into this die's L2 ahead of the instruction fetch")
            a(f"""
            s_getpc_b64 {s(T,2)}
            L_pc:
            s_sub_u32 {s(T)}, {s(T)}, L_pc-{NAME}_kernel
            s_subb_u32 {s(T+1)}, {s(T+1)}, 0
            s_lshr_b32 {s(T+2)}, s2, 3
            v_lshl_add_u32 v19, v0, 5, {s(T+2)}
            v_lshlrev_b32 v19, 7, v19
            v_cmp_gt_u32 vcc, L_last-{NAME}_kernel, v19
            s_and_saveexec_b64 {s(T+2,2)}, vcc
            global_load_dword v19, v19, {s(T,2)}
            s_mov_b64 exec, -1
            """)
        tag()
        self.await_(20, vaddr=21, val="8", sleep=0)
        self.stamp(2)
        self.kv_compute()
        self.arrive(20)
        self.flag(WS_F1, T+7, shift=2)
        self.stamp(11)
        if self.o.get("pd", 1): a("s_waitcnt vmcnt(0)")
        a("s_mov_b64 exec, 0xffff")
        self.poll4(22, SF1, 88, sleep=self.o.get("ps1", 1))
        a("s_mov_b64 exec, -1")
        a(f"{Mc}:")
        a(f"s_mov_b32 {s(S_EPOCH)}, 8")
        rb = self.o.get("rotB", 1)
        if rb == 0: a(f"s_mov_b32 {s(S_KC0)}, 0")
        if rb == 2:
            a(f"s_and_b32 {s(S_KC0)}, {s(S_G)}, 3")
            a(f"s_lshl_b32 {s(S_KC0)}, {s(S_KC0)}, 1")
        a(f"s_lshl_b32 {s(T)}, {s(WB)}, 11")
        self.add64(SF1, SF1, s(T))
        self.stamp(4)
        a("s_barrier")
        self.stamp(5)
        a(LOW)
        if self.o.get("noB"):
            a(f"ds_write_b32 {v(V_SLOT)}, v25 offset:48")
            a("s_branch L_Bend")
        vm = []
        def vmwait(label):
            n = len(vm) - 1 - max(i for i, x in enumerate(vm) if x == label)
            a(f"s_waitcnt vmcnt({n})")
            return n
        def loads(st):
            G = []
            slot = L_W + (st % 4)*16384
            if st < 8:
                pre = [f"s_add_u32 {s(T)}, {s(S_KC0)}, {st}",
                       f"s_and_b32 {s(T)}, {s(T)}, 7",
                       f"s_lshl_b32 {s(T+1)}, {s(T)}, 7",
                       f"s_add_u32 {s(T+1)}, {s(T+1)}, {s(SXO)}",
                       f"s_add_u32 {s(T+2)}, {s(S_BX)}, {s(T+1)}",
                       f"s_addc_u32 {s(T+3)}, {s(S_BX+1)}, 0"]
                G.append(pre + self.dma(VX, T+2, SXM, L_X + st*8192))
                G.append(self.dma(VX+1, T+2, SXM, L_X + st*8192 + 1024))
                pre = [f"s_mul_i32 {s(T)}, {s(T)}, {64*3072}",
                       f"s_add_u32 {s(T)}, {s(T)}, {s(SWO)}",
                       f"s_lshl_b32 {s(T+1)}, {s(RB)}, 10",
                       f"s_add_u32 {s(T)}, {s(T)}, {s(T+1)}",
                       f"s_add_u32 {s(T)}, {s(T)}, 1024",
                       f"s_add_u32 {s(T+2)}, {s(S_WQKV)}, {s(T)}",
                       f"s_addc_u32 {s(T+3)}, {s(S_WQKV+1)}, 0"]
                for i in range(4): G.append((pre if i == 0 else []) + self.dma(VW+i, T+2, SWM, slot + i*1024))
            elif st < 12:
                pre = [f"s_add_u32 {s(T)}, {s(S_KC0)}, {s(RB)}",
                       f"s_add_u32 {s(T)}, {s(T)}, {2*(st-8)}",
                       f"s_and_b32 {s(T)}, {s(T)}, 7",
                       f"s_mul_i32 {s(T)}, {s(T)}, {64*3072}",
                       f"s_add_u32 {s(T)}, {s(T)}, {s(SWO)}",
                       f"s_add_u32 {s(T+2)}, {s(S_WQKV)}, {s(T)}",
                       f"s_addc_u32 {s(T+3)}, {s(S_WQKV+1)}, 0"]
                for i in range(4): G.append((pre if i == 0 else []) + self.dma(VW+i, T+2, SWM, slot + i*1024))
            else:
                for (base, L) in ((S_AWO, L_X), (S_BWO, L_W))[:len(self.o.get("wip", ""))]:
                    pre = [f"s_lshl_b32 {s(T)}, {s(WB)}, 15",
                           f"s_lshl_b32 {s(T+1)}, {s(S_J)}, 7",
                           f"s_add_u32 {s(T)}, {s(T)}, {s(T+1)}",
                           f"s_add_u32 {s(T)}, {s(T)}, {(st-12)*131072}"] if L == L_X else []
                    pre += [f"s_add_u32 {s(T+2)}, {s(base)}, {s(T)}",
                            f"s_addc_u32 {s(T+3)}, {s(base+1)}, 0"]
                    for i in range(4): G.append((pre if i == 0 else []) + self.dma(VO+i, T+2, SWM, L + (st-12)*16384 + i*1024))
            return G
        def put(st, g):
            thr = self.o.get("thr", 6) if st < 12 else None
            if thr: g = [x if x != "s_nop 0" else f"s_waitcnt vmcnt({thr-1})" for x in g]
            self.emit(g); vm.append(st)
        def reads(st):
            R = []; B = F[st % 2]; slot = (st % 4)*16384
            if st < 8:
                for t in range(4):
                    R.append(f"ds_read_b128 {v(B+12*t,4)}, {v(XA+t)} offset:{st*8192}")
                    for k in range(2):
                        for sx in range(2):
                            R.append(f"ds_read_b64_tr_b16 {v(B+12*t+4+4*k+2*sx,2)}, {v(WA)} offset:{slot + k*8192 + t*2048 + sx*256}")
            else:
                for t in range(8):
                    R.append(f"ds_read_b128 {v(B+8*t,4)}, {v(XA+(t&3))} offset:{(2*(st-8)+t//4)*8192}")
                    for sx in range(2):
                        R.append(f"ds_read_b64_tr_b16 {v(B+8*t+4+2*sx,2)}, {v(WA)} offset:{slot + t*2048 + sx*256}")
            return R
        def mfmas(st):
            M = []; B = F[st % 2]
            if st < 8:
                for t in range(4):
                    for k, acc in enumerate((AK, AV)):
                        c = "0" if (acc == AV and st == 0 and t == 0) else v(acc,16)
                        M.append(f"v_mfma_f32_32x32x16_bf16 {v(acc,16)}, {v(B+12*t,4)}, {v(B+12*t+4+4*k,4)}, {c}")
            else:
                for t in range(8):
                    M.append(f"v_mfma_f32_32x32x16_bf16 {v(AQ,16)}, {v(B+8*t+4,4)}, {v(B+8*t,4)}, {v(AQ,16)}")
            return M
        def arrive():
            a(HI); self.arrive(20); a(LOW)
        def iteration(i, after=None):
            M = mfmas(i)
            R = reads(i+1) if i < 11 else []
            G = [(st, g) for st in self.o.get("sched", {}).get(i, [i+4]) for g in loads(st)]
            Lok = a.label("ok")
            self.stamp(i+1, "it")
            a(f"ds_read_b32 v21, {v(V_ALL)}")
            a("s_waitcnt lgkmcnt(2)")
            a(M[0])
            a(f"""
            s_waitcnt lgkmcnt(0)
            {HI}
            v_cmp_gt_u32 vcc, {s(S_EPOCH)}, v21
            s_cmp_eq_u64 vcc, 0
            s_cbranch_scc1 {Lok}
            """)
            self.await_(21)
            a(f"{Lok}:")
            a(LOW)
            if i == self.o.get("fi", 9) + 1:
                Lf = a.label("b")
                a(f"s_cmp_lg_u32 {s(WB)}, 0")
                a(f"s_cbranch_scc1 {Lf}")
                self.flag(WS_F2, T+6, vm=None)
                a(f"{Lf}:")
                self.stamp(7)
            nr = -(-len(R) // 5); ng = -(-len(G) // 5)
            for k in range(1, 8):
                if k <= 5:
                    for x in R[(k-1)*nr:k*nr]: a(x)
                    for st, g in G[(k-1)*ng:k*ng]: put(st, g)
                if k == 6 and i < 11:
                    if i < 6: self.stamp(2*i+1, "vm")
                    if i == self.o.get("fi", 9): vmwait("part")
                    elif i + 2 <= 11 and i < self.o.get("fi", 9): vmwait(i+2)
                    if i < 6: self.stamp(2*i+2, "vm")
                    arrive()
                a(M[k])
            if i in self.o.get("tr", {}):
                touch_round(self.o["tr"][i]); vm.append("t")
            if after: after()
        a.c("---- B: k,v projections")
        a("s_sleep 1")
        a("s_mov_b64 exec, 0xffff")
        a(f"global_load_dwordx4 v[88:91], {v(V_L128)}, {s(SF1,2)} sc1"); vm.append("poll")
        a("s_mov_b64 exec, -1")
        G0 = [(st, g) for st in (0, 1) for g in loads(st)]
        for st, g in G0[:2]: put(st, g)
        Lr = a.label("b")
        vmwait("poll")
        a(HI)
        a("s_mov_b64 exec, 0xffff")
        self.check4(88)
        a(f"s_cbranch_scc1 {Lr}")
        self.poll4(V_L128, SF1, 88, sleep=4)
        a(f"{Lr}:")
        a("s_mov_b64 exec, -1")
        a(f"ds_write_b32 {v(V_SLOT)}, v25 offset:48")
        a(LOW)
        for st, g in G0[2:]: put(st, g)
        vmwait(0)
        a(HI)
        self.arrive(20)
        pro = self.o.get("pro", 4)
        if pro >= 3:
            for g in loads(2): put(2, g)
        self.await_(21)
        self.stamp(6)
        self.emit(reads(0))
        vmwait(1)
        self.arrive(20)
        a(LOW)
        if pro >= 4:
            for g in loads(3): put(3, g)
        if -1 in self.o.get("tr", {}):
            touch_round(self.o["tr"][-1]); vm.append("t")
        for i in range(8): iteration(i)
        a.c("---- B: phi(k), partial state")
        a(f"""
        s_lshl_b32 {s(T+6)}, {s(S_J)}, 2
        s_lshl_b32 {s(T)}, {s(HP)}, 1
        s_add_u32 {s(T+6)}, {s(T+6)}, {s(T)}
        s_add_u32 {s(T+6)}, {s(T+6)}, {s(RB)}
        s_lshl_b32 {s(T)}, {s(T+6)}, 11
        s_add_u32 {s(T)}, {s(T)}, {WS_ACC}
        s_lshl_b32 {s(T+6)}, {s(S_J)}, 5
        s_add_u32 {s(T+6)}, {s(T+6)}, {s(S_G)}
        """)
        self.add64(T+4, S_WS, s(T))
        a(HI)
        self.phi(AK)
        a("s_mov_b32 exec_lo, 0xffff")
        a("s_mov_b32 exec_hi, 0xffff")
        for i in range(8): a(f"v_cvt_pk_bf16_f32 {v(X+i)}, {v(AV+2*i)}, {v(AV+2*i+1)}")
        a("s_not_b64 exec, exec")
        for i in range(8): a(f"v_cvt_pk_bf16_f32 {v(Y+i)}, {v(AV+2*i)}, {v(AV+2*i+1)}")
        a("s_mov_b64 exec, -1")
        D0, D1 = F[1], F[1]+16
        LK, LJ, LK2, LJ2 = a.label("k1"), a.label("kj"), a.label("k2"), a.label("kj2")
        a(f"""
        {LOW}
        v_mfma_f32_32x32x16_bf16 {v(D0,16)}, {v(AK,4)}, {v(X,4)}, 0
        v_mfma_f32_32x32x16_bf16 {v(D1,16)}, {v(AK,4)}, {v(Y,4)}, 0
        v_mfma_f32_32x32x16_bf16 {v(D0,16)}, {v(AK+4,4)}, {v(X+4,4)}, {v(D0,16)}
        v_mfma_f32_32x32x16_bf16 {v(D1,16)}, {v(AK+4,4)}, {v(Y+4,4)}, {v(D1,16)}
        s_nop 8
        {HI}
        s_cmp_eq_u32 {s(RB)}, 0
        s_cbranch_scc0 {LK}
        ds_write_b128 {v(V_SX)}, {v(D1+8,4)}
        ds_write_b128 {v(V_SX)}, {v(D1+12,4)} offset:1024
        s_branch {LJ}
        {LK}:
        ds_write_b128 {v(V_SX)}, {v(D0,4)}
        ds_write_b128 {v(V_SX)}, {v(D0+4,4)} offset:1024
        {LJ}:
        """)
        self.softbar(20)
        a(f"""
        s_cmp_eq_u32 {s(RB)}, 0
        s_cbranch_scc0 {LK2}
        ds_read_b128 {v(D1+8,4)}, {v(V_SX)} offset:4096
        ds_read_b128 {v(D1+12,4)}, {v(V_SX)} offset:5120
        s_branch {LJ2}
        {LK2}:
        v_add_u32 {v(V_SX)}, -4096, {v(V_SX)}
        ds_read_b128 {v(D0,4)}, {v(V_SX)}
        ds_read_b128 {v(D0+4,4)}, {v(V_SX)} offset:1024
        {LJ2}:
        s_waitcnt lgkmcnt(0)
        """)
        for i in range(0, 8, 2): a(f"v_pk_add_f32 {v(AK+i,2)}, {v(D0+i,2)}, {v(D1+8+i,2)}")
        for i in range(8):
            a(f"global_atomic_add_f32 {v(V_L4)}, {v(AK+i)}, {s(T+4,2)} offset:{256*i} sc1"); vm.append("part")
        a(LOW)
        self.stamp(3)
        a.c("---- B: q projection")
        for i in range(8, 12): iteration(i)
        a.c("mark the A-side output images of the matching wave as not yet written")
        a(f"s_sub_u32 {s(T)}, {s(S_WS)}, {WS_OB-WS_OA}")
        a(f"s_subb_u32 {s(T+1)}, {s(S_WS+1)}, 0")
        a(f"global_store_dwordx4 {v(self.V_IMG)}, v[252:255], {s(T,2)} sc1")
        a(f"global_store_dwordx4 {v(self.V_IMG)}, v[252:255], {s(T,2)} offset:1024 sc1")
        wt = self.o.get("wthr", 4)
        def wo_loads(base, L, mid=None):
            for u in range(4):
                a(f"""
                s_add_u32 {s(T)}, {s(S_G)}, {u}
                s_and_b32 {s(T)}, {s(T)}, 3
                s_lshl_b32 {s(T+7)}, {s(T)}, 14
                s_add_u32 {s(T+7)}, {s(T+7)}, {s(SWM)}
                s_lshl_b32 {s(T)}, {s(T)}, 17
                s_add_u32 {s(T)}, {s(T)}, {s(SWO)}
                """)
                self.add64(T+2, base, s(T))
                for i in range(4):
                    self.emit([x if x != "s_nop 0" else f"s_waitcnt vmcnt({wt-1})" for x in self.dma(VO+i, T+2, T+7, L + i*1024)])
                if mid and u == 0: mid()
        a(f"""
        s_lshl_b32 {s(SWO)}, {s(WB)}, 15
        s_lshl_b32 {s(T)}, {s(S_J)}, 7
        s_add_u32 {s(SWO)}, {s(SWO)}, {s(T)}
        """)
        def phiq():
            a(HI); self.phi(AQ); a(LOW)
        self.stamp(1, "hop")
        if "a" in self.o.get("wip", ""):
            a("s_nop 2")
            phiq()
        else: wo_loads(S_AWO, L_X, phiq)
        self.stamp(2, "hop")
        a.c("---- B: the summed state")
        LR = a.label("nr")
        a(f"""
        {HI}
        s_cmp_lg_u32 {s(WB)}, 1
        s_cbranch_scc1 {LR}
        s_lshl_b32 {s(T)}, {s(S_J)}, 12
        s_add_u32 {s(T)}, {s(T)}, {WS_F2}
        """)
        self.add64(T+4, S_WS, s(T))
        a("s_mov_b32 exec_hi, 0")
        self.poll(V_L128, T+4, [0], 21, sleep=8)
        a("s_mov_b32 exec_hi, -1")
        a(f"{LR}:")
        a("s_waitcnt vmcnt(0)")
        self.softbar(20, sleep=2)
        self.stamp(3, "hop")
        self.stamp(8)
        D0, D1 = AK, AV
        a(f"""
        s_lshl_b32 {s(T)}, {s(S_J)}, 1
        s_add_u32 {s(T)}, {s(T)}, {s(HP)}
        s_lshl_b32 {s(T)}, {s(T)}, 12
        s_add_u32 {s(T)}, {s(T)}, {WS_ACC}
        """)
        self.add64(T+4, S_WS, s(T))
        for i in range(16): a(f"global_load_dword {v(XF+i)}, {v(V_L4)}, {s(T+4,2)} offset:{256*i} sc1")
        if "b" not in self.o.get("wip", ""):
            for i in range(4): a(f"v_mov_b32 {v(VW+i)}, {v(VO+i)}")
        VO = VW
        self.outproj_wfrags()
        self.arrive(20)
        a("s_waitcnt vmcnt(0)")
        self.stamp(4, "hop")
        for i in range(8): a(f"v_cvt_pk_bf16_f32 {v(XF+i)}, {v(XF+2*i)}, {v(XF+2*i+1)}")
        a(f"""
        s_nop 1
        v_mfma_f32_32x32x16_bf16 {v(D0,16)}, {v(XF,4)}, {v(AQ,4)}, 0
        v_mfma_f32_32x32x16_bf16 {v(D1,16)}, {v(XF+4,4)}, {v(AQ+4,4)}, 0
        s_nop 7
        s_nop 3
        v_add_f32 {v(D0+8)}, {f32(1e-6)}, {v(D0+8)}
        v_add_f32 {v(D1)}, {f32(1e-6)}, {v(D1)}
        """)
        self.normalize([(D0, D0+8), (D1+8, D1)], 80, guard=False)
        a(LOW)
        self.stamp(5, "hop")
        def pub4():
            a(f"""
            s_lshl_b32 {s(T+6)}, {s(S_C)}, 2
            s_add_u32 {s(T+6)}, {s(T+6)}, {s(WB)}
            """)
            self.flag(WS_F4, T+6, vm=0 if "b" in self.o.get("wip", "") else 4)
            self.stamp(6, "hop")
            self.stamp(12)
        if "b" in self.o.get("wip", ""):
            pub4()
            a("s_waitcnt vmcnt(0)")
        else: wo_loads(S_BWO, L_W, pub4)
        a(f"""
        s_lshl_b32 {s(T)}, {s(S_G)}, 5
        s_lshl_b32 {s(T+1)}, {s(HP)}, 4
        s_add_u32 {s(T)}, {s(T)}, {s(T+1)}
        s_lshl_b32 {s(T+1)}, {s(RB)}, 1
        s_add_u32 {s(T)}, {s(T)}, {s(T+1)}
        s_lshl_b32 {s(T)}, {s(T)}, 7
        s_add_u32 {s(T)}, {s(T)}, {WS_F4}
        """)
        self.add64(T+4, S_WS, s(T))
        self.stamp(7, "hop")
        a(HI)
        a("s_mov_b64 exec, 0xff")
        self.poll(V_F4, T+4, [0], 21, sleep=8)
        a("s_mov_b64 exec, -1")
        self.await_(20)
        self.stamp(8, "hop")
        a.c("---- B: the group's o_B images go to LDS for the A waves")
        a(f"s_lshl_b32 {s(SWM)}, {s(WB)}, 14")
        ot = self.o.get("othr", 6)
        for p in range(4):
            a(f"""
            s_add_u32 {s(T)}, {s(S_J)}, {p}
            s_and_b32 {s(T)}, {s(T)}, 3
            s_lshl_b32 {s(T)}, {s(T)}, 12
            s_add_u32 m0, {s(SWM)}, {s(T)}
            s_add_u32 {s(T)}, {s(T)}, {WS_OB-WS_OA}
            """)
            self.add64(T+2, S_IMG, s(T))
            for k in range(4):
                a(f"s_waitcnt vmcnt({ot-1})")
                a(f"global_load_lds_dwordx4 {v(V_L16)}, {s(T+2,2)} offset:{k*1024} sc1")
        if self.o.get("touch", 1):
            a(f"global_load_dword v21, {v(V_ZERO)}, {s(S_OUTB,2)}")
        a("L_Bend:")
        for i in range(0, 32, 2): a(f"v_mov_b64 {v(96+i,2)}, 0")
        a(f"s_mov_b32 {s(S_PEND)}, 15")
        a(f"s_mov_b32 {s(T+9)}, 0")
        a(HI)
        a("s_waitcnt vmcnt(0) lgkmcnt(0)")
        self.stamp(9)
        self.stamp(9, "hop")
        a("s_barrier")
        a.c("every wave of the grid has used this launch's tag by now: advance the generation word")
        Lg = a.label("b")
        a(f"""
        s_lshl_b32 {s(T)}, s2, 2
        s_add_u32 {s(T)}, {s(T)}, {s(WB)}
        s_cmp_lg_u32 {s(T)}, 0
        s_cbranch_scc1 {Lg}
        s_mov_b64 exec, 1
        global_store_dword {v(V_ZERO)}, {v(V_TAG)}, {s(S_WS,2)} offset:{WS_G} sc1
        s_mov_b64 exec, -1
        {Lg}:
        s_barrier
        """)

    def finish(self):
        a = self.a
        a("L_fin:")
        if self.o.get("spin"):
            a(f"""
            L_spin:
            s_memrealtime s[66:67]
            s_waitcnt lgkmcnt(0)
            s_sub_u32 s66, s66, s64
            s_cmp_lt_u32 s66, {self.o["spin"]}
            s_cbranch_scc1 L_spin
            """)
        if self.stamps:
            a("s_waitcnt vmcnt(0)")
            self.stamp(13)
            a(f"""
            s_waitcnt lgkmcnt(0)
            s_cmp_ge_u32 {s(S_W)}, 4
            s_cselect_b32 {s(S_ST+28)}, {s(T+9)}, {s(S_ST+28)}
            s_lshl_b32 {s(T)}, s2, 3
            s_add_u32 {s(T)}, {s(T)}, {s(S_W)}
            s_lshl_b32 {s(T)}, {s(T)}, 6
            s_add_u32 {s(T)}, {s(T)}, {WS_STAMP}
            v_mov_b32 v20, {s(T)}
            """)
            for i in range(16): a(f"v_mov_b32 {v(32+i)}, {s(S_ST+2*i)}")
            for i in range(4): a(f"global_store_dwordx4 v20, {v(32+4*i,4)}, {s(S_WS,2)} offset:{16*i}")
        a("L_end:")
        a("s_endpgm")

    def build(self):
        self.entry()
        self.head_A()
        self.attn()
        self.tail_A()
        self.roleB()
        self.outproj()
        self.finish()
        self.a("L_last:")
        self.attn_fallback("L_norm")
        return self.wrap()

    def wrap(self):
        hdr = open("cdna_kernels/%s.s.ref" % NAME).read().split("; Override launch")[0]
        return hdr + f"""; Override launch geometry by editing the next line (default: block=256,
; grid=ceil(out_elems/256), lds=0). Harness parses it; keep it on one line.
; @launch grid=(256,1,1) block=(512,1,1) lds={LDS_BYTES}
.amdgcn_target "amdgcn-amd-amdhsa--gfx950"
.text
.globl {NAME}_kernel
.p2align 8
.type {NAME}_kernel,@function
{NAME}_kernel:
""" + self.a.text() + f""".section .rodata,"a"
.p2align 6
.amdhsa_kernel {NAME}_kernel
  .amdhsa_next_free_vgpr 256
  .amdhsa_next_free_sgpr 102
  .amdhsa_accum_offset 256
  .amdhsa_group_segment_fixed_size 0
  .amdhsa_kernarg_size 88
  .amdhsa_user_sgpr_count 2
  .amdhsa_user_sgpr_kernarg_segment_ptr 1
  .amdhsa_system_sgpr_workgroup_id_x 1
  .amdhsa_dx10_clamp 0
.end_amdhsa_kernel
"""

if __name__ == "__main__":
    out = sys.argv[1]
    stamps = "--stamps" in sys.argv
    opts = {}
    for x in sys.argv[2:]:
        if "=" in x:
            k, val = x.split("=", 1); opts[k] = eval(val)
    open(out, "w").write(Gen(stamps=stamps, opts=opts).build())
```

```python
import sys, struct
from asmlib import *

NAME = "concat_heads__grouped_kv_mqa__linear_attn_block__prompt"
def f32(x): return "0x%08x" % struct.unpack("<I", struct.pack("<f", x))[0]
LOG2E = 1.4426950408889634

WS_G   = 0x0
WS_F1  = 0x8000
WS_ACC = 0x10000
WS_KV  = 0x20000
C4_OFF = 576
WS_F2  = 0x60000
WS_OA  = 0x100000
WS_OB  = 0x300000
WS_STAMP = 0x800000
KVREC = 640
KVTILE = 4*KVREC
L_X   = 0
L_W   = 0x10000
L_WKV = 0x20000
L_MISC= 0x24000
L_SYNC= L_MISC + 0x3f00
LDS_BYTES = 0x28000
SPIN_MAX = 200000

S_AX, S_WQ, S_WK, S_WV, S_AWO, S_BX, S_WQKV, S_BWO = 8, 10, 12, 14, 16, 18, 20, 22
S_OUT, S_WS = 24, 26
S_W, S_G, S_J, S_C, S_TAG, S_XCD, S_KC0, S_EPOCH = 28, 29, 30, 31, 32, 33, 34, 35
T = 36
S_HI, S_LO, S_W3 = 50, 51, 52
S_IMG = 54
S_OUTB = 56
S_EX = 58
S_PEND = 59
S_PC = 0
L_MK = L_SYNC + 80
U = 4
S_ST = 64
V_L16, V_SLOT, V_ALL, V_TAG, V_ZERO = 4, 5, 6, 7, 1

class Gen:
    def __init__(self, stamps=False, opts=None):
        self.a = Asm()
        self.stamps = stamps
        self.o = opts or {}
        self.inB = False
    def stamp(self, i, grp=None):
        if grp != self.o.get("stg") and (grp or (self.inB and self.o.get("stg") and i not in (0, 13))): return
        if self.stamps:
            self.a(f"s_memrealtime {s(S_ST+2*i,2)}")
            cyc = self.o.get("cyc", (6, 7))
            if i in cyc:
                self.a(f"s_memtime {s(S_ST+2*(14+list(cyc).index(i)),2)}")
    def add64(self, dst, base, off):
        self.a(f"s_add_u32 {s(dst)}, {s(base)}, {off}")
        self.a(f"s_addc_u32 {s(dst+1)}, {s(base+1)}, 0")
    def dma(self, vreg, pair, m0s, m0i, off=0):
        return [f"s_add_u32 m0, {s(m0s)}, {m0i}", "s_nop 0",
                f"global_load_lds_dwordx4 {v(vreg)}, {s(pair,2)}" + (f" offset:{off}" if off else "")]
    def marker(self, idx):
        self.a(f"""
        s_lshl_b32 {s(T)}, {s(S_W3)}, 2
        s_add_u32 m0, {s(T)}, {L_MK + 4*idx}
        s_mov_b64 exec, 1
        global_load_lds_dword {v(V_ZERO)}, {s(S_PC,2)}
        s_mov_b64 exec, -1
        """)
    def emit(self, L):
        for x in L: self.a(x)
    def poll(self, vaddr, pair, offs, vt, sleep=2):
        a = self.a
        Lp, Ld = a.label("poll"), a.label("polld")
        a(f"s_mov_b32 {s(T+10)}, 0")
        a(f"{Lp}:")
        for i, o in enumerate(offs):
            a(f"global_load_dword {v(vt+i)}, {v(vaddr)}, {s(pair,2)} offset:{o} sc1")
        a("s_waitcnt vmcnt(0)")
        for i in range(len(offs)):
            if i == 0:
                a(f"v_cmp_ne_u32 vcc, {s(S_TAG)}, {v(vt)}")
            else:
                a(f"v_cmp_ne_u32 {s(T+12,2)}, {s(S_TAG)}, {v(vt+i)}")
                a(f"s_or_b64 vcc, vcc, {s(T+12,2)}")
        a(f"s_add_u32 {s(T+10)}, {s(T+10)}, 1")
        a(f"s_cmp_eq_u64 vcc, 0")
        a(f"s_cbranch_scc1 {Ld}")
        if sleep: a(f"s_sleep {sleep}")
        a(f"s_cmp_lt_u32 {s(T+10)}, {SPIN_MAX}")
        a(f"s_cbranch_scc1 {Lp}")
        a(f"{Ld}:")
    def check4(self, vt):
        a = self.a
        a(f"v_cmp_ne_u32 vcc, {s(S_TAG)}, {v(vt)}")
        for i in range(1, 4):
            a(f"v_cmp_ne_u32 {s(T+12,2)}, {s(S_TAG)}, {v(vt+i)}")
            a(f"s_or_b64 vcc, vcc, {s(T+12,2)}")
        a(f"s_cmp_eq_u64 vcc, 0")
    def poll4(self, vaddr, pair, vt, sleep):
        a = self.a
        Lp, Ld = a.label("poll"), a.label("polld")
        a(f"s_mov_b32 {s(T+10)}, 0")
        a(f"{Lp}:")
        a(f"global_load_dwordx4 {v(vt,4)}, {v(vaddr)}, {s(pair,2)} sc1")
        a(f"s_add_u32 {s(T+10)}, {s(T+10)}, 1")
        a("s_waitcnt vmcnt(0)")
        self.check4(vt)
        a(f"s_cbranch_scc1 {Ld}")
        if sleep: a(f"s_sleep {sleep}")
        a(f"s_cmp_lt_u32 {s(T+10)}, {SPIN_MAX}")
        a(f"s_cbranch_scc1 {Lp}")
        a(f"{Ld}:")
    def count(self, pair):
        a = self.a
        a(f"s_mov_b32 {s(T+11)}, 1")
        a(f"s_atomic_add {s(T+11)}, {s(pair,2)}, 0 glc")
    def count_peek(self, pair, sd):
        self.a(f"s_load_dword {s(sd)}, {s(pair,2)}, 0 glc")
    def count_wait(self, pair, sd, n, sleep=8):
        a = self.a
        Lp, Ld = a.label("cw"), a.label("cwd")
        a(f"""
        s_mov_b32 {s(T+10)}, 0
        {Lp}:
        s_waitcnt lgkmcnt(0)
        s_cmp_ge_u32 {s(sd)}, {n}
        s_cbranch_scc1 {Ld}
        s_sleep {sleep}
        s_load_dword {s(sd)}, {s(pair,2)}, 0 glc
        s_add_u32 {s(T+10)}, {s(T+10)}, 1
        s_cmp_lt_u32 {s(T+10)}, {SPIN_MAX}
        s_cbranch_scc1 {Lp}
        s_waitcnt lgkmcnt(0)
        {Ld}:
        """)
    def flag(self, base, sidx, vm=0, shift=7):
        a = self.a
        a(f"s_lshl_b32 {s(T+10)}, {s(sidx)}, {shift}")
        a(f"s_add_u32 {s(T+10)}, {s(T+10)}, {base}")
        self.add64(T+12, S_WS, s(T+10))
        if vm is not None: a(f"s_waitcnt vmcnt({vm})")
        a("s_mov_b64 exec, 1")
        a(f"global_store_dword {v(V_ZERO)}, {v(V_TAG)}, {s(T+12,2)} sc1")
        a("s_mov_b64 exec, -1")
    def arrive(self, vt):
        a = self.a
        a(f"s_add_u32 {s(S_EPOCH)}, {s(S_EPOCH)}, 1")
        a(f"v_mov_b32 {v(vt)}, {s(S_EPOCH)}")
        a(f"ds_write_b32 {v(V_SLOT)}, {v(vt)}")
    def await_(self, vt, vaddr=V_ALL, val=None, off=0, sleep=1):
        a = self.a
        Lp, Ld = a.label("sb"), a.label("sbd")
        a(f"s_mov_b32 {s(T+10)}, 0")
        a(f"{Lp}:")
        a(f"ds_read_b32 {v(vt)}, {v(vaddr)} offset:{off}")
        a("s_waitcnt lgkmcnt(0)")
        a(f"v_cmp_gt_u32 vcc, {val or s(S_EPOCH)}, {v(vt)}")
        a(f"s_add_u32 {s(T+10)}, {s(T+10)}, 1")
        a(f"s_cmp_eq_u64 vcc, 0")
        a(f"s_cbranch_scc1 {Ld}")
        if sleep: a(f"s_sleep {sleep}")
        a(f"s_cmp_lt_u32 {s(T+10)}, {SPIN_MAX*8}")
        a(f"s_cbranch_scc1 {Lp}")
        a(f"{Ld}:")
    def softbar(self, vt, sleep=1):
        self.arrive(vt); self.await_(vt, sleep=sleep)

    def entry(self):
        a = self.a
        a(f"""
        s_cmp_ge_u32 s2, 256
        s_cbranch_scc1 L_end
        """)
        self.stamp(0)
        if self.o.get("spin"): a("s_memrealtime s[64:65]")
        a(f"""
        s_load_dwordx16 s[8:23], s[0:1], 0
        s_load_dwordx2 {s(S_OUT,2)}, s[0:1], 64
        s_load_dwordx2 {s(S_WS,2)}, s[0:1], 80
        v_lshrrev_b32 v1, 6, v0
        v_and_b32 v0, 63, v0
        v_readfirstlane_b32 {s(S_W)}, v1
        s_and_b32 {s(S_XCD)}, s2, 7
        s_lshr_b32 {s(T)}, s2, 6
        s_lshl_b32 {s(S_G)}, {s(S_XCD)}, 2
        s_add_u32 {s(S_G)}, {s(S_G)}, {s(T)}
        s_lshr_b32 {s(S_J)}, s2, 3
        s_and_b32 {s(S_J)}, {s(S_J)}, 7
        s_lshl_b32 {s(S_C)}, {s(S_G)}, 3
        s_add_u32 {s(S_C)}, {s(S_C)}, {s(S_J)}
        s_lshl_b32 {s(T)}, {s(T)}, 1
        s_add_u32 {s(S_KC0)}, {s(T)}, {s(S_J)}
        s_and_b32 {s(S_KC0)}, {s(S_KC0)}, {7 if self.o.get('rot', 1) else 0}
        s_mov_b32 {s(S_EPOCH)}, 0
        s_and_b32 {s(S_W3)}, {s(S_W)}, 3
        s_lshr_b32 {s(S_HI)}, {s(S_W3)}, 1
        s_and_b32 {s(S_LO)}, {s(S_W)}, 1
        v_mov_b32 {v(V_ZERO)}, 0
        v_lshlrev_b32 {v(V_L16)}, 4, v0
        s_cmp_ge_u32 {s(S_W)}, 4
        s_cselect_b32 {s(T)}, 11, 1
        s_cselect_b32 {s(T+1)}, 16, 208
        s_lshl_b32 {s(T+2)}, {s(S_W)}, 2
        s_add_u32 {s(T+2)}, {s(T+2)}, {L_SYNC}
        v_min_u32 v9, {s(T)}, v0
        v_mul_u32_u24 v9, {s(T+1)}, v9
        v_add_u32 v9, {s(T+2)}, v9
        ds_write_b32 v9, {v(V_ZERO)}
        """)
        a(f"""
        v_lshrrev_b32 v8, 3, v0
        v_lshlrev_b32 v2, 10, v8
        v_and_b32 v9, 7, v0
        v_lshrrev_b32 v10, 4, v0
        v_xor_b32 v9, v9, v10
        v_lshl_add_u32 v2, v9, 4, v2
        s_lshl_b32 {s(T)}, {s(S_W)}, 2
        s_add_u32 {s(T)}, {s(T)}, {L_SYNC}
        v_mov_b32 {v(V_SLOT)}, {s(T)}
        s_and_b32 {s(T)}, {s(T)}, -16
        v_and_b32 v9, 3, v0
        v_lshl_add_u32 {v(V_ALL)}, v9, 2, {s(T)}
        v_bfe_u32 v8, v0, 2, 3
        v_lshlrev_b32 v9, 4, v9
        v_lshrrev_b32 v10, 5, v0
        v_lshl_add_u32 v9, v10, 6, v9
        v_lshl_add_u32 v3, v8, 10, v9
        s_cmp_ge_u32 {s(S_W)}, 4
        s_cbranch_scc1 L_roleB
        """)

    def xfrag_addr(self, dst, sblk, vt):
        self.a(f"""
        v_and_b32 {v(vt)}, 31, v0
        v_lshlrev_b32 {v(vt+1)}, 7, {v(vt)}
        s_lshl_b32 {s(T)}, {s(sblk)}, 12
        v_add_u32 {v(vt+1)}, {s(T)}, {v(vt+1)}
        v_bfe_u32 {v(vt)}, v0, 1, 3
        v_lshrrev_b32 {v(vt+2)}, 5, v0
        v_xor_b32 {v(vt)}, {v(vt)}, {v(vt+2)}
        v_lshl_add_u32 {v(dst)}, {v(vt)}, 4, {v(vt+1)}
        v_xor_b32 {v(dst+1)}, 32, {v(dst)}
        v_xor_b32 {v(dst+2)}, 64, {v(dst)}
        v_xor_b32 {v(dst+3)}, 0x60, {v(dst)}
        """)
    def wfrag_addr(self, dst, vt):
        self.a(f"""
        v_bfe_u32 {v(vt)}, v0, 2, 2
        v_lshlrev_b32 {v(vt)}, 6, {v(vt)}
        v_bfe_u32 {v(vt+1)}, v0, 4, 1
        v_lshl_add_u32 {v(vt)}, {v(vt+1)}, 5, {v(vt)}
        v_and_b32 {v(vt+1)}, 3, v0
        v_lshl_add_u32 {v(vt)}, {v(vt+1)}, 3, {v(vt)}
        v_lshrrev_b32 {v(vt+1)}, 5, v0
        v_lshl_add_u32 {v(vt)}, {v(vt+1)}, 10, {v(vt)}
        s_lshl_b32 {s(T)}, {s(S_LO)}, 9
        s_add_u32 {s(T)}, {s(T)}, {L_W}
        v_add_u32 {v(dst)}, {s(T)}, {v(vt)}
        """)
    V_WO, V_EXW, V_EXR, V_OUT, V_IMG = 8, 9, 3, 2, 13
    def tail_addr(self, lbase, loshift, ownimg, colbytes, vt):
        a = self.a
        a(f"""
        v_bfe_u32 {v(vt)}, v0, 2, 2
        v_lshlrev_b32 {v(vt)}, 6, {v(vt)}
        v_lshrrev_b32 {v(vt+1)}, 5, v0
        v_lshl_add_u32 {v(vt)}, {v(vt+1)}, 8, {v(vt)}
        v_and_b32 {v(vt+2)}, 1, v0
        v_lshl_add_u32 {v(vt)}, {v(vt+2)}, 5, {v(vt)}
        v_bfe_u32 {v(vt+2)}, v0, 1, 1
        v_lshl_add_u32 {v(vt)}, {v(vt+2)}, 3, {v(vt)}
        v_bfe_u32 {v(vt+2)}, v0, 4, 1
        v_lshl_add_u32 {v(vt)}, {v(vt+2)}, 4, {v(vt)}
        s_mul_i32 {s(T)}, {s(S_LO)}, {loshift}
        s_add_u32 {s(T)}, {s(T)}, {lbase}
        v_add_u32 {v(self.V_WO)}, {s(T)}, {v(vt)}
        s_lshl_b32 {s(T)}, {s(S_W3)}, 12
        s_add_u32 {s(T)}, {s(T)}, {L_WKV}
        v_add_u32 {v(self.V_EXW)}, {s(T)}, {v(V_L16)}
        v_xor_b32 {v(self.V_EXR)}, 4096, {v(self.V_EXW)}
        v_lshrrev_b32 {v(vt)}, 3, v0
        v_lshlrev_b32 {v(vt)}, 11, {v(vt)}
        v_and_b32 {v(vt+1)}, 7, v0
        v_lshl_add_u32 {v(self.V_OUT)}, {v(vt+1)}, 4, {v(vt)}
        s_lshl_b32 {s(T)}, {s(S_G)}, 1
        s_add_u32 {s(T)}, {s(T)}, {s(S_HI)}
        s_lshl_b32 {s(T+1)}, {s(T)}, 16
        s_lshl_b32 {s(T+2)}, {s(S_J)}, 1
        s_add_u32 {s(T+2)}, {s(T+2)}, {s(S_LO)}
        s_lshl_b32 {s(T+3)}, {s(S_J)}, 7
        s_add_u32 {s(T+1)}, {s(T+1)}, {s(T+3)}
        s_lshl_b32 {s(T+3)}, {s(S_LO)}, 15
        s_add_u32 {s(T+1)}, {s(T+1)}, {s(T+3)}
        s_add_u32 {s(T+1)}, {s(T+1)}, {colbytes}
        """)
        self.add64(S_OUTB, S_OUT, s(T+1))
        a(f"""
        s_lshl_b32 {s(T)}, {s(T)}, 15
        s_lshl_b32 {s(T+2)}, {s(T+2)}, 11
        s_add_u32 {s(T+2)}, {s(T+2)}, {s(T)}
        s_add_u32 {s(T+2)}, {s(T+2)}, {ownimg}
        v_add_u32 {v(self.V_IMG)}, {s(T+2)}, {v(V_L16)}
        s_lshl_b32 {s(T+1)}, {s(S_LO)}, 14
        s_add_u32 {s(T)}, {s(T)}, {s(T+1)}
        s_add_u32 {s(T)}, {s(T)}, {WS_OA}
        """)
        self.add64(S_IMG, S_WS, s(T))

    RQ, RO, RS, RKV = 16, 64, 128, 192
    RIDX, RKA, RVA = 10, 11, 12
    def head_A(self):
        a = self.a
        RQ, RO, RS, RKV, RIDX, RKA, RVA = self.RQ, self.RO, self.RS, self.RKV, self.RIDX, self.RKA, self.RVA
        XA, WA = 248, 252
        a.c("=========================== role A ===========================")
        a.c("---- what the K/V producer needs goes first")
        a(f"""
        v_xor_b32 v10, 64, v2
        v_add_u32 v10, 8192, v10
        s_and_b32 {s(T+1)}, {s(S_J)}, 6
        s_lshl_b32 {s(T+6)}, {s(S_G)}, 16
        s_lshl_b32 {s(T+2)}, {s(T+1)}, 13
        s_add_u32 {s(T+6)}, {s(T+6)}, {s(T+2)}
        s_lshl_b32 {s(T+7)}, {s(S_W)}, 14
        s_lshl_b32 {s(T+2)}, {s(T+1)}, 10
        s_add_u32 {s(T+7)}, {s(T+7)}, {s(T+2)}
        s_lshl_b32 {s(T+8)}, {s(S_W)}, 12
        s_lshl_b32 {s(T+9)}, {s(S_W)}, 1
        s_add_u32 {s(T+9)}, {s(T+9)}, {s(S_KC0)}
        s_mov_b32 {s(S_EPOCH)}, 7
        s_waitcnt lgkmcnt(0)
        """)
        self.stamp(1)
        a(f"""
        s_bitcmp1_b32 {s(S_J)}, 0
        s_cselect_b32 {s(S_WK)}, {s(S_WV)}, {s(S_WK)}
        s_cselect_b32 {s(S_WK+1)}, {s(S_WV+1)}, {s(S_WK+1)}
        """)
        for i in range(2):
            a(f"""
            s_add_u32 {s(T)}, {s(T+9)}, {i}
            s_and_b32 {s(T)}, {s(T)}, 7
            s_lshl_b32 {s(T+1)}, {s(T)}, 7
            s_add_u32 {s(T+1)}, {s(T+1)}, {s(T+6)}
            """)
            self.add64(T+2, S_AX, s(T+1))
            a(f"s_lshl_b32 {s(T)}, {s(T)}, 11")
            self.add64(T+4, S_WK, s(T))
            self.emit(self.dma(2, T+2, T+7, L_X + i*8192))
            self.emit(self.dma(10, T+2, T+7, L_X + i*8192 + 1024))
            self.emit(self.dma(V_L16, T+4, T+8, L_WKV + i*2048))
            a(f"global_load_lds_dwordx4 {v(V_L16)}, {s(T+4,2)} offset:1024")
        a(f"s_getpc_b64 {s(S_PC,2)}")
        self.marker(32)
        a("s_barrier")
        XF, WF = RS, RS+32
        def rd(t):
            i = t % 8
            a(f"ds_read_b128 {v(XF+4*i,4)}, {v(XA+(t&3))} offset:{(t//4)*8192}")
            a(f"ds_read_b64_tr_b16 {v(WF+4*i,2)}, {v(WA)} offset:{t*2048}")
            a(f"ds_read_b64_tr_b16 {v(WF+4*i+2,2)}, {v(WA)} offset:{t*2048+256}")
        def mm(t):
            i = t % 8
            a(f"v_mfma_f32_32x32x16_bf16 v[32:47], {v(WF+4*i,4)}, {v(XF+4*i,4)}, {'0' if t == 0 else 'v[32:47]'}")
        def qproj():
            chk = self.o.get("chk", {0: 0, 4: 1, 8: 3, 16: 5, 24: 6, 28: 7})
            self.await_(20, vaddr=52, val="1", off=128, sleep=1)
            self.await_(20, vaddr=53, val="1", off=16*chk[0], sleep=0)
            self.stamp(2)
            for t in range(4): rd(t)
            for tb in range(4, 32, 4):
                if tb not in chk:
                    for t in range(tb-4, tb):
                        rd(t+4)
                        a("s_waitcnt lgkmcnt(12)")
                        mm(t)
                    continue
                Lok, Lj = a.label("a"), a.label("a")
                ad = 54 if chk[tb] == 7 else 53
                a(f"ds_read_b32 v20, {v(ad)} offset:{16*chk[tb]}")
                a("s_waitcnt lgkmcnt(10)")
                mm(tb-4)
                a("s_waitcnt lgkmcnt(7)")
                mm(tb-3)
                a(f"""
                s_waitcnt lgkmcnt(0)
                v_cmp_gt_u32 vcc, 1, v20
                s_cmp_eq_u64 vcc, 0
                s_cbranch_scc1 {Lok}
                """)
                mm(tb-2); mm(tb-1)
                self.await_(20, vaddr=ad, val="1", off=16*chk[tb], sleep=0)
                for t in range(tb, tb+4): rd(t)
                a(f"s_branch {Lj}")
                a(f"{Lok}:")
                rd(tb); rd(tb+1)
                mm(tb-2)
                rd(tb+2); rd(tb+3)
                mm(tb-1)
                a(f"{Lj}:")
                if tb == 28: self.stamp(3)
            for t in range(28, 32):
                a(f"s_waitcnt lgkmcnt({3*(31-t)})")
                mm(t)
        self.xfrag_addr(XA, S_HI, 20)
        self.wfrag_addr(WA, 20)
        for i in range(0, 64, 2): a(f"v_mov_b64 {v(RO+i,2)}, 0")
        for i in range(0, 4, 2): a(f"v_mov_b64 {v(RKV+36+8+i,2)}, 0")
        a(f"""
        v_and_b32 v20, 15, v0
        v_lshlrev_b32 v20, 4, v20
        v_lshrrev_b32 v21, 5, v0
        v_lshl_add_u32 v20, v21, 8, v20
        v_bfe_u32 v21, v0, 4, 1
        v_mul_u32_u24 v22, {2*KVREC}, v21
        v_add_u32 {v(RKA)}, v20, v22
        v_cmp_eq_u32 vcc, 0, v21
        v_and_b32 v22, 11, v0
        v_min_u32 v22, 1, v22
        v_lshlrev_b32 v22, 4, v22
        v_add_u32 v22, 512, v22
        v_mov_b32 {v(RIDX)}, 0xdddd
        v_cndmask_b32 {v(RVA)}, v22, v20, vcc
        s_lshl_b32 {s(T)}, {s(S_W)}, 9
        s_add_u32 {s(T)}, {s(T)}, {L_MISC}
        v_lshl_add_u32 v48, v0, 2, {s(T)}
        v_xor_b32 v49, 512, v48
        v_and_b32 v51, 4, v0
        v_add_u32 v52, {L_MK-L_SYNC}, {v(V_ALL)}
        v_or_b32 v53, 8, v52
        v_and_b32 v54, 3, v0
        v_cmp_eq_u32 vcc, 0, v54
        s_nop 1
        v_cndmask_b32 v54, v53, v52, vcc
        v_lshl_add_u32 v51, v51, 4, {v(V_ALL)}
        s_lshl_b32 {s(T)}, {s(S_HI)}, 15
        v_add_u32 v14, {s(T)}, {v(V_L16)}
        """)
        self.tail_addr(L_W, 512, WS_OA, 1024, 20)
        a(f"""
        s_lshl_b32 {s(T)}, {s(S_HI)}, 12
        s_add_u32 {s(T)}, {s(T)}, {L_MISC+0x1000}
        v_lshrrev_b32 v20, 5, v0
        v_lshlrev_b32 v20, 1, v20
        s_lshl_b32 {s(T+1)}, {s(S_LO)}, 2
        v_add_u32 v20, {s(T+1)}, v20
        v_and_b32 v21, 7, v0
        v_xor_b32 v20, v20, v21
        v_and_b32 v22, 31, v0
        v_lshl_add_u32 v22, v22, 7, {s(T)}
        v_lshl_add_u32 v57, v20, 4, v22
        v_xor_b32 v58, 16, v57
        v_lshrrev_b32 v20, 3, v0
        v_xor_b32 v21, v21, v20
        s_lshl_b32 {s(T+1)}, {s(S_LO)}, 11
        s_add_u32 {s(T)}, {s(T)}, {s(T+1)}
        v_lshl_add_u32 v20, v20, 7, {s(T)}
        v_lshl_add_u32 v59, v21, 4, v20
        """)
        a(f"""
        s_add_u32 {s(U+2)}, {s(S_XCD)}, 1
        s_and_b32 {s(U+2)}, {s(U+2)}, 7
        s_lshl_b32 {s(U+2)}, {s(U+2)}, 3
        s_add_u32 {s(U+2)}, {s(U+2)}, {s(S_LO)}
        s_mul_i32 {s(U+2)}, {s(U+2)}, {KVTILE}
        s_add_u32 {s(U+2)}, {s(U+2)}, {WS_KV}
        """)
        qproj()
        for i in range(0, 8, 2): a(f"v_mov_b64 {v(RS+48+8+i,2)}, 0")
        a("s_nop 7")
        for i in range(8):
            a(f"v_cvt_pk_bf16_f32 {v(RQ+i)}, {v(32+2*i)}, {v(33+2*i)}")
        a(f"ds_write_b128 {v(self.V_EXW)}, {v(RQ,4)}")
        a(f"ds_write_b128 {v(self.V_EXW)}, {v(RQ+4,4)} offset:1024")
        a("s_waitcnt lgkmcnt(0)")
        self.stamp(4)
        a("s_barrier")
        self.stamp(5)

    def attn(self):
        a = self.a
        RQ, RO, RS, RKV, RIDX, RKA, RVA = self.RQ, self.RO, self.RS, self.RKV, self.RIDX, self.RKA, self.RVA
        SB, SOFF, SCNT, SPASS = T, U+2, U+3, U
        def K(u): return v(RKV+12*u, 4)
        def V(u, h): return v(RKV+12*u+4+4*h, 4)
        def addr_ops():
            return [f"s_add_u32 {s(SB)}, {s(S_WS)}, {s(SOFF)}",
                    f"s_addc_u32 {s(SB+1)}, {s(S_WS+1)}, 0",
                    f"s_add_u32 {s(SOFF)}, {s(SOFF)}, {2*KVTILE}",
                    f"s_cmp_ge_u32 {s(SOFF)}, {WS_KV+64*KVTILE}",
                    f"s_cselect_b32 {s(T+2)}, {64*KVTILE}, 0",
                    f"s_sub_u32 {s(SOFF)}, {s(SOFF)}, {s(T+2)}"]
        def ld(u, k):
            if k == 0: return f"global_load_dwordx4 {K(u)}, {v(RKA)}, {s(SB,2)} sc1"
            return f"global_load_dwordx4 {V(u,k-1)}, {v(RVA)}, {s(SB,2)} offset:{KVREC+(k-1)*2*KVREC} sc1"
        a.c("---- attention")
        a(f"s_setprio {self.o.get('aprio', 1)}")
        for u in range(3):
            for x in addr_ops(): a(x)
            for k in range(3): a(ld(u, k))
        a(f"ds_read_b128 {v(RQ+8,4)}, {v(self.V_EXR)}")
        a(f"ds_read_b128 {v(RQ+12,4)}, {v(self.V_EXR)} offset:1024")
        self.arrive(50)
        a(f"s_mov_b32 {s(SCNT)}, 1")
        a(f"s_mov_b32 {s(SPASS)}, 0")
        if self.o.get("aprof"): a("s_mov_b32 m0, 0")
        a(f"s_waitcnt vmcnt(6) lgkmcnt(0)")
        self.stamp(6)
        a(f"v_mfma_f32_32x32x16_bf16 {v(RS,16)}, {K(0)}, {v(RQ,4)}, 0")
        a("s_nop 7")
        a("s_nop 2")
        L, LD = a.label("attn"), a.label("attnd")
        a(".p2align 6")
        a(f"{L}:")
        p2, p1 = self.o.get("pos", (3, 10))
        for u in range(4):
            for b in range(4):
                if self.o.get("aprof") and b == 0:
                    a(f"""
                    s_memtime s[60:61]
                    s_waitcnt lgkmcnt(0)
                    v_writelane_b32 v55, s60, m0
                    s_add_u32 m0, m0, 1
                    """)
                fill = [[], [], []]
                if b == 0:
                    ops = addr_ops()
                    fill[0] = ops[0:1]; fill[1] = ops[1:3]; fill[2] = ops[3:5]
                if b == 1:
                    fill[0] = addr_ops()[5:6]; fill[1] = [ld((u+3) % 4, 0)]; fill[2] = [ld((u+3) % 4, 1)]
                if b == 2:
                    fill[1] = [ld((u+3) % 4, 2)]; fill[2] = ["s_waitcnt vmcnt(6)"]
                if b == 3 and u == 3:
                    fill[1] = [f"s_sub_u32 {s(SCNT)}, {s(SCNT)}, 1", f"s_cmp_lg_u32 {s(SCNT)}, 0"]
                nu, nb = (u, b+1) if b < 3 else ((u+1) % 4, 0)
                pu, pb = (u, b-1) if b > 0 else ((u-1) % 4, 3)
                S = RS + 16*b
                a(f"v_mfma_f32_32x32x16_bf16 {v(RS+16*nb,16)}, {K(nu)}, {v(RQ+4*nb,4)}, 0")
                for x in fill[0]: a(x)
                for i in range(0, p2): a(f"v_exp_f32 {v(S+i)}, {v(S+i)}")
                a(f"v_smfmac_f32_32x32x32_bf16 {v(RO+16*pb,16)}, {V(pu,1)}, {v(RS+16*pb+8,8)}, {v(RIDX)}")
                for x in fill[1]: a(x)
                for i in range(p2, p1): a(f"v_exp_f32 {v(S+i)}, {v(S+i)}")
                a(f"v_smfmac_f32_32x32x32_bf16 {v(RO+16*b,16)}, {V(u,0)}, {v(S,8)}, {v(RIDX)}")
                for x in fill[2]: a(x)
                for i in range(p1, 16): a(f"v_exp_f32 {v(S+i)}, {v(S+i)}")
        a(f"s_cbranch_scc1 {L}")
        a(f"s_cmp_lg_u32 {s(SPASS)}, 0")
        a(f"s_cbranch_scc1 {LD}")
        a.c("the remaining key tiles must have been published before they are fetched")
        self.await_(50, vaddr=51)
        a(f"s_mov_b32 {s(SPASS)}, 1")
        a(f"s_mov_b32 {s(SCNT)}, 7")
        a(f"s_branch {L}")
        a(f"{LD}:")
        a(f"v_smfmac_f32_32x32x32_bf16 {v(RO+48,16)}, {V(3,1)}, {v(RS+48+8,8)}, {v(RIDX)}")

    def tail_A(self):
        a = self.a
        RQ, RO = self.RQ, self.RO
        self.stamp(7)
        if self.o.get("aprof"):
            a(f"""
            s_lshl_b32 s60, s2, 2
            s_add_u32 s60, s60, {s(S_W)}
            s_lshl_b32 s60, s60, 8
            s_add_u32 s60, s60, {WS_STAMP+0x40000}
            v_lshl_add_u32 v56, v0, 2, s60
            global_store_dword v56, v55, {s(S_WS,2)}
            """)
        a.c("---- pair reduction of the two key halves")
        a(f"""
        ds_write_b128 {v(self.V_EXW)}, {v(RO+32,4)}
        ds_write_b128 {v(self.V_EXW)}, {v(RO+36,4)} offset:1024
        ds_write_b32 v48, {v(RO+40)}
        s_mov_b32 {s(T+2)}, {f32(2.0**-20)}
        s_mov_b32 {s(T+3)}, {f32(2.0**100)}
        s_nop 6
        ds_write_b128 {v(self.V_EXW)}, {v(RO+48,4)} offset:2048
        ds_write_b128 {v(self.V_EXW)}, {v(RO+52,4)} offset:3072
        ds_write_b32 v48, {v(RO+56)} offset:256
        s_waitcnt vmcnt(0) lgkmcnt(0)
        s_barrier
        {f"s_memrealtime {s(S_ST+2*11,2)}" if self.stamps else ""}
        ds_read_b32 {v(RO+40)}, v49
        ds_read_b32 {v(RO+56)}, v49 offset:256
        ds_read_b128 {v(RO+32,4)}, {v(self.V_EXR)}
        ds_read_b128 {v(RO+36,4)}, {v(self.V_EXR)} offset:1024
        ds_read_b128 {v(RO+48,4)}, {v(self.V_EXR)} offset:2048
        ds_read_b128 {v(RO+52,4)}, {v(self.V_EXR)} offset:3072
        s_waitcnt lgkmcnt(4)
        v_add_f32 {v(RO+8)}, {v(RO+8)}, {v(RO+40)}
        v_add_f32 {v(RO+24)}, {v(RO+24)}, {v(RO+56)}
        v_cmp_le_f32 {s(T+4,2)}, {s(T+2)}, {v(RO+8)}
        v_cmp_le_f32 {s(T+6,2)}, {s(T+2)}, {v(RO+24)}
        v_add_f32 {v(RO+41)}, {v(RO+8)}, {v(RO+24)}
        s_waitcnt lgkmcnt(0)
        """)
        for b in range(2):
            for i in range(0, 8, 2):
                a(f"v_pk_add_f32 {v(RO+16*b+i,2)}, {v(RO+16*b+i,2)}, {v(RO+32+16*b+i,2)}")
        a.c("---- the zero shift is kept only if every row sum is in range and every sum is finite")
        a(f"""
        v_pk_add_f32 {v(RO+32,2)}, {v(RO,2)}, {v(RO+2,2)}
        v_pk_add_f32 {v(RO+34,2)}, {v(RO+4,2)}, {v(RO+6,2)}
        v_pk_add_f32 {v(RO+36,2)}, {v(RO+16,2)}, {v(RO+18,2)}
        v_pk_add_f32 {v(RO+38,2)}, {v(RO+20,2)}, {v(RO+22,2)}
        v_pk_add_f32 {v(RO+32,2)}, {v(RO+32,2)}, {v(RO+34,2)}
        v_pk_add_f32 {v(RO+36,2)}, {v(RO+36,2)}, {v(RO+38,2)}
        s_and_b64 {s(T+4,2)}, {s(T+4,2)}, {s(T+6,2)}
        v_pk_add_f32 {v(RO+32,2)}, {v(RO+32,2)}, {v(RO+36,2)}
        v_fma_f32 {v(RO+41)}, {v(RO+32)}, 0, {v(RO+41)}
        v_fma_f32 {v(RO+41)}, {v(RO+33)}, 0, {v(RO+41)}
        v_cmp_ge_f32 vcc, {s(T+3)}, {v(RO+41)}
        s_and_b64 vcc, vcc, {s(T+4,2)}
        s_cmp_eq_u64 vcc, -1
        s_cbranch_scc0 L_fallback
        L_norm:
        """)
        self.normalize([(RO, RO+8), (RO+16, RO+24)], 24)
        self.stamp(8)
        a.c("---- the linear-attention half of the output projection fills the hand-off wait")
        a("s_setprio 0")
        XF, WF, ACC = 128, 160, 96
        D = 4
        def rd(u):
            i = u % 8
            a(f"ds_read_b128 {v(XF+4*i,4)}, v14 offset:{u*1024}")
            for sx in range(2):
                a(f"ds_read_b64_tr_b16 {v(WF+4*i+2*sx,2)}, {v(self.V_WO)} offset:{(2*u+sx)*1024}")
        for u in range(D): rd(u)
        for u in range(32):
            if u + D < 32:
                rd(u+D); n = 3*D
            else:
                n = 3*(31-u)
            if u == self.o.get("y2", 12):
                if self.o.get("y2w", 1): a("s_waitcnt vmcnt(0)")
                a("s_barrier")
                self.stamp(9)
            a(f"s_waitcnt lgkmcnt({n})")
            i = u % 8
            a(f"v_mfma_f32_32x32x16_bf16 {v(ACC,16)}, {v(WF+4*i,4)}, {v(XF+4*i,4)}, {'0' if u == 0 else v(ACC,16)}")
        self.stamp(10)
        a(f"s_mov_b32 {s(S_EPOCH)}, 39")
        self.add64(T+2, S_OUTB, 16384)
        a("s_nop 7")
        a("s_nop 0")
        for h in range(2):
            for i in range(4*h, 4*h+4): a(f"v_cvt_pk_bf16_f32 {v(32+i)}, {v(ACC+2*i)}, {v(ACC+2*i+1)}")
            a(f"ds_write_b128 {v(57+h)}, {v(32+4*h,4)}")
        self.softbar(50, sleep=0)
        a("ds_read_b128 v[40:43], v59")
        a("ds_read_b128 v[44:47], v59 offset:1024")
        for h in range(2):
            a(f"s_waitcnt lgkmcnt({1-h})")
            a(f"global_store_dwordx4 {v(self.V_OUT)}, {v(40+4*h,4)}, {s(T+2 if h else S_OUTB,2)} {self.o.get('osta','')}")
        a("s_branch L_fin")

    def normalize(self, blocks, P, guard=True):
        a = self.a
        for N, R in blocks: a(f"v_rcp_f32 {v(R)}, {v(R)}")
        for b, (N, R) in enumerate(blocks):
            for i in range(0, 8, 2):
                a(f"v_pk_mul_f32 {v(N+i,2)}, {v(N+i,2)}, {v(R,2)} op_sel_hi:[1,0]")
            for i in range(4):
                a(f"v_cvt_pk_bf16_f32 {v(P+4*b+i)}, {v(N+2*i)}, {v(N+2*i+1)}")
            if guard: a(f"v_min_u32 {v(P+4*b)}, -2, {v(P+4*b)}")
            a(f"global_store_dwordx4 {v(self.V_IMG)}, {v(P+4*b,4)}, {s(S_WS,2)} offset:{1024*b} sc1")

    def attn_fallback(self, Lret):
        a = self.a
        RQ, RO, RS, RKV, RIDX, RKA, RVA = self.RQ, self.RO, self.RS, self.RKV, self.RIDX, self.RKA, self.RVA
        SB, SCNT = T, U+3
        NM = RS + 32
        a("L_fallback:")
        a(f"v_mov_b32 {v(RKV+20)}, 0xff800000")
        a(f"v_mov_b32 {v(RKV+21)}, 0xff800000")
        for ps in (0, 1):
            L = a.label("fb")
            self.add64(SB, S_WS, WS_KV)
            a(f"""
            s_mov_b32 {s(SCNT)}, 64
            {L}:
            global_load_dwordx4 {v(RKV,4)}, {v(RKA)}, {s(SB,2)} sc1
            """)
            if ps:
                a(f"global_load_dwordx4 {v(RKV+4,4)}, {v(RVA)}, {s(SB,2)} offset:{KVREC} sc1")
                a(f"global_load_dwordx4 {v(RKV+8,4)}, {v(RVA)}, {s(SB,2)} offset:{3*KVREC} sc1")
            self.add64(SB, SB, KVTILE)
            a("s_waitcnt vmcnt(0)")
            for b in range(2):
                c = v(NM+16*b, 16) if ps else "0"
                a(f"v_mfma_f32_32x32x16_bf16 {v(RS+16*b,16)}, {v(RKV,4)}, {v(RQ+4*b,4)}, {c}")
            a("s_nop 7")
            a("s_nop 4")
            for b in range(2):
                S = RS + 16*b
                if not ps:
                    for i in range(0, 16, 2):
                        a(f"v_max3_f32 {v(RKV+20+b)}, {v(S+i)}, {v(S+i+1)}, {v(RKV+20+b)}")
                else:
                    for i in range(16): a(f"v_exp_f32 {v(S+i)}, {v(S+i)}")
                    a("s_nop 1")
                    a(f"v_smfmac_f32_32x32x32_bf16 {v(RO+16*b,16)}, {v(RKV+4,4)}, {v(S,8)}, {v(RIDX)}")
                    a(f"v_smfmac_f32_32x32x32_bf16 {v(RO+16*b,16)}, {v(RKV+8,4)}, {v(S+8,8)}, {v(RIDX)}")
            a(f"""
            s_sub_u32 {s(SCNT)}, {s(SCNT)}, 1
            s_cmp_lg_u32 {s(SCNT)}, 0
            s_cbranch_scc1 {L}
            """)
            if not ps:
                for b in range(2):
                    m = RKV+20+b
                    a(f"""
                    v_mov_b32 {v(RKV+22)}, {v(m)}
                    s_nop 1
                    v_permlane32_swap_b32 {v(m)}, {v(RKV+22)}
                    s_nop 1
                    v_max_f32 {v(m)}, {v(m)}, {v(RKV+22)}
                    """)
                    for i in range(16): a(f"v_sub_f32 {v(NM+16*b+i)}, 0, {v(m)}")
                for i in range(32): a(f"v_mov_b32 {v(RO+i)}, 0")
        a("s_nop 7")
        a("s_nop 4")
        a(f"s_branch {Lret}")

    def outproj_wfrags(self):
        a = self.a
        for p in range(4):
            a(f"""
            s_add_u32 {s(T)}, {s(S_J)}, {p}
            s_and_b32 {s(T)}, {s(T)}, 3
            s_lshl_b32 {s(T+1)}, {s(S_LO)}, 2
            s_add_u32 {s(T)}, {s(T)}, {s(T+1)}
            s_lshl_b32 {s(T+1)}, {s(S_G)}, 1
            s_sub_u32 {s(T)}, {s(T)}, {s(T+1)}
            s_and_b32 {s(T)}, {s(T)}, 7
            s_lshl_b32 {s(T)}, {s(T)}, 13
            v_add_u32 v21, {s(T)}, {v(self.V_WO)}
            """)
            for k in range(4):
                u = 4*p + k
                for nb in range(2):
                    for sx in range(2):
                        a(f"ds_read_b64_tr_b16 {v(128+8*u+4*nb+2*sx,2)}, v21 offset:{(2*k+sx)*1024+nb*512}")
    def gather_loads(self, p):
        for k in range(4):
            self.a(f"global_load_dwordx4 {v(32+16*p+4*k,4)}, {v(V_L16)}, {s(8+2*p,2)} offset:{k*1024} sc1")
    def outproj(self):
        a = self.a
        a.c("=========================== attention half of the output projection ===========================")
        def consume(p, Ls):
            I = 32 + 16*p
            a(f"""
            v_max3_u32 v16, {v(I)}, {v(I+4)}, {v(I+8)}
            v_max_u32 v16, v16, {v(I+12)}
            v_cmp_eq_u32 vcc, -1, v16
            s_cmp_lg_u64 vcc, 0
            s_cbranch_scc1 {Ls}
            s_bitset0_b32 {s(S_PEND)}, {p}
            """)
            for k in range(4):
                u = 4*p + k
                for nb in range(2):
                    acc = v(96+16*nb, 16)
                    a(f"v_mfma_f32_32x32x16_bf16 {acc}, {v(128+8*u+4*nb,4)}, {v(32+4*u,4)}, {acc}")
            a(f"{Ls}:")
        self.gather_loads(0); self.gather_loads(1)
        for p in range(4):
            a(f"s_waitcnt vmcnt({4 if p < 3 else 0})")
            if p < 2: self.gather_loads(p+2)
            if p == 3: a(f"ds_read_b32 v20, v21")
            consume(p, a.label("cs"))
        a(f"s_cmp_lg_u32 {s(S_PEND)}, 0")
        a("s_cbranch_scc1 L_retry")
        a("L_gathered:")
        self.stamp(10)
        Lok = a.label("k")
        a.c("the exchange tiles reuse LDS the A waves have finished reading")
        a(f"""
        s_waitcnt lgkmcnt(0)
        v_cmp_gt_u32 vcc, 40, v20
        s_cmp_eq_u64 vcc, 0
        s_cbranch_scc1 {Lok}
        """)
        self.await_(20, vaddr=21, val="40", sleep=0)
        a(f"{Lok}:")
        self.add64(T+2, S_OUTB, 16384)
        a("s_nop 3")
        for nb in range(2):
            for k, ad in enumerate((9, 14, 15, 17)):
                a(f"ds_write_b128 {v(ad)}, {v(96+16*nb+4*k,4)} offset:{128*nb}")
        self.softbar(16, sleep=0)
        for i in range(2):
            for pt in range(2):
                for e, ad in enumerate((3, 24)):
                    a(f"ds_read_b128 {v(32+16*i+8*pt+4*e,4)}, {v(ad)} offset:{2048*i+8192*pt}")
        for i in range(2):
            a(f"s_waitcnt lgkmcnt({4-4*i})")
            for k in range(0, 8, 2): a(f"v_pk_add_f32 {v(32+16*i+k,2)}, {v(32+16*i+k,2)}, {v(32+16*i+8+k,2)}")
            for k in range(4): a(f"v_cvt_pk_bf16_f32 {v(64+4*i+k)}, {v(32+16*i+2*k)}, {v(32+16*i+2*k+1)}")
            a(f"global_store_dwordx4 {v(self.V_OUT)}, {v(64+4*i,4)}, {s(T+2 if i else S_OUTB,2)} {self.o.get('ostb','')}")
        def retry():
            a("L_retry:")
            if self.o.get("rs", 2): a(f"s_sleep {self.o.get('rs', 2)}")
            for p in range(4):
                Ls = a.label("gs")
                a(f"s_bitcmp1_b32 {s(S_PEND)}, {p}")
                a(f"s_cbranch_scc0 {Ls}")
                self.gather_loads(p)
                a(f"{Ls}:")
            a("s_waitcnt vmcnt(0)")
            for p in range(4):
                Ls = a.label("cs")
                a(f"s_bitcmp1_b32 {s(S_PEND)}, {p}")
                a(f"s_cbranch_scc0 {Ls}")
                consume(p, Ls)
            a(f"""
            s_add_u32 {s(T+9)}, {s(T+9)}, 1
            s_cmp_eq_u32 {s(S_PEND)}, 0
            s_cbranch_scc1 L_gathered
            s_cmp_lt_u32 {s(T+9)}, {SPIN_MAX}
            s_cbranch_scc1 L_retry
            s_branch L_gathered
            """)
        self.retry = retry

    def kv_setup(self):
        self.a(f"""
        v_and_b32 v96, 15, v0
        v_and_b32 v97, 3, v0
        v_bfe_u32 v98, v0, 2, 1
        v_lshl_add_u32 v97, v98, 3, v97
        v_bfe_u32 v98, v0, 3, 1
        v_lshl_add_u32 v97, v98, 2, v97
        s_bitcmp1_b32 {s(S_J)}, 0
        s_cselect_b64 vcc, -1, 0
        s_cselect_b32 {s(T+8)}, 1.0, {f32(0.25*LOG2E)}
        v_cndmask_b32 v96, v96, v97, vcc
        v_lshrrev_b32 v98, 4, v0
        v_lshrrev_b32 v97, 1, v96
        v_xor_b32 v97, v97, v98
        v_lshlrev_b32 v96, 7, v96
        v_lshl_add_u32 v96, v97, 4, v96
        s_and_b32 {s(T)}, {s(S_J)}, 6
        s_lshl_b32 {s(T)}, {s(T)}, 10
        v_add_u32 v96, {s(T)}, v96
        v_xor_b32 v97, 64, v96
        v_bfe_u32 v99, v0, 2, 2
        v_lshl_add_u32 v99, v98, 3, v99
        v_lshlrev_b32 v99, 5, v99
        v_and_b32 v100, 3, v0
        v_lshl_add_u32 v99, v100, 3, v99
        v_add_u32 v99, {L_WKV}, v99
        """)
    def kv_compute(self):
        a = self.a
        XF, WF = 128, 160
        def rd(t):
            a(f"ds_read_b128 {v(XF+4*(t%8),4)}, {v(96+(t&1))} offset:{(t//2)*8192}")
            a(f"ds_read_b64_tr_b16 {v(WF+4*(t%8),2)}, v99 offset:{t*1024}")
            a(f"ds_read_b64_tr_b16 {v(WF+4*(t%8)+2,2)}, v99 offset:{t*1024+128}")
        LV, LD = a.label("kvv"), a.label("kvd")
        D = 4
        for t in range(D): rd(t)
        a(f"s_bitcmp1_b32 {s(S_J)}, 0")
        a(f"s_cbranch_scc1 {LV}")
        for isv in (0, 1):
            if isv: a(f"{LV}:")
            for t in range(16):
                if t + D < 16:
                    rd(t + D); n = 3*D
                else:
                    n = 3*(15 - t)
                a(f"s_waitcnt lgkmcnt({n})")
                x, w = v(XF+4*(t%8),4), v(WF+4*(t%8),4)
                A, B = (x, w) if isv else (w, x)
                a(f"v_mfma_f32_16x16x32_bf16 v[104:107], {A}, {B}, {'0' if t == 0 else 'v[104:107]'}")
            if not isv: a(f"s_branch {LD}")
        a(f"""
        {LD}:
        s_nop 7
        v_pk_mul_f32 v[104:105], v[104:105], {s(T+8,2)} op_sel_hi:[1,0]
        v_pk_mul_f32 v[106:107], v[106:107], {s(T+8,2)} op_sel_hi:[1,0]
        v_cvt_pk_bf16_f32 v108, v104, v105
        v_cvt_pk_bf16_f32 v109, v106, v107
        s_nop 1
        v_permlane32_swap_b32 v108, v110
        v_permlane32_swap_b32 v109, v111
        s_mov_b32 exec_hi, 0
        global_store_dwordx4 v101, v[108:111], {s(S_WS,2)} sc1
        s_mov_b32 exec_hi, -1
        """)

    def phi(self, R):
        a = self.a
        TMP = 80
        a(f"s_mov_b32 {s(T)}, {f32(LOG2E)}")
        a(f"s_mov_b32 {s(T+2)}, {f32(1e-6)}")
        for i in range(0, 16, 2): a(f"v_pk_fma_f32 {v(TMP+i,2)}, {v(R+i,2)}, {s(T,2)}, v[18:19] op_sel_hi:[1,0,0]")
        for i in range(16): a(f"v_exp_f32 {v(TMP+i)}, {v(TMP+i)} clamp")
        for i in range(16): a(f"v_max_f32 {v(R+i)}, {s(T+2)}, {v(R+i)}")
        for i in range(0, 16, 2): a(f"v_pk_add_f32 {v(R+i,2)}, {v(R+i,2)}, {v(TMP+i,2)}")
        for i in range(0, 16, 2): a(f"v_cvt_pk_bf16_f32 {v(R+i//2)}, {v(R+i)}, {v(R+i+1)}")

    def roleB(self):
        a = self.a
        RB, HP, WB = S_HI, S_LO, S_W3
        SXM, SWM, SXO, SWO = U, U+1, U+2, U+3
        VX, VW, VO = 26, 240, 28
        XA, WA = 244, 248
        AK, AV, AQ = 32, 48, 64
        F = (96, 160)
        XF = 96
        X, Y = 224, 232
        V_L128, V_SX, V_L4, V_F4 = 10, 11, 12, 15
        VL, SL, SLO, SF1 = 80, 96, 60, 62
        HI, LOW = "s_setprio 3", f"s_setprio {self.o.get('bmm', 0)}"
        a.c("=========================== role B ===========================")
        a("L_roleB:")
        self.inB = True
        Lj = a.label("b")
        if self.o.get("cpf", 1):
            a.c("pull the kernel's code into this die's L2 ahead of the instruction fetch")
            Lc = a.label("b")
            a(f"""
            s_cmp_lg_u32 {s(S_W)}, 4
            s_cbranch_scc1 {Lc}
            s_getpc_b64 {s(T,2)}
            L_pc:
            s_sub_u32 {s(T)}, {s(T)}, L_pc-{NAME}_kernel
            s_subb_u32 {s(T+1)}, {s(T+1)}, 0
            s_lshr_b32 {s(T+2)}, s2, 3
            v_lshl_add_u32 v23, v0, 5, {s(T+2)}
            v_lshlrev_b32 v23, 7, v23
            v_cmp_gt_u32 vcc, L_last-{NAME}_kernel, v23
            s_and_saveexec_b64 {s(T+2,2)}, vcc
            global_load_dword v23, v23, {s(T,2)}
            s_mov_b64 exec, -1
            {Lc}:
            """)
        a(f"""
        s_lshl_b32 {s(T)}, {s(S_C)}, 8
        s_add_u32 {s(T)}, {s(T)}, {WS_ACC}
        v_lshl_add_u32 v24, v0, 2, {s(T)}
        s_mul_i32 {s(T)}, {s(S_C)}, {KVREC}
        s_add_u32 {s(T)}, {s(T)}, {WS_KV}
        v_add_u32 v101, {s(T)}, {v(V_L16)}
        v_cmp_eq_u32 vcc, 32, v0
        v_mov_b32 v112, 0x3f803f80
        s_nop 0
        v_cndmask_b32 v112, 0, v112, vcc
        v_mov_b32 v113, v112
        v_mov_b32 v114, v112
        v_mov_b32 v115, v112
        """)
        for u in range(4): a(f"v_add_u32 {v(VL+u)}, {8192*u}, v3")
        a(f"s_lshl_b32 {s(T)}, {s(S_LO)}, 6")
        a(f"v_xor_b32 v20, {s(T)}, v2")
        for u in range(3):
            a(f"""
            s_add_u32 {s(T)}, {s(S_J)}, {2+2*u}
            s_and_b32 {s(T)}, {s(T)}, 6
            s_add_u32 {s(T)}, {s(T)}, {s(S_LO)}
            s_lshl_b32 {s(SL+u)}, {s(T)}, 10
            s_lshl_b32 {s(T)}, {s(T)}, 13
            v_add_u32 {v(VL+4+u)}, {s(T)}, v20
            """)
        a(f"""
        s_lshl_b32 {s(SL+3)}, {s(S_LO)}, 12
        s_lshl_b32 {s(SL+4)}, {s(S_G)}, 16
        s_lshl_b32 {s(SLO)}, {s(S_J)}, 7
        s_lshl_b32 {s(T)}, {s(S_LO)}, 15
        s_add_u32 {s(SLO)}, {s(SLO)}, {s(T)}
        """)
        ta = self.o.get("ta", 0)
        if ta:
            a.c("first touch (one dword per line) of this CU's share of what the die reads for the A-side projections")
            a(f"""
            s_and_b32 {s(T)}, {s(S_G)}, 3
            s_lshl_b32 {s(T+1)}, {s(T)}, 10
            s_lshl_b32 {s(T+2)}, {s(S_J)}, 7
            s_add_u32 {s(T+1)}, {s(T+1)}, {s(T+2)}
            s_lshl_b32 {s(T+2)}, {s(S_LO)}, 18
            s_add_u32 {s(T+1)}, {s(T+1)}, {s(T+2)}
            s_lshl_b32 {s(T+2)}, {s(S_C)}, 13
            s_lshl_b32 {s(T)}, {s(T)}, 2
            s_lshr_b32 {s(T+3)}, {s(S_J)}, 1
            s_add_u32 {s(T)}, {s(T)}, {s(T+3)}
            s_lshl_b32 {s(T)}, {s(T)}, 10
            s_cmp_eq_u32 {s(S_W)}, 5
            s_cselect_b32 {s(T)}, {s(T+2)}, {s(T)}
            s_cmp_ge_u32 {s(S_W)}, 6
            s_cselect_b32 {s(T)}, {s(T+1)}, {s(T)}
            s_cselect_b32 {s(T+1)}, 12, 7
            v_lshlrev_b32 v19, {s(T+1)}, v0
            v_add_u32 v19, {s(T)}, v19
            """)
        a("s_waitcnt lgkmcnt(0)")
        if ta:
            Lt4, Lt5, Lte = a.label("t"), a.label("t"), a.label("t")
            a(f"""
            s_cmp_eq_u32 {s(S_W)}, 4
            s_cbranch_scc1 {Lt4}
            s_cmp_eq_u32 {s(S_W)}, 5
            s_cbranch_scc1 {Lt5}
            {f"global_load_dword v19, v19, {s(S_WQ,2)}" if ta != 4 else ""}
            s_branch {Lte}
            {Lt5}:
            {f"global_load_dword v19, v19, {s(S_AX,2)}" if ta == 1 else ""}
            s_branch {Lte}
            {Lt4}:
            s_bitcmp1_b32 {s(S_J)}, 0
            s_cselect_b32 {s(S_WK)}, {s(S_WV)}, {s(S_WK)}
            s_cselect_b32 {s(S_WK+1)}, {s(S_WV+1)}, {s(S_WK+1)}
            s_mov_b64 exec, 0xff
            {f"global_load_dword v19, v19, {s(S_WK,2)}" if ta in (1, 3) else ""}
            s_mov_b64 exec, -1
            {Lte}:
            """)
        Lz = a.label("b")
        a.c("clear this CU's share of the state accumulators (ordered before the K/V flag)")
        a(f"""
        s_cmp_lg_u32 {s(S_W)}, 4
        s_cbranch_scc1 {Lz}
        global_store_dword v24, {v(V_ZERO)}, {s(S_WS,2)} sc1
        s_mov_b32 exec_lo, {-1 if self.o.get("pre", 1) == 1 else 0}
        s_mov_b32 exec_hi, 0xff
        global_store_dwordx4 v101, v[112:115], {s(S_WS,2)} sc1
        s_mov_b64 exec, -1
        {Lz}:
        s_lshr_b32 {s(T)}, {s(S_C)}, 2
        s_lshl_b32 {s(T)}, {s(T)}, 7
        s_and_b32 {s(T+1)}, {s(S_C)}, 3
        s_lshl_b32 {s(T+1)}, {s(T+1)}, 2
        s_add_u32 {s(T)}, {s(T)}, {s(T+1)}
        s_add_u32 {s(T)}, {s(T)}, {WS_F1}
        s_add_u32 {s(S_WV)}, {s(S_WS)}, {s(T)}
        s_addc_u32 {s(S_WV+1)}, {s(S_WS+1)}, 0
        s_load_dword s53, {s(S_WV,2)}, 0
        s_load_dword {s(S_TAG)}, {s(S_WS,2)}, {WS_G}
        """)
        a(f"s_getpc_b64 {s(S_PC,2)}")
        self.stamp(1)
        a("s_barrier")
        self.stamp(1, "hd")
        def setup():
            a.c("---- B-side setup, all in the shadow of the head")
            a(f"""
            v_mov_b32 {v(VX)}, v2
            v_xor_b32 {v(VX+1)}, 64, v2
            v_add_u32 {v(VX+1)}, 8192, {v(VX+1)}
            v_mul_u32_u24 {v(VW)}, 3072, v8
            v_add_u32 {v(VW)}, {v(VW)}, v9
            v_mov_b32 {v(VO)}, v3
            """)
            for i in range(1, 4):
                a(f"v_add_u32 {v(VW+i)}, {24576*i}, {v(VW)}")
                a(f"v_add_u32 {v(VO+i)}, {8192*i}, v3")
            self.xfrag_addr(XA, RB, 20)
            self.wfrag_addr(WA, 20)
            self.tail_addr(L_X, 0, WS_OB, 0, 20)
            a(f"""
            s_lshl_b32 {s(T)}, {s(S_W3)}, 13
            s_add_u32 {s(T)}, {s(T)}, {L_W}
            v_lshrrev_b32 v20, 5, v0
            v_lshlrev_b32 v20, 2, v20
            v_and_b32 v21, 7, v0
            v_xor_b32 v20, v20, v21
            v_and_b32 v22, 31, v0
            v_lshl_add_u32 v22, v22, 8, {s(T)}
            v_lshl_add_u32 v9, v20, 4, v22
            v_xor_b32 v14, 16, v9
            v_xor_b32 v15, 32, v9
            v_xor_b32 v17, 48, v9
            s_lshl_b32 {s(T)}, {s(S_HI)}, 14
            s_lshl_b32 {s(T+1)}, {s(S_LO)}, 12
            s_add_u32 {s(T)}, {s(T)}, {s(T+1)}
            s_add_u32 {s(T)}, {s(T)}, {L_W}
            v_lshrrev_b32 v20, 3, v0
            v_lshlrev_b32 v21, 1, v21
            v_xor_b32 v21, v21, v20
            v_lshl_add_u32 v20, v20, 8, {s(T)}
            v_lshl_add_u32 v3, v21, 4, v20
            v_xor_b32 v24, 16, v3
            """)
            a(f"""
            s_lshl_b32 {s(SXM)}, {s(WB)}, 11
            s_lshl_b32 {s(SWM)}, {s(WB)}, 12
            s_lshl_b32 {s(SXO)}, {s(S_G)}, 16
            s_lshl_b32 {s(T)}, {s(WB)}, 14
            s_add_u32 {s(SXO)}, {s(SXO)}, {s(T)}
            s_mul_i32 {s(SWO)}, {s(HP)}, {32*3072}
            s_lshl_b32 {s(T)}, {s(S_J)}, 7
            s_add_u32 {s(SWO)}, {s(SWO)}, {s(T)}
            s_mov_b32 {s(T)}, {f32(1e-6)}
            s_mov_b32 {s(T+1)}, {f32(1e-6)}
            s_mov_b32 {s(T+2)}, 0x3f803f80
            s_mov_b32 {s(T+3)}, 0x3f803f80
            """)
            for i in range(0, 16, 2):
                a(f"v_mov_b64 {v(AK+i,2)}, {s(T,2)}")
                a(f"v_mov_b64 {v(AQ+i,2)}, {s(T,2)}")
                a(f"v_mov_b64 {v(X+i,2)}, {s(T+2,2)}")
            a(f"""
            v_mov_b32 v18, {f32(-1e-6*LOG2E)}
            v_mov_b64 v[252:253], -1
            v_mov_b64 v[254:255], -1
            v_mov_b32 v25, 63
            v_mul_u32_u24 v250, 12288, v0
            v_lshlrev_b32 v251, 12, v0
            v_lshlrev_b32 {v(V_L128)}, 7, v0
            s_lshl_b32 {s(T)}, {s(WB)}, 11
            s_add_u32 {s(T)}, {s(T)}, {L_MISC+0x1000}
            v_add_u32 {v(V_SX)}, {s(T)}, {v(V_L16)}
            v_lshlrev_b32 {v(V_L4)}, 2, v0
                """)
            self.add64(SF1, S_WS, WS_F1)
        def tag():
            a(f"""
            s_waitcnt lgkmcnt(0)
            s_add_u32 {s(S_TAG)}, {s(S_TAG)}, 0x9e3779b9
            v_mov_b32 {v(V_TAG)}, {s(S_TAG)}
            """)
        def touch(spec):
            kind, lo, hi = spec
            if kind == "x":
                m = sum(1 << e for e in range(lo, hi)) * 0x01010101
                a(f"s_lshl_b32 {s(T)}, {s(S_C)}, 13")
                self.add64(T+2, S_BX, s(T))
                mlo = mhi = m; vr = V_L128
            else:
                base, rs, col = {"q": (S_WQKV, 3072, 0), "k": (S_WQKV, 3072, 1024), "v": (S_WQKV, 3072, 2048),
                                 "a": (S_AWO, 1024, 0), "b": (S_BWO, 1024, 0)}[kind]
                h = lo // 4
                m = sum(0xffff << (16*(e - 4*h)) for e in range(lo, hi))
                mlo, mhi = m & 0xffffffff, m >> 32
                a(f"""
                s_and_b32 {s(T)}, {s(S_G)}, 3
                s_mul_i32 {s(T)}, {s(T)}, {rs}
                s_lshl_b32 {s(T+1)}, {s(S_J)}, 7
                s_add_u32 {s(T)}, {s(T)}, {s(T+1)}
                s_add_u32 {s(T)}, {s(T)}, {h*256*rs + col}
                """)
                self.add64(T+2, base, s(T))
                vr = 250 if rs == 3072 else 251
            a(f"s_mov_b32 exec_lo, {mlo:#x}")
            a(f"s_mov_b32 exec_hi, {mhi:#x}")
            a(f"global_load_dword v19, {v(vr)}, {s(T+2,2)}")
            a("s_mov_b64 exec, -1")
        def touch_round(specs):
            Le = a.label("t")
            for w, sp in enumerate(specs):
                Ln = a.label("t")
                if w < 3:
                    a(f"s_cmp_lg_u32 {s(WB)}, {w}")
                    a(f"s_cbranch_scc1 {Ln}")
                if sp: touch(sp)
                else: a(f"global_load_dword v19, {v(V_ZERO)}, {s(S_WQKV,2)}")
                if w < 3: a(f"s_branch {Le}")
                a(f"{Ln}:")
            a(f"{Le}:")
        M4, M5, Mc, Ms = a.label("b"), a.label("b"), a.label("b"), a.label("b")
        self.stamp(2, "hd")
        a(f"""
        s_cmp_lt_u32 {s(S_W)}, 6
        s_cbranch_scc1 {M5}
        """)
        a.c("---- waves 6, 7 stream the rest of x and wq, one k-slot at a time")
        if ta == 4: a(f"global_load_dword v19, v19, {s(S_WQ,2)}")
        Ll = a.label("ld")
        a(f"""
        s_mov_b32 {s(T+6)}, 0
        s_lshl_b32 {s(T+7)}, {s(S_W3)}, 2
        {Ll}:
        s_add_u32 {s(T)}, {s(S_KC0)}, {s(T+6)}
        s_and_b32 {s(T)}, {s(T)}, 7
        s_lshl_b32 {s(T+1)}, {s(T)}, 16
        s_add_u32 {s(T+1)}, {s(T+1)}, {s(SLO)}
        """)
        self.add64(T+2, S_WQ, s(T+1))
        a(f"s_lshl_b32 {s(T)}, {s(T)}, 7")
        a(f"s_add_u32 {s(T)}, {s(T)}, {s(SL+4)}")
        self.add64(T+4, S_AX, s(T))
        for u in range(4): self.emit(self.dma(VL+u, T+2, SL+3, L_W + u*1024))
        for u in range(3):
            a(f"s_mov_b32 m0, {s(SL+u)}")
            a(f"s_add_u32 {s(SL+u)}, {s(SL+u)}, 8192")
            a(f"global_load_lds_dwordx4 {v(VL+4+u)}, {s(T+4,2)}")
        a(f"""
        s_add_u32 m0, {s(T+7)}, {L_MK}
        s_mov_b64 exec, 1
        global_load_lds_dword {v(V_ZERO)}, {s(S_PC,2)}
        s_mov_b64 exec, -1
        s_add_u32 {s(T+7)}, {s(T+7)}, 16
        s_add_u32 {s(SL+3)}, {s(SL+3)}, 8192
        s_add_u32 {s(T+6)}, {s(T+6)}, 1
        """)
        if self.o.get("hb"):
            Lh = a.label("h")
            a(f"s_cmp_lg_u32 {s(T+6)}, {self.o['hb']}")
            a(f"s_cbranch_scc1 {Lh}")
            a(f"v_mov_b32 v21, {L_MK+112}")
            self.await_(20, vaddr=21, val="1", sleep=0)
            a(f"{Lh}:")
        a(f"""
        s_waitcnt vmcnt(48)
        s_cmp_lt_u32 {s(T+6)}, 8
        s_cbranch_scc1 {Ll}
        {M5}:
        """)
        self.stamp(3, "hd")
        setup()
        a(f"s_cmp_eq_u32 {s(S_W)}, 4")
        a(f"s_cbranch_scc1 {M4}")
        tag()
        def late_touch(lab):
            if self.o.get("tb"):
                (a(f"v_mov_b32 v22, {L_MK+8+112}"), self.await_(21, vaddr=22, val="1", sleep=0))
                if lab:
                    if "x" in self.o["tb"]: touch(("x", 0, 8))
                else:
                    Lk = a.label("t")
                    a(f"""
                    s_lshl_b32 {s(T+1)}, {s(S_J)}, 7
                    v_lshlrev_b32 v22, 10, v0
                    s_cmp_eq_u32 {s(S_W)}, 6
                    s_cbranch_scc1 {Lk}
                    s_lshl_b32 {s(T)}, {s(S_G)}, 14
                    s_add_u32 {s(T)}, {s(T)}, {s(T+1)}
                    v_add_u32 v22, {s(T)}, v22
                    s_mov_b64 exec, 0xffff
                    {f"global_load_dword v19, v22, {s(S_AWO,2)}" if "o" in self.o["tb"] else ""}
                    {f"global_load_dword v23, v22, {s(S_BWO,2)}" if "o" in self.o["tb"] else ""}
                    s_mov_b64 exec, -1
                    s_branch {Mc}
                    {Lk}:
                    s_mul_i32 {s(T)}, {s(S_G)}, {16*3072}
                    s_add_u32 {s(T)}, {s(T)}, {s(T+1)}
                    v_add_u32 v22, {s(T)}, v22
                    s_mov_b32 exec_hi, 0xffff
                    {f"global_load_dword v19, v22, {s(S_WQKV,2)}" if "w" in self.o["tb"] else ""}
                    s_mov_b64 exec, -1
                    """)
            n1 = self.o.get("n1", 0)
            if n1:
                if self.o.get("n1w", 1): (a(f"v_mov_b32 v22, {L_MK+8+112}"), self.await_(21, vaddr=22, val="1", sleep=0))
                if lab: touch(("x", 0, n1))
                else:
                    Lk = a.label("t")
                    a(f"s_cmp_eq_u32 {s(S_W)}, 6")
                    a(f"s_cbranch_scc1 {Lk}")
                    touch(("v", 0, n1))
                    a(f"s_branch {Mc}")
                    a(f"{Lk}:")
                    touch(("k", 0, n1))
            a(f"s_branch {Mc}")
        N5 = a.label("b")
        a(f"s_cmp_eq_u32 {s(S_W)}, 5")
        a(f"s_cbranch_scc1 {N5}")
        late_touch(None)
        a(f"{N5}:")
        late_touch(1)
        a(f"{M4}:")
        a(f"""
        v_mov_b32 v102, {L_MK}
        """)
        self.kv_setup()
        a(f"""
        v_add_u32 v21, {L_MK-L_SYNC+128-16}, {v(V_ALL)}
        """)
        self.stamp(3, "hd")
        tag()
        a(f"s_sub_u32 s53, {s(S_TAG)}, s53")
        self.stamp(4, "hd")
        self.await_(20, vaddr=21, val="1", sleep=0)
        self.stamp(2)
        self.stamp(5, "hd")
        self.kv_compute()
        self.stamp(6, "hd")
        a("ds_write_b32 v102, v102 offset:112")
        a(f"""
        s_add_u32 {s(T)}, {s(S_XCD)}, 1
        s_lshl_b32 {s(T)}, {s(T)}, 3
        v_add_u32 v22, {s(T)}, v0
        v_and_b32 v22, 63, v22
        v_lshlrev_b32 v22, 7, v22
        """)
        a.c("publish: only this wave writes the word, so adding the difference sets it to the tag")
        a("s_waitcnt vmcnt(0)")
        a(f"s_atomic_add s53, {s(S_WV,2)}, 0 glc")
        self.stamp(11)
        self.stamp(7, "hd")
        if self.o.get("pd", 1): a("s_waitcnt vmcnt(0) lgkmcnt(0)")
        if self.o.get("pw", 6):
            a(f"v_mov_b32 v21, {L_MK+8}")
            self.await_(20, vaddr=21, val="1", off=16*self.o.get("pw", 6), sleep=0)
        self.stamp(8, "hd")
        a("s_mov_b64 exec, 0xffff")
        self.poll4(22, SF1, 88, sleep=self.o.get("ps1", 1))
        self.stamp(9, "hd")
        a("s_mov_b64 exec, -1")
        a(f"{Mc}:")
        a(f"s_mov_b32 {s(S_EPOCH)}, 8")
        rb = self.o.get("rotB", 1)
        if rb == 0: a(f"s_mov_b32 {s(S_KC0)}, 0")
        if rb == 2:
            a(f"s_and_b32 {s(S_KC0)}, {s(S_G)}, 3")
            a(f"s_lshl_b32 {s(S_KC0)}, {s(S_KC0)}, 1")
        a(f"s_lshl_b32 {s(T)}, {s(WB)}, 11")
        self.add64(SF1, SF1, s(T))
        a(f"""
        s_lshl_b32 {s(T)}, {s(S_J)}, 12
        s_add_u32 {s(T)}, {s(T)}, {WS_F2}
        """)
        self.add64(8, S_WS, s(T))
        a(f"""
        s_lshl_b32 {s(T)}, {s(S_G)}, 1
        s_add_u32 {s(T)}, {s(T)}, {s(RB)}
        s_lshl_b32 {s(T)}, {s(T)}, 1
        s_lshr_b32 {s(T+1)}, {s(S_J)}, 2
        s_add_u32 {s(T+1)}, {s(T+1)}, {s(T)}
        s_mul_i32 {s(T+1)}, {s(T+1)}, {2*KVREC}
        s_add_u32 {s(T+1)}, {s(T+1)}, {WS_KV+C4_OFF}
        """)
        self.add64(10, S_WS, s(T+1))
        a(f"""
        s_add_u32 {s(T)}, {s(T)}, {s(HP)}
        s_mul_i32 {s(T)}, {s(T)}, {2*KVREC}
        s_add_u32 {s(T)}, {s(T)}, {WS_KV+C4_OFF}
        """)
        self.add64(12, S_WS, s(T))
        self.stamp(4)
        a("s_barrier")
        self.stamp(5)
        a(LOW)
        if self.o.get("noB"):
            a(f"ds_write_b32 {v(V_SLOT)}, v25 offset:48")
            a("s_branch L_Bend")
        vm = []
        def vmwait(label):
            n = len(vm) - 1 - max(i for i, x in enumerate(vm) if x == label)
            a(f"s_waitcnt vmcnt({n})")
            return n
        def loads(st):
            G = []
            slot = L_W + (st % 4)*16384
            if st < 8:
                pre = [f"s_add_u32 {s(T)}, {s(S_KC0)}, {st}",
                       f"s_and_b32 {s(T)}, {s(T)}, 7",
                       f"s_lshl_b32 {s(T+1)}, {s(T)}, 7",
                       f"s_add_u32 {s(T+1)}, {s(T+1)}, {s(SXO)}",
                       f"s_add_u32 {s(T+2)}, {s(S_BX)}, {s(T+1)}",
                       f"s_addc_u32 {s(T+3)}, {s(S_BX+1)}, 0"]
                G.append(pre + self.dma(VX, T+2, SXM, L_X + st*8192))
                G.append(self.dma(VX+1, T+2, SXM, L_X + st*8192 + 1024))
                pre = [f"s_mul_i32 {s(T)}, {s(T)}, {64*3072}",
                       f"s_add_u32 {s(T)}, {s(T)}, {s(SWO)}",
                       f"s_lshl_b32 {s(T+1)}, {s(RB)}, 10",
                       f"s_add_u32 {s(T)}, {s(T)}, {s(T+1)}",
                       f"s_add_u32 {s(T)}, {s(T)}, 1024",
                       f"s_add_u32 {s(T+2)}, {s(S_WQKV)}, {s(T)}",
                       f"s_addc_u32 {s(T+3)}, {s(S_WQKV+1)}, 0"]
                for i in range(4): G.append((pre if i == 0 else []) + self.dma(VW+i, T+2, SWM, slot + i*1024))
            elif st < 12:
                pre = [f"s_add_u32 {s(T)}, {s(S_KC0)}, {s(RB)}",
                       f"s_add_u32 {s(T)}, {s(T)}, {2*(st-8)}",
                       f"s_and_b32 {s(T)}, {s(T)}, 7",
                       f"s_mul_i32 {s(T)}, {s(T)}, {64*3072}",
                       f"s_add_u32 {s(T)}, {s(T)}, {s(SWO)}",
                       f"s_add_u32 {s(T+2)}, {s(S_WQKV)}, {s(T)}",
                       f"s_addc_u32 {s(T+3)}, {s(S_WQKV+1)}, 0"]
                for i in range(4): G.append((pre if i == 0 else []) + self.dma(VW+i, T+2, SWM, slot + i*1024))
            else:
                base, L = (S_AWO, L_X) if st < 16 else (S_BWO, L_W)
                u = st % 4
                pre = [f"s_add_u32 {s(T)}, {s(S_G)}, {u}",
                       f"s_and_b32 {s(T)}, {s(T)}, 3",
                       f"s_lshl_b32 {s(T)}, {s(T)}, 2",
                       f"s_add_u32 {s(T)}, {s(T)}, {s(WB)}",
                       f"s_lshl_b32 {s(T)}, {s(T)}, 8",
                       f"s_add_u32 {s(T)}, {s(T)}, {s(S_J)}",
                       f"s_lshl_b32 {s(T)}, {s(T)}, 7",
                       f"s_add_u32 {s(T+2)}, {s(base)}, {s(T)}",
                       f"s_addc_u32 {s(T+3)}, {s(base+1)}, 0"]
                for i in range(4): G.append((pre if i == 0 else []) + self.dma(VO+i, T+2, SWM, L + u*16384 + i*1024))
            return G
        done = set()
        def put(st, g):
            thr = self.o.get("thr", 6) if st < 12 else self.o.get("wthr", 4)
            done.add(st)
            if thr: g = [x if x != "s_nop 0" else f"s_waitcnt vmcnt({thr-1})" for x in g]
            self.emit(g); vm.append(st)
        def reads(st):
            R = []; B = F[st % 2]; slot = (st % 4)*16384
            if st < 8:
                for t in range(4):
                    R.append(f"ds_read_b128 {v(B+12*t,4)}, {v(XA+t)} offset:{st*8192}")
                    for k in range(2):
                        for sx in range(2):
                            R.append(f"ds_read_b64_tr_b16 {v(B+12*t+4+4*k+2*sx,2)}, {v(WA)} offset:{slot + k*8192 + t*2048 + sx*256}")
            else:
                for t in range(8):
                    R.append(f"ds_read_b128 {v(B+8*t,4)}, {v(XA+(t&3))} offset:{(2*(st-8)+t//4)*8192}")
                    for sx in range(2):
                        R.append(f"ds_read_b64_tr_b16 {v(B+8*t+4+2*sx,2)}, {v(WA)} offset:{slot + t*2048 + sx*256}")
            return R
        def mfmas(st):
            M = []; B = F[st % 2]
            if st < 8:
                for t in range(4):
                    for k, acc in enumerate((AK, AV)):
                        c = "0" if (acc == AV and st == 0 and t == 0) else v(acc,16)
                        M.append(f"v_mfma_f32_32x32x16_bf16 {v(acc,16)}, {v(B+12*t,4)}, {v(B+12*t+4+4*k,4)}, {c}")
            else:
                for t in range(8):
                    M.append(f"v_mfma_f32_32x32x16_bf16 {v(AQ,16)}, {v(B+8*t+4,4)}, {v(B+8*t,4)}, {v(AQ,16)}")
            return M
        def arrive():
            a(HI); self.arrive(20); a(LOW)
        def iteration(i, after=None):
            M = mfmas(i)
            R = reads(i+1) if i < 11 else []
            G = [(st, g) for st in self.o.get("sched", {}).get(i, [i+4] if i < 8 else []) for g in loads(st)]
            Lok = a.label("ok")
            self.stamp(i+1, "it")
            a(f"ds_read_b32 v21, {v(V_ALL)}")
            a("s_waitcnt lgkmcnt(2)")
            a(M[0])
            a(f"""
            s_waitcnt lgkmcnt(0)
            {HI}
            v_cmp_gt_u32 vcc, {s(S_EPOCH)}, v21
            s_cmp_eq_u64 vcc, 0
            s_cbranch_scc1 {Lok}
            """)
            self.await_(21)
            a(f"{Lok}:")
            a(LOW)
            if i == self.o.get("fi", 9) + 1:
                Lf = a.label("b")
                a(f"s_cmp_lg_u32 {s(WB)}, 0")
                a(f"s_cbranch_scc1 {Lf}")
                a(f"s_lshl_b32 {s(T)}, {s(S_G)}, 7")
                self.add64(T+2, 8, s(T))
                a("s_mov_b64 exec, 1")
                a(f"global_store_dword {v(V_ZERO)}, {v(V_TAG)}, {s(T+2,2)} sc1")
                a("s_mov_b64 exec, -1")
                a(f"{Lf}:")
                self.stamp(7)
            nr = -(-len(R) // 5); ng = -(-len(G) // 5)
            for k in range(1, 8):
                if k <= 5:
                    for x in R[(k-1)*nr:k*nr]: a(x)
                    for st, g in G[(k-1)*ng:k*ng]: put(st, g)
                if k == 6 and i < 11:
                    if i < 6: self.stamp(2*i+1, "vm")
                    if i == self.o.get("fi", 9): vmwait("part")
                    elif i + 2 <= 11 and i < self.o.get("fi", 9): vmwait(i+2)
                    if i < 6: self.stamp(2*i+2, "vm")
                    arrive()
                a(M[k])
            if i in self.o.get("tr", {}):
                touch_round(self.o["tr"][i]); vm.append("t")
            if after: after()
        a.c("---- B: k,v projections")
        a("s_sleep 1")
        a("s_mov_b64 exec, 0xffff")
        a(f"global_load_dwordx4 v[88:91], {v(V_L128)}, {s(SF1,2)} sc1"); vm.append("poll")
        a("s_mov_b64 exec, -1")
        G0 = [(st, g) for st in (0, 1) for g in loads(st)]
        for st, g in G0[:2]: put(st, g)
        Lr = a.label("b")
        vmwait("poll")
        a(HI)
        a("s_mov_b64 exec, 0xffff")
        self.check4(88)
        a(f"s_cbranch_scc1 {Lr}")
        self.poll4(V_L128, SF1, 88, sleep=4)
        a(f"{Lr}:")
        a("s_mov_b64 exec, -1")
        a(f"ds_write_b32 {v(V_SLOT)}, v25 offset:48")
        a(LOW)
        for st, g in G0[2:]: put(st, g)
        vmwait(0)
        a(HI)
        self.arrive(20)
        pro = self.o.get("pro", 4)
        if pro >= 3:
            for g in loads(2): put(2, g)
        self.await_(21)
        self.stamp(6)
        self.emit(reads(0))
        vmwait(1)
        self.arrive(20)
        a(LOW)
        if pro >= 4:
            for g in loads(3): put(3, g)
        if -1 in self.o.get("tr", {}):
            touch_round(self.o["tr"][-1]); vm.append("t")
        for i in range(8): iteration(i)
        a.c("---- B: phi(k), partial state")
        a(f"""
        s_lshl_b32 {s(T+6)}, {s(S_J)}, 2
        s_lshl_b32 {s(T)}, {s(HP)}, 1
        s_add_u32 {s(T+6)}, {s(T+6)}, {s(T)}
        s_add_u32 {s(T+6)}, {s(T+6)}, {s(RB)}
        s_lshl_b32 {s(T)}, {s(T+6)}, 11
        s_add_u32 {s(T)}, {s(T)}, {WS_ACC}
        s_nop 1
        """)
        self.add64(T+4, S_WS, s(T))
        a(HI)
        self.phi(AK)
        a("s_mov_b32 exec_lo, 0xffff")
        a("s_mov_b32 exec_hi, 0xffff")
        for i in range(8): a(f"v_cvt_pk_bf16_f32 {v(X+i)}, {v(AV+2*i)}, {v(AV+2*i+1)}")
        a("s_not_b64 exec, exec")
        for i in range(8): a(f"v_cvt_pk_bf16_f32 {v(Y+i)}, {v(AV+2*i)}, {v(AV+2*i+1)}")
        a("s_mov_b64 exec, -1")
        D0, D1 = F[1], F[1]+16
        LK, LJ, LK2, LJ2 = a.label("k1"), a.label("kj"), a.label("k2"), a.label("kj2")
        a(f"""
        {LOW}
        v_mfma_f32_32x32x16_bf16 {v(D0,16)}, {v(AK,4)}, {v(X,4)}, 0
        v_mfma_f32_32x32x16_bf16 {v(D1,16)}, {v(AK,4)}, {v(Y,4)}, 0
        v_mfma_f32_32x32x16_bf16 {v(D0,16)}, {v(AK+4,4)}, {v(X+4,4)}, {v(D0,16)}
        v_mfma_f32_32x32x16_bf16 {v(D1,16)}, {v(AK+4,4)}, {v(Y+4,4)}, {v(D1,16)}
        s_nop 8
        {HI}
        s_cmp_eq_u32 {s(RB)}, 0
        s_cbranch_scc0 {LK}
        ds_write_b128 {v(V_SX)}, {v(D1+8,4)}
        ds_write_b128 {v(V_SX)}, {v(D1+12,4)} offset:1024
        s_branch {LJ}
        {LK}:
        ds_write_b128 {v(V_SX)}, {v(D0,4)}
        ds_write_b128 {v(V_SX)}, {v(D0+4,4)} offset:1024
        {LJ}:
        """)
        self.softbar(20)
        a(f"""
        s_cmp_eq_u32 {s(RB)}, 0
        s_cbranch_scc0 {LK2}
        ds_read_b128 {v(D1+8,4)}, {v(V_SX)} offset:4096
        ds_read_b128 {v(D1+12,4)}, {v(V_SX)} offset:5120
        s_branch {LJ2}
        {LK2}:
        v_add_u32 {v(V_SX)}, -4096, {v(V_SX)}
        ds_read_b128 {v(D0,4)}, {v(V_SX)}
        ds_read_b128 {v(D0+4,4)}, {v(V_SX)} offset:1024
        {LJ2}:
        s_waitcnt lgkmcnt(0)
        """)
        for i in range(0, 8, 2): a(f"v_pk_add_f32 {v(AK+i,2)}, {v(D0+i,2)}, {v(D1+8+i,2)}")
        a.c("mark the A-side output images of the matching wave as not yet written")
        a(f"s_sub_u32 {s(T)}, {s(S_WS)}, {WS_OB-WS_OA}")
        a(f"s_subb_u32 {s(T+1)}, {s(S_WS+1)}, 0")
        a(f"global_store_dwordx4 {v(self.V_IMG)}, v[252:255], {s(T,2)} sc1")
        a(f"global_store_dwordx4 {v(self.V_IMG)}, v[252:255], {s(T,2)} offset:1024 sc1")
        vm.append("part"); vm.append("part")
        for i in range(8):
            a(f"global_atomic_add_f32 {v(V_L4)}, {v(AK+i)}, {s(T+4,2)} offset:{256*i} sc1"); vm.append("part")
        a(LOW)
        self.stamp(3)
        a.c("---- B: q projection")
        for i in range(8, 12): iteration(i)
        todo = [st for st in range(12, 20) if st not in done]
        def more(n=1):
            for _ in range(n):
                if todo:
                    st = todo.pop(0)
                    for g in loads(st): put(st, g)
        self.stamp(1, "hop")
        a("s_nop 8")
        more()
        a(HI); self.phi(AQ); a(LOW)
        more(self.o.get("pre2", 1))
        self.stamp(2, "hop")
        a.c("---- B: the summed state, the normalised output images")
        D0, D1 = AK, AV
        a(f"""
        s_lshl_b32 {s(T)}, {s(S_J)}, 1
        s_add_u32 {s(T)}, {s(T)}, {s(HP)}
        s_lshl_b32 {s(T)}, {s(T)}, 12
        s_add_u32 {s(T)}, {s(T)}, {WS_ACC}
        """)
        self.add64(T+4, S_WS, s(T))
        LR = a.label("nr")
        a(f"""
        {HI}
        s_cmp_lg_u32 {s(WB)}, 1
        s_cbranch_scc1 {LR}
        s_mov_b32 exec_hi, 0
        """)
        self.poll(V_L128, 8, [0], 21, sleep=8)
        a("s_mov_b32 exec_hi, -1")
        a(f"{LR}:")
        self.softbar(20, sleep=2)
        a(LOW)
        self.stamp(3, "hop")
        self.stamp(8)
        for i in range(16):
            a(f"global_load_dword {v(XF+i)}, {v(V_L4)}, {s(T+4,2)} offset:{256*i} sc1"); vm.append("state")
        more()
        vmwait("state")
        self.stamp(4, "hop")
        a(HI)
        for i in range(8): a(f"v_cvt_pk_bf16_f32 {v(XF+i)}, {v(XF+2*i)}, {v(XF+2*i+1)}")
        a(f"""
        s_nop 1
        v_mfma_f32_32x32x16_bf16 {v(D0,16)}, {v(XF,4)}, {v(AQ,4)}, 0
        v_mfma_f32_32x32x16_bf16 {v(D1,16)}, {v(XF+4,4)}, {v(AQ+4,4)}, 0
        s_nop 7
        s_nop 3
        v_add_f32 {v(D0+8)}, {f32(1e-6)}, {v(D0+8)}
        v_add_f32 {v(D1)}, {f32(1e-6)}, {v(D1)}
        """)
        self.normalize([(D0, D0+8), (D1+8, D1)], 80, guard=False)
        vm.append("ob"); vm.append("ob")
        a(LOW)
        self.stamp(5, "hop")
        more()
        vmwait("ob")
        self.count(10)
        self.stamp(6, "hop")
        self.stamp(12)
        while any(st < 16 for st in todo): more()
        more()
        vmwait(15)
        arrive()
        more()
        a(HI)
        self.await_(20)
        self.outproj_wfrags()
        self.arrive(20)
        a(LOW)
        more()
        self.count_peek(12, T+8)
        more(4)
        self.stamp(7, "hop")
        self.count_wait(12, T+8, 8)
        a(HI)
        self.await_(20)
        self.stamp(8, "hop")
        a.c("---- B: the group's o_B images go to LDS for the A waves")
        a(f"""
        s_lshl_b32 {s(SWM)}, {s(RB)}, 15
        s_lshl_b32 {s(SWO)}, {s(HP)}, 14
        s_lshl_b32 {s(T)}, {s(S_G)}, 13
        s_sub_u32 {s(SWO)}, {s(SWO)}, {s(T)}
        """)
        ot = self.o.get("othr", 6)
        for p in range(4):
            a(f"""
            s_add_u32 {s(T)}, {s(S_J)}, {p}
            s_and_b32 {s(T)}, {s(T)}, 3
            s_lshl_b32 {s(T)}, {s(T)}, 12
            s_add_u32 {s(T+1)}, {s(T)}, {s(SWO)}
            s_and_b32 {s(T+1)}, {s(T+1)}, 0x7fff
            s_add_u32 m0, {s(SWM)}, {s(T+1)}
            s_add_u32 {s(T)}, {s(T)}, {WS_OB-WS_OA}
            """)
            self.add64(T+2, S_IMG, s(T))
            for k in range(4):
                a(f"s_waitcnt vmcnt({ot-1})")
                a(f"global_load_lds_dwordx4 {v(V_L16)}, {s(T+2,2)} offset:{k*1024} sc1")
        if self.o.get("touch", 0):
            a(f"global_load_dword v21, {v(V_ZERO)}, {s(S_OUTB,2)}")
        a("L_Bend:")
        for p in range(4):
            a(f"s_add_u32 {s(T)}, {s(S_J)}, {p}")
            a(f"s_and_b32 {s(T)}, {s(T)}, 3")
            a(f"s_lshl_b32 {s(T)}, {s(T)}, 12")
            self.add64(8+2*p, S_IMG, s(T))
        for i in range(0, 32, 2): a(f"v_mov_b64 {v(96+i,2)}, 0")
        a(f"s_mov_b32 {s(S_PEND)}, 15")
        a(f"s_mov_b32 {s(T+9)}, 0")
        a(f"v_add_u32 v21, -16, {v(V_ALL)}")
        a(f"s_mul_i32 {s(T)}, {s(S_G)}, {8*KVREC}")
        a(f"s_add_u32 {s(T)}, {s(T)}, {WS_KV+C4_OFF+32}")
        self.add64(T+4, S_WS, s(T))
        a(HI)
        a("s_waitcnt vmcnt(0) lgkmcnt(0)")
        self.stamp(9)
        self.stamp(9, "hop")
        a("s_barrier")
        a.c("every wave of the grid has used this launch's tag by now: advance the generation word")
        Lg = a.label("b")
        a(f"""
        s_lshl_b32 {s(T)}, s2, 2
        s_add_u32 {s(T)}, {s(T)}, {s(WB)}
        s_cmp_lg_u32 {s(T)}, 0
        s_cbranch_scc1 {Lg}
        s_mov_b64 exec, 1
        global_store_dword {v(V_ZERO)}, {v(V_TAG)}, {s(S_WS,2)} offset:{WS_G} sc1
        s_mov_b64 exec, -1
        {Lg}:
        """)
        if self.o.get("ann", 1):
            a.c("start fetching only when the whole group is about to publish (reads that meet the writes are slow)")
            Ln = a.label("b")
            a(f"s_cmp_lg_u32 {s(WB)}, 1")
            a(f"s_cbranch_scc1 {Ln}")
            self.count(T+4)
            a("s_waitcnt lgkmcnt(0)")
            a(f"s_add_u32 {s(T+8)}, {s(T+11)}, 1")
            self.count_wait(T+4, T+8, 8, sleep=self.o.get("anns", 1))
            a(f"{Ln}:")
        a("s_barrier")

    def finish(self):
        a = self.a
        a("L_fin:")
        if self.o.get("spin"):
            a(f"""
            L_spin:
            s_memrealtime s[66:67]
            s_waitcnt lgkmcnt(0)
            s_sub_u32 s66, s66, s64
            s_cmp_lt_u32 s66, {self.o["spin"]}
            s_cbranch_scc1 L_spin
            """)
        if self.stamps:
            a("s_waitcnt vmcnt(0)")
            self.stamp(13)
            a(f"""
            s_waitcnt lgkmcnt(0)
            s_cmp_ge_u32 {s(S_W)}, 4
            s_cselect_b32 {s(S_ST+28)}, {s(T+9)}, {s(S_ST+28)}
            s_lshl_b32 {s(T)}, s2, 3
            s_add_u32 {s(T)}, {s(T)}, {s(S_W)}
            s_lshl_b32 {s(T)}, {s(T)}, 6
            s_add_u32 {s(T)}, {s(T)}, {WS_STAMP}
            v_mov_b32 v20, {s(T)}
            """)
            for i in range(16): a(f"v_mov_b32 {v(32+i)}, {s(S_ST+2*i)}")
            for i in range(4): a(f"global_store_dwordx4 v20, {v(32+4*i,4)}, {s(S_WS,2)} offset:{16*i}")
        a("L_end:")
        a("s_endpgm")

    def build(self):
        self.entry()
        self.head_A()
        self.attn()
        self.tail_A()
        self.roleB()
        self.outproj()
        self.finish()
        self.retry()
        self.a("L_last:")
        self.attn_fallback("L_norm")
        return self.wrap()

    def wrap(self):
        hdr = open("cdna_kernels/%s.s.ref" % NAME).read().split("; Override launch")[0]
        return hdr + f"""; Override launch geometry by editing the next line (default: block=256,
; grid=ceil(out_elems/256), lds=0). Harness parses it; keep it on one line.
; @launch grid=(256,1,1) block=(512,1,1) lds={LDS_BYTES}
.amdgcn_target "amdgcn-amd-amdhsa--gfx950"
.text
.globl {NAME}_kernel
.p2align 8
.type {NAME}_kernel,@function
{NAME}_kernel:
""" + self.a.text() + f""".section .rodata,"a"
.p2align 6
.amdhsa_kernel {NAME}_kernel
  .amdhsa_next_free_vgpr 256
  .amdhsa_next_free_sgpr 102
  .amdhsa_accum_offset 256
  .amdhsa_group_segment_fixed_size 0
  .amdhsa_kernarg_size 88
  .amdhsa_user_sgpr_count 2
  .amdhsa_user_sgpr_kernarg_segment_ptr 1
  .amdhsa_system_sgpr_workgroup_id_x 1
  .amdhsa_dx10_clamp 0
.end_amdhsa_kernel
"""

if __name__ == "__main__":
    out = sys.argv[1]
    stamps = "--stamps" in sys.argv
    opts = {}
    for x in sys.argv[2:]:
        if "=" in x:
            k, val = x.split("=", 1); opts[k] = eval(val)
    open(out, "w").write(Gen(stamps=stamps, opts=opts).build())
```

```python
import sys, os, subprocess, struct, ctypes
sys.path.insert(0, "cdna_kernels")
import numpy as np
import cdna_launch as cl

def build(name, body, iters, block, nv=128, pre="", lds=0, grid=256):
    asm = f"""; @launch grid=({grid},1,1) block=({block},1,1) lds={lds}
.amdgcn_target "amdgcn-amd-amdhsa--gfx950"
.text
.globl {name}_kernel
.p2align 8
.type {name}_kernel,@function
{name}_kernel:
    s_load_dwordx2 s[4:5], s[0:1], 0
    v_lshrrev_b32 v1, 6, v0
    s_nop 1
    v_readfirstlane_b32 s6, v1
    s_mul_i32 s7, s2, {block//64}
    s_add_u32 s7, s7, s6
    s_lshl_b32 s7, s7, 3
    v_cvt_f32_u32 v2, v0
    v_mul_f32 v2, 0x3a83126f, v2
"""
    for r in range(3, nv):
        asm += f"    v_mov_b32 v{r}, v2\n"
    asm += pre
    asm += f"""
    s_waitcnt lgkmcnt(0)
    s_barrier
    s_memtime s[10:11]
    s_mov_b32 s8, {iters}
    s_waitcnt lgkmcnt(0)
    .p2align 6
L_loop:
{body}
    s_sub_u32 s8, s8, 1
    s_cmp_lg_u32 s8, 0
    s_cbranch_scc1 L_loop
    s_nop 15
    s_waitcnt vmcnt(0) lgkmcnt(0)
    s_memtime s[12:13]
    s_waitcnt lgkmcnt(0)
    s_sub_u32 s12, s12, s10
    s_subb_u32 s13, s13, s11
    v_mov_b32 v2, s12
    v_mov_b32 v3, s13
    v_mov_b32 v4, s7
    s_nop 1
    global_store_dwordx2 v4, v[2:3], s[4:5]
    s_waitcnt vmcnt(0)
    s_endpgm
.section .rodata,"a"
.p2align 6
.amdhsa_kernel {name}_kernel
  .amdhsa_next_free_vgpr {nv}
  .amdhsa_next_free_sgpr 64
  .amdhsa_accum_offset {nv}
  .amdhsa_group_segment_fixed_size 0
  .amdhsa_kernarg_size 8
  .amdhsa_user_sgpr_count 2
  .amdhsa_user_sgpr_kernarg_segment_ptr 1
  .amdhsa_system_sgpr_workgroup_id_x 1
  .amdhsa_ieee_mode 0
  .amdhsa_dx10_clamp 0
.end_amdhsa_kernel
"""
    full = cl.with_harness_metadata(asm, f"{name}_kernel", 1)
    open(f"/tmp/{name}.s", "w").write(full)
    r = subprocess.run(["clang", "-x", "assembler", "-target", "amdgcn-amd-amdhsa", "-mcpu=gfx950", f"/tmp/{name}.s", "-o", f"/tmp/{name}.co"], capture_output=True, text=True)
    if r.returncode != 0:
        print(r.stderr); raise SystemExit(1)
    return f"/tmp/{name}.co"

def run(name, body, iters=2000, block=256, nv=128, pre="", lds=0, grid=256, reps=3):
    co = build(name, body, iters, block, nv, pre, lds, grid)
    if not os.path.exists('/dev/kfd'):
        return None
    k = cl.AsmKernel(co, f"{name}_kernel")
    nw = grid*block//64
    buf = cl.DeviceBuffer(nw*8)
    ka = cl.pack_ptr_kernargs([buf.ptr])
    res = []
    for _ in range(reps):
        e0 = ctypes.c_void_p(); e1 = ctypes.c_void_p()
        cl._hip.hipEventCreate(ctypes.byref(e0)); cl._hip.hipEventCreate(ctypes.byref(e1))
        cl._hip.hipEventRecord(e0, None)
        k.launch((grid,1,1), (block,1,1), ka, lds)
        cl._hip.hipEventRecord(e1, None)
        cl._check(cl._hip.hipDeviceSynchronize())
        ms = ctypes.c_float()
        cl._hip.hipEventElapsedTime(ctypes.byref(ms), e0, e1)
        out = buf.to_numpy(np.uint64, (nw,))
        res.append((np.median(out)/iters, out.max()/iters, ms.value*1e3))
    k.unload()
    return res[-1]
```

```python
from ubench import *
import numpy as np
def run2(name, body, block, iters=100, pre="", lds=0, nv=256, n=32):
    co = build(name, body, iters, block, pre=pre, lds=lds, nv=nv)
    if not os.path.exists('/dev/kfd'): return
    k = cl.AsmKernel(co, f"{name}_kernel")
    buf = cl.DeviceBuffer(1<<24)
    ka = cl.pack_ptr_kernargs([buf.ptr])
    for _ in range(2):
        k.launch((256,1,1), (block,1,1), ka, lds)
        cl._check(cl._hip.hipDeviceSynchronize())
    out = buf.to_numpy(np.uint64, (256, block//64)).astype(np.float64)/iters
    k.unload()
    print(f"{name:22s} cyc/step", " ".join(f"{x/n:6.1f}" for x in np.median(out, axis=0)), flush=True)
pre = """
v_and_b32 v2, 63, v0
v_lshlrev_b32 v3, 4, v2
v_lshlrev_b32 v4, 3, v2
v_and_b32 v5, 3, v2
v_lshlrev_b32 v5, 2, v5
"""
def loop(D, order=0):
    b = ""
    def rd(t):
        i = t % 8
        return (f"ds_read_b128 v[{128+4*i}:{131+4*i}], v3 offset:{(t%32)*1024}\n"
                f"ds_read_b64_tr_b16 v[{160+4*i}:{161+4*i}], v4 offset:{32768+(t%32)*1024}\n"
                f"ds_read_b64_tr_b16 v[{162+4*i}:{163+4*i}], v4 offset:{32768+(t%32)*1024+512}\n")
    for t in range(32):
        i = t % 8
        mm = f"v_mfma_f32_32x32x16_bf16 v[32:47], v[{160+4*i}:{163+4*i}], v[{128+4*i}:{131+4*i}], v[32:47]\n"
        b += rd(t+D) + f"s_waitcnt lgkmcnt({3*D})\n" + mm
    return b
poll = "".join("ds_read_b32 v20, v5 offset:60000\ns_waitcnt lgkmcnt(0)\nv_cmp_gt_u32 vcc, 3, v20\ns_add_u32 s20, s20, 1\ns_cmp_eq_u64 vcc, 0\n" for _ in range(16))
valu = "".join(f"v_lshl_add_u32 v{20+i%8}, v2, 3, v3\n" for i in range(256))
def spec(a, b): return f"s_cmp_ge_u32 s6, 4\ns_cbranch_scc1 L_b\n{a}\ns_branch L_e\nL_b:\n{b}\nL_e:\n"
run2("d4", loop(4), 256, pre=pre, lds=65536)
run2("d2", loop(2), 256, pre=pre, lds=65536)
run2("d4_poll", spec(loop(4), poll), 512, pre=pre, lds=65536)
run2("d4_valu", spec(loop(4), valu), 512, pre=pre, lds=65536)
```

```python
import sys, struct
from asmlib import *

NAME = "concat_heads__grouped_kv_mqa__linear_attn_block__prompt"
def f32(x): return "0x%08x" % struct.unpack("<I", struct.pack("<f", x))[0]
LOG2E = 1.4426950408889634

WS_G   = 0x0
WS_F1  = 0x8000
WS_ACC = 0x10000
WS_KV  = 0x20000
C4_OFF = 576
WS_F2  = 0x60000
WS_OA  = 0x100000
WS_OB  = 0x300000
WS_STAMP = 0x800000
KVREC = 640
KVTILE = 4*KVREC
L_X   = 0
L_W   = 0x10000
L_WKV = 0x20000
L_MISC= 0x24000
L_SYNC= L_MISC + 0x3f00
LDS_BYTES = 0x28000
SPIN_MAX = 200000

S_AX, S_WQ, S_WK, S_WV, S_AWO, S_BX, S_WQKV, S_BWO = 8, 10, 12, 14, 16, 18, 20, 22
S_OUT, S_WS = 24, 26
S_W, S_G, S_J, S_C, S_TAG, S_XCD, S_KC0, S_EPOCH = 28, 29, 30, 31, 32, 33, 34, 35
T = 36
S_HI, S_LO, S_W3 = 50, 51, 52
S_IMG = 54
S_OUTB = 56
S_EX = 58
S_PEND = 59
S_PC = 0
E_CLR = 30
L_MK = L_SYNC + 80
U = 4
S_ST = 64
V_L16, V_SLOT, V_ALL, V_TAG, V_ZERO = 4, 5, 6, 7, 1

class Gen:
    def __init__(self, stamps=False, opts=None):
        self.a = Asm()
        self.stamps = stamps
        self.o = opts or {}
        self.inB = False
    def stamp(self, i, grp=None):
        m = self.o.get("meas")
        if m and grp is None and i in m[:2]: self.a(f"s_memrealtime s[{68+2*m.index(i)}:{69+2*m.index(i)}]")
        if grp != self.o.get("stg") and (grp or (self.inB and self.o.get("stg") and i not in (0, 13))): return
        if self.stamps:
            self.a(f"s_memrealtime {s(S_ST+2*i,2)}")
            cyc = self.o.get("cyc", (6, 7))
            if i in cyc:
                self.a(f"s_memtime {s(S_ST+2*(14+list(cyc).index(i)),2)}")
    def add64(self, dst, base, off):
        self.a(f"s_add_u32 {s(dst)}, {s(base)}, {off}")
        self.a(f"s_addc_u32 {s(dst+1)}, {s(base+1)}, 0")
    def dma(self, vreg, pair, m0s, m0i, off=0):
        return [f"s_add_u32 m0, {s(m0s)}, {m0i}", "s_nop 0",
                f"global_load_lds_dwordx4 {v(vreg)}, {s(pair,2)}" + (f" offset:{off}" if off else "")]
    def marker(self, idx):
        self.a(f"""
        s_lshl_b32 {s(T)}, {s(S_W3)}, 2
        s_add_u32 m0, {s(T)}, {L_MK + 4*idx}
        s_mov_b64 exec, 1
        global_load_lds_dword {v(V_ZERO)}, {s(S_PC,2)}
        s_mov_b64 exec, -1
        """)
    def emit(self, L):
        for x in L: self.a(x)
    def poll(self, vaddr, pair, offs, vt, sleep=2):
        a = self.a
        Lp, Ld = a.label("poll"), a.label("polld")
        a(f"s_mov_b32 {s(T+10)}, 0")
        a(f"{Lp}:")
        for i, o in enumerate(offs):
            a(f"global_load_dword {v(vt+i)}, {v(vaddr)}, {s(pair,2)} offset:{o} sc1")
        a("s_waitcnt vmcnt(0)")
        for i in range(len(offs)):
            if i == 0:
                a(f"v_cmp_ne_u32 vcc, {s(S_TAG)}, {v(vt)}")
            else:
                a(f"v_cmp_ne_u32 {s(T+12,2)}, {s(S_TAG)}, {v(vt+i)}")
                a(f"s_or_b64 vcc, vcc, {s(T+12,2)}")
        a(f"s_add_u32 {s(T+10)}, {s(T+10)}, 1")
        a(f"s_cmp_eq_u64 vcc, 0")
        a(f"s_cbranch_scc1 {Ld}")
        if sleep: a(f"s_sleep {sleep}")
        a(f"s_cmp_lt_u32 {s(T+10)}, {SPIN_MAX}")
        a(f"s_cbranch_scc1 {Lp}")
        a(f"{Ld}:")
    def check4(self, vt):
        a = self.a
        a(f"v_cmp_ne_u32 vcc, {s(S_TAG)}, {v(vt)}")
        for i in range(1, 4):
            a(f"v_cmp_ne_u32 {s(T+12,2)}, {s(S_TAG)}, {v(vt+i)}")
            a(f"s_or_b64 vcc, vcc, {s(T+12,2)}")
        a(f"s_cmp_eq_u64 vcc, 0")
    def poll4(self, vaddr, pair, vt, sleep):
        a = self.a
        Lp, Ld = a.label("poll"), a.label("polld")
        a(f"s_mov_b32 {s(T+10)}, 0")
        a(f"{Lp}:")
        a(f"global_load_dwordx4 {v(vt,4)}, {v(vaddr)}, {s(pair,2)} sc1")
        a(f"s_add_u32 {s(T+10)}, {s(T+10)}, 1")
        a("s_waitcnt vmcnt(0)")
        self.check4(vt)
        a(f"s_cbranch_scc1 {Ld}")
        if sleep: a(f"s_sleep {sleep}")
        a(f"s_cmp_lt_u32 {s(T+10)}, {SPIN_MAX}")
        a(f"s_cbranch_scc1 {Lp}")
        a(f"{Ld}:")
    def count(self, pair):
        a = self.a
        a(f"s_mov_b32 {s(T+11)}, 1")
        a(f"s_atomic_add {s(T+11)}, {s(pair,2)}, 0 glc")
    def count_peek(self, pair, sd):
        self.a(f"s_load_dword {s(sd)}, {s(pair,2)}, 0 glc")
    def count_wait(self, pair, sd, n, sleep=8):
        a = self.a
        Lp, Ld = a.label("cw"), a.label("cwd")
        a(f"""
        s_mov_b32 {s(T+10)}, 0
        {Lp}:
        s_waitcnt lgkmcnt(0)
        s_cmp_ge_u32 {s(sd)}, {n}
        s_cbranch_scc1 {Ld}
        {f"s_sleep {sleep}" if sleep else ""}
        s_load_dword {s(sd)}, {s(pair,2)}, 0 glc
        s_add_u32 {s(T+10)}, {s(T+10)}, 1
        s_cmp_lt_u32 {s(T+10)}, {SPIN_MAX}
        s_cbranch_scc1 {Lp}
        s_waitcnt lgkmcnt(0)
        {Ld}:
        """)
    def flag(self, base, sidx, vm=0, shift=7):
        a = self.a
        a(f"s_lshl_b32 {s(T+10)}, {s(sidx)}, {shift}")
        a(f"s_add_u32 {s(T+10)}, {s(T+10)}, {base}")
        self.add64(T+12, S_WS, s(T+10))
        if vm is not None: a(f"s_waitcnt vmcnt({vm})")
        a("s_mov_b64 exec, 1")
        a(f"global_store_dword {v(V_ZERO)}, {v(V_TAG)}, {s(T+12,2)} sc1")
        a("s_mov_b64 exec, -1")
    def arrive(self, vt):
        a = self.a
        a(f"s_add_u32 {s(S_EPOCH)}, {s(S_EPOCH)}, 1")
        a(f"v_mov_b32 {v(vt)}, {s(S_EPOCH)}")
        a(f"ds_write_b32 {v(V_SLOT)}, {v(vt)}")
    def await_(self, vt, vaddr=V_ALL, val=None, off=0, sleep=1):
        a = self.a
        Lp, Ld = a.label("sb"), a.label("sbd")
        a(f"s_mov_b32 {s(T+10)}, 0")
        a(f"{Lp}:")
        a(f"ds_read_b32 {v(vt)}, {v(vaddr)} offset:{off}")
        a("s_waitcnt lgkmcnt(0)")
        a(f"v_cmp_gt_u32 vcc, {val or s(S_EPOCH)}, {v(vt)}")
        a(f"s_add_u32 {s(T+10)}, {s(T+10)}, 1")
        a(f"s_cmp_eq_u64 vcc, 0")
        a(f"s_cbranch_scc1 {Ld}")
        if sleep: a(f"s_sleep {sleep}")
        a(f"s_cmp_lt_u32 {s(T+10)}, {SPIN_MAX*8}")
        a(f"s_cbranch_scc1 {Lp}")
        a(f"{Ld}:")
    def softbar(self, vt, sleep=1):
        self.arrive(vt); self.await_(vt, sleep=sleep)

    def entry(self):
        a = self.a
        a(f"""
        s_cmp_ge_u32 s2, 256
        s_cbranch_scc1 L_end
        """)
        self.stamp(0)
        if self.o.get("spin"): a("s_memrealtime s[64:65]")
        a(f"""
        s_load_dwordx16 s[8:23], s[0:1], 0
        s_load_dwordx2 {s(S_OUT,2)}, s[0:1], 64
        s_load_dwordx2 {s(S_WS,2)}, s[0:1], 80
        v_lshrrev_b32 v1, 6, v0
        v_and_b32 v0, 63, v0
        v_readfirstlane_b32 {s(S_W)}, v1
        s_and_b32 {s(S_XCD)}, s2, 7
        s_lshr_b32 {s(T)}, s2, 6
        s_lshl_b32 {s(S_G)}, {s(S_XCD)}, 2
        s_add_u32 {s(S_G)}, {s(S_G)}, {s(T)}
        s_lshr_b32 {s(S_J)}, s2, 3
        s_and_b32 {s(S_J)}, {s(S_J)}, 7
        s_lshl_b32 {s(S_C)}, {s(S_G)}, 3
        s_add_u32 {s(S_C)}, {s(S_C)}, {s(S_J)}
        s_lshl_b32 {s(T)}, {s(T)}, 1
        s_add_u32 {s(S_KC0)}, {s(T)}, {s(S_J)}
        s_and_b32 {s(S_KC0)}, {s(S_KC0)}, {7 if self.o.get('rot', 1) else 0}
        s_mov_b32 {s(S_EPOCH)}, 0
        s_and_b32 {s(S_W3)}, {s(S_W)}, 3
        s_lshr_b32 {s(S_HI)}, {s(S_W3)}, 1
        s_and_b32 {s(S_LO)}, {s(S_W)}, 1
        v_mov_b32 {v(V_ZERO)}, 0
        v_lshlrev_b32 {v(V_L16)}, 4, v0
        s_cmp_ge_u32 {s(S_W)}, 4
        s_cselect_b32 {s(T)}, 11, 1
        s_cselect_b32 {s(T+1)}, 16, 208
        s_lshl_b32 {s(T+2)}, {s(S_W)}, 2
        s_add_u32 {s(T+2)}, {s(T+2)}, {L_SYNC}
        v_min_u32 v9, {s(T)}, v0
        v_mul_u32_u24 v9, {s(T+1)}, v9
        v_add_u32 v9, {s(T+2)}, v9
        ds_write_b32 v9, {v(V_ZERO)}
        """)
        a(f"""
        v_lshrrev_b32 v8, 3, v0
        v_lshlrev_b32 v2, 10, v8
        v_and_b32 v9, 7, v0
        v_lshrrev_b32 v10, 4, v0
        v_xor_b32 v9, v9, v10
        v_lshl_add_u32 v2, v9, 4, v2
        s_lshl_b32 {s(T)}, {s(S_W)}, 2
        s_add_u32 {s(T)}, {s(T)}, {L_SYNC}
        v_mov_b32 {v(V_SLOT)}, {s(T)}
        s_and_b32 {s(T)}, {s(T)}, -16
        v_and_b32 v9, 3, v0
        v_lshl_add_u32 {v(V_ALL)}, v9, 2, {s(T)}
        v_bfe_u32 v8, v0, 2, 3
        v_lshlrev_b32 v9, 4, v9
        v_lshrrev_b32 v10, 5, v0
        v_lshl_add_u32 v9, v10, 6, v9
        v_lshl_add_u32 v3, v8, 10, v9
        s_cmp_ge_u32 {s(S_W)}, 4
        s_cbranch_scc1 L_roleB
        """)

    def xfrag_addr(self, dst, sblk, vt):
        self.a(f"""
        v_and_b32 {v(vt)}, 31, v0
        v_lshlrev_b32 {v(vt+1)}, 7, {v(vt)}
        s_lshl_b32 {s(T)}, {s(sblk)}, 12
        v_add_u32 {v(vt+1)}, {s(T)}, {v(vt+1)}
        v_bfe_u32 {v(vt)}, v0, 1, 3
        v_lshrrev_b32 {v(vt+2)}, 5, v0
        v_xor_b32 {v(vt)}, {v(vt)}, {v(vt+2)}
        v_lshl_add_u32 {v(dst)}, {v(vt)}, 4, {v(vt+1)}
        v_xor_b32 {v(dst+1)}, 32, {v(dst)}
        v_xor_b32 {v(dst+2)}, 64, {v(dst)}
        v_xor_b32 {v(dst+3)}, 0x60, {v(dst)}
        """)
    def wfrag_addr(self, dst, vt):
        self.a(f"""
        v_bfe_u32 {v(vt)}, v0, 2, 2
        v_lshlrev_b32 {v(vt)}, 6, {v(vt)}
        v_bfe_u32 {v(vt+1)}, v0, 4, 1
        v_lshl_add_u32 {v(vt)}, {v(vt+1)}, 5, {v(vt)}
        v_and_b32 {v(vt+1)}, 3, v0
        v_lshl_add_u32 {v(vt)}, {v(vt+1)}, 3, {v(vt)}
        v_lshrrev_b32 {v(vt+1)}, 5, v0
        v_lshl_add_u32 {v(vt)}, {v(vt+1)}, 10, {v(vt)}
        s_lshl_b32 {s(T)}, {s(S_LO)}, 9
        s_add_u32 {s(T)}, {s(T)}, {L_W}
        v_add_u32 {v(dst)}, {s(T)}, {v(vt)}
        """)
    V_WO, V_EXW, V_EXR, V_OUT, V_IMG = 8, 9, 3, 2, 13
    def tail_addr(self, lbase, loshift, ownimg, colbytes, vt):
        a = self.a
        a(f"""
        v_bfe_u32 {v(vt)}, v0, 2, 2
        v_lshlrev_b32 {v(vt)}, 6, {v(vt)}
        v_lshrrev_b32 {v(vt+1)}, 5, v0
        v_lshl_add_u32 {v(vt)}, {v(vt+1)}, 8, {v(vt)}
        v_and_b32 {v(vt+2)}, 1, v0
        v_lshl_add_u32 {v(vt)}, {v(vt+2)}, 5, {v(vt)}
        v_bfe_u32 {v(vt+2)}, v0, 1, 1
        v_lshl_add_u32 {v(vt)}, {v(vt+2)}, 3, {v(vt)}
        v_bfe_u32 {v(vt+2)}, v0, 4, 1
        v_lshl_add_u32 {v(vt)}, {v(vt+2)}, 4, {v(vt)}
        s_mul_i32 {s(T)}, {s(S_LO)}, {loshift}
        s_add_u32 {s(T)}, {s(T)}, {lbase}
        v_add_u32 {v(self.V_WO)}, {s(T)}, {v(vt)}
        s_lshl_b32 {s(T)}, {s(S_W3)}, 12
        s_add_u32 {s(T)}, {s(T)}, {L_WKV}
        v_add_u32 {v(self.V_EXW)}, {s(T)}, {v(V_L16)}
        v_xor_b32 {v(self.V_EXR)}, 4096, {v(self.V_EXW)}
        v_lshrrev_b32 {v(vt)}, 3, v0
        v_lshlrev_b32 {v(vt)}, 11, {v(vt)}
        v_and_b32 {v(vt+1)}, 7, v0
        v_lshl_add_u32 {v(self.V_OUT)}, {v(vt+1)}, 4, {v(vt)}
        s_lshl_b32 {s(T)}, {s(S_G)}, 1
        s_add_u32 {s(T)}, {s(T)}, {s(S_HI)}
        s_lshl_b32 {s(T+1)}, {s(T)}, 16
        s_lshl_b32 {s(T+2)}, {s(S_J)}, 1
        s_add_u32 {s(T+2)}, {s(T+2)}, {s(S_LO)}
        s_lshl_b32 {s(T+3)}, {s(S_J)}, 7
        s_add_u32 {s(T+1)}, {s(T+1)}, {s(T+3)}
        s_lshl_b32 {s(T+3)}, {s(S_LO)}, 15
        s_add_u32 {s(T+1)}, {s(T+1)}, {s(T+3)}
        s_add_u32 {s(T+1)}, {s(T+1)}, {colbytes}
        """)
        self.add64(S_OUTB, S_OUT, s(T+1))
        a(f"""
        s_lshl_b32 {s(T)}, {s(T)}, 15
        s_lshl_b32 {s(T+2)}, {s(T+2)}, 11
        s_add_u32 {s(T+2)}, {s(T+2)}, {s(T)}
        s_add_u32 {s(T+2)}, {s(T+2)}, {ownimg}
        v_add_u32 {v(self.V_IMG)}, {s(T+2)}, {v(V_L16)}
        s_lshl_b32 {s(T+1)}, {s(S_LO)}, 14
        s_add_u32 {s(T)}, {s(T)}, {s(T+1)}
        s_add_u32 {s(T)}, {s(T)}, {WS_OA}
        """)
        self.add64(S_IMG, S_WS, s(T))

    RQ, RO, RS, RKV = 16, 64, 128, 192
    RIDX, RKA, RVA = 10, 11, 12
    def head_A(self):
        a = self.a
        RQ, RO, RS, RKV, RIDX, RKA, RVA = self.RQ, self.RO, self.RS, self.RKV, self.RIDX, self.RKA, self.RVA
        XA, WA = 248, 252
        a.c("=========================== role A ===========================")
        a.c("---- what the K/V producer needs goes first")
        a(f"""
        v_xor_b32 v10, 64, v2
        v_add_u32 v10, 8192, v10
        s_and_b32 {s(T+1)}, {s(S_J)}, 6
        s_lshl_b32 {s(T+6)}, {s(S_G)}, 16
        s_lshl_b32 {s(T+2)}, {s(T+1)}, 13
        s_add_u32 {s(T+6)}, {s(T+6)}, {s(T+2)}
        s_lshl_b32 {s(T+7)}, {s(S_W)}, 14
        s_lshl_b32 {s(T+2)}, {s(T+1)}, 10
        s_add_u32 {s(T+7)}, {s(T+7)}, {s(T+2)}
        s_lshl_b32 {s(T+8)}, {s(S_W)}, 12
        s_lshl_b32 {s(T+9)}, {s(S_W)}, 1
        s_add_u32 {s(T+9)}, {s(T+9)}, {s(S_KC0)}
        s_mov_b32 {s(S_EPOCH)}, 7
        s_waitcnt lgkmcnt(0)
        """)
        self.stamp(1)
        a(f"""
        s_bitcmp1_b32 {s(S_J)}, 0
        s_cselect_b32 {s(S_WK)}, {s(S_WV)}, {s(S_WK)}
        s_cselect_b32 {s(S_WK+1)}, {s(S_WV+1)}, {s(S_WK+1)}
        """)
        for i in range(2):
            a(f"""
            s_add_u32 {s(T)}, {s(T+9)}, {i}
            s_and_b32 {s(T)}, {s(T)}, 7
            s_lshl_b32 {s(T+1)}, {s(T)}, 7
            s_add_u32 {s(T+1)}, {s(T+1)}, {s(T+6)}
            """)
            self.add64(T+2, S_AX, s(T+1))
            a(f"s_lshl_b32 {s(T)}, {s(T)}, 11")
            self.add64(T+4, S_WK, s(T))
            self.emit(self.dma(2, T+2, T+7, L_X + i*8192))
            self.emit(self.dma(10, T+2, T+7, L_X + i*8192 + 1024))
            self.emit(self.dma(V_L16, T+4, T+8, L_WKV + i*2048))
            a(f"global_load_lds_dwordx4 {v(V_L16)}, {s(T+4,2)} offset:1024")
        a(f"s_getpc_b64 {s(S_PC,2)}")
        self.marker(32)
        a("s_barrier")
        XF, WF = RS, RS+32
        def rd(t):
            i = t % 8
            a(f"ds_read_b128 {v(XF+4*i,4)}, {v(XA+(t&3))} offset:{(t//4)*8192}")
            a(f"ds_read_b64_tr_b16 {v(WF+4*i,2)}, {v(WA)} offset:{t*2048}")
            a(f"ds_read_b64_tr_b16 {v(WF+4*i+2,2)}, {v(WA)} offset:{t*2048+256}")
        def mm(t):
            i = t % 8
            a(f"v_mfma_f32_32x32x16_bf16 v[32:47], {v(WF+4*i,4)}, {v(XF+4*i,4)}, {'0' if t == 0 else 'v[32:47]'}")
        def qproj():
            chk = self.o.get("chk", {0: 0, 4: 1, 8: 3, 16: 5, 24: 6, 28: 7})
            self.await_(20, vaddr=52, val="1", off=128, sleep=1)
            self.await_(20, vaddr=53, val="1", off=16*chk[0], sleep=0)
            self.stamp(2)
            for t in range(4): rd(t)
            for tb in range(4, 32, 4):
                if tb not in chk:
                    for t in range(tb-4, tb):
                        rd(t+4)
                        a("s_waitcnt lgkmcnt(12)")
                        mm(t)
                    continue
                Lok, Lj = a.label("a"), a.label("a")
                ad = 54 if chk[tb] == 7 else 53
                a(f"ds_read_b32 v20, {v(ad)} offset:{16*chk[tb]}")
                a("s_waitcnt lgkmcnt(10)")
                mm(tb-4)
                a("s_waitcnt lgkmcnt(7)")
                mm(tb-3)
                a(f"""
                s_waitcnt lgkmcnt(0)
                v_cmp_gt_u32 vcc, 1, v20
                s_cmp_eq_u64 vcc, 0
                s_cbranch_scc1 {Lok}
                """)
                mm(tb-2); mm(tb-1)
                self.await_(20, vaddr=ad, val="1", off=16*chk[tb], sleep=0)
                for t in range(tb, tb+4): rd(t)
                a(f"s_branch {Lj}")
                a(f"{Lok}:")
                rd(tb); rd(tb+1)
                mm(tb-2)
                rd(tb+2); rd(tb+3)
                mm(tb-1)
                a(f"{Lj}:")
                if tb == 28: self.stamp(3)
            for t in range(28, 32):
                a(f"s_waitcnt lgkmcnt({3*(31-t)})")
                mm(t)
        self.xfrag_addr(XA, S_HI, 20)
        self.wfrag_addr(WA, 20)
        for i in range(0, 64, 2): a(f"v_mov_b64 {v(RO+i,2)}, 0")
        for i in range(0, 4, 2): a(f"v_mov_b64 {v(RKV+36+8+i,2)}, 0")
        a(f"""
        v_and_b32 v20, 15, v0
        v_lshlrev_b32 v20, 4, v20
        v_lshrrev_b32 v21, 5, v0
        v_lshl_add_u32 v20, v21, 8, v20
        v_bfe_u32 v21, v0, 4, 1
        v_mul_u32_u24 v22, {2*KVREC}, v21
        v_add_u32 {v(RKA)}, v20, v22
        v_cmp_eq_u32 vcc, 0, v21
        v_and_b32 v22, 11, v0
        v_min_u32 v22, 1, v22
        v_lshlrev_b32 v22, 4, v22
        v_add_u32 v22, 512, v22
        v_mov_b32 {v(RIDX)}, 0xdddd
        v_cndmask_b32 {v(RVA)}, v22, v20, vcc
        s_lshl_b32 {s(T)}, {s(S_W)}, 9
        s_add_u32 {s(T)}, {s(T)}, {L_MISC}
        v_lshl_add_u32 v48, v0, 2, {s(T)}
        v_xor_b32 v49, 512, v48
        v_and_b32 v60, 1, v0
        v_mul_u32_u24 v60, 12, v60
        v_add_u32 v60, 4, v60
        v_xor_b32 v60, v60, {v(V_SLOT)}
        v_mov_b32 v61, {E_CLR}
        v_and_b32 v51, 4, v0
        v_add_u32 v52, {L_MK-L_SYNC}, {v(V_ALL)}
        v_or_b32 v53, 8, v52
        v_and_b32 v54, 3, v0
        v_cmp_eq_u32 vcc, 0, v54
        s_nop 1
        v_cndmask_b32 v54, v53, v52, vcc
        v_lshl_add_u32 v51, v51, 4, {v(V_ALL)}
        s_lshl_b32 {s(T)}, {s(S_HI)}, 15
        v_add_u32 v14, {s(T)}, {v(V_L16)}
        """)
        self.tail_addr(L_W, 512, WS_OA, 1024, 20)
        a(f"""
        s_lshl_b32 {s(T)}, {s(S_HI)}, 12
        s_add_u32 {s(T)}, {s(T)}, {L_MISC+0x1000}
        v_lshrrev_b32 v20, 5, v0
        v_lshlrev_b32 v20, 1, v20
        s_lshl_b32 {s(T+1)}, {s(S_LO)}, 2
        v_add_u32 v20, {s(T+1)}, v20
        v_and_b32 v21, 7, v0
        v_xor_b32 v20, v20, v21
        v_and_b32 v22, 31, v0
        v_lshl_add_u32 v22, v22, 7, {s(T)}
        v_lshl_add_u32 v57, v20, 4, v22
        v_xor_b32 v58, 16, v57
        v_lshrrev_b32 v20, 3, v0
        v_xor_b32 v21, v21, v20
        s_lshl_b32 {s(T+1)}, {s(S_LO)}, 11
        s_add_u32 {s(T)}, {s(T)}, {s(T+1)}
        v_lshl_add_u32 v20, v20, 7, {s(T)}
        v_lshl_add_u32 v59, v21, 4, v20
        """)
        a(f"""
        s_add_u32 {s(U+2)}, {s(S_XCD)}, 1
        s_and_b32 {s(U+2)}, {s(U+2)}, 7
        s_lshl_b32 {s(U+2)}, {s(U+2)}, 3
        s_add_u32 {s(U+2)}, {s(U+2)}, {s(S_LO)}
        s_mul_i32 {s(U+2)}, {s(U+2)}, {KVTILE}
        s_add_u32 {s(U+2)}, {s(U+2)}, {WS_KV}
        """)
        qproj()
        for i in range(0, 8, 2): a(f"v_mov_b64 {v(RS+48+8+i,2)}, 0")
        a("s_nop 7")
        for i in range(8):
            a(f"v_cvt_pk_bf16_f32 {v(RQ+8+i)}, {v(32+2*i)}, {v(33+2*i)}")
        a(f"ds_write_b128 {v(self.V_EXW)}, {v(RQ+8,4)}")
        a(f"ds_write_b128 {v(self.V_EXW)}, {v(RQ+12,4)} offset:1024")
        a("s_waitcnt lgkmcnt(0)")
        self.stamp(4)
        a("s_barrier")
        self.stamp(5)

    def attn(self):
        a = self.a
        RQ, RO, RS, RKV, RIDX, RKA, RVA = self.RQ, self.RO, self.RS, self.RKV, self.RIDX, self.RKA, self.RVA
        SB, SOFF, SCNT, SPASS = T, U+2, U+3, U
        def K(u): return v(RKV+12*u, 4)
        def V(u, h): return v(RKV+12*u+4+4*h, 4)
        def addr_ops():
            return [f"s_add_u32 {s(SB)}, {s(S_WS)}, {s(SOFF)}",
                    f"s_addc_u32 {s(SB+1)}, {s(S_WS+1)}, 0",
                    f"s_add_u32 {s(SOFF)}, {s(SOFF)}, {2*KVTILE}",
                    f"s_cmp_ge_u32 {s(SOFF)}, {WS_KV+64*KVTILE}",
                    f"s_cselect_b32 {s(T+2)}, {64*KVTILE}, 0",
                    f"s_sub_u32 {s(SOFF)}, {s(SOFF)}, {s(T+2)}"]
        def ld(u, k):
            if k == 0: return f"global_load_dwordx4 {K(u)}, {v(RKA)}, {s(SB,2)} sc1"
            return f"global_load_dwordx4 {V(u,k-1)}, {v(RVA)}, {s(SB,2)} offset:{KVREC+(k-1)*2*KVREC} sc1"
        a.c("---- attention")
        a(f"s_setprio {self.o.get('aprio', 1)}")
        for u in range(3):
            for x in addr_ops(): a(x)
            for k in range(3): a(ld(u, k))
        a(f"ds_read_b128 {v(RQ,4)}, {v(self.V_EXR)}")
        a(f"ds_read_b128 {v(RQ+4,4)}, {v(self.V_EXR)} offset:1024")
        self.arrive(50)
        a(f"s_mov_b32 {s(SCNT)}, 1")
        a(f"s_mov_b32 {s(SPASS)}, 0")
        if self.o.get("aprof"): a("s_mov_b32 m0, 0")
        a(f"s_waitcnt vmcnt(6) lgkmcnt(0)")
        self.stamp(6)
        a(f"v_mfma_f32_32x32x16_bf16 {v(RS,16)}, {K(0)}, {v(RQ,4)}, 0")
        a("s_nop 7")
        a("s_nop 2")
        L = a.label("attn")
        p2, p1 = self.o.get("pos", (3, 10))
        EXW = v(self.V_EXW)
        def body(last):
            for u in range(4):
                for b in range(4):
                    if self.o.get("aprof") and b == 0:
                        a(f"""
                        s_memtime s[60:61]
                        s_waitcnt lgkmcnt(0)
                        v_writelane_b32 v55, s60, m0
                        s_add_u32 m0, m0, 1
                        """)
                    fill = [[], [], []]
                    if not last or u == 0:
                        if b == 0:
                            ops = addr_ops()
                            fill[0] = ops[0:1]; fill[1] = ops[1:3]; fill[2] = ops[3:5]
                        if b == 1:
                            fill[0] = addr_ops()[5:6]; fill[1] = [ld((u+3) % 4, 0)]; fill[2] = [ld((u+3) % 4, 1)]
                        if b == 2:
                            fill[1] = [ld((u+3) % 4, 2)]; fill[2] = ["s_waitcnt vmcnt(6)"]
                    elif b == 2 and u < 3:
                        fill[2] = [f"s_waitcnt vmcnt({6-3*u})"]
                    if not last and b == 3 and u == 3:
                        fill[1] = [f"s_sub_u32 {s(SCNT)}, {s(SCNT)}, 1", f"s_cmp_lg_u32 {s(SCNT)}, 0"]
                    if last and u == 3 and b >= 2:
                        k = b - 2
                        fill[0] = [f"ds_write_b128 {EXW}, {v(RO+16*k,4)} offset:{2048*k}"]
                        fill[1] = [f"ds_write_b128 {EXW}, {v(RO+16*k+4,4)} offset:{2048*k+1024}",
                                   f"ds_write_b32 v48, {v(RO+16*k+8)} offset:{256*k}"]
                        if k: fill[1].append(f"ds_write_b32 {v(V_SLOT)}, v61")
                    nu, nb = (u, b+1) if b < 3 else ((u+1) % 4, 0)
                    pu, pb = (u, b-1) if b > 0 else ((u-1) % 4, 3)
                    S = RS + 16*b
                    if not (last and u == 3 and b == 3):
                        a(f"v_mfma_f32_32x32x16_bf16 {v(RS+16*nb,16)}, {K(nu)}, {v(RQ+4*nb,4)}, 0")
                    for x in fill[0]: a(x)
                    for i in range(0, p2): a(f"v_exp_f32 {v(S+i)}, {v(S+i)}")
                    a(f"v_smfmac_f32_32x32x32_bf16 {v(RO+16*pb,16)}, {V(pu,1)}, {v(RS+16*pb+8,8)}, {v(RIDX)}")
                    for x in fill[1]: a(x)
                    for i in range(p2, p1): a(f"v_exp_f32 {v(S+i)}, {v(S+i)}")
                    a(f"v_smfmac_f32_32x32x32_bf16 {v(RO+16*b,16)}, {V(u,0)}, {v(S,8)}, {v(RIDX)}")
                    for x in fill[2]: a(x)
                    for i in range(p1, 16): a(f"v_exp_f32 {v(S+i)}, {v(S+i)}")
        a(".p2align 6")
        a(f"{L}:")
        body(False)
        a(f"s_cbranch_scc1 {L}")
        a(f"s_cmp_eq_u32 {s(SPASS)}, 0")
        a(f"s_cbranch_scc1 L_check")
        body(True)
        def check():
            a("L_check:")
            a.c("the remaining key tiles must have been published before they are fetched")
            self.await_(50, vaddr=51)
            a(f"s_mov_b32 {s(SPASS)}, 1")
            a(f"s_mov_b32 {s(SCNT)}, 6")
            a(f"s_branch {L}")
        self.check = check
        a(f"ds_read_b32 v50, v60")
        a(f"ds_read_b32 {v(RO+8)}, v49")
        a(f"v_smfmac_f32_32x32x32_bf16 {v(RO+48,16)}, {V(3,1)}, {v(RS+48+8,8)}, {v(RIDX)}")

    def tail_A(self):
        a = self.a
        RQ, RO = self.RQ, self.RO
        self.stamp(7)
        if self.o.get("aprof"):
            a(f"""
            s_lshl_b32 s60, s2, 2
            s_add_u32 s60, s60, {s(S_W)}
            s_lshl_b32 s60, s60, 8
            s_add_u32 s60, s60, {WS_STAMP+0x40000}
            v_lshl_add_u32 v56, v0, 2, s60
            global_store_dword v56, v55, {s(S_WS,2)}
            """)
        a.c("---- pair reduction of the two key halves")
        O2, O3 = RO+32, RO+48
        def rdpart():
            a(f"""
            ds_read_b32 {v(RO+24)}, v49 offset:256
            ds_read_b128 {v(RO,4)}, {v(self.V_EXR)}
            ds_read_b128 {v(RO+4,4)}, {v(self.V_EXR)} offset:1024
            ds_read_b128 {v(RO+16,4)}, {v(self.V_EXR)} offset:2048
            ds_read_b128 {v(RO+20,4)}, {v(self.V_EXR)} offset:3072
            """)
        rdpart()
        Lok, La = a.label("x"), a.label("x")
        a(f"""
        s_mov_b32 {s(T+2)}, {f32(2.0**-20)}
        s_mov_b32 {s(T+3)}, {f32(2.0**100)}
        s_waitcnt lgkmcnt(6)
        v_cmp_gt_u32 vcc, {E_CLR}, v50
        s_cmp_eq_u64 vcc, 0
        s_cbranch_scc1 {Lok}
        """)
        self.await_(50, vaddr=60, val=str(E_CLR), sleep=0)
        a(f"ds_read_b32 {v(RO+8)}, v49")
        rdpart()
        a(f"{Lok}:")
        self.stamp(11)
        a(f"""
        s_waitcnt lgkmcnt(2)
        v_add_f32 {v(O2+8)}, {v(O2+8)}, {v(RO+8)}
        v_add_f32 {v(O3+8)}, {v(O3+8)}, {v(RO+24)}
        v_cmp_le_f32 {s(T+4,2)}, {s(T+2)}, {v(O2+8)}
        v_cmp_le_f32 {s(T+6,2)}, {s(T+2)}, {v(O3+8)}
        v_add_f32 {v(RO+9)}, {v(O2+8)}, {v(O3+8)}
        """)
        for b in range(2):
            if b: a("s_waitcnt lgkmcnt(0)")
            for i in range(0, 8, 2):
                a(f"v_pk_add_f32 {v(O2+16*b+i,2)}, {v(O2+16*b+i,2)}, {v(RO+16*b+i,2)}")
        a.c("---- the zero shift is kept only if every row sum is in range and every sum is finite")
        a(f"""
        v_pk_add_f32 {v(RO,2)}, {v(O2,2)}, {v(O2+2,2)}
        v_pk_add_f32 {v(RO+2,2)}, {v(O2+4,2)}, {v(O2+6,2)}
        v_pk_add_f32 {v(RO+4,2)}, {v(O3,2)}, {v(O3+2,2)}
        v_pk_add_f32 {v(RO+6,2)}, {v(O3+4,2)}, {v(O3+6,2)}
        v_pk_add_f32 {v(RO,2)}, {v(RO,2)}, {v(RO+2,2)}
        v_pk_add_f32 {v(RO+4,2)}, {v(RO+4,2)}, {v(RO+6,2)}
        s_and_b64 {s(T+4,2)}, {s(T+4,2)}, {s(T+6,2)}
        v_pk_add_f32 {v(RO,2)}, {v(RO,2)}, {v(RO+4,2)}
        v_fma_f32 {v(RO+9)}, {v(RO)}, 0, {v(RO+9)}
        v_fma_f32 {v(RO+9)}, {v(RO+1)}, 0, {v(RO+9)}
        v_cmp_ge_f32 vcc, {s(T+3)}, {v(RO+9)}
        s_and_b64 vcc, vcc, {s(T+4,2)}
        s_cmp_eq_u64 vcc, -1
        s_cbranch_scc0 L_fallback
        L_norm:
        """)
        self.normalize([(O2, O2+8), (O3, O3+8)], 16)
        self.stamp(8)
        a.c("---- the linear-attention half of the output projection fills the hand-off wait")
        a("s_setprio 0")
        a("s_barrier")
        XF, WF, ACC = 128, 160, 64
        D = 4
        def rd(u):
            i = u % 8
            a(f"ds_read_b128 {v(XF+4*i,4)}, v14 offset:{u*1024}")
            for sx in range(2):
                a(f"ds_read_b64_tr_b16 {v(WF+4*i+2*sx,2)}, {v(self.V_WO)} offset:{(2*u+sx)*1024}")
        for u in range(D): rd(u)
        for u in range(32):
            if u + D < 32:
                rd(u+D); n = 3*D
            else:
                n = 3*(31-u)
            y2 = self.o.get("y2", 12)
            if u == y2:
                a("v_mov_b32 v50, 39")
                a("s_waitcnt vmcnt(0)")
                a(f"ds_write_b32 {v(V_SLOT)}, v50")
                self.stamp(9)
            a(f"s_waitcnt lgkmcnt({n})")
            i = u % 8
            a(f"v_mfma_f32_32x32x16_bf16 {v(ACC,16)}, {v(WF+4*i,4)}, {v(XF+4*i,4)}, {'0' if u == 0 else v(ACC,16)}")
        self.stamp(10)
        a(f"s_mov_b32 {s(S_EPOCH)}, 39")
        self.add64(T+2, S_OUTB, 16384)
        a("s_nop 7")
        a("s_nop 0")
        for h in range(2):
            for i in range(4*h, 4*h+4): a(f"v_cvt_pk_bf16_f32 {v(32+i)}, {v(ACC+2*i)}, {v(ACC+2*i+1)}")
            a(f"ds_write_b128 {v(57+h)}, {v(32+4*h,4)}")
        self.softbar(50, sleep=0)
        a("ds_read_b128 v[40:43], v59")
        a("ds_read_b128 v[44:47], v59 offset:1024")
        a.c("these stores queue behind the other waves' fetches, not in front of them")
        if self.o.get("sw", 1): self.await_(50, val="40", off=16, sleep=1)
        for h in range(2):
            a(f"s_waitcnt lgkmcnt({1-h})")
            a(f"global_store_dwordx4 {v(self.V_OUT)}, {v(40+4*h,4)}, {s(T+2 if h else S_OUTB,2)} {self.o.get('osta','sc1')}")
        a("s_branch L_fin")

    def normalize(self, blocks, P, guard=True):
        a = self.a
        for N, R in blocks: a(f"v_rcp_f32 {v(R)}, {v(R)}")
        for b, (N, R) in enumerate(blocks):
            for i in range(0, 8, 2):
                a(f"v_pk_mul_f32 {v(N+i,2)}, {v(N+i,2)}, {v(R,2)} op_sel_hi:[1,0]")
            for i in range(4):
                a(f"v_cvt_pk_bf16_f32 {v(P+4*b+i)}, {v(N+2*i)}, {v(N+2*i+1)}")
            if guard: a(f"v_min_u32 {v(P+4*b)}, -2, {v(P+4*b)}")
            a(f"global_store_dwordx4 {v(self.V_IMG)}, {v(P+4*b,4)}, {s(S_WS,2)} offset:{1024*b} {'' if guard and self.o.get('xplain') else 'sc1'}")

    def attn_fallback(self, Lret):
        a = self.a
        RQ, RO, RS, RKV, RIDX, RKA, RVA = self.RQ+8, self.RO+32, self.RS, self.RKV, self.RIDX, self.RKA, self.RVA
        SB, SCNT = T, U+3
        NM = RS + 32
        a("L_fallback:")
        a(f"v_mov_b32 {v(RKV+20)}, 0xff800000")
        a(f"v_mov_b32 {v(RKV+21)}, 0xff800000")
        for ps in (0, 1):
            L = a.label("fb")
            self.add64(SB, S_WS, WS_KV)
            a(f"""
            s_mov_b32 {s(SCNT)}, 64
            {L}:
            global_load_dwordx4 {v(RKV,4)}, {v(RKA)}, {s(SB,2)} sc1
            """)
            if ps:
                a(f"global_load_dwordx4 {v(RKV+4,4)}, {v(RVA)}, {s(SB,2)} offset:{KVREC} sc1")
                a(f"global_load_dwordx4 {v(RKV+8,4)}, {v(RVA)}, {s(SB,2)} offset:{3*KVREC} sc1")
            self.add64(SB, SB, KVTILE)
            a("s_waitcnt vmcnt(0)")
            for b in range(2):
                c = v(NM+16*b, 16) if ps else "0"
                a(f"v_mfma_f32_32x32x16_bf16 {v(RS+16*b,16)}, {v(RKV,4)}, {v(RQ+4*b,4)}, {c}")
            a("s_nop 7")
            a("s_nop 4")
            for b in range(2):
                S = RS + 16*b
                if not ps:
                    for i in range(0, 16, 2):
                        a(f"v_max3_f32 {v(RKV+20+b)}, {v(S+i)}, {v(S+i+1)}, {v(RKV+20+b)}")
                else:
                    for i in range(16): a(f"v_exp_f32 {v(S+i)}, {v(S+i)}")
                    a("s_nop 1")
                    a(f"v_smfmac_f32_32x32x32_bf16 {v(RO+16*b,16)}, {v(RKV+4,4)}, {v(S,8)}, {v(RIDX)}")
                    a(f"v_smfmac_f32_32x32x32_bf16 {v(RO+16*b,16)}, {v(RKV+8,4)}, {v(S+8,8)}, {v(RIDX)}")
            a(f"""
            s_sub_u32 {s(SCNT)}, {s(SCNT)}, 1
            s_cmp_lg_u32 {s(SCNT)}, 0
            s_cbranch_scc1 {L}
            """)
            if not ps:
                for b in range(2):
                    m = RKV+20+b
                    a(f"""
                    v_mov_b32 {v(RKV+22)}, {v(m)}
                    s_nop 1
                    v_permlane32_swap_b32 {v(m)}, {v(RKV+22)}
                    s_nop 1
                    v_max_f32 {v(m)}, {v(m)}, {v(RKV+22)}
                    """)
                    for i in range(16): a(f"v_sub_f32 {v(NM+16*b+i)}, 0, {v(m)}")
                for i in range(32): a(f"v_mov_b32 {v(RO+i)}, 0")
        a("s_nop 7")
        a("s_nop 4")
        a(f"s_branch {Lret}")

    def outproj_wfrags(self):
        a = self.a
        for p in range(4):
            a(f"""
            s_add_u32 {s(T)}, {s(S_J)}, {p}
            s_and_b32 {s(T)}, {s(T)}, 3
            s_lshl_b32 {s(T+1)}, {s(S_LO)}, 2
            s_add_u32 {s(T)}, {s(T)}, {s(T+1)}
            s_lshl_b32 {s(T+1)}, {s(S_G)}, 1
            s_sub_u32 {s(T)}, {s(T)}, {s(T+1)}
            s_and_b32 {s(T)}, {s(T)}, 7
            s_lshl_b32 {s(T)}, {s(T)}, 13
            v_add_u32 v21, {s(T)}, {v(self.V_WO)}
            """)
            for k in range(4):
                u = 4*p + k
                for nb in range(2):
                    for sx in range(2):
                        a(f"ds_read_b64_tr_b16 {v(128+8*u+4*nb+2*sx,2)}, v21 offset:{(2*k+sx)*1024+nb*512}")
    def gather_loads(self, p):
        for k in range(4):
            self.a(f"global_load_dwordx4 {v(32+16*p+4*k,4)}, {v(V_L16)}, {s(8+2*p,2)} offset:{k*1024} sc1")
    def outproj(self):
        a = self.a
        a.c("=========================== attention half of the output projection ===========================")
        def test(p):
            I = 32 + 16*p
            a(f"""
            v_max3_u32 v16, {v(I)}, {v(I+4)}, {v(I+8)}
            v_max_u32 v16, v16, {v(I+12)}
            v_cmp_eq_u32 vcc, -1, v16
            """)
        def mms(p):
            return [f"v_mfma_f32_32x32x16_bf16 {v(96+16*nb,16)}, {v(128+8*(4*p+k)+4*nb,4)}, {v(32+4*(4*p+k),4)}, {v(96+16*nb,16)}"
                    for k in range(4) for nb in range(2)]
        def consume(p, Ls):
            test(p)
            a(f"""
            s_cmp_lg_u64 vcc, 0
            s_cbranch_scc1 {Ls}
            s_bitset0_b32 {s(S_PEND)}, {p}
            """)
            self.emit(mms(p))
            a(f"{Ls}:")
        self.gather_loads(0); self.gather_loads(1)
        a("s_waitcnt vmcnt(4)")
        self.stamp(5)
        test(0)
        for p in range(4):
            a("s_cmp_lg_u64 vcc, 0")
            a(f"s_cbranch_scc1 L_miss")
            a(f"s_bitset0_b32 {s(S_PEND)}, {p}")
            M = mms(p)
            a(M[0])
            if p < 2: self.gather_loads(p+2)
            if p == 1: a(f"ds_write_b32 {v(V_SLOT)}, v19")
            if p == 3: a(f"ds_read_b32 v20, v21")
            self.emit(M[1:7])
            if p < 3:
                a(f"s_waitcnt vmcnt({4 if p < 2 else 0})")
                test(p+1)
            a(M[7])
        a("L_gathered:")
        self.stamp(10)
        Lok = a.label("k")
        a.c("the exchange tiles reuse LDS the A waves have finished reading")
        a(f"""
        s_waitcnt lgkmcnt(0)
        v_cmp_gt_u32 vcc, 40, v20
        s_cmp_eq_u64 vcc, 0
        s_cbranch_scc1 {Lok}
        """)
        self.await_(20, vaddr=21, val="40", sleep=0)
        a(f"{Lok}:")
        self.add64(T+2, S_OUTB, 16384)
        a("s_nop 5")
        for nb in range(2):
            for k, ad in enumerate((9, 14, 15, 17)):
                a(f"ds_write_b128 {v(ad)}, {v(96+16*nb+4*k,4)} offset:{128*nb}")
        self.softbar(16, sleep=0)
        for i in range(2):
            for pt in range(2):
                for e, ad in enumerate((3, 24)):
                    a(f"ds_read_b128 {v(32+16*i+8*pt+4*e,4)}, {v(ad)} offset:{2048*i+8192*pt}")
        for i in range(2):
            a(f"s_waitcnt lgkmcnt({4-4*i})")
            for k in range(0, 8, 2): a(f"v_pk_add_f32 {v(32+16*i+k,2)}, {v(32+16*i+k,2)}, {v(32+16*i+8+k,2)}")
            for k in range(4): a(f"v_cvt_pk_bf16_f32 {v(64+4*i+k)}, {v(32+16*i+2*k)}, {v(32+16*i+2*k+1)}")
            a(f"global_store_dwordx4 {v(self.V_OUT)}, {v(64+4*i,4)}, {s(T+2 if i else S_OUTB,2)} {self.o.get('ostb','sc1')}")
        def retry():
            a("L_miss:")
            a(f"ds_write_b32 {v(V_SLOT)}, v19")
            a("v_mov_b32 v20, 0")
            a("s_waitcnt vmcnt(0)")
            a("L_retry:")
            if self.o.get("rs", 2): a(f"s_sleep {self.o.get('rs', 2)}")
            for p in range(4):
                Ls = a.label("gs")
                a(f"s_bitcmp1_b32 {s(S_PEND)}, {p}")
                a(f"s_cbranch_scc0 {Ls}")
                self.gather_loads(p)
                a(f"{Ls}:")
            a("s_waitcnt vmcnt(0)")
            for p in range(4):
                Ls = a.label("cs")
                a(f"s_bitcmp1_b32 {s(S_PEND)}, {p}")
                a(f"s_cbranch_scc0 {Ls}")
                consume(p, Ls)
            a(f"""
            s_add_u32 {s(T+9)}, {s(T+9)}, 1
            s_cmp_eq_u32 {s(S_PEND)}, 0
            s_cbranch_scc1 L_gathered
            s_cmp_lt_u32 {s(T+9)}, {SPIN_MAX}
            s_cbranch_scc1 L_retry
            s_branch L_gathered
            """)
        self.retry = retry

    def kv_setup(self):
        self.a(f"""
        v_and_b32 v96, 15, v0
        v_and_b32 v97, 3, v0
        v_bfe_u32 v98, v0, 2, 1
        v_lshl_add_u32 v97, v98, 3, v97
        v_bfe_u32 v98, v0, 3, 1
        v_lshl_add_u32 v97, v98, 2, v97
        s_bitcmp1_b32 {s(S_J)}, 0
        s_cselect_b64 vcc, -1, 0
        s_cselect_b32 {s(T+8)}, 1.0, {f32(0.25*LOG2E)}
        v_cndmask_b32 v96, v96, v97, vcc
        v_lshrrev_b32 v98, 4, v0
        v_lshrrev_b32 v97, 1, v96
        v_xor_b32 v97, v97, v98
        v_lshlrev_b32 v96, 7, v96
        v_lshl_add_u32 v96, v97, 4, v96
        s_and_b32 {s(T)}, {s(S_J)}, 6
        s_lshl_b32 {s(T)}, {s(T)}, 10
        v_add_u32 v96, {s(T)}, v96
        v_xor_b32 v97, 64, v96
        v_bfe_u32 v99, v0, 2, 2
        v_lshl_add_u32 v99, v98, 3, v99
        v_lshlrev_b32 v99, 5, v99
        v_and_b32 v100, 3, v0
        v_lshl_add_u32 v99, v100, 3, v99
        v_add_u32 v99, {L_WKV}, v99
        """)
    def kv_compute(self):
        a = self.a
        XF, WF = 128, 160
        def rd(t):
            a(f"ds_read_b128 {v(XF+4*(t%8),4)}, {v(96+(t&1))} offset:{(t//2)*8192}")
            a(f"ds_read_b64_tr_b16 {v(WF+4*(t%8),2)}, v99 offset:{t*1024}")
            a(f"ds_read_b64_tr_b16 {v(WF+4*(t%8)+2,2)}, v99 offset:{t*1024+128}")
        LV, LD = a.label("kvv"), a.label("kvd")
        D = 4
        for t in range(D): rd(t)
        a(f"s_bitcmp1_b32 {s(S_J)}, 0")
        a(f"s_cbranch_scc1 {LV}")
        for isv in (0, 1):
            if isv: a(f"{LV}:")
            for t in range(16):
                if t + D < 16:
                    rd(t + D); n = 3*D
                else:
                    n = 3*(15 - t)
                a(f"s_waitcnt lgkmcnt({n})")
                x, w = v(XF+4*(t%8),4), v(WF+4*(t%8),4)
                A, B = (x, w) if isv else (w, x)
                a(f"v_mfma_f32_16x16x32_bf16 v[104:107], {A}, {B}, {'0' if t == 0 else 'v[104:107]'}")
            if not isv: a(f"s_branch {LD}")
        a(f"""
        {LD}:
        s_nop 7
        v_pk_mul_f32 v[104:105], v[104:105], {s(T+8,2)} op_sel_hi:[1,0]
        v_pk_mul_f32 v[106:107], v[106:107], {s(T+8,2)} op_sel_hi:[1,0]
        v_cvt_pk_bf16_f32 v108, v104, v105
        v_cvt_pk_bf16_f32 v109, v106, v107
        s_nop 1
        v_permlane32_swap_b32 v108, v110
        v_permlane32_swap_b32 v109, v111
        s_mov_b32 exec_hi, 0
        global_store_dwordx4 v101, v[108:111], {s(S_WS,2)} sc1
        s_mov_b32 exec_hi, -1
        """)

    def phi(self, R):
        a = self.a
        TMP = 80
        a(f"s_mov_b32 {s(T)}, {f32(LOG2E)}")
        a(f"s_mov_b32 {s(T+2)}, {f32(1e-6)}")
        for i in range(0, 16, 2): a(f"v_pk_fma_f32 {v(TMP+i,2)}, {v(R+i,2)}, {s(T,2)}, v[18:19] op_sel_hi:[1,0,0]")
        for i in range(16): a(f"v_exp_f32 {v(TMP+i)}, {v(TMP+i)} clamp")
        for i in range(16): a(f"v_max_f32 {v(R+i)}, {s(T+2)}, {v(R+i)}")
        for i in range(0, 16, 2): a(f"v_pk_add_f32 {v(R+i,2)}, {v(R+i,2)}, {v(TMP+i,2)}")
        for i in range(0, 16, 2): a(f"v_cvt_pk_bf16_f32 {v(R+i//2)}, {v(R+i)}, {v(R+i+1)}")

    def roleB(self):
        a = self.a
        RB, HP, WB = S_HI, S_LO, S_W3
        SXM, SWM, SXO, SWO = U, U+1, U+2, U+3
        VX, VW, VO = 26, 240, 28
        XA, WA = 244, 248
        AK, AV, AQ = 32, 48, 64
        F = (96, 160)
        XF = 96
        X, Y = 224, 232
        V_L128, V_SX, V_L4, V_F4 = 10, 11, 12, 15
        VL, SL, SLO, SF1 = 80, 96, 60, 62
        HI, LOW = "s_setprio 3", f"s_setprio {self.o.get('bmm', 0)}"
        a.c("=========================== role B ===========================")
        a("L_roleB:")
        self.inB = True
        Lj = a.label("b")
        if self.o.get("cpf", 1):
            a.c("pull the kernel's code into this die's L2 ahead of the instruction fetch")
            Lc = a.label("b")
            a(f"""
            s_cmp_lg_u32 {s(S_W)}, 4
            s_cbranch_scc1 {Lc}
            s_getpc_b64 {s(T,2)}
            L_pc:
            s_sub_u32 {s(T)}, {s(T)}, L_pc-{NAME}_kernel
            s_subb_u32 {s(T+1)}, {s(T+1)}, 0
            s_lshr_b32 {s(T+2)}, s2, 3
            v_lshl_add_u32 v23, v0, 5, {s(T+2)}
            v_lshlrev_b32 v23, 7, v23
            v_cmp_gt_u32 vcc, L_last-{NAME}_kernel, v23
            s_and_saveexec_b64 {s(T+2,2)}, vcc
            global_load_dword v23, v23, {s(T,2)}
            s_mov_b64 exec, -1
            {Lc}:
            """)
        a(f"""
        s_lshl_b32 {s(T)}, {s(S_C)}, 8
        s_add_u32 {s(T)}, {s(T)}, {WS_ACC}
        v_lshl_add_u32 v24, v0, 2, {s(T)}
        s_mul_i32 {s(T)}, {s(S_C)}, {KVREC}
        s_add_u32 {s(T)}, {s(T)}, {WS_KV}
        v_add_u32 v101, {s(T)}, {v(V_L16)}
        v_cmp_eq_u32 vcc, 32, v0
        v_mov_b32 v112, 0x3f803f80
        s_nop 0
        v_cndmask_b32 v112, 0, v112, vcc
        v_mov_b32 v113, v112
        v_mov_b32 v114, v112
        v_mov_b32 v115, v112
        """)
        for u in range(4): a(f"v_add_u32 {v(VL+u)}, {8192*u}, v3")
        a(f"s_lshl_b32 {s(T)}, {s(S_LO)}, 6")
        a(f"v_xor_b32 v20, {s(T)}, v2")
        for u in range(3):
            a(f"""
            s_add_u32 {s(T)}, {s(S_J)}, {2+2*u}
            s_and_b32 {s(T)}, {s(T)}, 6
            s_add_u32 {s(T)}, {s(T)}, {s(S_LO)}
            s_lshl_b32 {s(SL+u)}, {s(T)}, 10
            s_lshl_b32 {s(T)}, {s(T)}, 13
            v_add_u32 {v(VL+4+u)}, {s(T)}, v20
            """)
        a(f"""
        s_lshl_b32 {s(SL+3)}, {s(S_LO)}, 12
        s_lshl_b32 {s(SL+4)}, {s(S_G)}, 16
        s_lshl_b32 {s(SLO)}, {s(S_J)}, 7
        s_lshl_b32 {s(T)}, {s(S_LO)}, 15
        s_add_u32 {s(SLO)}, {s(SLO)}, {s(T)}
        """)
        ta = self.o.get("ta", 0)
        if ta:
            a.c("first touch (one dword per line) of this CU's share of what the die reads for the A-side projections")
            a(f"""
            s_and_b32 {s(T)}, {s(S_G)}, 3
            s_lshl_b32 {s(T+1)}, {s(T)}, 10
            s_lshl_b32 {s(T+2)}, {s(S_J)}, 7
            s_add_u32 {s(T+1)}, {s(T+1)}, {s(T+2)}
            s_lshl_b32 {s(T+2)}, {s(S_LO)}, 18
            s_add_u32 {s(T+1)}, {s(T+1)}, {s(T+2)}
            s_lshl_b32 {s(T+2)}, {s(S_C)}, 13
            s_lshl_b32 {s(T)}, {s(T)}, 2
            s_lshr_b32 {s(T+3)}, {s(S_J)}, 1
            s_add_u32 {s(T)}, {s(T)}, {s(T+3)}
            s_lshl_b32 {s(T)}, {s(T)}, 10
            s_cmp_eq_u32 {s(S_W)}, 5
            s_cselect_b32 {s(T)}, {s(T+2)}, {s(T)}
            s_cmp_ge_u32 {s(S_W)}, 6
            s_cselect_b32 {s(T)}, {s(T+1)}, {s(T)}
            s_cselect_b32 {s(T+1)}, 12, 7
            v_lshlrev_b32 v19, {s(T+1)}, v0
            v_add_u32 v19, {s(T)}, v19
            """)
        a("s_waitcnt lgkmcnt(0)")
        if ta:
            Lt4, Lt5, Lte = a.label("t"), a.label("t"), a.label("t")
            a(f"""
            s_cmp_eq_u32 {s(S_W)}, 4
            s_cbranch_scc1 {Lt4}
            s_cmp_eq_u32 {s(S_W)}, 5
            s_cbranch_scc1 {Lt5}
            {f"global_load_dword v19, v19, {s(S_WQ,2)}" if ta != 4 else ""}
            s_branch {Lte}
            {Lt5}:
            {f"global_load_dword v19, v19, {s(S_AX,2)}" if ta == 1 else ""}
            s_branch {Lte}
            {Lt4}:
            s_bitcmp1_b32 {s(S_J)}, 0
            s_cselect_b32 {s(S_WK)}, {s(S_WV)}, {s(S_WK)}
            s_cselect_b32 {s(S_WK+1)}, {s(S_WV+1)}, {s(S_WK+1)}
            s_mov_b64 exec, 0xff
            {f"global_load_dword v19, v19, {s(S_WK,2)}" if ta in (1, 3) else ""}
            s_mov_b64 exec, -1
            {Lte}:
            """)
        Lz = a.label("b")
        a.c("clear this CU's share of the state accumulators (ordered before the K/V flag)")
        a(f"""
        s_cmp_lg_u32 {s(S_W)}, 4
        s_cbranch_scc1 {Lz}
        global_store_dword v24, {v(V_ZERO)}, {s(S_WS,2)} sc1
        s_mov_b32 exec_lo, {-1 if self.o.get("pre", 1) == 1 else 0}
        s_mov_b32 exec_hi, 0xff
        global_store_dwordx4 v101, v[112:115], {s(S_WS,2)} sc1
        s_mov_b64 exec, -1
        {Lz}:
        s_lshr_b32 {s(T)}, {s(S_C)}, 2
        s_lshl_b32 {s(T)}, {s(T)}, 7
        s_and_b32 {s(T+1)}, {s(S_C)}, 3
        s_lshl_b32 {s(T+1)}, {s(T+1)}, 2
        s_add_u32 {s(T)}, {s(T)}, {s(T+1)}
        s_add_u32 {s(T)}, {s(T)}, {WS_F1}
        s_add_u32 {s(S_WV)}, {s(S_WS)}, {s(T)}
        s_addc_u32 {s(S_WV+1)}, {s(S_WS+1)}, 0
        s_load_dword s53, {s(S_WV,2)}, 0
        s_load_dword {s(S_TAG)}, {s(S_WS,2)}, {WS_G}
        """)
        a(f"s_getpc_b64 {s(S_PC,2)}")
        self.stamp(1)
        a("s_barrier")
        self.stamp(1, "hd")
        def setup():
            a.c("---- B-side setup, all in the shadow of the head")
            a(f"""
            v_mov_b32 {v(VX)}, v2
            v_xor_b32 {v(VX+1)}, 64, v2
            v_add_u32 {v(VX+1)}, 8192, {v(VX+1)}
            v_mul_u32_u24 {v(VW)}, 3072, v8
            v_add_u32 {v(VW)}, {v(VW)}, v9
            v_mov_b32 {v(VO)}, v3
            """)
            for i in range(1, 4):
                a(f"v_add_u32 {v(VW+i)}, {24576*i}, {v(VW)}")
                a(f"v_add_u32 {v(VO+i)}, {8192*i}, v3")
            self.xfrag_addr(XA, RB, 20)
            self.wfrag_addr(WA, 20)
            self.tail_addr(L_X, 0, WS_OB, 0, 20)
            a(f"""
            s_lshl_b32 {s(T)}, {s(S_W3)}, 13
            s_add_u32 {s(T)}, {s(T)}, {L_W}
            v_lshrrev_b32 v20, 5, v0
            v_lshlrev_b32 v20, 2, v20
            v_and_b32 v21, 7, v0
            v_xor_b32 v20, v20, v21
            v_and_b32 v22, 31, v0
            v_lshl_add_u32 v22, v22, 8, {s(T)}
            v_lshl_add_u32 v9, v20, 4, v22
            v_xor_b32 v14, 16, v9
            v_xor_b32 v15, 32, v9
            v_xor_b32 v17, 48, v9
            s_lshl_b32 {s(T)}, {s(S_HI)}, 14
            s_lshl_b32 {s(T+1)}, {s(S_LO)}, 12
            s_add_u32 {s(T)}, {s(T)}, {s(T+1)}
            s_add_u32 {s(T)}, {s(T)}, {L_W}
            v_lshrrev_b32 v20, 3, v0
            v_lshlrev_b32 v21, 1, v21
            v_xor_b32 v21, v21, v20
            v_lshl_add_u32 v20, v20, 8, {s(T)}
            v_lshl_add_u32 v3, v21, 4, v20
            v_xor_b32 v24, 16, v3
            """)
            a(f"""
            s_lshl_b32 {s(SXM)}, {s(WB)}, 11
            s_lshl_b32 {s(SWM)}, {s(WB)}, 12
            s_lshl_b32 {s(SXO)}, {s(S_G)}, 16
            s_lshl_b32 {s(T)}, {s(WB)}, 14
            s_add_u32 {s(SXO)}, {s(SXO)}, {s(T)}
            s_mul_i32 {s(SWO)}, {s(HP)}, {32*3072}
            s_lshl_b32 {s(T)}, {s(S_J)}, 7
            s_add_u32 {s(SWO)}, {s(SWO)}, {s(T)}
            s_mov_b32 {s(T)}, {f32(1e-6)}
            s_mov_b32 {s(T+1)}, {f32(1e-6)}
            s_mov_b32 {s(T+2)}, 0x3f803f80
            s_mov_b32 {s(T+3)}, 0x3f803f80
            """)
            for i in range(0, 16, 2):
                a(f"v_mov_b64 {v(AK+i,2)}, {s(T,2)}")
                a(f"v_mov_b64 {v(AQ+i,2)}, {s(T,2)}")
                if i < 4: a(f"v_mov_b64 {v(X+i,2)}, {s(T+2,2)}")
            a(f"""
            v_mov_b32 v18, {f32(-1e-6*LOG2E)}
            v_mov_b64 v[252:253], -1
            v_mov_b64 v[254:255], -1
            v_mov_b32 v25, 63
            v_mul_u32_u24 v250, 12288, v0
            v_lshlrev_b32 v251, 12, v0
            v_lshlrev_b32 {v(V_L128)}, 7, v0
            s_lshl_b32 {s(T)}, {s(WB)}, 10
            s_add_u32 {s(T)}, {s(T)}, {L_MISC+0x1000}
            v_add_u32 {v(V_SX)}, {s(T)}, {v(V_L16)}
            v_xor_b32 {v(X+4)}, 2048, {v(V_SX)}
            v_and_b32 v20, 15, v0
            v_bfe_u32 v21, v0, 4, 1
            v_lshlrev_b32 v22, 11, v21
            v_lshl_add_u32 {v(X+5)}, v20, 2, v22
            v_lshrrev_b32 v22, 5, v0
            v_lshl_add_u32 {v(X+6)}, v22, 8, {v(X+5)}
            s_lshl_b32 {s(T)}, {s(RB)}, 9
            v_add_u32 {v(X+6)}, {s(T)}, {v(X+6)}
            v_and_b32 v20, 31, v0
            v_min_u32 v20, 16, v20
            v_lshlrev_b32 v20, 6, v20
            v_lshl_add_u32 {v(V_L4)}, v22, 4, v20
                """)
            self.add64(SF1, S_WS, WS_F1)
        def tag():
            a(f"""
            s_waitcnt lgkmcnt(0)
            s_add_u32 {s(S_TAG)}, {s(S_TAG)}, 0x9e3779b9
            v_mov_b32 {v(V_TAG)}, {s(S_TAG)}
            """)
        def touch(spec):
            kind, lo, hi = spec
            if kind == "x":
                m = sum(1 << e for e in range(lo, hi)) * 0x01010101
                a(f"s_lshl_b32 {s(T)}, {s(S_C)}, 13")
                self.add64(T+2, S_BX, s(T))
                mlo = mhi = m; vr = V_L128
            else:
                base, rs, col = {"q": (S_WQKV, 3072, 0), "k": (S_WQKV, 3072, 1024), "v": (S_WQKV, 3072, 2048),
                                 "a": (S_AWO, 1024, 0), "b": (S_BWO, 1024, 0)}[kind]
                h = lo // 4
                m = sum(0xffff << (16*(e - 4*h)) for e in range(lo, hi))
                mlo, mhi = m & 0xffffffff, m >> 32
                a(f"""
                s_and_b32 {s(T)}, {s(S_G)}, 3
                s_mul_i32 {s(T)}, {s(T)}, {rs}
                s_lshl_b32 {s(T+1)}, {s(S_J)}, 7
                s_add_u32 {s(T)}, {s(T)}, {s(T+1)}
                s_add_u32 {s(T)}, {s(T)}, {h*256*rs + col}
                """)
                self.add64(T+2, base, s(T))
                vr = 250 if rs == 3072 else 251
            a(f"s_mov_b32 exec_lo, {mlo:#x}")
            a(f"s_mov_b32 exec_hi, {mhi:#x}")
            a(f"global_load_dword v19, {v(vr)}, {s(T+2,2)}")
            a("s_mov_b64 exec, -1")
        def touch_round(specs):
            Le = a.label("t")
            for w, sp in enumerate(specs):
                Ln = a.label("t")
                if w < 3:
                    a(f"s_cmp_lg_u32 {s(WB)}, {w}")
                    a(f"s_cbranch_scc1 {Ln}")
                if sp: touch(sp)
                else: a(f"global_load_dword v19, {v(V_ZERO)}, {s(S_WQKV,2)}")
                if w < 3: a(f"s_branch {Le}")
                a(f"{Ln}:")
            a(f"{Le}:")
        M4, M5, Mc, Ms = a.label("b"), a.label("b"), a.label("b"), a.label("b")
        self.stamp(2, "hd")
        a(f"""
        s_cmp_lt_u32 {s(S_W)}, 6
        s_cbranch_scc1 {M5}
        """)
        a.c("---- waves 6, 7 stream the rest of x and wq, one k-slot at a time")
        if ta == 4: a(f"global_load_dword v19, v19, {s(S_WQ,2)}")
        Ll = a.label("ld")
        a(f"""
        s_mov_b32 {s(T+6)}, 0
        s_lshl_b32 {s(T+7)}, {s(S_W3)}, 2
        {Ll}:
        s_add_u32 {s(T)}, {s(S_KC0)}, {s(T+6)}
        s_and_b32 {s(T)}, {s(T)}, 7
        s_lshl_b32 {s(T+1)}, {s(T)}, 16
        s_add_u32 {s(T+1)}, {s(T+1)}, {s(SLO)}
        """)
        self.add64(T+2, S_WQ, s(T+1))
        a(f"s_lshl_b32 {s(T)}, {s(T)}, 7")
        a(f"s_add_u32 {s(T)}, {s(T)}, {s(SL+4)}")
        self.add64(T+4, S_AX, s(T))
        for u in range(4): self.emit(self.dma(VL+u, T+2, SL+3, L_W + u*1024))
        for u in range(3):
            a(f"s_mov_b32 m0, {s(SL+u)}")
            a(f"s_add_u32 {s(SL+u)}, {s(SL+u)}, 8192")
            a(f"global_load_lds_dwordx4 {v(VL+4+u)}, {s(T+4,2)}")
        a(f"""
        s_add_u32 m0, {s(T+7)}, {L_MK}
        s_mov_b64 exec, 1
        global_load_lds_dword {v(V_ZERO)}, {s(S_PC,2)}
        s_mov_b64 exec, -1
        s_add_u32 {s(T+7)}, {s(T+7)}, 16
        s_add_u32 {s(SL+3)}, {s(SL+3)}, 8192
        s_add_u32 {s(T+6)}, {s(T+6)}, 1
        """)
        if self.o.get("hb"):
            Lh = a.label("h")
            a(f"s_cmp_lg_u32 {s(T+6)}, {self.o['hb']}")
            a(f"s_cbranch_scc1 {Lh}")
            a(f"v_mov_b32 v21, {L_MK+112}")
            self.await_(20, vaddr=21, val="1", sleep=0)
            a(f"{Lh}:")
        a(f"""
        s_waitcnt vmcnt(48)
        s_cmp_lt_u32 {s(T+6)}, 8
        s_cbranch_scc1 {Ll}
        {M5}:
        """)
        self.stamp(3, "hd")
        setup()
        a(f"s_cmp_eq_u32 {s(S_W)}, 4")
        a(f"s_cbranch_scc1 {M4}")
        tag()
        def late_touch(lab):
            if self.o.get("tb"):
                (a(f"v_mov_b32 v22, {L_MK+8+112}"), self.await_(21, vaddr=22, val="1", sleep=0))
                if lab:
                    if "x" in self.o["tb"]: touch(("x", 0, 8))
                else:
                    Lk = a.label("t")
                    a(f"""
                    s_lshl_b32 {s(T+1)}, {s(S_J)}, 7
                    v_lshlrev_b32 v22, 10, v0
                    s_cmp_eq_u32 {s(S_W)}, 6
                    s_cbranch_scc1 {Lk}
                    s_lshl_b32 {s(T)}, {s(S_G)}, 14
                    s_add_u32 {s(T)}, {s(T)}, {s(T+1)}
                    v_add_u32 v22, {s(T)}, v22
                    s_mov_b64 exec, 0xffff
                    {f"global_load_dword v19, v22, {s(S_AWO,2)}" if "o" in self.o["tb"] else ""}
                    {f"global_load_dword v23, v22, {s(S_BWO,2)}" if "o" in self.o["tb"] else ""}
                    s_mov_b64 exec, -1
                    s_branch {Mc}
                    {Lk}:
                    s_mul_i32 {s(T)}, {s(S_G)}, {16*3072}
                    s_add_u32 {s(T)}, {s(T)}, {s(T+1)}
                    v_add_u32 v22, {s(T)}, v22
                    s_mov_b32 exec_hi, 0xffff
                    {f"global_load_dword v19, v22, {s(S_WQKV,2)}" if "w" in self.o["tb"] else ""}
                    s_mov_b64 exec, -1
                    """)
            n1 = self.o.get("n1", 0)
            if n1:
                if self.o.get("n1w", 1): (a(f"v_mov_b32 v22, {L_MK+8+112}"), self.await_(21, vaddr=22, val="1", sleep=0))
                if lab: touch(("x", 0, n1))
                else:
                    Lk = a.label("t")
                    a(f"s_cmp_eq_u32 {s(S_W)}, 6")
                    a(f"s_cbranch_scc1 {Lk}")
                    touch(("v", 0, n1))
                    a(f"s_branch {Mc}")
                    a(f"{Lk}:")
                    touch(("k", 0, n1))
            a(f"s_branch {Mc}")
        N5 = a.label("b")
        a(f"s_cmp_eq_u32 {s(S_W)}, 5")
        a(f"s_cbranch_scc1 {N5}")
        late_touch(None)
        a(f"{N5}:")
        late_touch(1)
        a(f"{M4}:")
        a(f"""
        v_mov_b32 v102, {L_MK}
        """)
        self.kv_setup()
        a(f"""
        v_add_u32 v21, {L_MK-L_SYNC+128-16}, {v(V_ALL)}
        """)
        self.stamp(3, "hd")
        tag()
        a(f"s_sub_u32 s53, {s(S_TAG)}, s53")
        self.stamp(4, "hd")
        self.await_(20, vaddr=21, val="1", sleep=0)
        self.stamp(2)
        self.stamp(5, "hd")
        self.kv_compute()
        self.stamp(6, "hd")
        a("ds_write_b32 v102, v102 offset:112")
        a(f"""
        s_add_u32 {s(T)}, {s(S_XCD)}, 1
        s_lshl_b32 {s(T)}, {s(T)}, 3
        v_add_u32 v22, {s(T)}, v0
        v_and_b32 v22, 63, v22
        v_lshlrev_b32 v22, 7, v22
        """)
        a.c("publish: only this wave writes the word, so adding the difference sets it to the tag")
        a("s_waitcnt vmcnt(0)")
        a(f"s_atomic_add s53, {s(S_WV,2)}, 0 glc")
        self.stamp(11)
        self.stamp(7, "hd")
        if self.o.get("pd", 1): a("s_waitcnt vmcnt(0) lgkmcnt(0)")
        if self.o.get("pw", 6):
            a(f"v_mov_b32 v21, {L_MK+8}")
            self.await_(20, vaddr=21, val="1", off=16*self.o.get("pw", 6), sleep=0)
        self.stamp(8, "hd")
        a("s_mov_b64 exec, 0xffff")
        self.poll4(22, SF1, 88, sleep=self.o.get("ps1", 1))
        self.stamp(9, "hd")
        a("s_mov_b64 exec, -1")
        a(f"{Mc}:")
        a(f"s_mov_b32 {s(S_EPOCH)}, 8")
        rb = self.o.get("rotB", 1)
        if rb == 0: a(f"s_mov_b32 {s(S_KC0)}, 0")
        if rb == 2:
            a(f"s_and_b32 {s(S_KC0)}, {s(S_G)}, 3")
            a(f"s_lshl_b32 {s(S_KC0)}, {s(S_KC0)}, 1")
        a(f"s_lshl_b32 {s(T)}, {s(WB)}, 11")
        self.add64(SF1, SF1, s(T))
        a(f"""
        s_lshl_b32 {s(T)}, {s(S_J)}, 12
        s_add_u32 {s(T)}, {s(T)}, {WS_F2}
        """)
        self.add64(8, S_WS, s(T))
        a(f"""
        s_lshl_b32 {s(T)}, {s(S_G)}, 1
        s_add_u32 {s(T)}, {s(T)}, {s(RB)}
        s_lshl_b32 {s(T)}, {s(T)}, 1
        s_lshr_b32 {s(T+1)}, {s(S_J)}, 2
        s_add_u32 {s(T+1)}, {s(T+1)}, {s(T)}
        s_mul_i32 {s(T+1)}, {s(T+1)}, {2*KVREC}
        s_add_u32 {s(T+1)}, {s(T+1)}, {WS_KV+C4_OFF}
        """)
        self.add64(10, S_WS, s(T+1))
        a(f"""
        s_add_u32 {s(T)}, {s(T)}, {s(HP)}
        s_mul_i32 {s(T)}, {s(T)}, {2*KVREC}
        s_add_u32 {s(T)}, {s(T)}, {WS_KV+C4_OFF}
        """)
        self.add64(12, S_WS, s(T))
        self.stamp(4)
        a("s_barrier")
        self.stamp(5)
        a(LOW)
        if self.o.get("noB"):
            a(f"ds_write_b32 {v(V_SLOT)}, v25 offset:48")
            a(f"s_mov_b32 {s(S_EPOCH)}, {E_CLR-1}")
            self.arrive(20)
            a("s_branch L_Bend")
        vm = []
        def vmwait(label):
            n = len(vm) - 1 - max(i for i, x in enumerate(vm) if x == label)
            a(f"s_waitcnt vmcnt({n})")
            return n
        def loads(st):
            G = []
            slot = L_W + (st % 4)*16384
            if st < 8:
                pre = [f"s_add_u32 {s(T)}, {s(S_KC0)}, {st}",
                       f"s_and_b32 {s(T)}, {s(T)}, 7",
                       f"s_lshl_b32 {s(T+1)}, {s(T)}, 7",
                       f"s_add_u32 {s(T+1)}, {s(T+1)}, {s(SXO)}",
                       f"s_add_u32 {s(T+2)}, {s(S_BX)}, {s(T+1)}",
                       f"s_addc_u32 {s(T+3)}, {s(S_BX+1)}, 0"]
                G.append(pre + self.dma(VX, T+2, SXM, L_X + st*8192))
                G.append(self.dma(VX+1, T+2, SXM, L_X + st*8192 + 1024))
                pre = [f"s_mul_i32 {s(T)}, {s(T)}, {64*3072}",
                       f"s_add_u32 {s(T)}, {s(T)}, {s(SWO)}",
                       f"s_lshl_b32 {s(T+1)}, {s(RB)}, 10",
                       f"s_add_u32 {s(T)}, {s(T)}, {s(T+1)}",
                       f"s_add_u32 {s(T)}, {s(T)}, 1024",
                       f"s_add_u32 {s(T+2)}, {s(S_WQKV)}, {s(T)}",
                       f"s_addc_u32 {s(T+3)}, {s(S_WQKV+1)}, 0"]
                for i in range(4): G.append((pre if i == 0 else []) + self.dma(VW+i, T+2, SWM, slot + i*1024))
            elif st < 12:
                pre = [f"s_add_u32 {s(T)}, {s(S_KC0)}, {s(RB)}",
                       f"s_add_u32 {s(T)}, {s(T)}, {2*(st-8)}",
                       f"s_and_b32 {s(T)}, {s(T)}, 7",
                       f"s_mul_i32 {s(T)}, {s(T)}, {64*3072}",
                       f"s_add_u32 {s(T)}, {s(T)}, {s(SWO)}",
                       f"s_add_u32 {s(T+2)}, {s(S_WQKV)}, {s(T)}",
                       f"s_addc_u32 {s(T+3)}, {s(S_WQKV+1)}, 0"]
                for i in range(4): G.append((pre if i == 0 else []) + self.dma(VW+i, T+2, SWM, slot + i*1024))
            else:
                base, L = (S_AWO, L_X) if st < 16 else (S_BWO, L_W)
                u = st % 4
                pre = [f"s_add_u32 {s(T)}, {s(S_G)}, {u}",
                       f"s_and_b32 {s(T)}, {s(T)}, 3",
                       f"s_lshl_b32 {s(T)}, {s(T)}, 2",
                       f"s_add_u32 {s(T)}, {s(T)}, {s(WB)}",
                       f"s_lshl_b32 {s(T)}, {s(T)}, 8",
                       f"s_add_u32 {s(T)}, {s(T)}, {s(S_J)}",
                       f"s_lshl_b32 {s(T)}, {s(T)}, 7",
                       f"s_add_u32 {s(T+2)}, {s(base)}, {s(T)}",
                       f"s_addc_u32 {s(T+3)}, {s(base+1)}, 0"]
                for i in range(4): G.append((pre if i == 0 else []) + self.dma(VO+i, T+2, SWM, L + u*16384 + i*1024))
            return G
        done = set()
        def put(st, g):
            thr = self.o.get("thr", 5) if st < 12 else self.o.get("wthr", 4)
            done.add(st)
            if thr: g = [x if x != "s_nop 0" else f"s_waitcnt vmcnt({thr-1})" for x in g]
            self.emit(g); vm.append(st)
        def reads(st):
            R = []; B = F[st % 2]; slot = (st % 4)*16384
            if st < 8:
                for t in range(4):
                    R.append(f"ds_read_b128 {v(B+12*t,4)}, {v(XA+t)} offset:{st*8192}")
                    for k in range(2):
                        for sx in range(2):
                            R.append(f"ds_read_b64_tr_b16 {v(B+12*t+4+4*k+2*sx,2)}, {v(WA)} offset:{slot + k*8192 + t*2048 + sx*256}")
            else:
                for t in range(8):
                    R.append(f"ds_read_b128 {v(B+8*t,4)}, {v(XA+(t&3))} offset:{(2*(st-8)+t//4)*8192}")
                    for sx in range(2):
                        R.append(f"ds_read_b64_tr_b16 {v(B+8*t+4+2*sx,2)}, {v(WA)} offset:{slot + t*2048 + sx*256}")
            return R
        def mfmas(st):
            M = []; B = F[st % 2]
            if st < 8:
                for t in range(4):
                    for k, acc in enumerate((AK, AV)):
                        c = "0" if (acc == AV and st == 0 and t == 0) else v(acc,16)
                        M.append(f"v_mfma_f32_32x32x16_bf16 {v(acc,16)}, {v(B+12*t,4)}, {v(B+12*t+4+4*k,4)}, {c}")
            else:
                for t in range(8):
                    M.append(f"v_mfma_f32_32x32x16_bf16 {v(AQ,16)}, {v(B+8*t+4,4)}, {v(B+8*t,4)}, {v(AQ,16)}")
            return M
        def arrive():
            a(HI); self.arrive(20); a(LOW)
        def iteration(i, after=None):
            M = mfmas(i)
            R = reads(i+1) if i < 11 else []
            G = [(st, g) for st in self.o.get("sched", {9: [12], 10: [13], 11: [14]}).get(i, [i+4] if i < 8 else []) for g in loads(st)]
            Lok = a.label("ok")
            self.stamp(i+1, "it")
            a(f"ds_read_b32 v21, {v(V_ALL)}")
            a("s_waitcnt lgkmcnt(2)")
            a(M[0])
            a(f"""
            s_waitcnt lgkmcnt(0)
            {HI}
            v_cmp_gt_u32 vcc, {s(S_EPOCH)}, v21
            s_cmp_eq_u64 vcc, 0
            s_cbranch_scc1 {Lok}
            """)
            self.await_(21)
            a(f"{Lok}:")
            a(LOW)
            if i == self.o.get("fi", 8) + 1:
                Lf = a.label("b")
                a(f"s_cmp_lg_u32 {s(WB)}, 0")
                a(f"s_cbranch_scc1 {Lf}")
                a(f"s_lshl_b32 {s(T)}, {s(S_G)}, 7")
                self.add64(T+2, 8, s(T))
                a("s_mov_b64 exec, 1")
                a(f"global_store_dword {v(V_ZERO)}, {v(V_TAG)}, {s(T+2,2)} sc1")
                a("s_mov_b64 exec, -1")
                a(f"{Lf}:")
                self.stamp(7)
            nr = -(-len(R) // 5); ng = -(-len(G) // 5)
            for k in range(1, 8):
                if k <= 5:
                    for x in R[(k-1)*nr:k*nr]: a(x)
                    for st, g in G[(k-1)*ng:k*ng]: put(st, g)
                if k == 6 and i < 11:
                    if i < 6: self.stamp(2*i+1, "vm")
                    if i == self.o.get("fi", 8):
                        vmwait("part")
                        a(f"s_mov_b32 {s(S_EPOCH)}, {E_CLR-1}")
                    elif i + 2 <= 11 and i < self.o.get("fi", 8): vmwait(i+2)
                    if i < 6: self.stamp(2*i+2, "vm")
                    arrive()
                a(M[k])
            if i in self.o.get("tr", {}):
                touch_round(self.o["tr"][i]); vm.append("t")
            if after: after()
        a.c("---- B: k,v projections")
        a("s_sleep 1")
        a("s_mov_b64 exec, 0xffff")
        a(f"global_load_dwordx4 v[88:91], {v(V_L128)}, {s(SF1,2)} sc1"); vm.append("poll")
        a("s_mov_b64 exec, -1")
        G0 = [(st, g) for st in (0, 1) for g in loads(st)]
        for st, g in G0[:2]: put(st, g)
        Lr = a.label("b")
        vmwait("poll")
        a(HI)
        a("s_mov_b64 exec, 0xffff")
        self.check4(88)
        a(f"s_cbranch_scc1 {Lr}")
        self.poll4(V_L128, SF1, 88, sleep=4)
        a(f"{Lr}:")
        a("s_mov_b64 exec, -1")
        a(f"ds_write_b32 {v(V_SLOT)}, v25 offset:48")
        a(LOW)
        for st, g in G0[2:]: put(st, g)
        vmwait(0)
        a(HI)
        self.arrive(20)
        pro = self.o.get("pro", 4)
        if pro >= 3:
            for g in loads(2): put(2, g)
        self.await_(21)
        self.stamp(6)
        self.emit(reads(0))
        vmwait(1)
        self.arrive(20)
        a(LOW)
        if pro >= 4:
            for g in loads(3): put(3, g)
        if -1 in self.o.get("tr", {}):
            touch_round(self.o["tr"][-1]); vm.append("t")
        def clr():
            a.c("mark the A-side output images of the matching wave as not yet written")
            a(f"s_sub_u32 {s(T)}, {s(S_WS)}, {WS_OB-WS_OA}")
            a(f"s_subb_u32 {s(T+1)}, {s(S_WS+1)}, 0")
            a(f"global_store_dwordx4 {v(self.V_IMG)}, v[252:255], {s(T,2)} sc1")
            a(f"global_store_dwordx4 {v(self.V_IMG)}, v[252:255], {s(T,2)} offset:1024 sc1")
            vm.append("clr"); vm.append("clr")
        for i in range(8): iteration(i, clr if i == self.o.get("ci", 7) else None)
        a.c("---- B: phi(k), partial state: rows (head, e) x columns (head, d), and the column sums z")
        a(f"""
        s_lshl_b32 {s(T)}, {s(S_J)}, 1
        s_add_u32 {s(T)}, {s(T)}, {s(HP)}
        s_lshl_b32 {s(T)}, {s(T)}, 12
        s_add_u32 {s(T)}, {s(T)}, {WS_ACC}
        """)
        self.add64(T+4, S_WS, s(T))
        a("s_nop 3")
        a(HI)
        self.phi(AK)
        for i in range(8): a(f"v_cvt_pk_bf16_f32 {v(AV+i)}, {v(AV+2*i)}, {v(AV+2*i+1)}")
        D0, D1 = F[1], F[1]+16
        LK, LJ, LK2, LJ2 = a.label("k1"), a.label("kj"), a.label("k2"), a.label("kj2")
        a(f"""
        {LOW}
        s_nop 0
        v_mfma_f32_32x32x16_bf16 {v(D0,16)}, {v(AV,4)}, {v(AK,4)}, 0
        v_mfma_f32_32x32x16_bf16 {v(D0,16)}, {v(AV+4,4)}, {v(AK+4,4)}, {v(D0,16)}
        v_mfma_f32_32x32x16_bf16 {v(D1,16)}, {v(X,4)}, {v(AK,4)}, 0
        v_mfma_f32_32x32x16_bf16 {v(D1,16)}, {v(X,4)}, {v(AK+4,4)}, {v(D1,16)}
        s_nop 4
        {HI}
        s_mov_b32 exec_lo, 0xffff
        s_mov_b32 exec_hi, 0xffff
        s_cmp_eq_u32 {s(RB)}, 0
        s_cbranch_scc0 {LK}
        ds_write_b128 {v(V_SX)}, {v(D0+4,4)}
        s_not_b64 exec, exec
        ds_write_b128 {v(V_SX)}, {v(D0+12,4)}
        s_branch {LJ}
        {LK}:
        ds_write_b128 {v(V_SX)}, {v(D0,4)}
        s_not_b64 exec, exec
        ds_write_b128 {v(V_SX)}, {v(D0+8,4)}
        {LJ}:
        s_mov_b64 exec, -1
        """)
        self.softbar(20)
        a(f"""
        ds_read_b128 {v(AK,4)}, {v(X+4)}
        s_mov_b32 exec_lo, 0xffff
        s_mov_b32 exec_hi, 0xffff
        s_cmp_eq_u32 {s(RB)}, 0
        s_waitcnt lgkmcnt(0)
        s_cbranch_scc0 {LK2}
        """)
        for rbv, lab in ((0, None), (1, LK2)):
            if lab: a(f"{lab}:")
            for h in range(2):
                for i in (0, 2): a(f"v_pk_add_f32 {v(AK+i,2)}, {v(AK+i,2)}, {v(D0+8*h+4*rbv+i,2)}")
                if h == 0: a("s_not_b64 exec, exec")
            if not lab: a(f"s_branch {LJ2}")
        a(f"{LJ2}:")
        a("s_mov_b64 exec, -1")
        for i in range(4):
            a(f"global_atomic_add_f32 {v(X+6)}, {v(AK+i)}, {s(T+4,2)} offset:{64*i} sc1"); vm.append("part")
        a("s_mov_b32 exec_hi, 0")
        a(f"global_atomic_add_f32 {v(X+5)}, {v(D1)}, {s(T+4,2)} offset:1024 sc1"); vm.append("part")
        a("s_mov_b32 exec_hi, -1")
        a(LOW)
        self.stamp(3)
        a.c("---- B: q projection")
        for i in range(8, 12): iteration(i)
        todo = [st for st in range(12, 20) if st not in done]
        def more(n=1):
            for _ in range(n):
                if todo:
                    st = todo.pop(0)
                    for g in loads(st): put(st, g)
        self.stamp(1, "hop")
        a("s_nop 8")
        more()
        a(HI); self.phi(AQ); a(LOW)
        more(self.o.get("pre2", 0))
        self.stamp(2, "hop")
        a.c("---- B: the summed state, the normalised output images")
        D0, D1 = AK, AV
        a(f"""
        s_lshl_b32 {s(T)}, {s(S_J)}, 1
        s_add_u32 {s(T)}, {s(T)}, {s(HP)}
        s_lshl_b32 {s(T)}, {s(T)}, 12
        s_add_u32 {s(T)}, {s(T)}, {WS_ACC}
        """)
        self.add64(T+4, S_WS, s(T))
        LR = a.label("nr")
        a(f"""
        {HI}
        s_cmp_lg_u32 {s(WB)}, 1
        s_cbranch_scc1 {LR}
        s_mov_b32 exec_hi, 0
        """)
        self.poll(V_L128, 8, [0], 21, sleep=8)
        a("s_mov_b32 exec_hi, -1")
        a(f"{LR}:")
        self.softbar(20, sleep=2)
        a(LOW)
        self.stamp(3, "hop")
        self.stamp(8)
        for i in range(4):
            a(f"global_load_dwordx4 {v(XF+4*i,4)}, {v(V_L4)}, {s(T+4,2)} offset:{2048*(i//2)+32*(i%2)} sc1"); vm.append("state")
        more()
        vmwait("state")
        self.stamp(4, "hop")
        a(HI)
        for i in range(8): a(f"v_cvt_pk_bf16_f32 {v(XF+i)}, {v(XF+2*i)}, {v(XF+2*i+1)}")
        a(f"""
        s_nop 1
        v_mfma_f32_32x32x16_bf16 {v(D0,16)}, {v(XF,4)}, {v(AQ,4)}, 0
        v_mfma_f32_32x32x16_bf16 {v(D1,16)}, {v(XF+4,4)}, {v(AQ+4,4)}, 0
        s_nop 7
        s_nop 3
        v_add_f32 {v(D0+8)}, {f32(1e-6)}, {v(D0+8)}
        v_add_f32 {v(D1+8)}, {f32(1e-6)}, {v(D1+8)}
        """)
        self.normalize([(D0, D0+8), (D1, D1+8)], 80, guard=False)
        vm.append("ob"); vm.append("ob")
        a(LOW)
        self.stamp(5, "hop")
        more()
        vmwait("ob")
        self.count(10)
        self.stamp(6, "hop")
        self.stamp(12)
        while any(st < 16 for st in todo): more()
        more()
        vmwait(15)
        arrive()
        more()
        a(HI)
        self.await_(20)
        self.outproj_wfrags()
        self.arrive(20)
        a(LOW)
        more()
        if self.o.get("touch", 0):
            a(HI)
            a("v_lshlrev_b32 v22, 10, v0")
            a(LOW)
            a("s_mov_b32 exec_hi, 0")
            a(f"global_load_dword v22, v22, {s(S_OUTB,2)}")
            a("s_mov_b32 exec_hi, -1")
        self.count_peek(12, T+8)
        more(4)
        self.stamp(7, "hop")
        self.count_wait(12, T+8, 8)
        a(HI)
        self.await_(20)
        self.stamp(8, "hop")
        a.c("---- B: the group's o_B images go to LDS for the A waves")
        a(f"""
        s_lshl_b32 {s(SWM)}, {s(RB)}, 15
        s_lshl_b32 {s(SWO)}, {s(HP)}, 14
        s_lshl_b32 {s(T)}, {s(S_G)}, 13
        s_sub_u32 {s(SWO)}, {s(SWO)}, {s(T)}
        """)
        ot = self.o.get("othr", 6)
        for p in range(4):
            a(f"""
            s_add_u32 {s(T)}, {s(S_J)}, {p}
            s_and_b32 {s(T)}, {s(T)}, 3
            s_lshl_b32 {s(T)}, {s(T)}, 12
            s_add_u32 {s(T+1)}, {s(T)}, {s(SWO)}
            s_and_b32 {s(T+1)}, {s(T+1)}, 0x7fff
            s_add_u32 m0, {s(SWM)}, {s(T+1)}
            s_add_u32 {s(T)}, {s(T)}, {WS_OB-WS_OA}
            """)
            self.add64(T+2, S_IMG, s(T))
            for k in range(4):
                a(f"s_waitcnt vmcnt({ot-1})")
                a(f"global_load_lds_dwordx4 {v(V_L16)}, {s(T+2,2)} offset:{k*1024} sc1")

        a("L_Bend:")
        for p in range(4):
            a(f"s_add_u32 {s(T)}, {s(S_J)}, {p}")
            a(f"s_and_b32 {s(T)}, {s(T)}, 3")
            a(f"s_lshl_b32 {s(T)}, {s(T)}, 12")
            self.add64(8+2*p, S_IMG, s(T))
        a(f"s_mov_b32 {s(S_PEND)}, 15")
        a(f"s_mov_b32 {s(T+9)}, 0")
        a(f"v_add_u32 v21, -16, {v(V_ALL)}")
        a(f"s_mul_i32 {s(T)}, {s(S_G)}, {8*KVREC}")
        a(f"s_add_u32 {s(T)}, {s(T)}, {WS_KV+C4_OFF+32}")
        self.add64(T+4, S_WS, s(T))
        a(HI)
        a("s_waitcnt vmcnt(0) lgkmcnt(0)")
        self.stamp(9)
        self.stamp(9, "hop")
        a.c("tell the group when this CU is about to publish (a timing hint only)")
        Ln = a.label("b")
        a(f"s_cmp_lg_u32 {s(WB)}, 1")
        a(f"s_cbranch_scc1 {Ln}")
        self.await_(20, vaddr=21, val=str(E_CLR), sleep=self.o.get("aws", 1))
        self.count(T+4)
        a(f"{Ln}:")
        a("s_barrier")
        a.c("every wave of the grid has used this launch's tag by now: advance the generation word")
        Lg = a.label("b")
        a(f"""
        s_lshl_b32 {s(T)}, s2, 2
        s_add_u32 {s(T)}, {s(T)}, {s(WB)}
        s_cmp_lg_u32 {s(T)}, 0
        s_cbranch_scc1 {Lg}
        s_mov_b64 exec, 1
        global_store_dword {v(V_ZERO)}, {v(V_TAG)}, {s(S_WS,2)} offset:{WS_G} sc1
        s_mov_b64 exec, -1
        {Lg}:
        """)
        a.c("start fetching only when the whole group is about to publish (reads that meet the writes are slow)")
        for i in range(0, 32, 2): a(f"v_mov_b64 {v(96+i,2)}, 0")
        a(f"v_and_b32 v22, 4, v0")
        a(f"v_lshl_add_u32 v22, v22, 2, v21")
        Ln = a.label("b")
        a(f"s_cmp_lg_u32 {s(WB)}, 1")
        a(f"s_cbranch_scc1 {Ln}")
        a("s_waitcnt lgkmcnt(0)")
        a(f"s_add_u32 {s(T+8)}, {s(T+11)}, 1")
        self.count_wait(T+4, T+8, 8, sleep=self.o.get("anns", 0))
        a(f"{Ln}:")
        a(f"s_mov_b32 {s(S_EPOCH)}, 38")
        self.arrive(20)
        a("v_mov_b32 v19, 40")
        self.await_(20, vaddr=22, sleep=0)
        a(f"s_mov_b32 {s(S_EPOCH)}, 40")
        self.stamp(4)

    def finish(self):
        a = self.a
        a("L_fin:")
        if self.o.get("spin"):
            m = self.o.get("meas")
            a(f"s_mov_b32 s72, {self.o['spin']}")
            if m:
                if 13 in m[:2]:
                    a("s_waitcnt vmcnt(0)")
                    self.stamp(13)
                a(f"""
                s_waitcnt lgkmcnt(0)
                s_sub_u32 s70, s70, s68
                s_mul_i32 s70, s70, 10
                s_min_u32 s70, s70, 30000
                s_cmp_eq_u32 {s(S_W)}, {m[2]}
                s_cselect_b32 s70, s70, 0
                s_lshr_b32 s73, s2, 3
                s_cmp_eq_u32 s73, {m[3]}
                s_cselect_b32 s70, s70, 0
                s_add_u32 s72, s72, s70
                """)
            a(f"""
            L_spin:
            s_memrealtime s[66:67]
            s_waitcnt lgkmcnt(0)
            s_sub_u32 s66, s66, s64
            s_cmp_lt_u32 s66, s72
            s_cbranch_scc1 L_spin
            """)
        if self.stamps:
            a("s_waitcnt vmcnt(0)")
            self.stamp(13)
            a(f"""
            s_waitcnt lgkmcnt(0)
            s_cmp_ge_u32 {s(S_W)}, 4
            s_cselect_b32 {s(S_ST+28)}, {s(T+9)}, {s(S_ST+28)}
            s_lshl_b32 {s(T)}, s2, 3
            s_add_u32 {s(T)}, {s(T)}, {s(S_W)}
            s_lshl_b32 {s(T)}, {s(T)}, 6
            s_add_u32 {s(T)}, {s(T)}, {WS_STAMP}
            v_mov_b32 v20, {s(T)}
            """)
            for i in range(16): a(f"v_mov_b32 {v(32+i)}, {s(S_ST+2*i)}")
            for i in range(4): a(f"global_store_dwordx4 v20, {v(32+4*i,4)}, {s(S_WS,2)} offset:{16*i}")
        a("L_end:")
        a("s_endpgm")

    def build(self):
        self.entry()
        self.head_A()
        self.attn()
        self.tail_A()
        self.roleB()
        self.outproj()
        self.finish()
        self.check()
        self.retry()
        self.a("L_last:")
        self.attn_fallback("L_norm")
        return self.wrap()

    def wrap(self):
        hdr = open("cdna_kernels/%s.s.ref" % NAME).read().split("; Override launch")[0]
        return hdr + f"""; Override launch geometry by editing the next line (default: block=256,
; grid=ceil(out_elems/256), lds=0). Harness parses it; keep it on one line.
; @launch grid=(256,1,1) block=(512,1,1) lds={LDS_BYTES}
.amdgcn_target "amdgcn-amd-amdhsa--gfx950"
.text
.globl {NAME}_kernel
.p2align 8
.type {NAME}_kernel,@function
{NAME}_kernel:
""" + self.a.text() + f""".section .rodata,"a"
.p2align 6
.amdhsa_kernel {NAME}_kernel
  .amdhsa_next_free_vgpr 256
  .amdhsa_next_free_sgpr 102
  .amdhsa_accum_offset 256
  .amdhsa_group_segment_fixed_size 0
  .amdhsa_kernarg_size 88
  .amdhsa_user_sgpr_count 2
  .amdhsa_user_sgpr_kernarg_segment_ptr 1
  .amdhsa_system_sgpr_workgroup_id_x 1
  .amdhsa_dx10_clamp 0
.end_amdhsa_kernel
"""

if __name__ == "__main__":
    out = sys.argv[1]
    stamps = "--stamps" in sys.argv
    opts = {}
    for x in sys.argv[2:]:
        if "=" in x:
            k, val = x.split("=", 1); opts[k] = eval(val)
    open(out, "w").write(Gen(stamps=stamps, opts=opts).build())
```

```python
import sys, struct
from asmlib import *

NAME = "concat_heads__grouped_kv_mqa__linear_attn_block__prompt"
def f32(x): return "0x%08x" % struct.unpack("<I", struct.pack("<f", x))[0]
LOG2E = 1.4426950408889634

WS_G   = 0x0
WS_F1  = 0x8000
WS_ACC = 0x10000
WS_KV  = 0x20000
C4_OFF = 576
WS_F2  = 0x60000
WS_OA  = 0x100000
WS_OB  = 0x300000
WS_STAMP = 0x800000
KVREC = 640
KVTILE = 4*KVREC
L_X   = 0
L_W   = 0x10000
L_WKV = 0x20000
L_MISC= 0x24000
L_SYNC= L_MISC + 0x3f00
LDS_BYTES = 0x28000
SPIN_MAX = 200000

S_AX, S_WQ, S_WK, S_WV, S_AWO, S_BX, S_WQKV, S_BWO = 8, 10, 12, 14, 16, 18, 20, 22
S_OUT, S_WS = 24, 26
S_W, S_G, S_J, S_C, S_TAG, S_XCD, S_KC0, S_EPOCH = 28, 29, 30, 31, 32, 33, 34, 35
T = 36
S_HI, S_LO, S_W3 = 50, 51, 52
S_IMG = 54
S_OUTB = 56
S_EX = 58
S_PEND = 59
S_PC = 0
E_CLR = 30
L_MK = L_SYNC + 80
U = 4
S_ST = 64
V_L16, V_SLOT, V_ALL, V_TAG, V_ZERO = 4, 5, 6, 7, 1

class Gen:
    def __init__(self, stamps=False, opts=None):
        self.a = Asm()
        self.stamps = stamps
        self.o = opts or {}
        self.inB = False
    def stamp(self, i, grp=None):
        m = self.o.get("meas")
        if m and grp is None and i in m[:2]: self.a(f"s_memrealtime s[{68+2*m.index(i)}:{69+2*m.index(i)}]")
        if grp != self.o.get("stg") and (grp or (self.inB and self.o.get("stg") and i not in (0, 13))): return
        if self.stamps:
            self.a(f"s_memrealtime {s(S_ST+2*i,2)}")
            cyc = self.o.get("cyc", (6, 7))
            if i in cyc:
                self.a(f"s_memtime {s(S_ST+2*(14+list(cyc).index(i)),2)}")
    def add64(self, dst, base, off):
        self.a(f"s_add_u32 {s(dst)}, {s(base)}, {off}")
        self.a(f"s_addc_u32 {s(dst+1)}, {s(base+1)}, 0")
    def dma(self, vreg, pair, m0s, m0i, off=0):
        return [f"s_add_u32 m0, {s(m0s)}, {m0i}", "s_nop 0",
                f"global_load_lds_dwordx4 {v(vreg)}, {s(pair,2)}" + (f" offset:{off}" if off else "")]
    def marker(self, idx):
        self.a(f"""
        s_lshl_b32 {s(T)}, {s(S_W3)}, 2
        s_add_u32 m0, {s(T)}, {L_MK + 4*idx}
        s_mov_b64 exec, 1
        global_load_lds_dword {v(V_ZERO)}, {s(S_PC,2)}
        s_mov_b64 exec, -1
        """)
    def emit(self, L):
        for x in L: self.a(x)
    def poll(self, vaddr, pair, offs, vt, sleep=2):
        a = self.a
        Lp, Ld = a.label("poll"), a.label("polld")
        a(f"s_mov_b32 {s(T+10)}, 0")
        a(f"{Lp}:")
        for i, o in enumerate(offs):
            a(f"global_load_dword {v(vt+i)}, {v(vaddr)}, {s(pair,2)} offset:{o} sc1")
        a("s_waitcnt vmcnt(0)")
        for i in range(len(offs)):
            if i == 0:
                a(f"v_cmp_ne_u32 vcc, {s(S_TAG)}, {v(vt)}")
            else:
                a(f"v_cmp_ne_u32 {s(T+12,2)}, {s(S_TAG)}, {v(vt+i)}")
                a(f"s_or_b64 vcc, vcc, {s(T+12,2)}")
        a(f"s_add_u32 {s(T+10)}, {s(T+10)}, 1")
        a(f"s_cmp_eq_u64 vcc, 0")
        a(f"s_cbranch_scc1 {Ld}")
        if sleep: a(f"s_sleep {sleep}")
        a(f"s_cmp_lt_u32 {s(T+10)}, {SPIN_MAX}")
        a(f"s_cbranch_scc1 {Lp}")
        a(f"{Ld}:")
    def check4(self, vt):
        a = self.a
        a(f"v_cmp_ne_u32 vcc, {s(S_TAG)}, {v(vt)}")
        for i in range(1, 4):
            a(f"v_cmp_ne_u32 {s(T+12,2)}, {s(S_TAG)}, {v(vt+i)}")
            a(f"s_or_b64 vcc, vcc, {s(T+12,2)}")
        a(f"s_cmp_eq_u64 vcc, 0")
    def poll4(self, vaddr, pair, vt, sleep):
        a = self.a
        Lp, Ld = a.label("poll"), a.label("polld")
        a(f"s_mov_b32 {s(T+10)}, 0")
        a(f"{Lp}:")
        a(f"global_load_dwordx4 {v(vt,4)}, {v(vaddr)}, {s(pair,2)} sc1")
        a(f"s_add_u32 {s(T+10)}, {s(T+10)}, 1")
        a("s_waitcnt vmcnt(0)")
        self.check4(vt)
        a(f"s_cbranch_scc1 {Ld}")
        if sleep: a(f"s_sleep {sleep}")
        a(f"s_cmp_lt_u32 {s(T+10)}, {SPIN_MAX}")
        a(f"s_cbranch_scc1 {Lp}")
        a(f"{Ld}:")
    def count(self, pair):
        a = self.a
        a(f"s_mov_b32 {s(T+11)}, 1")
        a(f"s_atomic_add {s(T+11)}, {s(pair,2)}, 0 glc")
    def count_peek(self, pair, sd):
        self.a(f"s_load_dword {s(sd)}, {s(pair,2)}, 0 glc")
    def count_wait(self, pair, sd, n, sleep=8):
        a = self.a
        Lp, Ld = a.label("cw"), a.label("cwd")
        a(f"""
        s_mov_b32 {s(T+10)}, 0
        {Lp}:
        s_waitcnt lgkmcnt(0)
        s_cmp_ge_u32 {s(sd)}, {n}
        s_cbranch_scc1 {Ld}
        {f"s_sleep {sleep}" if sleep else ""}
        s_load_dword {s(sd)}, {s(pair,2)}, 0 glc
        s_add_u32 {s(T+10)}, {s(T+10)}, 1
        s_cmp_lt_u32 {s(T+10)}, {SPIN_MAX}
        s_cbranch_scc1 {Lp}
        s_waitcnt lgkmcnt(0)
        {Ld}:
        """)
    def flag(self, base, sidx, vm=0, shift=7):
        a = self.a
        a(f"s_lshl_b32 {s(T+10)}, {s(sidx)}, {shift}")
        a(f"s_add_u32 {s(T+10)}, {s(T+10)}, {base}")
        self.add64(T+12, S_WS, s(T+10))
        if vm is not None: a(f"s_waitcnt vmcnt({vm})")
        a("s_mov_b64 exec, 1")
        a(f"global_store_dword {v(V_ZERO)}, {v(V_TAG)}, {s(T+12,2)} sc1")
        a("s_mov_b64 exec, -1")
    def arrive(self, vt):
        a = self.a
        a(f"s_add_u32 {s(S_EPOCH)}, {s(S_EPOCH)}, 1")
        a(f"v_mov_b32 {v(vt)}, {s(S_EPOCH)}")
        a(f"ds_write_b32 {v(V_SLOT)}, {v(vt)}")
    def await_(self, vt, vaddr=V_ALL, val=None, off=0, sleep=1):
        a = self.a
        Lp, Ld = a.label("sb"), a.label("sbd")
        a(f"s_mov_b32 {s(T+10)}, 0")
        a(f"{Lp}:")
        a(f"ds_read_b32 {v(vt)}, {v(vaddr)} offset:{off}")
        a("s_waitcnt lgkmcnt(0)")
        a(f"v_cmp_gt_u32 vcc, {val or s(S_EPOCH)}, {v(vt)}")
        a(f"s_add_u32 {s(T+10)}, {s(T+10)}, 1")
        a(f"s_cmp_eq_u64 vcc, 0")
        a(f"s_cbranch_scc1 {Ld}")
        if sleep: a(f"s_sleep {sleep}")
        a(f"s_cmp_lt_u32 {s(T+10)}, {SPIN_MAX*8}")
        a(f"s_cbranch_scc1 {Lp}")
        a(f"{Ld}:")
    def softbar(self, vt, sleep=1):
        self.arrive(vt); self.await_(vt, sleep=sleep)

    def entry(self):
        a = self.a
        a(f"""
        s_cmpk_ge_u32 s2, 256
        s_cbranch_scc1 L_end
        """)
        self.stamp(0)
        if self.o.get("spin"): a("s_memrealtime s[64:65]")
        Lp = a.label("p")
        a.c("wave 0: pull the code and this CU's share of x into the die's L2 right away")
        a(f"""
        s_load_dwordx16 s[8:23], s[0:1], 0
        s_load_dwordx2 {s(S_OUT,2)}, s[0:1], 64
        s_load_dwordx2 {s(S_WS,2)}, s[0:1], 80
        s_getpc_b64 {s(U,2)}
        L_pc:
        s_lshr_b32 {s(S_C)}, s2, 3
        v_lshl_add_u32 v23, v0, 5, {s(S_C)}
        v_lshlrev_b32 v23, 7, v23
        s_and_b32 {s(S_XCD)}, s2, 7
        s_lshl_b32 {s(S_G)}, {s(S_XCD)}, 5
        s_add_u32 {s(S_C)}, {s(S_C)}, {s(S_G)}
        v_cmp_gt_u32 vcc, L_last-L_pc, v23
        s_and_b64 exec, exec, vcc
        s_cbranch_execz {Lp}
        {f"global_load_dword v23, v23, {s(U,2)}" if self.o.get("cpf", 1) else ""}
        s_mov_b64 exec, -1
        """)
        if self.o.get("xt", 1):
            a(f"""
            s_lshl_b32 {s(S_G)}, {s(S_C)}, 13
            v_lshl_add_u32 v19, v0, 7, {s(S_G)}
            s_waitcnt lgkmcnt(0)
            global_load_dword v19, v19, {s(S_AX,2)}
            """)
        a(f"""
        {Lp}:
        s_mov_b64 exec, -1
        v_lshrrev_b32 v1, 6, v0
        v_and_b32 v0, 63, v0
        v_readfirstlane_b32 {s(S_W)}, v1
        s_lshr_b32 {s(T)}, s2, 6
        s_lshr_b32 {s(S_G)}, {s(S_C)}, 3
        s_and_b32 {s(S_J)}, {s(S_C)}, 7
        s_lshl_b32 {s(T)}, {s(T)}, 1
        s_add_u32 {s(S_KC0)}, {s(T)}, {s(S_J)}
        s_and_b32 {s(S_KC0)}, {s(S_KC0)}, {7 if self.o.get('rot', 1) else 0}
        s_mov_b32 {s(S_EPOCH)}, 0
        s_and_b32 {s(S_W3)}, {s(S_W)}, 3
        s_lshr_b32 {s(S_HI)}, {s(S_W3)}, 1
        s_and_b32 {s(S_LO)}, {s(S_W)}, 1
        v_mov_b32 {v(V_ZERO)}, 0
        v_lshlrev_b32 {v(V_L16)}, 4, v0
        s_cmp_ge_u32 {s(S_W)}, 4
        s_cselect_b32 {s(T)}, 11, 3
        s_cselect_b32 {s(T+1)}, 1, 13
        s_lshl_b32 {s(T+2)}, {s(S_W3)}, 2
        s_add_u32 {s(T+2)}, {s(T+2)}, {L_SYNC}
        v_min_u32 v9, {s(T)}, v0
        v_add_u32 v9, {s(T+1)}, v9
        v_and_b32 v9, 15, v9
        v_lshl_add_u32 v9, v9, 4, {s(T+2)}
        ds_write_b32 v9, {v(V_ZERO)}
        """)
        a(f"""
        v_lshrrev_b32 v8, 3, v0
        v_lshlrev_b32 v2, 10, v8
        v_and_b32 v9, 7, v0
        v_lshrrev_b32 v10, 4, v0
        v_xor_b32 v9, v9, v10
        v_lshl_add_u32 v2, v9, 4, v2
        s_lshl_b32 {s(T)}, {s(S_W)}, 2
        s_add_u32 {s(T)}, {s(T)}, {L_SYNC}
        v_mov_b32 {v(V_SLOT)}, {s(T)}
        s_and_b32 {s(T)}, {s(T)}, -16
        v_and_b32 v9, 3, v0
        v_lshl_add_u32 {v(V_ALL)}, v9, 2, {s(T)}
        v_bfe_u32 v8, v0, 2, 3
        v_lshlrev_b32 v9, 4, v9
        v_lshrrev_b32 v10, 5, v0
        v_lshl_add_u32 v9, v10, 6, v9
        v_lshl_add_u32 v3, v8, 10, v9
        s_cmp_ge_u32 {s(S_W)}, 4
        s_cbranch_scc1 L_roleB
        """)

    def xfrag_addr(self, dst, sblk, vt):
        self.a(f"""
        v_and_b32 {v(vt)}, 31, v0
        v_lshlrev_b32 {v(vt+1)}, 7, {v(vt)}
        s_lshl_b32 {s(T)}, {s(sblk)}, 12
        v_add_u32 {v(vt+1)}, {s(T)}, {v(vt+1)}
        v_bfe_u32 {v(vt)}, v0, 1, 3
        v_lshrrev_b32 {v(vt+2)}, 5, v0
        v_xor_b32 {v(vt)}, {v(vt)}, {v(vt+2)}
        v_lshl_add_u32 {v(dst)}, {v(vt)}, 4, {v(vt+1)}
        v_xor_b32 {v(dst+1)}, 32, {v(dst)}
        v_xor_b32 {v(dst+2)}, 64, {v(dst)}
        v_xor_b32 {v(dst+3)}, 0x60, {v(dst)}
        """)
    def wfrag_addr(self, dst, vt):
        self.a(f"""
        v_bfe_u32 {v(vt)}, v0, 2, 2
        v_lshlrev_b32 {v(vt)}, 6, {v(vt)}
        v_bfe_u32 {v(vt+1)}, v0, 4, 1
        v_lshl_add_u32 {v(vt)}, {v(vt+1)}, 5, {v(vt)}
        v_and_b32 {v(vt+1)}, 3, v0
        v_lshl_add_u32 {v(vt)}, {v(vt+1)}, 3, {v(vt)}
        v_lshrrev_b32 {v(vt+1)}, 5, v0
        v_lshl_add_u32 {v(vt)}, {v(vt+1)}, 10, {v(vt)}
        s_lshl_b32 {s(T)}, {s(S_LO)}, 9
        s_add_u32 {s(T)}, {s(T)}, {L_W}
        v_add_u32 {v(dst)}, {s(T)}, {v(vt)}
        """)
    V_WO, V_EXW, V_EXR, V_OUT, V_IMG = 8, 9, 3, 2, 13
    def tail_addr(self, lbase, loshift, ownimg, colbytes, vt):
        a = self.a
        a(f"""
        v_bfe_u32 {v(vt)}, v0, 2, 2
        v_lshlrev_b32 {v(vt)}, 6, {v(vt)}
        v_lshrrev_b32 {v(vt+1)}, 5, v0
        v_lshl_add_u32 {v(vt)}, {v(vt+1)}, 8, {v(vt)}
        v_and_b32 {v(vt+2)}, 1, v0
        v_lshl_add_u32 {v(vt)}, {v(vt+2)}, 5, {v(vt)}
        v_bfe_u32 {v(vt+2)}, v0, 1, 1
        v_lshl_add_u32 {v(vt)}, {v(vt+2)}, 3, {v(vt)}
        v_bfe_u32 {v(vt+2)}, v0, 4, 1
        v_lshl_add_u32 {v(vt)}, {v(vt+2)}, 4, {v(vt)}
        s_mul_i32 {s(T)}, {s(S_LO)}, {loshift}
        s_add_u32 {s(T)}, {s(T)}, {lbase}
        v_add_u32 {v(self.V_WO)}, {s(T)}, {v(vt)}
        s_lshl_b32 {s(T)}, {s(S_W3)}, 12
        s_add_u32 {s(T)}, {s(T)}, {L_WKV}
        v_add_u32 {v(self.V_EXW)}, {s(T)}, {v(V_L16)}
        v_xor_b32 {v(self.V_EXR)}, 4096, {v(self.V_EXW)}
        v_lshrrev_b32 {v(vt)}, 3, v0
        v_lshlrev_b32 {v(vt)}, 11, {v(vt)}
        v_and_b32 {v(vt+1)}, 7, v0
        v_lshl_add_u32 {v(self.V_OUT)}, {v(vt+1)}, 4, {v(vt)}
        s_lshl_b32 {s(T)}, {s(S_G)}, 1
        s_add_u32 {s(T)}, {s(T)}, {s(S_HI)}
        s_lshl_b32 {s(T+1)}, {s(T)}, 16
        s_lshl_b32 {s(T+2)}, {s(S_J)}, 1
        s_add_u32 {s(T+2)}, {s(T+2)}, {s(S_LO)}
        s_lshl_b32 {s(T+3)}, {s(S_J)}, 7
        s_add_u32 {s(T+1)}, {s(T+1)}, {s(T+3)}
        s_lshl_b32 {s(T+3)}, {s(S_LO)}, 15
        s_add_u32 {s(T+1)}, {s(T+1)}, {s(T+3)}
        s_add_u32 {s(T+1)}, {s(T+1)}, {colbytes}
        """)
        self.add64(S_OUTB, S_OUT, s(T+1))
        a(f"""
        s_lshl_b32 {s(T)}, {s(T)}, 15
        s_lshl_b32 {s(T+2)}, {s(T+2)}, 11
        s_add_u32 {s(T+2)}, {s(T+2)}, {s(T)}
        s_add_u32 {s(T+2)}, {s(T+2)}, {ownimg}
        v_add_u32 {v(self.V_IMG)}, {s(T+2)}, {v(V_L16)}
        s_lshl_b32 {s(T+1)}, {s(S_LO)}, 14
        s_add_u32 {s(T)}, {s(T)}, {s(T+1)}
        s_add_u32 {s(T)}, {s(T)}, {WS_OA}
        """)
        self.add64(S_IMG, S_WS, s(T))

    RQ, RO, RS, RKV = 16, 64, 128, 192
    RIDX, RKA, RVA = 10, 11, 12
    def head_A(self):
        a = self.a
        RQ, RO, RS, RKV, RIDX, RKA, RVA = self.RQ, self.RO, self.RS, self.RKV, self.RIDX, self.RKA, self.RVA
        XA, WA = 248, 252
        a.c("=========================== role A ===========================")
        a.c("---- what the K/V producer needs goes first")
        a(f"""
        v_xor_b32 v10, 64, v2
        v_add_u32 v10, 8192, v10
        s_and_b32 {s(T+1)}, {s(S_J)}, 6
        s_lshl_b32 {s(T+6)}, {s(S_G)}, 16
        s_lshl_b32 {s(T+2)}, {s(T+1)}, 13
        s_add_u32 {s(T+6)}, {s(T+6)}, {s(T+2)}
        s_lshl_b32 {s(T+7)}, {s(S_W)}, 14
        s_lshl_b32 {s(T+2)}, {s(T+1)}, 10
        s_add_u32 {s(T+7)}, {s(T+7)}, {s(T+2)}
        s_lshl_b32 {s(T+8)}, {s(S_W)}, 12
        s_lshl_b32 {s(T+9)}, {s(S_W)}, 1
        s_add_u32 {s(T+9)}, {s(T+9)}, {s(S_KC0)}
        s_mov_b32 {s(S_EPOCH)}, 7
        s_waitcnt lgkmcnt(0)
        """)
        self.stamp(1)
        a(f"""
        s_bitcmp1_b32 {s(S_J)}, 0
        s_cselect_b32 {s(S_WK)}, {s(S_WV)}, {s(S_WK)}
        s_cselect_b32 {s(S_WK+1)}, {s(S_WV+1)}, {s(S_WK+1)}
        """)
        for i in range(2):
            a(f"""
            s_add_u32 {s(T)}, {s(T+9)}, {i}
            s_and_b32 {s(T)}, {s(T)}, 7
            s_lshl_b32 {s(T+1)}, {s(T)}, 7
            s_add_u32 {s(T+1)}, {s(T+1)}, {s(T+6)}
            """)
            self.add64(T+2, S_AX, s(T+1))
            a(f"s_lshl_b32 {s(T)}, {s(T)}, 11")
            self.add64(T+4, S_WK, s(T))
            self.emit(self.dma(2, T+2, T+7, L_X + i*8192))
            self.emit(self.dma(10, T+2, T+7, L_X + i*8192 + 1024))
            self.emit(self.dma(V_L16, T+4, T+8, L_WKV + i*2048))
            a(f"global_load_lds_dwordx4 {v(V_L16)}, {s(T+4,2)} offset:1024")
            if i == 0: a(f"s_getpc_b64 {s(S_PC,2)}")
            self.marker(36 - 4*i)
        a("s_barrier")
        a("s_branch L_bodyA")
        a("L_cutA:")
        a("L_bodyA:")
        XF, WF = RS, RS+32
        def rd(t):
            i = t % 8
            a(f"ds_read_b128 {v(XF+4*i,4)}, {v(XA+(t&3))} offset:{(t//4)*8192}")
            a(f"ds_read_b64_tr_b16 {v(WF+4*i,2)}, {v(WA)} offset:{t*2048}")
            a(f"ds_read_b64_tr_b16 {v(WF+4*i+2,2)}, {v(WA)} offset:{t*2048+256}")
        def mm(t):
            i = t % 8
            a(f"v_mfma_f32_32x32x16_bf16 v[32:47], {v(WF+4*i,4)}, {v(XF+4*i,4)}, {'0' if t == 0 else 'v[32:47]'}")
        def qproj():
            chk = self.o.get("chk", {0: 0, 4: 1, 8: 3, 16: 5, 24: 6, 28: 7})
            self.await_(20, vaddr=52, val="1", off=128, sleep=1)
            self.await_(20, vaddr=53, val="1", off=16*chk[0], sleep=0)
            self.stamp(2)
            for t in range(4): rd(t)
            for tb in range(4, 32, 4):
                if tb not in chk:
                    for t in range(tb-4, tb):
                        rd(t+4)
                        a("s_waitcnt lgkmcnt(12)")
                        mm(t)
                    continue
                Lok, Lj = a.label("a"), a.label("a")
                ad = 54 if chk[tb] == 7 else 53
                a(f"ds_read_b32 v20, {v(ad)} offset:{16*chk[tb]}")
                a("s_waitcnt lgkmcnt(10)")
                mm(tb-4)
                a("s_waitcnt lgkmcnt(7)")
                mm(tb-3)
                a(f"""
                s_waitcnt lgkmcnt(0)
                v_cmp_gt_u32 vcc, 1, v20
                s_cmp_eq_u64 vcc, 0
                s_cbranch_scc1 {Lok}
                """)
                mm(tb-2); mm(tb-1)
                self.await_(20, vaddr=ad, val="1", off=16*chk[tb], sleep=0)
                for t in range(tb, tb+4): rd(t)
                a(f"s_branch {Lj}")
                a(f"{Lok}:")
                rd(tb); rd(tb+1)
                mm(tb-2)
                rd(tb+2); rd(tb+3)
                mm(tb-1)
                a(f"{Lj}:")
                if tb == 28: self.stamp(3)
            a.c("the first key tiles are published: their fetch overlaps the end of the projection")
            a("s_barrier")
            self.stamp(5)
            for t in range(28, 32):
                if t == 28:
                    for k in range(3): a(self.kv_ld(0, k, 8))
                a(f"s_waitcnt lgkmcnt({3*(31-t)})")
                mm(t)
        self.xfrag_addr(XA, S_HI, 20)
        self.wfrag_addr(WA, 20)
        for i in range(0, 64, 2): a(f"v_mov_b64 {v(RO+i,2)}, 0")
        for i in range(0, 4, 2): a(f"v_mov_b64 {v(RKV+36+8+i,2)}, 0")
        a(f"""
        v_and_b32 v20, 15, v0
        v_lshlrev_b32 v20, 4, v20
        v_lshrrev_b32 v21, 5, v0
        v_lshl_add_u32 v20, v21, 8, v20
        v_bfe_u32 v21, v0, 4, 1
        v_mul_u32_u24 v22, {2*KVREC}, v21
        v_add_u32 {v(RKA)}, v20, v22
        v_cmp_eq_u32 vcc, 0, v21
        v_and_b32 v22, 11, v0
        v_min_u32 v22, 1, v22
        v_lshlrev_b32 v22, 4, v22
        v_add_u32 v22, 512, v22
        v_mov_b32 {v(RIDX)}, 0xdddd
        v_cndmask_b32 {v(RVA)}, v22, v20, vcc
        s_lshl_b32 {s(T)}, {s(S_W)}, 9
        s_add_u32 {s(T)}, {s(T)}, {L_MISC}
        v_lshl_add_u32 v48, v0, 2, {s(T)}
        v_xor_b32 v49, 512, v48
        v_and_b32 v60, 1, v0
        v_mul_u32_u24 v60, 12, v60
        v_add_u32 v60, 4, v60
        v_xor_b32 v60, v60, {v(V_SLOT)}
        v_mov_b32 v61, {E_CLR}
        v_and_b32 v51, 4, v0
        v_add_u32 v52, {L_MK-L_SYNC}, {v(V_ALL)}
        v_or_b32 v53, 8, v52
        v_and_b32 v54, 3, v0
        v_cmp_eq_u32 vcc, 0, v54
        s_nop 1
        v_cndmask_b32 v54, v53, v52, vcc
        v_lshl_add_u32 v51, v51, 4, {v(V_ALL)}
        s_lshl_b32 {s(T)}, {s(S_HI)}, 15
        v_add_u32 v14, {s(T)}, {v(V_L16)}
        """)
        self.tail_addr(L_W, 512, WS_OA, 1024, 20)
        a(f"""
        s_lshl_b32 {s(T)}, {s(S_HI)}, 12
        s_add_u32 {s(T)}, {s(T)}, {L_MISC+0x1000}
        v_lshrrev_b32 v20, 5, v0
        v_lshlrev_b32 v20, 1, v20
        s_lshl_b32 {s(T+1)}, {s(S_LO)}, 2
        v_add_u32 v20, {s(T+1)}, v20
        v_and_b32 v21, 7, v0
        v_xor_b32 v20, v20, v21
        v_and_b32 v22, 31, v0
        v_lshl_add_u32 v22, v22, 7, {s(T)}
        v_lshl_add_u32 v57, v20, 4, v22
        v_xor_b32 v58, 16, v57
        v_lshrrev_b32 v20, 3, v0
        v_xor_b32 v21, v21, v20
        s_lshl_b32 {s(T+1)}, {s(S_LO)}, 11
        s_add_u32 {s(T)}, {s(T)}, {s(T+1)}
        v_lshl_add_u32 v20, v20, 7, {s(T)}
        v_lshl_add_u32 v59, v21, 4, v20
        """)
        a(f"""
        s_add_u32 {s(U+2)}, {s(S_XCD)}, 1
        s_and_b32 {s(U+2)}, {s(U+2)}, 7
        s_lshl_b32 {s(U+2)}, {s(U+2)}, 3
        s_add_u32 {s(U+2)}, {s(U+2)}, {s(S_LO)}
        s_mul_i32 {s(U+2)}, {s(U+2)}, {KVTILE}
        s_add_u32 {s(U+2)}, {s(U+2)}, {WS_KV}
        """)
        for u in range(3):
            self.add64(8+2*u, S_WS, s(U+2))
            a(f"s_add_u32 {s(U+2)}, {s(U+2)}, {2*KVTILE}")
        qproj()
        for i in range(0, 8, 2): a(f"v_mov_b64 {v(RS+48+8+i,2)}, 0")
        for k in range(3): a(self.kv_ld(1, k, 10))
        a("s_nop 4")
        for i in range(8):
            a(f"v_cvt_pk_bf16_f32 {v(RQ+8+i)}, {v(32+2*i)}, {v(33+2*i)}")
        a(f"ds_write_b128 {v(self.V_EXW)}, {v(RQ+8,4)}")
        a(f"ds_write_b128 {v(self.V_EXW)}, {v(RQ+12,4)} offset:1024")
        a("s_waitcnt lgkmcnt(0)")
        self.stamp(4)
        a("s_barrier")

    def kv_ops(self):
        SB, SOFF = T, U+2
        return [f"s_add_u32 {s(SB)}, {s(S_WS)}, {s(SOFF)}",
                f"s_addc_u32 {s(SB+1)}, {s(S_WS+1)}, 0",
                f"s_add_u32 {s(SOFF)}, {s(SOFF)}, {2*KVTILE}",
                f"s_cmp_ge_u32 {s(SOFF)}, {WS_KV+64*KVTILE}",
                f"s_cselect_b32 {s(T+2)}, {64*KVTILE}, 0",
                f"s_sub_u32 {s(SOFF)}, {s(SOFF)}, {s(T+2)}"]
    def kv_ld(self, u, k, SB=T):
        if k == 0: return f"global_load_dwordx4 {v(self.RKV+12*u,4)}, {v(self.RKA)}, {s(SB,2)} sc1"
        return f"global_load_dwordx4 {v(self.RKV+12*u+4*k,4)}, {v(self.RVA)}, {s(SB,2)} offset:{KVREC+(k-1)*2*KVREC} sc1"
    def attn(self):
        a = self.a
        RQ, RO, RS, RKV, RIDX, RKA, RVA = self.RQ, self.RO, self.RS, self.RKV, self.RIDX, self.RKA, self.RVA
        SB, SOFF, SCNT, SPASS = T, U+2, U+3, U
        def K(u): return v(RKV+12*u, 4)
        def V(u, h): return v(RKV+12*u+4+4*h, 4)
        addr_ops, ld = self.kv_ops, self.kv_ld
        a.c("---- attention")
        a(f"s_setprio {self.o.get('aprio', 1)}")
        a(f"ds_read_b128 {v(RQ,4)}, {v(self.V_EXR)}")
        a(f"ds_read_b128 {v(RQ+4,4)}, {v(self.V_EXR)} offset:1024")
        for k in range(3): a(self.kv_ld(2, k, 12))
        self.arrive(50)
        a(f"s_mov_b32 {s(SCNT)}, 1")
        a(f"s_mov_b32 {s(SPASS)}, 0")
        if self.o.get("aprof"): a("s_mov_b32 m0, 0")
        a(f"s_waitcnt vmcnt(6) lgkmcnt(0)")
        self.stamp(6)
        a(f"v_mfma_f32_32x32x16_bf16 {v(RS,16)}, {K(0)}, {v(RQ,4)}, 0")
        a("s_nop 7")
        a("s_nop 2")
        L = a.label("attn")
        p2, p1 = self.o.get("pos", (3, 10))
        EXW = v(self.V_EXW)
        def body(last):
            for u in range(4):
                for b in range(4):
                    if self.o.get("aprof") and b == 0:
                        a(f"""
                        s_memtime s[60:61]
                        s_waitcnt lgkmcnt(0)
                        v_writelane_b32 v55, s60, m0
                        s_add_u32 m0, m0, 1
                        """)
                    fill = [[], [], []]
                    if not last or u == 0:
                        if b == 0:
                            ops = addr_ops()
                            fill[0] = ops[0:1]; fill[1] = ops[1:3]; fill[2] = ops[3:5]
                        if b == 1:
                            fill[0] = addr_ops()[5:6]; fill[1] = [ld((u+3) % 4, 0)]; fill[2] = [ld((u+3) % 4, 1)]
                        if b == 2:
                            fill[1] = [ld((u+3) % 4, 2)]; fill[2] = ["s_waitcnt vmcnt(6)"]
                    elif b == 2 and u < 3:
                        fill[2] = [f"s_waitcnt vmcnt({6-3*u})"]
                    if not last and b == 3 and u == 3:
                        fill[1] = [f"s_sub_u32 {s(SCNT)}, {s(SCNT)}, 1", f"s_cmp_lg_u32 {s(SCNT)}, 0"]
                    if last and u == 3 and b >= 2:
                        k = b - 2
                        fill[0] = [f"ds_write_b128 {EXW}, {v(RO+16*k,4)} offset:{2048*k}"]
                        fill[1] = [f"ds_write_b128 {EXW}, {v(RO+16*k+4,4)} offset:{2048*k+1024}",
                                   f"ds_write_b32 v48, {v(RO+16*k+8)} offset:{256*k}"]
                        if k: fill[1].append(f"ds_write_b32 {v(V_SLOT)}, v61")
                    nu, nb = (u, b+1) if b < 3 else ((u+1) % 4, 0)
                    pu, pb = (u, b-1) if b > 0 else ((u-1) % 4, 3)
                    S = RS + 16*b
                    if not (last and u == 3 and b == 3):
                        a(f"v_mfma_f32_32x32x16_bf16 {v(RS+16*nb,16)}, {K(nu)}, {v(RQ+4*nb,4)}, 0")
                    for x in fill[0]: a(x)
                    for i in range(0, p2): a(f"v_exp_f32 {v(S+i)}, {v(S+i)}")
                    a(f"v_smfmac_f32_32x32x32_bf16 {v(RO+16*pb,16)}, {V(pu,1)}, {v(RS+16*pb+8,8)}, {v(RIDX)}")
                    for x in fill[1]: a(x)
                    for i in range(p2, p1): a(f"v_exp_f32 {v(S+i)}, {v(S+i)}")
                    a(f"v_smfmac_f32_32x32x32_bf16 {v(RO+16*b,16)}, {V(u,0)}, {v(S,8)}, {v(RIDX)}")
                    for x in fill[2]: a(x)
                    for i in range(p1, 16): a(f"v_exp_f32 {v(S+i)}, {v(S+i)}")
        a(".p2align 6")
        a(f"{L}:")
        body(False)
        a(f"s_cbranch_scc1 {L}")
        a(f"s_cmp_eq_u32 {s(SPASS)}, 0")
        a(f"s_cbranch_scc1 L_check")
        body(True)
        def check():
            a("L_check:")
            a.c("the remaining key tiles must have been published before they are fetched")
            self.await_(50, vaddr=51)
            a(f"s_mov_b32 {s(SPASS)}, 1")
            a(f"s_mov_b32 {s(SCNT)}, 6")
            a(f"s_branch {L}")
        self.check = check
        a(f"ds_read_b32 v50, v60")
        a(f"ds_read_b32 {v(RO+8)}, v49")
        a(f"v_smfmac_f32_32x32x32_bf16 {v(RO+48,16)}, {V(3,1)}, {v(RS+48+8,8)}, {v(RIDX)}")

    def tail_A(self):
        a = self.a
        RQ, RO = self.RQ, self.RO
        self.stamp(7)
        if self.o.get("aprof"):
            a(f"""
            s_lshl_b32 s60, s2, 2
            s_add_u32 s60, s60, {s(S_W)}
            s_lshl_b32 s60, s60, 8
            s_add_u32 s60, s60, {WS_STAMP+0x40000}
            v_lshl_add_u32 v56, v0, 2, s60
            global_store_dword v56, v55, {s(S_WS,2)}
            """)
        a.c("---- pair reduction of the two key halves")
        O2, O3 = RO+32, RO+48
        def rdpart():
            a(f"""
            ds_read_b32 {v(RO+24)}, v49 offset:256
            ds_read_b128 {v(RO,4)}, {v(self.V_EXR)}
            ds_read_b128 {v(RO+4,4)}, {v(self.V_EXR)} offset:1024
            ds_read_b128 {v(RO+16,4)}, {v(self.V_EXR)} offset:2048
            ds_read_b128 {v(RO+20,4)}, {v(self.V_EXR)} offset:3072
            """)
        rdpart()
        Lok, La = a.label("x"), a.label("x")
        a(f"""
        s_mov_b32 {s(T+2)}, {f32(2.0**-20)}
        s_mov_b32 {s(T+3)}, {f32(2.0**100)}
        s_waitcnt lgkmcnt(6)
        v_cmp_gt_u32 vcc, {E_CLR}, v50
        s_cmp_eq_u64 vcc, 0
        s_cbranch_scc1 {Lok}
        """)
        self.await_(50, vaddr=60, val=str(E_CLR), sleep=0)
        a(f"ds_read_b32 {v(RO+8)}, v49")
        rdpart()
        a(f"{Lok}:")
        self.stamp(11)
        a(f"""
        s_waitcnt lgkmcnt(2)
        v_add_f32 {v(O2+8)}, {v(O2+8)}, {v(RO+8)}
        v_add_f32 {v(O3+8)}, {v(O3+8)}, {v(RO+24)}
        v_cmp_le_f32 {s(T+4,2)}, {s(T+2)}, {v(O2+8)}
        v_cmp_le_f32 {s(T+6,2)}, {s(T+2)}, {v(O3+8)}
        v_add_f32 {v(RO+9)}, {v(O2+8)}, {v(O3+8)}
        """)
        for b in range(2):
            if b: a("s_waitcnt lgkmcnt(0)")
            for i in range(0, 8, 2):
                a(f"v_pk_add_f32 {v(O2+16*b+i,2)}, {v(O2+16*b+i,2)}, {v(RO+16*b+i,2)}")
        a.c("---- the zero shift is kept only if every row sum is in range and every sum is finite")
        a(f"""
        v_pk_add_f32 {v(RO,2)}, {v(O2,2)}, {v(O2+2,2)}
        v_pk_add_f32 {v(RO+2,2)}, {v(O2+4,2)}, {v(O2+6,2)}
        v_pk_add_f32 {v(RO+4,2)}, {v(O3,2)}, {v(O3+2,2)}
        v_pk_add_f32 {v(RO+6,2)}, {v(O3+4,2)}, {v(O3+6,2)}
        v_pk_add_f32 {v(RO,2)}, {v(RO,2)}, {v(RO+2,2)}
        v_pk_add_f32 {v(RO+4,2)}, {v(RO+4,2)}, {v(RO+6,2)}
        s_and_b64 {s(T+4,2)}, {s(T+4,2)}, {s(T+6,2)}
        v_pk_add_f32 {v(RO,2)}, {v(RO,2)}, {v(RO+4,2)}
        v_fma_f32 {v(RO+9)}, {v(RO)}, 0, {v(RO+9)}
        v_fma_f32 {v(RO+9)}, {v(RO+1)}, 0, {v(RO+9)}
        v_cmp_ge_f32 vcc, {s(T+3)}, {v(RO+9)}
        s_and_b64 vcc, vcc, {s(T+4,2)}
        s_cmp_eq_u64 vcc, -1
        s_cbranch_scc0 L_fallback
        L_norm:
        """)
        self.normalize([(O2, O2+8), (O3, O3+8)], 16)
        self.stamp(8)
        a.c("---- the linear-attention half of the output projection fills the hand-off wait")
        a("s_setprio 0")
        a("s_barrier")
        XF, WF, ACC = 128, 160, 64
        D = 4
        def rd(u):
            i = u % 8
            a(f"ds_read_b128 {v(XF+4*i,4)}, v14 offset:{u*1024}")
            for sx in range(2):
                a(f"ds_read_b64_tr_b16 {v(WF+4*i+2*sx,2)}, {v(self.V_WO)} offset:{(2*u+sx)*1024}")
        for u in range(D): rd(u)
        for u in range(32):
            if u + D < 32:
                rd(u+D); n = 3*D
            else:
                n = 3*(31-u)
            y2 = self.o.get("y2", 12)
            if u == y2:
                a("v_mov_b32 v50, 39")
                a("s_waitcnt vmcnt(0)")
                a(f"ds_write_b32 {v(V_SLOT)}, v50")
                self.stamp(9)
            a(f"s_waitcnt lgkmcnt({n})")
            i = u % 8
            a(f"v_mfma_f32_32x32x16_bf16 {v(ACC,16)}, {v(WF+4*i,4)}, {v(XF+4*i,4)}, {'0' if u == 0 else v(ACC,16)}")
        self.stamp(10)
        a(f"s_mov_b32 {s(S_EPOCH)}, 39")
        self.add64(T+2, S_OUTB, 16384)
        a("s_nop 7")
        a("s_nop 0")
        for h in range(2):
            for i in range(4*h, 4*h+4): a(f"v_cvt_pk_bf16_f32 {v(32+i)}, {v(ACC+2*i)}, {v(ACC+2*i+1)}")
            a(f"ds_write_b128 {v(57+h)}, {v(32+4*h,4)}")
        self.softbar(50, sleep=0)
        a("ds_read_b128 v[40:43], v59")
        a("ds_read_b128 v[44:47], v59 offset:1024")
        a.c("these stores queue behind the other waves' fetches, not in front of them")
        if self.o.get("sw", 1): self.await_(50, val="40", off=16, sleep=1)
        for h in range(2):
            a(f"s_waitcnt lgkmcnt({1-h})")
            a(f"global_store_dwordx4 {v(self.V_OUT)}, {v(40+4*h,4)}, {s(T+2 if h else S_OUTB,2)} {self.o.get('osta','sc1')}")
        a("s_branch L_fin")

    def normalize(self, blocks, P, guard=True):
        a = self.a
        for N, R in blocks: a(f"v_rcp_f32 {v(R)}, {v(R)}")
        for b, (N, R) in enumerate(blocks):
            for i in range(0, 8, 2):
                a(f"v_pk_mul_f32 {v(N+i,2)}, {v(N+i,2)}, {v(R,2)} op_sel_hi:[1,0]")
            for i in range(4):
                a(f"v_cvt_pk_bf16_f32 {v(P+4*b+i)}, {v(N+2*i)}, {v(N+2*i+1)}")
            if guard: a(f"v_min_u32 {v(P+4*b)}, -2, {v(P+4*b)}")
            a(f"global_store_dwordx4 {v(self.V_IMG)}, {v(P+4*b,4)}, {s(S_WS,2)} offset:{1024*b} {'' if guard and self.o.get('xplain') else 'sc1'}")

    def attn_fallback(self, Lret):
        a = self.a
        RQ, RO, RS, RKV, RIDX, RKA, RVA = self.RQ+8, self.RO+32, self.RS, self.RKV, self.RIDX, self.RKA, self.RVA
        SB, SCNT = T, U+3
        NM = RS + 32
        a("L_fallback:")
        a(f"v_mov_b32 {v(RKV+20)}, 0xff800000")
        a(f"v_mov_b32 {v(RKV+21)}, 0xff800000")
        for ps in (0, 1):
            L = a.label("fb")
            self.add64(SB, S_WS, WS_KV)
            a(f"""
            s_mov_b32 {s(SCNT)}, 64
            {L}:
            global_load_dwordx4 {v(RKV,4)}, {v(RKA)}, {s(SB,2)} sc1
            """)
            if ps:
                a(f"global_load_dwordx4 {v(RKV+4,4)}, {v(RVA)}, {s(SB,2)} offset:{KVREC} sc1")
                a(f"global_load_dwordx4 {v(RKV+8,4)}, {v(RVA)}, {s(SB,2)} offset:{3*KVREC} sc1")
            self.add64(SB, SB, KVTILE)
            a("s_waitcnt vmcnt(0)")
            for b in range(2):
                c = v(NM+16*b, 16) if ps else "0"
                a(f"v_mfma_f32_32x32x16_bf16 {v(RS+16*b,16)}, {v(RKV,4)}, {v(RQ+4*b,4)}, {c}")
            a("s_nop 7")
            a("s_nop 4")
            for b in range(2):
                S = RS + 16*b
                if not ps:
                    for i in range(0, 16, 2):
                        a(f"v_max3_f32 {v(RKV+20+b)}, {v(S+i)}, {v(S+i+1)}, {v(RKV+20+b)}")
                else:
                    for i in range(16): a(f"v_exp_f32 {v(S+i)}, {v(S+i)}")
                    a("s_nop 1")
                    a(f"v_smfmac_f32_32x32x32_bf16 {v(RO+16*b,16)}, {v(RKV+4,4)}, {v(S,8)}, {v(RIDX)}")
                    a(f"v_smfmac_f32_32x32x32_bf16 {v(RO+16*b,16)}, {v(RKV+8,4)}, {v(S+8,8)}, {v(RIDX)}")
            a(f"""
            s_sub_u32 {s(SCNT)}, {s(SCNT)}, 1
            s_cmp_lg_u32 {s(SCNT)}, 0
            s_cbranch_scc1 {L}
            """)
            if not ps:
                for b in range(2):
                    m = RKV+20+b
                    a(f"""
                    v_mov_b32 {v(RKV+22)}, {v(m)}
                    s_nop 1
                    v_permlane32_swap_b32 {v(m)}, {v(RKV+22)}
                    s_nop 1
                    v_max_f32 {v(m)}, {v(m)}, {v(RKV+22)}
                    """)
                    for i in range(16): a(f"v_sub_f32 {v(NM+16*b+i)}, 0, {v(m)}")
                for i in range(32): a(f"v_mov_b32 {v(RO+i)}, 0")
        a("s_nop 7")
        a("s_nop 4")
        a(f"s_branch {Lret}")

    def outproj_wfrags(self):
        a = self.a
        for p in range(4):
            a(f"""
            s_add_u32 {s(T)}, {s(S_J)}, {p}
            s_and_b32 {s(T)}, {s(T)}, 3
            s_lshl_b32 {s(T+1)}, {s(S_LO)}, 2
            s_add_u32 {s(T)}, {s(T)}, {s(T+1)}
            s_lshl_b32 {s(T+1)}, {s(S_G)}, 1
            s_sub_u32 {s(T)}, {s(T)}, {s(T+1)}
            s_and_b32 {s(T)}, {s(T)}, 7
            s_lshl_b32 {s(T)}, {s(T)}, 13
            v_add_u32 v21, {s(T)}, {v(self.V_WO)}
            """)
            for k in range(4):
                u = 4*p + k
                for nb in range(2):
                    for sx in range(2):
                        a(f"ds_read_b64_tr_b16 {v(128+8*u+4*nb+2*sx,2)}, v21 offset:{(2*k+sx)*1024+nb*512}")
    def gather_loads(self, p):
        for k in range(4):
            self.a(f"global_load_dwordx4 {v(32+16*p+4*k,4)}, {v(V_L16)}, {s(8+2*p,2)} offset:{k*1024} sc1")
    def outproj(self):
        a = self.a
        a.c("=========================== attention half of the output projection ===========================")
        def test(p):
            I = 32 + 16*p
            a(f"""
            v_max3_u32 v16, {v(I)}, {v(I+4)}, {v(I+8)}
            v_max_u32 v16, v16, {v(I+12)}
            v_cmp_eq_u32 vcc, -1, v16
            """)
        def mms(p):
            return [f"v_mfma_f32_32x32x16_bf16 {v(96+16*nb,16)}, {v(128+8*(4*p+k)+4*nb,4)}, {v(32+4*(4*p+k),4)}, {v(96+16*nb,16)}"
                    for k in range(4) for nb in range(2)]
        def consume(p, Ls):
            test(p)
            a(f"""
            s_cmp_lg_u64 vcc, 0
            s_cbranch_scc1 {Ls}
            s_bitset0_b32 {s(S_PEND)}, {p}
            """)
            self.emit(mms(p))
            a(f"{Ls}:")
        self.gather_loads(0); self.gather_loads(1)
        a("s_waitcnt vmcnt(4)")
        self.stamp(5)
        test(0)
        for p in range(4):
            a("s_cmp_lg_u64 vcc, 0")
            a(f"s_cbranch_scc1 L_miss")
            a(f"s_bitset0_b32 {s(S_PEND)}, {p}")
            M = mms(p)
            a(M[0])
            if p < 2: self.gather_loads(p+2)
            if p == 1: a(f"ds_write_b32 {v(V_SLOT)}, v19")
            if p == 3: a(f"ds_read_b32 v20, v21")
            self.emit(M[1:7])
            if p < 3:
                a(f"s_waitcnt vmcnt({4 if p < 2 else 0})")
                test(p+1)
            a(M[7])
        a("L_gathered:")
        self.stamp(10)
        Lok = a.label("k")
        a.c("the exchange tiles reuse LDS the A waves have finished reading")
        a(f"""
        s_waitcnt lgkmcnt(0)
        v_cmp_gt_u32 vcc, 40, v20
        s_cmp_eq_u64 vcc, 0
        s_cbranch_scc1 {Lok}
        """)
        self.await_(20, vaddr=21, val="40", sleep=0)
        a(f"{Lok}:")
        self.add64(T+2, S_OUTB, 16384)
        a("s_nop 5")
        for nb in range(2):
            for k, ad in enumerate((9, 14, 15, 17)):
                a(f"ds_write_b128 {v(ad)}, {v(96+16*nb+4*k,4)} offset:{128*nb}")
        self.softbar(16, sleep=0)
        for i in range(2):
            for pt in range(2):
                for e, ad in enumerate((3, 24)):
                    a(f"ds_read_b128 {v(32+16*i+8*pt+4*e,4)}, {v(ad)} offset:{2048*i+8192*pt}")
        for i in range(2):
            a(f"s_waitcnt lgkmcnt({4-4*i})")
            for k in range(0, 8, 2): a(f"v_pk_add_f32 {v(32+16*i+k,2)}, {v(32+16*i+k,2)}, {v(32+16*i+8+k,2)}")
            for k in range(4): a(f"v_cvt_pk_bf16_f32 {v(64+4*i+k)}, {v(32+16*i+2*k)}, {v(32+16*i+2*k+1)}")
            a(f"global_store_dwordx4 {v(self.V_OUT)}, {v(64+4*i,4)}, {s(T+2 if i else S_OUTB,2)} {self.o.get('ostb','sc1')}")
        def retry():
            a("L_miss:")
            a(f"ds_write_b32 {v(V_SLOT)}, v19")
            a("v_mov_b32 v20, 0")
            a("s_waitcnt vmcnt(0)")
            a("L_retry:")
            if self.o.get("rs", 2): a(f"s_sleep {self.o.get('rs', 2)}")
            for p in range(4):
                Ls = a.label("gs")
                a(f"s_bitcmp1_b32 {s(S_PEND)}, {p}")
                a(f"s_cbranch_scc0 {Ls}")
                self.gather_loads(p)
                a(f"{Ls}:")
            a("s_waitcnt vmcnt(0)")
            for p in range(4):
                Ls = a.label("cs")
                a(f"s_bitcmp1_b32 {s(S_PEND)}, {p}")
                a(f"s_cbranch_scc0 {Ls}")
                consume(p, Ls)
            a(f"""
            s_add_u32 {s(T+9)}, {s(T+9)}, 1
            s_cmp_eq_u32 {s(S_PEND)}, 0
            s_cbranch_scc1 L_gathered
            s_cmp_lt_u32 {s(T+9)}, {SPIN_MAX}
            s_cbranch_scc1 L_retry
            s_branch L_gathered
            """)
        self.retry = retry

    def kv_setup(self):
        self.a(f"""
        v_and_b32 v96, 15, v0
        v_and_b32 v97, 3, v0
        v_bfe_u32 v98, v0, 2, 1
        v_lshl_add_u32 v97, v98, 3, v97
        v_bfe_u32 v98, v0, 3, 1
        v_lshl_add_u32 v97, v98, 2, v97
        s_bitcmp1_b32 {s(S_J)}, 0
        s_cselect_b64 vcc, -1, 0
        s_cselect_b32 {s(T+8)}, 1.0, {f32(0.25*LOG2E)}
        v_cndmask_b32 v96, v96, v97, vcc
        v_lshrrev_b32 v98, 4, v0
        v_lshrrev_b32 v97, 1, v96
        v_xor_b32 v97, v97, v98
        v_lshlrev_b32 v96, 7, v96
        v_lshl_add_u32 v96, v97, 4, v96
        s_and_b32 {s(T)}, {s(S_J)}, 6
        s_lshl_b32 {s(T)}, {s(T)}, 10
        v_add_u32 v96, {s(T)}, v96
        v_xor_b32 v97, 64, v96
        v_bfe_u32 v99, v0, 2, 2
        v_lshl_add_u32 v99, v98, 3, v99
        v_lshlrev_b32 v99, 5, v99
        v_and_b32 v100, 3, v0
        v_lshl_add_u32 v99, v100, 3, v99
        v_add_u32 v99, {L_WKV}, v99
        """)
    def kv_compute(self):
        a = self.a
        XF, WF = 128, 160
        LV, LD = a.label("kvv"), a.label("kvd")
        order = [2*sl + h for par in range(2) for sl in range(par, 8, 2) for h in range(2)]
        def rd(n):
            t = order[n]
            a(f"ds_read_b128 {v(XF+4*(n%8),4)}, {v(96+(t&1))} offset:{(t//2)*8192}")
            a(f"ds_read_b64_tr_b16 {v(WF+4*(n%8),2)}, v99 offset:{t*1024}")
            a(f"ds_read_b64_tr_b16 {v(WF+4*(n%8)+2,2)}, v99 offset:{t*1024+128}")
        a(f"s_bitcmp1_b32 {s(S_J)}, 0")
        a(f"s_cbranch_scc1 {LV}")
        for isv in (0, 1):
            if isv: a(f"{LV}:")
            def mm(n):
                x, w = v(XF+4*(n%8),4), v(WF+4*(n%8),4)
                A, B = (x, w) if isv else (w, x)
                a(f"v_mfma_f32_16x16x32_bf16 v[104:107], {A}, {B}, {'0' if n == 0 else 'v[104:107]'}")
            for h in range(2):
                self.await_(20, vaddr=21, val="1", off=16-16*h, sleep=0)
                if h == 0:
                    self.stamp(2); self.stamp(5, "hd")
                for n in range(8*h, 8*h+4):
                    rd(n)
                    if h: mm(n-4)
                for n in range(8*h, 8*h+4):
                    rd(n+4)
                    a("s_waitcnt lgkmcnt(12)")
                    mm(n)
            for n in range(12, 16):
                a(f"s_waitcnt lgkmcnt({3*(15-n)})")
                mm(n)
            if not isv: a(f"s_branch {LD}")
        a(f"""
        {LD}:
        s_nop 7
        v_pk_mul_f32 v[104:105], v[104:105], {s(T+8,2)} op_sel_hi:[1,0]
        v_pk_mul_f32 v[106:107], v[106:107], {s(T+8,2)} op_sel_hi:[1,0]
        v_cvt_pk_bf16_f32 v108, v104, v105
        v_cvt_pk_bf16_f32 v109, v106, v107
        s_nop 1
        v_permlane32_swap_b32 v108, v110
        v_permlane32_swap_b32 v109, v111
        s_mov_b32 exec_hi, 0
        global_store_dwordx4 v101, v[108:111], {s(S_WS,2)} sc1
        s_mov_b32 exec_hi, -1
        """)

    def phi(self, R):
        a = self.a
        TMP = 80
        a(f"s_mov_b32 {s(T)}, {f32(LOG2E)}")
        a(f"s_mov_b32 {s(T+2)}, {f32(1e-6)}")
        for i in range(0, 16, 2): a(f"v_pk_fma_f32 {v(TMP+i,2)}, {v(R+i,2)}, {s(T,2)}, v[18:19] op_sel_hi:[1,0,0]")
        for i in range(16): a(f"v_exp_f32 {v(TMP+i)}, {v(TMP+i)} clamp")
        for i in range(16): a(f"v_max_f32 {v(R+i)}, {s(T+2)}, {v(R+i)}")
        for i in range(0, 16, 2): a(f"v_pk_add_f32 {v(R+i,2)}, {v(R+i,2)}, {v(TMP+i,2)}")
        for i in range(0, 16, 2): a(f"v_cvt_pk_bf16_f32 {v(R+i//2)}, {v(R+i)}, {v(R+i+1)}")

    def roleB(self):
        a = self.a
        RB, HP, WB = S_HI, S_LO, S_W3
        SXM, SWM, SXO, SWO = U, U+1, U+2, U+3
        VX, VW, VO = 26, 240, 28
        XA, WA = 244, 248
        AK, AV, AQ = 32, 48, 64
        F = (96, 160)
        XF = 96
        X, Y = 224, 232
        V_L128, V_SX, V_L4, V_F4 = 10, 11, 12, 15
        VL, SL, SLO, SF1 = 80, 96, 60, 62
        HI, LOW = "s_setprio 3", f"s_setprio {self.o.get('bmm', 0)}"
        a.c("=========================== role B ===========================")
        a("L_roleB:")
        self.inB = True
        Lj = a.label("b")
        a(f"""
        s_lshl_b32 {s(T)}, {s(S_C)}, 8
        s_add_u32 {s(T)}, {s(T)}, {WS_ACC}
        v_lshl_add_u32 v24, v0, 2, {s(T)}
        s_mul_i32 {s(T)}, {s(S_C)}, {KVREC}
        s_add_u32 {s(T)}, {s(T)}, {WS_KV}
        v_add_u32 v101, {s(T)}, {v(V_L16)}
        v_cmp_eq_u32 vcc, 32, v0
        v_mov_b32 v112, 0x3f803f80
        s_nop 0
        v_cndmask_b32 v112, 0, v112, vcc
        v_mov_b32 v113, v112
        v_mov_b32 v114, v112
        v_mov_b32 v115, v112
        """)
        for u in range(4): a(f"v_add_u32 {v(VL+u)}, {8192*u}, v3")
        a(f"s_lshl_b32 {s(T)}, {s(S_LO)}, 6")
        a(f"v_xor_b32 v20, {s(T)}, v2")
        for u in range(3):
            a(f"""
            s_add_u32 {s(T)}, {s(S_J)}, {2+2*u}
            s_and_b32 {s(T)}, {s(T)}, 6
            s_add_u32 {s(T)}, {s(T)}, {s(S_LO)}
            s_lshl_b32 {s(SL+u)}, {s(T)}, 10
            s_lshl_b32 {s(T)}, {s(T)}, 13
            v_add_u32 {v(VL+4+u)}, {s(T)}, v20
            """)
        a(f"""
        s_lshl_b32 {s(SL+3)}, {s(S_LO)}, 12
        s_lshl_b32 {s(SL+4)}, {s(S_G)}, 16
        s_lshl_b32 {s(SLO)}, {s(S_J)}, 7
        s_lshl_b32 {s(T)}, {s(S_LO)}, 15
        s_add_u32 {s(SLO)}, {s(SLO)}, {s(T)}
        """)
        ta = self.o.get("ta", 0)
        if ta:
            a.c("first touch (one dword per line) of this CU's share of what the die reads for the A-side projections")
            a(f"""
            s_and_b32 {s(T)}, {s(S_G)}, 3
            s_lshl_b32 {s(T+1)}, {s(T)}, 10
            s_lshl_b32 {s(T+2)}, {s(S_J)}, 7
            s_add_u32 {s(T+1)}, {s(T+1)}, {s(T+2)}
            s_lshl_b32 {s(T+2)}, {s(S_LO)}, 18
            s_add_u32 {s(T+1)}, {s(T+1)}, {s(T+2)}
            s_lshl_b32 {s(T+2)}, {s(S_C)}, 13
            s_lshl_b32 {s(T)}, {s(T)}, 2
            s_lshr_b32 {s(T+3)}, {s(S_J)}, 1
            s_add_u32 {s(T)}, {s(T)}, {s(T+3)}
            s_lshl_b32 {s(T)}, {s(T)}, 10
            s_cmp_eq_u32 {s(S_W)}, 5
            s_cselect_b32 {s(T)}, {s(T+2)}, {s(T)}
            s_cmp_ge_u32 {s(S_W)}, 6
            s_cselect_b32 {s(T)}, {s(T+1)}, {s(T)}
            s_cselect_b32 {s(T+1)}, 12, 7
            v_lshlrev_b32 v19, {s(T+1)}, v0
            v_add_u32 v19, {s(T)}, v19
            """)
        a("s_waitcnt lgkmcnt(0)")
        if ta:
            Lt4, Lt5, Lte = a.label("t"), a.label("t"), a.label("t")
            a(f"""
            s_cmp_eq_u32 {s(S_W)}, 4
            s_cbranch_scc1 {Lt4}
            s_cmp_eq_u32 {s(S_W)}, 5
            s_cbranch_scc1 {Lt5}
            {f"global_load_dword v19, v19, {s(S_WQ,2)}" if ta != 4 else ""}
            s_branch {Lte}
            {Lt5}:
            {f"global_load_dword v19, v19, {s(S_AX,2)}" if ta == 1 else ""}
            s_branch {Lte}
            {Lt4}:
            s_bitcmp1_b32 {s(S_J)}, 0
            s_cselect_b32 {s(S_WK)}, {s(S_WV)}, {s(S_WK)}
            s_cselect_b32 {s(S_WK+1)}, {s(S_WV+1)}, {s(S_WK+1)}
            s_mov_b64 exec, 0xff
            {f"global_load_dword v19, v19, {s(S_WK,2)}" if ta in (1, 3) else ""}
            s_mov_b64 exec, -1
            {Lte}:
            """)
        Lz = a.label("b")
        a.c("clear this CU's share of the state accumulators (ordered before the K/V flag)")
        a(f"""
        s_cmp_lg_u32 {s(S_W)}, 4
        s_cbranch_scc1 {Lz}
        global_store_dword v24, {v(V_ZERO)}, {s(S_WS,2)} sc1
        s_mov_b32 exec_lo, {-1 if self.o.get("pre", 1) == 1 else 0}
        s_mov_b32 exec_hi, 0xff
        global_store_dwordx4 v101, v[112:115], {s(S_WS,2)} sc1
        s_mov_b64 exec, -1
        {Lz}:
        s_lshr_b32 {s(T)}, {s(S_C)}, 2
        s_lshl_b32 {s(T)}, {s(T)}, 7
        s_and_b32 {s(T+1)}, {s(S_C)}, 3
        s_lshl_b32 {s(T+1)}, {s(T+1)}, 2
        s_add_u32 {s(T)}, {s(T)}, {s(T+1)}
        s_add_u32 {s(T)}, {s(T)}, {WS_F1}
        s_add_u32 {s(S_WV)}, {s(S_WS)}, {s(T)}
        s_addc_u32 {s(S_WV+1)}, {s(S_WS+1)}, 0
        s_load_dword s53, {s(S_WV,2)}, 0
        s_load_dword {s(S_TAG)}, {s(S_WS,2)}, {WS_G}
        """)
        a(f"s_getpc_b64 {s(S_PC,2)}")
        self.stamp(1)
        a("s_barrier")
        self.stamp(1, "hd")
        def setup():
            a.c("---- B-side setup, all in the shadow of the head")
            a(f"""
            v_mov_b32 {v(VX)}, v2
            v_xor_b32 {v(VX+1)}, 64, v2
            v_add_u32 {v(VX+1)}, 8192, {v(VX+1)}
            v_mul_u32_u24 {v(VW)}, 3072, v8
            v_add_u32 {v(VW)}, {v(VW)}, v9
            v_mov_b32 {v(VO)}, v3
            """)
            for i in range(1, 4):
                a(f"v_add_u32 {v(VW+i)}, {24576*i}, {v(VW)}")
                a(f"v_add_u32 {v(VO+i)}, {8192*i}, v3")
            self.xfrag_addr(XA, RB, 20)
            self.wfrag_addr(WA, 20)
            self.tail_addr(L_X, 0, WS_OB, 0, 20)
            a(f"""
            s_lshl_b32 {s(T)}, {s(S_W3)}, 13
            s_add_u32 {s(T)}, {s(T)}, {L_W}
            v_lshrrev_b32 v20, 5, v0
            v_lshlrev_b32 v20, 2, v20
            v_and_b32 v21, 7, v0
            v_xor_b32 v20, v20, v21
            v_and_b32 v22, 31, v0
            v_lshl_add_u32 v22, v22, 8, {s(T)}
            v_lshl_add_u32 v9, v20, 4, v22
            v_xor_b32 v14, 16, v9
            v_xor_b32 v15, 32, v9
            v_xor_b32 v17, 48, v9
            s_lshl_b32 {s(T)}, {s(S_HI)}, 14
            s_lshl_b32 {s(T+1)}, {s(S_LO)}, 12
            s_add_u32 {s(T)}, {s(T)}, {s(T+1)}
            s_add_u32 {s(T)}, {s(T)}, {L_W}
            v_lshrrev_b32 v20, 3, v0
            v_lshlrev_b32 v21, 1, v21
            v_xor_b32 v21, v21, v20
            v_lshl_add_u32 v20, v20, 8, {s(T)}
            v_lshl_add_u32 v3, v21, 4, v20
            v_xor_b32 v24, 16, v3
            """)
            a(f"""
            s_lshl_b32 {s(SXM)}, {s(WB)}, 11
            s_lshl_b32 {s(SWM)}, {s(WB)}, 12
            s_lshl_b32 {s(SXO)}, {s(S_G)}, 16
            s_lshl_b32 {s(T)}, {s(WB)}, 14
            s_add_u32 {s(SXO)}, {s(SXO)}, {s(T)}
            s_mul_i32 {s(SWO)}, {s(HP)}, {32*3072}
            s_lshl_b32 {s(T)}, {s(S_J)}, 7
            s_add_u32 {s(SWO)}, {s(SWO)}, {s(T)}
            s_mov_b32 {s(T)}, {f32(1e-6)}
            s_mov_b32 {s(T+1)}, {f32(1e-6)}
            s_mov_b32 {s(T+2)}, 0x3f803f80
            s_mov_b32 {s(T+3)}, 0x3f803f80
            """)
            for i in range(0, 16, 2):
                a(f"v_mov_b64 {v(AK+i,2)}, {s(T,2)}")
                a(f"v_mov_b64 {v(AQ+i,2)}, {s(T,2)}")
                if i < 4: a(f"v_mov_b64 {v(X+i,2)}, {s(T+2,2)}")
            a(f"""
            v_mov_b32 v18, {f32(-1e-6*LOG2E)}
            v_mov_b64 v[252:253], -1
            v_mov_b64 v[254:255], -1
            v_mov_b32 v25, 63
            v_mul_u32_u24 v250, 12288, v0
            v_lshlrev_b32 v251, 12, v0
            v_lshlrev_b32 {v(V_L128)}, 7, v0
            s_lshl_b32 {s(T)}, {s(WB)}, 10
            s_add_u32 {s(T)}, {s(T)}, {L_MISC+0x1000}
            v_add_u32 {v(V_SX)}, {s(T)}, {v(V_L16)}
            v_xor_b32 {v(X+4)}, 2048, {v(V_SX)}
            v_and_b32 v20, 15, v0
            v_bfe_u32 v21, v0, 4, 1
            v_lshlrev_b32 v22, 11, v21
            v_lshl_add_u32 {v(X+5)}, v20, 2, v22
            v_lshrrev_b32 v22, 5, v0
            v_lshl_add_u32 {v(X+6)}, v22, 8, {v(X+5)}
            s_lshl_b32 {s(T)}, {s(RB)}, 9
            v_add_u32 {v(X+6)}, {s(T)}, {v(X+6)}
            v_and_b32 v20, 31, v0
            v_min_u32 v20, 16, v20
            v_lshlrev_b32 v20, 6, v20
            v_lshl_add_u32 {v(V_L4)}, v22, 4, v20
                """)
            self.add64(SF1, S_WS, WS_F1)
        def tag():
            a(f"""
            s_waitcnt lgkmcnt(0)
            s_add_u32 {s(S_TAG)}, {s(S_TAG)}, 0x9e3779b9
            v_mov_b32 {v(V_TAG)}, {s(S_TAG)}
            """)
        def touch(spec):
            kind, lo, hi = spec
            if kind == "x":
                m = sum(1 << e for e in range(lo, hi)) * 0x01010101
                a(f"s_lshl_b32 {s(T)}, {s(S_C)}, 13")
                self.add64(T+2, S_BX, s(T))
                mlo = mhi = m; vr = V_L128
            else:
                base, rs, col = {"q": (S_WQKV, 3072, 0), "k": (S_WQKV, 3072, 1024), "v": (S_WQKV, 3072, 2048),
                                 "a": (S_AWO, 1024, 0), "b": (S_BWO, 1024, 0)}[kind]
                h = lo // 4
                m = sum(0xffff << (16*(e - 4*h)) for e in range(lo, hi))
                mlo, mhi = m & 0xffffffff, m >> 32
                a(f"""
                s_and_b32 {s(T)}, {s(S_G)}, 3
                s_mul_i32 {s(T)}, {s(T)}, {rs}
                s_lshl_b32 {s(T+1)}, {s(S_J)}, 7
                s_add_u32 {s(T)}, {s(T)}, {s(T+1)}
                s_add_u32 {s(T)}, {s(T)}, {h*256*rs + col}
                """)
                self.add64(T+2, base, s(T))
                vr = 250 if rs == 3072 else 251
            a(f"s_mov_b32 exec_lo, {mlo:#x}")
            a(f"s_mov_b32 exec_hi, {mhi:#x}")
            a(f"global_load_dword v19, {v(vr)}, {s(T+2,2)}")
            a("s_mov_b64 exec, -1")
        def touch_round(specs):
            Le = a.label("t")
            for w, sp in enumerate(specs):
                Ln = a.label("t")
                if w < 3:
                    a(f"s_cmp_lg_u32 {s(WB)}, {w}")
                    a(f"s_cbranch_scc1 {Ln}")
                if sp: touch(sp)
                else: a(f"global_load_dword v19, {v(V_ZERO)}, {s(S_WQKV,2)}")
                if w < 3: a(f"s_branch {Le}")
                a(f"{Ln}:")
            a(f"{Le}:")
        M4, M5, Mc, Ms = a.label("b"), a.label("b"), a.label("b"), a.label("b")
        self.stamp(2, "hd")
        a(f"""
        s_cmp_lt_u32 {s(S_W)}, 6
        s_cbranch_scc1 {M4}
        """)
        a.c("---- waves 6, 7 stream the rest of x and wq, one k-slot at a time")
        if ta == 4: a(f"global_load_dword v19, v19, {s(S_WQ,2)}")
        Ll = a.label("ld")
        a(f"""
        s_mov_b32 {s(T+6)}, 0
        s_lshl_b32 {s(T+7)}, {s(S_W3)}, 2
        {Ll}:
        s_add_u32 {s(T)}, {s(S_KC0)}, {s(T+6)}
        s_and_b32 {s(T)}, {s(T)}, 7
        s_lshl_b32 {s(T+1)}, {s(T)}, 16
        s_add_u32 {s(T+1)}, {s(T+1)}, {s(SLO)}
        """)
        self.add64(T+2, S_WQ, s(T+1))
        a(f"s_lshl_b32 {s(T)}, {s(T)}, 7")
        a(f"s_add_u32 {s(T)}, {s(T)}, {s(SL+4)}")
        self.add64(T+4, S_AX, s(T))
        for u in range(4): self.emit(self.dma(VL+u, T+2, SL+3, L_W + u*1024))
        for u in range(3):
            a(f"s_mov_b32 m0, {s(SL+u)}")
            a(f"s_add_u32 {s(SL+u)}, {s(SL+u)}, 8192")
            a(f"global_load_lds_dwordx4 {v(VL+4+u)}, {s(T+4,2)}")
        a(f"""
        s_add_u32 m0, {s(T+7)}, {L_MK}
        s_mov_b64 exec, 1
        global_load_lds_dword {v(V_ZERO)}, {s(S_PC,2)}
        s_mov_b64 exec, -1
        s_add_u32 {s(T+7)}, {s(T+7)}, 16
        s_add_u32 {s(SL+3)}, {s(SL+3)}, 8192
        s_add_u32 {s(T+6)}, {s(T+6)}, 1
        """)
        if self.o.get("hb"):
            Lh = a.label("h")
            a(f"s_cmp_lg_u32 {s(T+6)}, {self.o['hb']}")
            a(f"s_cbranch_scc1 {Lh}")
            a(f"v_mov_b32 v21, {L_MK+112}")
            self.await_(20, vaddr=21, val="1", sleep=0)
            a(f"{Lh}:")
        a(f"""
        s_waitcnt vmcnt(48)
        s_cmp_lt_u32 {s(T+6)}, 8
        s_cbranch_scc1 {Ll}
        {M4}:
        """)
        self.stamp(3, "hd")
        a(f"s_cmp_lg_u32 {s(S_W)}, 4")
        a(f"s_cbranch_scc1 {M5}")
        a.c("---- wave 4: this CU's 16 x 16 piece of K or V")
        a("s_setprio 3")
        a(f"v_mov_b32 v102, {L_MK}")
        self.kv_setup()
        a(f"v_add_u32 v21, {L_MK-L_SYNC+128-16}, {v(V_ALL)}")
        self.stamp(4, "hd")
        self.kv_compute()
        self.stamp(6, "hd")
        a("ds_write_b32 v102, v102 offset:112")
        a.c("publish: only this wave writes the word, so adding the difference sets it to the tag")
        a(f"s_sub_u32 s53, {s(S_TAG)}, s53")
        a(f"s_add_u32 s53, s53, 0x9e3779b9")
        a("s_setprio 0")
        a("s_waitcnt vmcnt(0)")
        a(f"s_atomic_add s53, {s(S_WV,2)}, 0 glc")
        self.stamp(11)
        self.stamp(7, "hd")
        a(f"{M5}:")
        setup()
        tag()
        a(f"s_cmp_lg_u32 {s(S_W)}, 5")
        a(f"s_cbranch_scc1 {Mc}")
        a.c("---- wave 5: the first key tiles must have been published")
        a(f"""
        s_add_u32 {s(T)}, {s(S_XCD)}, 1
        s_lshl_b32 {s(T)}, {s(T)}, 3
        v_add_u32 v22, {s(T)}, v0
        v_and_b32 v22, 63, v22
        v_lshlrev_b32 v22, 7, v22
        v_mov_b32 v21, {L_MK+8}
        """)
        self.await_(20, vaddr=21, val="1", off=16*self.o.get("pw", 6), sleep=1)
        self.stamp(8, "hd")
        a("s_mov_b64 exec, 0xffff")
        self.poll4(22, SF1, 88, sleep=self.o.get("ps1", 1))
        self.stamp(9, "hd")
        a("s_mov_b64 exec, -1")
        a(f"{Mc}:")
        a("s_barrier")
        a(f"s_mov_b32 {s(S_EPOCH)}, 8")
        rb = self.o.get("rotB", 1)
        if rb == 0: a(f"s_mov_b32 {s(S_KC0)}, 0")
        if rb == 2:
            a(f"s_and_b32 {s(S_KC0)}, {s(S_G)}, 3")
            a(f"s_lshl_b32 {s(S_KC0)}, {s(S_KC0)}, 1")
        a(f"s_lshl_b32 {s(T)}, {s(WB)}, 11")
        self.add64(SF1, SF1, s(T))
        a(f"""
        s_lshl_b32 {s(T)}, {s(S_J)}, 12
        s_add_u32 {s(T)}, {s(T)}, {WS_F2}
        """)
        self.add64(8, S_WS, s(T))
        a(f"""
        s_lshl_b32 {s(T)}, {s(S_G)}, 1
        s_add_u32 {s(T)}, {s(T)}, {s(RB)}
        s_lshl_b32 {s(T)}, {s(T)}, 1
        s_lshr_b32 {s(T+1)}, {s(S_J)}, 2
        s_add_u32 {s(T+1)}, {s(T+1)}, {s(T)}
        s_mul_i32 {s(T+1)}, {s(T+1)}, {2*KVREC}
        s_add_u32 {s(T+1)}, {s(T+1)}, {WS_KV+C4_OFF}
        """)
        self.add64(10, S_WS, s(T+1))
        a(f"""
        s_add_u32 {s(T)}, {s(T)}, {s(HP)}
        s_mul_i32 {s(T)}, {s(T)}, {2*KVREC}
        s_add_u32 {s(T)}, {s(T)}, {WS_KV+C4_OFF}
        """)
        self.add64(12, S_WS, s(T))
        self.stamp(4)
        a("s_barrier")
        self.stamp(5)
        a("s_branch L_bodyB")
        a("L_cutB:")
        a("L_bodyB:")
        a(LOW)
        if self.o.get("noB"):
            a(f"ds_write_b32 {v(V_SLOT)}, v25 offset:48")
            a(f"s_mov_b32 {s(S_EPOCH)}, {E_CLR-1}")
            self.arrive(20)
            a("s_branch L_Bend")
        vm = []
        def vmwait(label):
            n = len(vm) - 1 - max(i for i, x in enumerate(vm) if x == label)
            a(f"s_waitcnt vmcnt({n})")
            return n
        def loads(st):
            G = []
            slot = L_W + (st % 4)*16384
            if st < 8:
                pre = [f"s_add_u32 {s(T)}, {s(S_KC0)}, {st}",
                       f"s_and_b32 {s(T)}, {s(T)}, 7",
                       f"s_lshl_b32 {s(T+1)}, {s(T)}, 7",
                       f"s_add_u32 {s(T+1)}, {s(T+1)}, {s(SXO)}",
                       f"s_add_u32 {s(T+2)}, {s(S_BX)}, {s(T+1)}",
                       f"s_addc_u32 {s(T+3)}, {s(S_BX+1)}, 0"]
                G.append(pre + self.dma(VX, T+2, SXM, L_X + st*8192))
                G.append(self.dma(VX+1, T+2, SXM, L_X + st*8192 + 1024))
                pre = [f"s_mul_i32 {s(T)}, {s(T)}, {64*3072}",
                       f"s_add_u32 {s(T)}, {s(T)}, {s(SWO)}",
                       f"s_lshl_b32 {s(T+1)}, {s(RB)}, 10",
                       f"s_add_u32 {s(T)}, {s(T)}, {s(T+1)}",
                       f"s_add_u32 {s(T)}, {s(T)}, 1024",
                       f"s_add_u32 {s(T+2)}, {s(S_WQKV)}, {s(T)}",
                       f"s_addc_u32 {s(T+3)}, {s(S_WQKV+1)}, 0"]
                for i in range(4): G.append((pre if i == 0 else []) + self.dma(VW+i, T+2, SWM, slot + i*1024))
            elif st < 12:
                pre = [f"s_add_u32 {s(T)}, {s(S_KC0)}, {s(RB)}",
                       f"s_add_u32 {s(T)}, {s(T)}, {2*(st-8)}",
                       f"s_and_b32 {s(T)}, {s(T)}, 7",
                       f"s_mul_i32 {s(T)}, {s(T)}, {64*3072}",
                       f"s_add_u32 {s(T)}, {s(T)}, {s(SWO)}",
                       f"s_add_u32 {s(T+2)}, {s(S_WQKV)}, {s(T)}",
                       f"s_addc_u32 {s(T+3)}, {s(S_WQKV+1)}, 0"]
                for i in range(4): G.append((pre if i == 0 else []) + self.dma(VW+i, T+2, SWM, slot + i*1024))
            else:
                base, L = (S_AWO, L_X) if st < 16 else (S_BWO, L_W)
                u = st % 4
                pre = [f"s_add_u32 {s(T)}, {s(S_G)}, {u}",
                       f"s_and_b32 {s(T)}, {s(T)}, 3",
                       f"s_lshl_b32 {s(T)}, {s(T)}, 2",
                       f"s_add_u32 {s(T)}, {s(T)}, {s(WB)}",
                       f"s_lshl_b32 {s(T)}, {s(T)}, 8",
                       f"s_add_u32 {s(T)}, {s(T)}, {s(S_J)}",
                       f"s_lshl_b32 {s(T)}, {s(T)}, 7",
                       f"s_add_u32 {s(T+2)}, {s(base)}, {s(T)}",
                       f"s_addc_u32 {s(T+3)}, {s(base+1)}, 0"]
                for i in range(4): G.append((pre if i == 0 else []) + self.dma(VO+i, T+2, SWM, L + u*16384 + i*1024))
            return G
        done = set()
        def put(st, g):
            thr = self.o.get("thr", 5) if st < 12 else self.o.get("wthr", 4)
            done.add(st)
            if thr: g = [x if x != "s_nop 0" else f"s_waitcnt vmcnt({thr-1})" for x in g]
            self.emit(g); vm.append(st)
        def reads(st):
            R = []; B = F[st % 2]; slot = (st % 4)*16384
            if st < 8:
                for t in range(4):
                    R.append(f"ds_read_b128 {v(B+12*t,4)}, {v(XA+t)} offset:{st*8192}")
                    for k in range(2):
                        for sx in range(2):
                            R.append(f"ds_read_b64_tr_b16 {v(B+12*t+4+4*k+2*sx,2)}, {v(WA)} offset:{slot + k*8192 + t*2048 + sx*256}")
            else:
                for t in range(8):
                    R.append(f"ds_read_b128 {v(B+8*t,4)}, {v(XA+(t&3))} offset:{(2*(st-8)+t//4)*8192}")
                    for sx in range(2):
                        R.append(f"ds_read_b64_tr_b16 {v(B+8*t+4+2*sx,2)}, {v(WA)} offset:{slot + t*2048 + sx*256}")
            return R
        def mfmas(st):
            M = []; B = F[st % 2]
            if st < 8:
                for t in range(4):
                    for k, acc in enumerate((AK, AV)):
                        c = "0" if (acc == AV and st == 0 and t == 0) else v(acc,16)
                        M.append(f"v_mfma_f32_32x32x16_bf16 {v(acc,16)}, {v(B+12*t,4)}, {v(B+12*t+4+4*k,4)}, {c}")
            else:
                for t in range(8):
                    M.append(f"v_mfma_f32_32x32x16_bf16 {v(AQ,16)}, {v(B+8*t+4,4)}, {v(B+8*t,4)}, {v(AQ,16)}")
            return M
        def arrive():
            a(HI); self.arrive(20); a(LOW)
        def iteration(i, after=None):
            M = mfmas(i)
            R = reads(i+1) if i < 11 else []
            G = [(st, g) for st in self.o.get("sched", {9: [12], 10: [13], 11: [14]}).get(i, [i+4] if i < 8 else []) for g in loads(st)]
            Lok = a.label("ok")
            self.stamp(i+1, "it")
            a(f"ds_read_b32 v21, {v(V_ALL)}")
            a("s_waitcnt lgkmcnt(2)")
            a(M[0])
            a(f"""
            s_waitcnt lgkmcnt(0)
            {HI}
            v_cmp_gt_u32 vcc, {s(S_EPOCH)}, v21
            s_cmp_eq_u64 vcc, 0
            s_cbranch_scc1 {Lok}
            """)
            self.await_(21)
            a(f"{Lok}:")
            a(LOW)
            if i == self.o.get("fi", 8) + 1:
                Lf = a.label("b")
                a(f"s_cmp_lg_u32 {s(WB)}, 0")
                a(f"s_cbranch_scc1 {Lf}")
                a(f"s_lshl_b32 {s(T)}, {s(S_G)}, 7")
                self.add64(T+2, 8, s(T))
                a("s_mov_b64 exec, 1")
                a(f"global_store_dword {v(V_ZERO)}, {v(V_TAG)}, {s(T+2,2)} sc1")
                a("s_mov_b64 exec, -1")
                a(f"{Lf}:")
                self.stamp(7)
            nr = -(-len(R) // 5); ng = -(-len(G) // 5)
            for k in range(1, 8):
                if k <= 5:
                    for x in R[(k-1)*nr:k*nr]: a(x)
                    for st, g in G[(k-1)*ng:k*ng]: put(st, g)
                if k == 6 and i < 11:
                    if i < 6: self.stamp(2*i+1, "vm")
                    if i == self.o.get("fi", 8):
                        vmwait("part")
                        a(f"s_mov_b32 {s(S_EPOCH)}, {E_CLR-1}")
                    elif i + 2 <= 11 and i < self.o.get("fi", 8): vmwait(i+2)
                    if i < 6: self.stamp(2*i+2, "vm")
                    arrive()
                a(M[k])
            if i in self.o.get("tr", {}):
                touch_round(self.o["tr"][i]); vm.append("t")
            if after: after()
        a.c("---- B: k,v projections")
        a("s_mov_b64 exec, 0xffff")
        a(f"global_load_dwordx4 v[88:91], {v(V_L128)}, {s(SF1,2)} sc1"); vm.append("poll")
        a("s_mov_b64 exec, -1")
        G0 = [(st, g) for st in (0, 1) for g in loads(st)]
        for st, g in G0[:2]: put(st, g)
        Lr = a.label("b")
        vmwait("poll")
        a(HI)
        a("s_mov_b64 exec, 0xffff")
        self.check4(88)
        a(f"s_cbranch_scc1 {Lr}")
        self.poll4(V_L128, SF1, 88, sleep=4)
        a(f"{Lr}:")
        a("s_mov_b64 exec, -1")
        a(f"ds_write_b32 {v(V_SLOT)}, v25 offset:48")
        a(LOW)
        for st, g in G0[2:]: put(st, g)
        vmwait(0)
        a(HI)
        self.arrive(20)
        pro = self.o.get("pro", 4)
        if pro >= 3:
            for g in loads(2): put(2, g)
        self.await_(21)
        self.stamp(6)
        self.emit(reads(0))
        vmwait(1)
        self.arrive(20)
        a(LOW)
        if pro >= 4:
            for g in loads(3): put(3, g)
        if -1 in self.o.get("tr", {}):
            touch_round(self.o["tr"][-1]); vm.append("t")
        def clr():
            a.c("mark the A-side output images of the matching wave as not yet written")
            a(f"s_sub_u32 {s(T)}, {s(S_WS)}, {WS_OB-WS_OA}")
            a(f"s_subb_u32 {s(T+1)}, {s(S_WS+1)}, 0")
            a(f"global_store_dwordx4 {v(self.V_IMG)}, v[252:255], {s(T,2)} sc1")
            a(f"global_store_dwordx4 {v(self.V_IMG)}, v[252:255], {s(T,2)} offset:1024 sc1")
            vm.append("clr"); vm.append("clr")
        for i in range(8): iteration(i, clr if i == self.o.get("ci", 7) else None)
        a.c("---- B: phi(k), partial state: rows (head, e) x columns (head, d), and the column sums z")
        a(f"""
        s_lshl_b32 {s(T)}, {s(S_J)}, 1
        s_add_u32 {s(T)}, {s(T)}, {s(HP)}
        s_lshl_b32 {s(T)}, {s(T)}, 12
        s_add_u32 {s(T)}, {s(T)}, {WS_ACC}
        """)
        self.add64(T+4, S_WS, s(T))
        a("s_nop 3")
        a(HI)
        self.phi(AK)
        for i in range(8): a(f"v_cvt_pk_bf16_f32 {v(AV+i)}, {v(AV+2*i)}, {v(AV+2*i+1)}")
        D0, D1 = F[1], F[1]+16
        LK, LJ, LK2, LJ2 = a.label("k1"), a.label("kj"), a.label("k2"), a.label("kj2")
        a(f"""
        {LOW}
        s_nop 0
        v_mfma_f32_32x32x16_bf16 {v(D0,16)}, {v(AV,4)}, {v(AK,4)}, 0
        v_mfma_f32_32x32x16_bf16 {v(D0,16)}, {v(AV+4,4)}, {v(AK+4,4)}, {v(D0,16)}
        v_mfma_f32_32x32x16_bf16 {v(D1,16)}, {v(X,4)}, {v(AK,4)}, 0
        v_mfma_f32_32x32x16_bf16 {v(D1,16)}, {v(X,4)}, {v(AK+4,4)}, {v(D1,16)}
        s_nop 4
        {HI}
        s_mov_b32 exec_lo, 0xffff
        s_mov_b32 exec_hi, 0xffff
        s_cmp_eq_u32 {s(RB)}, 0
        s_cbranch_scc0 {LK}
        ds_write_b128 {v(V_SX)}, {v(D0+4,4)}
        s_not_b64 exec, exec
        ds_write_b128 {v(V_SX)}, {v(D0+12,4)}
        s_branch {LJ}
        {LK}:
        ds_write_b128 {v(V_SX)}, {v(D0,4)}
        s_not_b64 exec, exec
        ds_write_b128 {v(V_SX)}, {v(D0+8,4)}
        {LJ}:
        s_mov_b64 exec, -1
        """)
        self.softbar(20)
        a(f"""
        ds_read_b128 {v(AK,4)}, {v(X+4)}
        s_mov_b32 exec_lo, 0xffff
        s_mov_b32 exec_hi, 0xffff
        s_cmp_eq_u32 {s(RB)}, 0
        s_waitcnt lgkmcnt(0)
        s_cbranch_scc0 {LK2}
        """)
        for rbv, lab in ((0, None), (1, LK2)):
            if lab: a(f"{lab}:")
            for h in range(2):
                for i in (0, 2): a(f"v_pk_add_f32 {v(AK+i,2)}, {v(AK+i,2)}, {v(D0+8*h+4*rbv+i,2)}")
                if h == 0: a("s_not_b64 exec, exec")
            if not lab: a(f"s_branch {LJ2}")
        a(f"{LJ2}:")
        a("s_mov_b64 exec, -1")
        for i in range(4):
            a(f"global_atomic_add_f32 {v(X+6)}, {v(AK+i)}, {s(T+4,2)} offset:{64*i} sc1"); vm.append("part")
        a("s_mov_b32 exec_hi, 0")
        a(f"global_atomic_add_f32 {v(X+5)}, {v(D1)}, {s(T+4,2)} offset:1024 sc1"); vm.append("part")
        a("s_mov_b32 exec_hi, -1")
        a(LOW)
        self.stamp(3)
        a.c("---- B: q projection")
        for i in range(8, 12): iteration(i)
        todo = [st for st in range(12, 20) if st not in done]
        def more(n=1):
            for _ in range(n):
                if todo:
                    st = todo.pop(0)
                    for g in loads(st): put(st, g)
        self.stamp(1, "hop")
        a("s_nop 8")
        more()
        a(HI); self.phi(AQ); a(LOW)
        more(self.o.get("pre2", 0))
        self.stamp(2, "hop")
        a.c("---- B: the summed state, the normalised output images")
        D0, D1 = AK, AV
        a(f"""
        s_lshl_b32 {s(T)}, {s(S_J)}, 1
        s_add_u32 {s(T)}, {s(T)}, {s(HP)}
        s_lshl_b32 {s(T)}, {s(T)}, 12
        s_add_u32 {s(T)}, {s(T)}, {WS_ACC}
        """)
        self.add64(T+4, S_WS, s(T))
        LR = a.label("nr")
        a(f"""
        {HI}
        s_cmp_lg_u32 {s(WB)}, 1
        s_cbranch_scc1 {LR}
        s_mov_b32 exec_hi, 0
        """)
        self.poll(V_L128, 8, [0], 21, sleep=8)
        a("s_mov_b32 exec_hi, -1")
        a(f"{LR}:")
        self.softbar(20, sleep=2)
        a(LOW)
        self.stamp(3, "hop")
        self.stamp(8)
        for i in range(4):
            a(f"global_load_dwordx4 {v(XF+4*i,4)}, {v(V_L4)}, {s(T+4,2)} offset:{2048*(i//2)+32*(i%2)} sc1"); vm.append("state")
        more()
        vmwait("state")
        self.stamp(4, "hop")
        a(HI)
        for i in range(8): a(f"v_cvt_pk_bf16_f32 {v(XF+i)}, {v(XF+2*i)}, {v(XF+2*i+1)}")
        a(f"""
        s_nop 1
        v_mfma_f32_32x32x16_bf16 {v(D0,16)}, {v(XF,4)}, {v(AQ,4)}, 0
        v_mfma_f32_32x32x16_bf16 {v(D1,16)}, {v(XF+4,4)}, {v(AQ+4,4)}, 0
        s_nop 7
        s_nop 3
        v_add_f32 {v(D0+8)}, {f32(1e-6)}, {v(D0+8)}
        v_add_f32 {v(D1+8)}, {f32(1e-6)}, {v(D1+8)}
        """)
        self.normalize([(D0, D0+8), (D1, D1+8)], 80, guard=False)
        vm.append("ob"); vm.append("ob")
        a(LOW)
        self.stamp(5, "hop")
        more()
        vmwait("ob")
        self.count(10)
        self.stamp(6, "hop")
        self.stamp(12)
        while any(st < 16 for st in todo): more()
        more()
        vmwait(15)
        arrive()
        more()
        a(HI)
        self.await_(20)
        self.outproj_wfrags()
        self.arrive(20)
        a(LOW)
        more()
        if self.o.get("touch", 0):
            a(HI)
            a("v_lshlrev_b32 v22, 10, v0")
            a(LOW)
            a("s_mov_b32 exec_hi, 0")
            a(f"global_load_dword v22, v22, {s(S_OUTB,2)}")
            a("s_mov_b32 exec_hi, -1")
        self.count_peek(12, T+8)
        more(4)
        self.stamp(7, "hop")
        self.count_wait(12, T+8, 8)
        a(HI)
        self.await_(20)
        self.stamp(8, "hop")
        a.c("---- B: the group's o_B images go to LDS for the A waves")
        a(f"""
        s_lshl_b32 {s(SWM)}, {s(RB)}, 15
        s_lshl_b32 {s(SWO)}, {s(HP)}, 14
        s_lshl_b32 {s(T)}, {s(S_G)}, 13
        s_sub_u32 {s(SWO)}, {s(SWO)}, {s(T)}
        """)
        ot = self.o.get("othr", 6)
        for p in range(4):
            a(f"""
            s_add_u32 {s(T)}, {s(S_J)}, {p}
            s_and_b32 {s(T)}, {s(T)}, 3
            s_lshl_b32 {s(T)}, {s(T)}, 12
            s_add_u32 {s(T+1)}, {s(T)}, {s(SWO)}
            s_and_b32 {s(T+1)}, {s(T+1)}, 0x7fff
            s_add_u32 m0, {s(SWM)}, {s(T+1)}
            s_add_u32 {s(T)}, {s(T)}, {WS_OB-WS_OA}
            """)
            self.add64(T+2, S_IMG, s(T))
            for k in range(4):
                a(f"s_waitcnt vmcnt({ot-1})")
                a(f"global_load_lds_dwordx4 {v(V_L16)}, {s(T+2,2)} offset:{k*1024} sc1")

        a("L_Bend:")
        for p in range(4):
            a(f"s_add_u32 {s(T)}, {s(S_J)}, {p}")
            a(f"s_and_b32 {s(T)}, {s(T)}, 3")
            a(f"s_lshl_b32 {s(T)}, {s(T)}, 12")
            self.add64(8+2*p, S_IMG, s(T))
        a(f"s_mov_b32 {s(S_PEND)}, 15")
        a(f"s_mov_b32 {s(T+9)}, 0")
        a(f"v_add_u32 v21, -16, {v(V_ALL)}")
        a(f"s_mul_i32 {s(T)}, {s(S_G)}, {8*KVREC}")
        a(f"s_add_u32 {s(T)}, {s(T)}, {WS_KV+C4_OFF+32}")
        self.add64(T+4, S_WS, s(T))
        a(HI)
        a("s_waitcnt vmcnt(0) lgkmcnt(0)")
        self.stamp(9)
        self.stamp(9, "hop")
        a.c("tell the group when this CU is about to publish (a timing hint only)")
        Ln = a.label("b")
        a(f"s_cmp_lg_u32 {s(WB)}, 1")
        a(f"s_cbranch_scc1 {Ln}")
        self.await_(20, vaddr=21, val=str(E_CLR), sleep=self.o.get("aws", 1))
        self.count(T+4)
        a(f"{Ln}:")
        a("s_barrier")
        a.c("every wave of the grid has used this launch's tag by now: advance the generation word")
        Lg = a.label("b")
        a(f"""
        s_lshl_b32 {s(T)}, s2, 2
        s_add_u32 {s(T)}, {s(T)}, {s(WB)}
        s_cmp_lg_u32 {s(T)}, 0
        s_cbranch_scc1 {Lg}
        s_mov_b64 exec, 1
        global_store_dword {v(V_ZERO)}, {v(V_TAG)}, {s(S_WS,2)} offset:{WS_G} sc1
        s_mov_b64 exec, -1
        {Lg}:
        """)
        a.c("start fetching only when the whole group is about to publish (reads that meet the writes are slow)")
        for i in range(0, 32, 2): a(f"v_mov_b64 {v(96+i,2)}, 0")
        a(f"v_and_b32 v22, 4, v0")
        a(f"v_lshl_add_u32 v22, v22, 2, v21")
        Ln = a.label("b")
        a(f"s_cmp_lg_u32 {s(WB)}, 1")
        a(f"s_cbranch_scc1 {Ln}")
        a("s_waitcnt lgkmcnt(0)")
        a(f"s_add_u32 {s(T+8)}, {s(T+11)}, 1")
        self.count_wait(T+4, T+8, 8, sleep=self.o.get("anns", 0))
        a(f"{Ln}:")
        a(f"s_mov_b32 {s(S_EPOCH)}, 38")
        self.arrive(20)
        a("v_mov_b32 v19, 40")
        self.await_(20, vaddr=22, sleep=0)
        a(f"s_mov_b32 {s(S_EPOCH)}, 40")
        self.stamp(4)

    def finish(self):
        a = self.a
        a("L_fin:")
        if self.o.get("spin"):
            m = self.o.get("meas")
            a(f"s_mov_b32 s72, {self.o['spin']}")
            if m:
                if 13 in m[:2]:
                    a("s_waitcnt vmcnt(0)")
                    self.stamp(13)
                a(f"""
                s_waitcnt lgkmcnt(0)
                s_sub_u32 s70, s70, s68
                s_mul_i32 s70, s70, 10
                s_min_u32 s70, s70, 30000
                s_cmp_eq_u32 {s(S_W)}, {m[2]}
                s_cselect_b32 s70, s70, 0
                s_lshr_b32 s73, s2, 3
                s_cmp_eq_u32 s73, {m[3]}
                s_cselect_b32 s70, s70, 0
                s_add_u32 s72, s72, s70
                """)
            a(f"""
            L_spin:
            s_memrealtime s[66:67]
            s_waitcnt lgkmcnt(0)
            s_sub_u32 s66, s66, s64
            s_cmp_lt_u32 s66, s72
            s_cbranch_scc1 L_spin
            """)
        if self.stamps:
            a("s_waitcnt vmcnt(0)")
            self.stamp(13)
            a(f"""
            s_waitcnt lgkmcnt(0)
            s_cmp_ge_u32 {s(S_W)}, 4
            s_cselect_b32 {s(S_ST+28)}, {s(T+9)}, {s(S_ST+28)}
            s_lshl_b32 {s(T)}, s2, 3
            s_add_u32 {s(T)}, {s(T)}, {s(S_W)}
            s_lshl_b32 {s(T)}, {s(T)}, 6
            s_add_u32 {s(T)}, {s(T)}, {WS_STAMP}
            v_mov_b32 v20, {s(T)}
            """)
            for i in range(16): a(f"v_mov_b32 {v(32+i)}, {s(S_ST+2*i)}")
            for i in range(4): a(f"global_store_dwordx4 v20, {v(32+4*i,4)}, {s(S_WS,2)} offset:{16*i}")
        a("L_end:")
        a("s_endpgm")

    def build(self):
        self.entry()
        self.head_A()
        self.attn()
        self.tail_A()
        self.roleB()
        self.outproj()
        self.finish()
        self.check()
        self.retry()
        self.a("L_last:")
        self.attn_fallback("L_norm")
        L = self.a.lines
        ia, ib, ic = L.index("L_cutA:"), L.index("L_roleB:"), L.index("L_cutB:")
        self.a.lines = L[:ia] + L[ib:ic] + L[ia+1:ib] + L[ic+1:]
        return self.wrap()

    def wrap(self):
        hdr = open("cdna_kernels/%s.s.ref" % NAME).read().split("; Override launch")[0]
        return hdr + f"""; Override launch geometry by editing the next line (default: block=256,
; grid=ceil(out_elems/256), lds=0). Harness parses it; keep it on one line.
; @launch grid=(256,1,1) block=(512,1,1) lds={LDS_BYTES}
.amdgcn_target "amdgcn-amd-amdhsa--gfx950"
.text
.globl {NAME}_kernel
.p2align 8
.type {NAME}_kernel,@function
{NAME}_kernel:
""" + self.a.text() + f""".section .rodata,"a"
.p2align 6
.amdhsa_kernel {NAME}_kernel
  .amdhsa_next_free_vgpr 256
  .amdhsa_next_free_sgpr 102
  .amdhsa_accum_offset 256
  .amdhsa_group_segment_fixed_size 0
  .amdhsa_kernarg_size 88
  .amdhsa_user_sgpr_count 2
  .amdhsa_user_sgpr_kernarg_segment_ptr 1
  .amdhsa_system_sgpr_workgroup_id_x 1
  .amdhsa_dx10_clamp 0
.end_amdhsa_kernel
"""

if __name__ == "__main__":
    out = sys.argv[1]
    stamps = "--stamps" in sys.argv
    opts = {}
    for x in sys.argv[2:]:
        if "=" in x:
            k, val = x.split("=", 1); opts[k] = eval(val)
    open(out, "w").write(Gen(stamps=stamps, opts=opts).build())
```

```python
import sys, struct
from asmlib import *

NAME = "concat_heads__grouped_kv_mqa__linear_attn_block__prompt"
def f32(x): return "0x%08x" % struct.unpack("<I", struct.pack("<f", x))[0]
LOG2E = 1.4426950408889634

WS_G   = 0x0
WS_F1  = 0x8000
WS_ACC = 0x10000
WS_KV  = 0x20000
C4_OFF = 576
WS_F2  = 0x60000
WS_OA  = 0x100000
WS_OB  = 0x300000
WS_STAMP = 0x800000
KVREC = 640
KVTILE = 4*KVREC
L_X   = 0
L_W   = 0x10000
L_WKV = 0x20000
L_MISC= 0x24000
L_SYNC= L_MISC + 0x3f00
LDS_BYTES = 0x28000
SPIN_MAX = 200000

S_AX, S_WQ, S_WK, S_WV, S_AWO, S_BX, S_WQKV, S_BWO = 8, 10, 12, 14, 16, 18, 20, 22
S_OUT, S_WS = 24, 26
S_W, S_G, S_J, S_C, S_TAG, S_XCD, S_KC0, S_EPOCH = 28, 29, 30, 31, 32, 33, 34, 35
T = 36
S_HI, S_LO, S_W3 = 50, 51, 52
S_IMG = 54
S_OUTB = 56
S_EX = 58
S_PEND = 59
S_PC = 0
E_CLR = 30
L_MK = L_SYNC + 80
U = 4
S_ST = 64
V_L16, V_SLOT, V_ALL, V_TAG, V_ZERO = 4, 5, 6, 7, 1

class Gen:
    def __init__(self, stamps=False, opts=None):
        self.a = Asm()
        self.stamps = stamps
        self.o = opts or {}
        self.inB = False
    def stamp(self, i, grp=None):
        m = self.o.get("meas")
        if m and grp is None and i in m[:2]: self.a(f"s_memrealtime s[{68+2*m.index(i)}:{69+2*m.index(i)}]")
        if grp != self.o.get("stg") and (grp or (self.inB and self.o.get("stg") and i not in (0, 13))): return
        if self.stamps:
            self.a(f"s_memrealtime {s(S_ST+2*i,2)}")
            cyc = self.o.get("cyc", (6, 7))
            if i in cyc:
                self.a(f"s_memtime {s(S_ST+2*(14+list(cyc).index(i)),2)}")
    def add64(self, dst, base, off):
        self.a(f"s_add_u32 {s(dst)}, {s(base)}, {off}")
        self.a(f"s_addc_u32 {s(dst+1)}, {s(base+1)}, 0")
    def dma(self, vreg, pair, m0s, m0i, off=0):
        return [f"s_add_u32 m0, {s(m0s)}, {m0i}", "s_nop 0",
                f"global_load_lds_dwordx4 {v(vreg)}, {s(pair,2)}" + (f" offset:{off}" if off else "")]
    def marker(self, idx):
        self.a(f"""
        s_lshl_b32 {s(T)}, {s(S_W3)}, 2
        s_add_u32 m0, {s(T)}, {L_MK + 4*idx}
        s_mov_b64 exec, 1
        global_load_lds_dword {v(V_ZERO)}, {s(S_PC,2)}
        s_mov_b64 exec, -1
        """)
    def newpage(self, name, back=None):
        a = self.a
        a(f"s_branch L_{name}")
        a(".p2align 12")
        if back:
            a(f"L_{name}_stub:")
            a(f"s_branch {back}")
            a("s_nop 0")
        a(f"L_{name}:")
    def emit(self, L):
        for x in L: self.a(x)
    def poll(self, vaddr, pair, offs, vt, sleep=2):
        a = self.a
        Lp, Ld = a.label("poll"), a.label("polld")
        a(f"s_mov_b32 {s(T+10)}, 0")
        a(f"{Lp}:")
        for i, o in enumerate(offs):
            a(f"global_load_dword {v(vt+i)}, {v(vaddr)}, {s(pair,2)} offset:{o} sc1")
        a("s_waitcnt vmcnt(0)")
        for i in range(len(offs)):
            if i == 0:
                a(f"v_cmp_ne_u32 vcc, {s(S_TAG)}, {v(vt)}")
            else:
                a(f"v_cmp_ne_u32 {s(T+12,2)}, {s(S_TAG)}, {v(vt+i)}")
                a(f"s_or_b64 vcc, vcc, {s(T+12,2)}")
        a(f"s_add_u32 {s(T+10)}, {s(T+10)}, 1")
        a(f"s_cmp_eq_u64 vcc, 0")
        a(f"s_cbranch_scc1 {Ld}")
        if sleep: a(f"s_sleep {sleep}")
        a(f"s_cmp_lt_u32 {s(T+10)}, {SPIN_MAX}")
        a(f"s_cbranch_scc1 {Lp}")
        a(f"{Ld}:")
    def check4(self, vt):
        a = self.a
        a(f"v_cmp_ne_u32 vcc, {s(S_TAG)}, {v(vt)}")
        for i in range(1, 4):
            a(f"v_cmp_ne_u32 {s(T+12,2)}, {s(S_TAG)}, {v(vt+i)}")
            a(f"s_or_b64 vcc, vcc, {s(T+12,2)}")
        a(f"s_cmp_eq_u64 vcc, 0")
    def poll4(self, vaddr, pair, vt, sleep):
        a = self.a
        Lp, Ld = a.label("poll"), a.label("polld")
        a(f"s_mov_b32 {s(T+10)}, 0")
        a(f"{Lp}:")
        a(f"global_load_dwordx4 {v(vt,4)}, {v(vaddr)}, {s(pair,2)} sc1")
        a(f"s_add_u32 {s(T+10)}, {s(T+10)}, 1")
        a("s_waitcnt vmcnt(0)")
        self.check4(vt)
        a(f"s_cbranch_scc1 {Ld}")
        if sleep: a(f"s_sleep {sleep}")
        a(f"s_cmp_lt_u32 {s(T+10)}, {SPIN_MAX}")
        a(f"s_cbranch_scc1 {Lp}")
        a(f"{Ld}:")
    def count(self, pair):
        a = self.a
        a(f"s_mov_b32 {s(T+11)}, 1")
        a(f"s_atomic_add {s(T+11)}, {s(pair,2)}, 0 glc")
    def count_peek(self, pair, sd):
        self.a(f"s_load_dword {s(sd)}, {s(pair,2)}, 0 glc")
    def count_wait(self, pair, sd, n, sleep=8):
        a = self.a
        Lp, Ld = a.label("cw"), a.label("cwd")
        a(f"""
        s_mov_b32 {s(T+10)}, 0
        {Lp}:
        s_waitcnt lgkmcnt(0)
        s_cmp_ge_u32 {s(sd)}, {n}
        s_cbranch_scc1 {Ld}
        {f"s_sleep {sleep}" if sleep else ""}
        s_load_dword {s(sd)}, {s(pair,2)}, 0 glc
        s_add_u32 {s(T+10)}, {s(T+10)}, 1
        s_cmp_lt_u32 {s(T+10)}, {SPIN_MAX}
        s_cbranch_scc1 {Lp}
        s_waitcnt lgkmcnt(0)
        {Ld}:
        """)
    def flag(self, base, sidx, vm=0, shift=7):
        a = self.a
        a(f"s_lshl_b32 {s(T+10)}, {s(sidx)}, {shift}")
        a(f"s_add_u32 {s(T+10)}, {s(T+10)}, {base}")
        self.add64(T+12, S_WS, s(T+10))
        if vm is not None: a(f"s_waitcnt vmcnt({vm})")
        a("s_mov_b64 exec, 1")
        a(f"global_store_dword {v(V_ZERO)}, {v(V_TAG)}, {s(T+12,2)} sc1")
        a("s_mov_b64 exec, -1")
    def arrive(self, vt):
        a = self.a
        a(f"s_add_u32 {s(S_EPOCH)}, {s(S_EPOCH)}, 1")
        a(f"v_mov_b32 {v(vt)}, {s(S_EPOCH)}")
        a(f"ds_write_b32 {v(V_SLOT)}, {v(vt)}")
    def await_(self, vt, vaddr=V_ALL, val=None, off=0, sleep=1):
        a = self.a
        Lp, Ld = a.label("sb"), a.label("sbd")
        a(f"s_mov_b32 {s(T+10)}, 0")
        a(f"{Lp}:")
        a(f"ds_read_b32 {v(vt)}, {v(vaddr)} offset:{off}")
        a("s_waitcnt lgkmcnt(0)")
        a(f"v_cmp_gt_u32 vcc, {val or s(S_EPOCH)}, {v(vt)}")
        a(f"s_add_u32 {s(T+10)}, {s(T+10)}, 1")
        a(f"s_cmp_eq_u64 vcc, 0")
        a(f"s_cbranch_scc1 {Ld}")
        if sleep: a(f"s_sleep {sleep}")
        a(f"s_cmp_lt_u32 {s(T+10)}, {SPIN_MAX*8}")
        a(f"s_cbranch_scc1 {Lp}")
        a(f"{Ld}:")
    def softbar(self, vt, sleep=1):
        self.arrive(vt); self.await_(vt, sleep=sleep)

    def entry(self):
        a = self.a
        a(f"""
        s_cmpk_ge_u32 s2, 256
        s_cbranch_scc1 L_end
        """)
        self.stamp(0)
        if self.o.get("spin"): a("s_memrealtime s[64:65]")
        Lp = a.label("p")
        a.c("wave 0: pull the code and this CU's share of x into the die's L2 right away")
        a(f"""
        s_load_dwordx16 s[8:23], s[0:1], 0
        s_load_dwordx2 {s(S_WS,2)}, s[0:1], 80
        s_getpc_b64 {s(U,2)}
        L_pc:
        s_lshr_b32 {s(S_C)}, s2, 3
        v_lshl_add_u32 v23, v0, 5, {s(S_C)}
        v_lshlrev_b32 v23, 7, v23
        s_and_b32 {s(S_XCD)}, s2, 7
        s_lshl_b32 {s(S_G)}, {s(S_XCD)}, 5
        s_add_u32 {s(S_C)}, {s(S_C)}, {s(S_G)}
        v_cmp_gt_u32 vcc, L_last-L_pc, v23
        s_and_b64 exec, exec, vcc
        s_cbranch_execz {Lp}
        {f"global_load_dword v18, v23, {s(U,2)}" if self.o.get("cpf", 1) else ""}
        s_mov_b64 exec, -1
        """)
        if self.o.get("xt", 1):
            a(f"""
            s_lshl_b32 {s(S_G)}, {s(S_C)}, 13
            v_lshl_add_u32 v19, v0, 7, {s(S_G)}
            s_waitcnt lgkmcnt(0)
            global_load_dword v19, v19, {s(S_AX,2)}
            """)
            if self.o.get("kt", 1):
                a(f"""
                s_mov_b64 exec, 15
                global_load_dword v17, v23, {s(S_WK,2)}
                global_load_dword v23, v23, {s(S_WV,2)}
                """)
        a(f"""
        {Lp}:
        s_mov_b64 exec, -1
        s_load_dwordx2 {s(S_OUT,2)}, s[0:1], 64
        v_lshrrev_b32 v1, 6, v0
        v_and_b32 v0, 63, v0
        v_readfirstlane_b32 {s(S_W)}, v1
        s_lshr_b32 {s(T)}, s2, 6
        s_lshr_b32 {s(S_G)}, {s(S_C)}, 3
        s_and_b32 {s(S_J)}, {s(S_C)}, 7
        s_lshl_b32 {s(T)}, {s(T)}, 1
        s_add_u32 {s(S_KC0)}, {s(T)}, {s(S_J)}
        s_and_b32 {s(S_KC0)}, {s(S_KC0)}, {7 if self.o.get('rot', 1) else 0}
        s_mov_b32 {s(S_EPOCH)}, 0
        s_and_b32 {s(S_W3)}, {s(S_W)}, 3
        s_lshr_b32 {s(S_HI)}, {s(S_W3)}, 1
        s_and_b32 {s(S_LO)}, {s(S_W)}, 1
        v_mov_b32 {v(V_ZERO)}, 0
        v_lshlrev_b32 {v(V_L16)}, 4, v0
        s_cmp_ge_u32 {s(S_W)}, 4
        s_cselect_b32 {s(T)}, 11, 3
        s_cselect_b32 {s(T+1)}, 1, 13
        s_lshl_b32 {s(T+2)}, {s(S_W3)}, 2
        s_add_u32 {s(T+2)}, {s(T+2)}, {L_SYNC}
        v_min_u32 v9, {s(T)}, v0
        v_add_u32 v9, {s(T+1)}, v9
        v_and_b32 v9, 15, v9
        v_lshl_add_u32 v9, v9, 4, {s(T+2)}
        ds_write_b32 v9, {v(V_ZERO)}
        """)
        a(f"""
        v_lshrrev_b32 v8, 3, v0
        v_lshlrev_b32 v2, 10, v8
        v_and_b32 v9, 7, v0
        v_lshrrev_b32 v10, 4, v0
        v_xor_b32 v9, v9, v10
        v_lshl_add_u32 v2, v9, 4, v2
        s_lshl_b32 {s(T)}, {s(S_W)}, 2
        s_add_u32 {s(T)}, {s(T)}, {L_SYNC}
        v_mov_b32 {v(V_SLOT)}, {s(T)}
        s_and_b32 {s(T)}, {s(T)}, -16
        v_and_b32 v9, 3, v0
        v_lshl_add_u32 {v(V_ALL)}, v9, 2, {s(T)}
        v_bfe_u32 v8, v0, 2, 3
        v_lshlrev_b32 v9, 4, v9
        v_lshrrev_b32 v10, 5, v0
        v_lshl_add_u32 v9, v10, 6, v9
        v_lshl_add_u32 v3, v8, 10, v9
        s_cmp_ge_u32 {s(S_W)}, 4
        s_cbranch_scc1 L_roleB
        """)

    def xfrag_addr(self, dst, sblk, vt):
        self.a(f"""
        v_and_b32 {v(vt)}, 31, v0
        v_lshlrev_b32 {v(vt+1)}, 7, {v(vt)}
        s_lshl_b32 {s(T)}, {s(sblk)}, 12
        v_add_u32 {v(vt+1)}, {s(T)}, {v(vt+1)}
        v_bfe_u32 {v(vt)}, v0, 1, 3
        v_lshrrev_b32 {v(vt+2)}, 5, v0
        v_xor_b32 {v(vt)}, {v(vt)}, {v(vt+2)}
        v_lshl_add_u32 {v(dst)}, {v(vt)}, 4, {v(vt+1)}
        v_xor_b32 {v(dst+1)}, 32, {v(dst)}
        v_xor_b32 {v(dst+2)}, 64, {v(dst)}
        v_xor_b32 {v(dst+3)}, 0x60, {v(dst)}
        """)
    def wfrag_addr(self, dst, vt):
        self.a(f"""
        v_bfe_u32 {v(vt)}, v0, 2, 2
        v_lshlrev_b32 {v(vt)}, 6, {v(vt)}
        v_bfe_u32 {v(vt+1)}, v0, 4, 1
        v_lshl_add_u32 {v(vt)}, {v(vt+1)}, 5, {v(vt)}
        v_and_b32 {v(vt+1)}, 3, v0
        v_lshl_add_u32 {v(vt)}, {v(vt+1)}, 3, {v(vt)}
        v_lshrrev_b32 {v(vt+1)}, 5, v0
        v_lshl_add_u32 {v(vt)}, {v(vt+1)}, 10, {v(vt)}
        s_lshl_b32 {s(T)}, {s(S_LO)}, 9
        s_add_u32 {s(T)}, {s(T)}, {L_W}
        v_add_u32 {v(dst)}, {s(T)}, {v(vt)}
        """)
    V_WO, V_EXW, V_EXR, V_OUT, V_IMG = 8, 9, 3, 2, 13
    def tail_addr(self, lbase, loshift, ownimg, colbytes, vt):
        a = self.a
        a(f"""
        v_bfe_u32 {v(vt)}, v0, 2, 2
        v_lshlrev_b32 {v(vt)}, 6, {v(vt)}
        v_lshrrev_b32 {v(vt+1)}, 5, v0
        v_lshl_add_u32 {v(vt)}, {v(vt+1)}, 8, {v(vt)}
        v_and_b32 {v(vt+2)}, 1, v0
        v_lshl_add_u32 {v(vt)}, {v(vt+2)}, 5, {v(vt)}
        v_bfe_u32 {v(vt+2)}, v0, 1, 1
        v_lshl_add_u32 {v(vt)}, {v(vt+2)}, 3, {v(vt)}
        v_bfe_u32 {v(vt+2)}, v0, 4, 1
        v_lshl_add_u32 {v(vt)}, {v(vt+2)}, 4, {v(vt)}
        s_mul_i32 {s(T)}, {s(S_LO)}, {loshift}
        s_add_u32 {s(T)}, {s(T)}, {lbase}
        v_add_u32 {v(self.V_WO)}, {s(T)}, {v(vt)}
        s_lshl_b32 {s(T)}, {s(S_W3)}, 12
        s_add_u32 {s(T)}, {s(T)}, {L_WKV}
        v_add_u32 {v(self.V_EXW)}, {s(T)}, {v(V_L16)}
        v_xor_b32 {v(self.V_EXR)}, 4096, {v(self.V_EXW)}
        v_lshrrev_b32 {v(vt)}, 3, v0
        v_lshlrev_b32 {v(vt)}, 11, {v(vt)}
        v_and_b32 {v(vt+1)}, 7, v0
        v_lshl_add_u32 {v(self.V_OUT)}, {v(vt+1)}, 4, {v(vt)}
        s_lshl_b32 {s(T)}, {s(S_G)}, 1
        s_add_u32 {s(T)}, {s(T)}, {s(S_HI)}
        s_lshl_b32 {s(T+1)}, {s(T)}, 16
        s_lshl_b32 {s(T+2)}, {s(S_J)}, 1
        s_add_u32 {s(T+2)}, {s(T+2)}, {s(S_LO)}
        s_lshl_b32 {s(T+3)}, {s(S_J)}, 7
        s_add_u32 {s(T+1)}, {s(T+1)}, {s(T+3)}
        s_lshl_b32 {s(T+3)}, {s(S_LO)}, 15
        s_add_u32 {s(T+1)}, {s(T+1)}, {s(T+3)}
        s_add_u32 {s(T+1)}, {s(T+1)}, {colbytes}
        """)
        self.add64(S_OUTB, S_OUT, s(T+1))
        a(f"""
        s_lshl_b32 {s(T)}, {s(T)}, 15
        s_lshl_b32 {s(T+2)}, {s(T+2)}, 11
        s_add_u32 {s(T+2)}, {s(T+2)}, {s(T)}
        s_add_u32 {s(T+2)}, {s(T+2)}, {ownimg}
        v_add_u32 {v(self.V_IMG)}, {s(T+2)}, {v(V_L16)}
        s_lshl_b32 {s(T+1)}, {s(S_LO)}, 14
        s_add_u32 {s(T)}, {s(T)}, {s(T+1)}
        s_add_u32 {s(T)}, {s(T)}, {WS_OA}
        """)
        self.add64(S_IMG, S_WS, s(T))

    RQ, RO, RS, RKV = 16, 64, 128, 192
    RIDX, RKA, RVA = 10, 11, 12
    def head_A(self):
        a = self.a
        RQ, RO, RS, RKV, RIDX, RKA, RVA = self.RQ, self.RO, self.RS, self.RKV, self.RIDX, self.RKA, self.RVA
        XA, WA = 248, 252
        a.c("=========================== role A ===========================")
        a.c("---- what the K/V producer needs goes first")
        a(f"""
        v_xor_b32 v10, 64, v2
        v_add_u32 v10, 8192, v10
        s_and_b32 {s(T+1)}, {s(S_J)}, 6
        s_lshl_b32 {s(T+6)}, {s(S_G)}, 16
        s_lshl_b32 {s(T+2)}, {s(T+1)}, 13
        s_add_u32 {s(T+6)}, {s(T+6)}, {s(T+2)}
        s_lshl_b32 {s(T+7)}, {s(S_W)}, 14
        s_lshl_b32 {s(T+2)}, {s(T+1)}, 10
        s_add_u32 {s(T+7)}, {s(T+7)}, {s(T+2)}
        s_lshl_b32 {s(T+8)}, {s(S_W)}, 12
        s_lshl_b32 {s(T+9)}, {s(S_W)}, 1
        s_add_u32 {s(T+9)}, {s(T+9)}, {s(S_KC0)}
        s_mov_b32 {s(S_EPOCH)}, 7
        s_waitcnt lgkmcnt(0)
        """)
        self.stamp(1)
        a(f"""
        s_bitcmp1_b32 {s(S_J)}, 0
        s_cselect_b32 {s(S_WK)}, {s(S_WV)}, {s(S_WK)}
        s_cselect_b32 {s(S_WK+1)}, {s(S_WV+1)}, {s(S_WK+1)}
        """)
        for i in range(2):
            a(f"""
            s_add_u32 {s(T)}, {s(T+9)}, {i}
            s_and_b32 {s(T)}, {s(T)}, 7
            s_lshl_b32 {s(T+1)}, {s(T)}, 7
            s_add_u32 {s(T+1)}, {s(T+1)}, {s(T+6)}
            """)
            self.add64(T+2, S_AX, s(T+1))
            a(f"s_lshl_b32 {s(T)}, {s(T)}, 11")
            self.add64(T+4, S_WK, s(T))
            self.emit(self.dma(2, T+2, T+7, L_X + i*8192))
            self.emit(self.dma(10, T+2, T+7, L_X + i*8192 + 1024))
            self.emit(self.dma(V_L16, T+4, T+8, L_WKV + i*2048))
            a(f"global_load_lds_dwordx4 {v(V_L16)}, {s(T+4,2)} offset:1024")
            if i == 0: a(f"s_getpc_b64 {s(S_PC,2)}")
            self.marker(36 - 4*i)
        a("s_barrier")
        a("s_branch L_bodyA")
        a("L_cutA:")
        a("L_bodyA:")
        XF, WF = RS, RS+32
        def rd(t):
            i = t % 8
            a(f"ds_read_b128 {v(XF+4*i,4)}, {v(XA+(t&3))} offset:{(t//4)*8192}")
            a(f"ds_read_b64_tr_b16 {v(WF+4*i,2)}, {v(WA)} offset:{t*2048}")
            a(f"ds_read_b64_tr_b16 {v(WF+4*i+2,2)}, {v(WA)} offset:{t*2048+256}")
        def mm(t):
            i = t % 8
            a(f"v_mfma_f32_32x32x16_bf16 v[32:47], {v(WF+4*i,4)}, {v(XF+4*i,4)}, {'0' if t == 0 else 'v[32:47]'}")
        def qproj():
            chk = self.o.get("chk", {0: 0, 4: 1, 8: 3, 16: 5, 24: 6, 28: 7})
            self.await_(20, vaddr=52, val="1", off=128, sleep=1)
            self.await_(20, vaddr=53, val="1", off=16*chk[0], sleep=0)
            self.stamp(2)
            for t in range(4): rd(t)
            for tb in range(4, 32, 4):
                if tb not in chk:
                    for t in range(tb-4, tb):
                        rd(t+4)
                        a("s_waitcnt lgkmcnt(12)")
                        mm(t)
                    continue
                Lok, Lj = a.label("a"), a.label("a")
                ad = 54 if chk[tb] == 7 else 53
                a(f"ds_read_b32 v20, {v(ad)} offset:{16*chk[tb]}")
                a("s_waitcnt lgkmcnt(10)")
                mm(tb-4)
                a("s_waitcnt lgkmcnt(7)")
                mm(tb-3)
                a(f"""
                s_waitcnt lgkmcnt(0)
                v_cmp_gt_u32 vcc, 1, v20
                s_cmp_eq_u64 vcc, 0
                s_cbranch_scc1 {Lok}
                """)
                mm(tb-2); mm(tb-1)
                self.await_(20, vaddr=ad, val="1", off=16*chk[tb], sleep=0)
                for t in range(tb, tb+4): rd(t)
                a(f"s_branch {Lj}")
                a(f"{Lok}:")
                rd(tb); rd(tb+1)
                mm(tb-2)
                rd(tb+2); rd(tb+3)
                mm(tb-1)
                a(f"{Lj}:")
                if tb == 28: self.stamp(3)
            a.c("the first key tiles are published: their fetch overlaps the end of the projection")
            a("s_barrier")
            self.stamp(5)
            for t in range(28, 32):
                if t == 28:
                    for k in range(3): a(self.kv_ld(0, k, 8))
                a(f"s_waitcnt lgkmcnt({3*(31-t)})")
                mm(t)
        self.xfrag_addr(XA, S_HI, 20)
        self.wfrag_addr(WA, 20)
        for i in range(0, 64, 2): a(f"v_mov_b64 {v(RO+i,2)}, 0")
        for i in range(0, 4, 2): a(f"v_mov_b64 {v(RKV+36+8+i,2)}, 0")
        a(f"""
        v_and_b32 v20, 15, v0
        v_lshlrev_b32 v20, 4, v20
        v_lshrrev_b32 v21, 5, v0
        v_lshl_add_u32 v20, v21, 8, v20
        v_bfe_u32 v21, v0, 4, 1
        v_mul_u32_u24 v22, {2*KVREC}, v21
        v_add_u32 {v(RKA)}, v20, v22
        v_cmp_eq_u32 vcc, 0, v21
        v_and_b32 v22, 11, v0
        v_min_u32 v22, 1, v22
        v_lshlrev_b32 v22, 4, v22
        v_add_u32 v22, 512, v22
        v_mov_b32 {v(RIDX)}, 0xdddd
        v_cndmask_b32 {v(RVA)}, v22, v20, vcc
        s_lshl_b32 {s(T)}, {s(S_W)}, 9
        s_add_u32 {s(T)}, {s(T)}, {L_MISC}
        v_lshl_add_u32 v48, v0, 2, {s(T)}
        v_xor_b32 v49, 512, v48
        v_and_b32 v60, 1, v0
        v_mul_u32_u24 v60, 12, v60
        v_add_u32 v60, 4, v60
        v_xor_b32 v60, v60, {v(V_SLOT)}
        v_mov_b32 v61, {E_CLR}
        v_and_b32 v51, 4, v0
        v_add_u32 v52, {L_MK-L_SYNC}, {v(V_ALL)}
        v_or_b32 v53, 8, v52
        v_and_b32 v54, 3, v0
        v_cmp_eq_u32 vcc, 0, v54
        s_nop 1
        v_cndmask_b32 v54, v53, v52, vcc
        v_lshl_add_u32 v51, v51, 4, {v(V_ALL)}
        s_lshl_b32 {s(T)}, {s(S_HI)}, 15
        v_add_u32 v14, {s(T)}, {v(V_L16)}
        """)
        self.tail_addr(L_W, 512, WS_OA, 1024, 20)
        a(f"""
        s_lshl_b32 {s(T)}, {s(S_HI)}, 12
        s_add_u32 {s(T)}, {s(T)}, {L_MISC+0x1000}
        v_lshrrev_b32 v20, 5, v0
        v_lshlrev_b32 v20, 1, v20
        s_lshl_b32 {s(T+1)}, {s(S_LO)}, 2
        v_add_u32 v20, {s(T+1)}, v20
        v_and_b32 v21, 7, v0
        v_xor_b32 v20, v20, v21
        v_and_b32 v22, 31, v0
        v_lshl_add_u32 v22, v22, 7, {s(T)}
        v_lshl_add_u32 v57, v20, 4, v22
        v_xor_b32 v58, 16, v57
        v_lshrrev_b32 v20, 3, v0
        v_xor_b32 v21, v21, v20
        s_lshl_b32 {s(T+1)}, {s(S_LO)}, 11
        s_add_u32 {s(T)}, {s(T)}, {s(T+1)}
        v_lshl_add_u32 v20, v20, 7, {s(T)}
        v_lshl_add_u32 v59, v21, 4, v20
        """)
        a(f"""
        s_add_u32 {s(U+2)}, {s(S_XCD)}, 1
        s_and_b32 {s(U+2)}, {s(U+2)}, 7
        s_lshl_b32 {s(U+2)}, {s(U+2)}, 3
        s_add_u32 {s(U+2)}, {s(U+2)}, {s(S_LO)}
        s_mul_i32 {s(U+2)}, {s(U+2)}, {KVTILE}
        s_add_u32 {s(U+2)}, {s(U+2)}, {WS_KV}
        """)
        for u in range(3):
            self.add64(8+2*u, S_WS, s(U+2))
            a(f"s_add_u32 {s(U+2)}, {s(U+2)}, {2*KVTILE}")
        if self.o.get("warm", 1): a("s_branch L_attn0_stub")
        a("L_warmed:")
        qproj()
        for i in range(0, 8, 2): a(f"v_mov_b64 {v(RS+48+8+i,2)}, 0")
        for k in range(3): a(self.kv_ld(1, k, 10))
        a("s_nop 4")
        for i in range(8):
            a(f"v_cvt_pk_bf16_f32 {v(RQ+8+i)}, {v(32+2*i)}, {v(33+2*i)}")
        a(f"ds_write_b128 {v(self.V_EXW)}, {v(RQ+8,4)}")
        a(f"ds_write_b128 {v(self.V_EXW)}, {v(RQ+12,4)} offset:1024")
        a("s_waitcnt lgkmcnt(0)")
        self.stamp(4)
        a("s_barrier")

    def kv_ops(self):
        SB, SOFF = T, U+2
        return [f"s_add_u32 {s(SB)}, {s(S_WS)}, {s(SOFF)}",
                f"s_addc_u32 {s(SB+1)}, {s(S_WS+1)}, 0",
                f"s_add_u32 {s(SOFF)}, {s(SOFF)}, {2*KVTILE}",
                f"s_cmp_ge_u32 {s(SOFF)}, {WS_KV+64*KVTILE}",
                f"s_cselect_b32 {s(T+2)}, {64*KVTILE}, 0",
                f"s_sub_u32 {s(SOFF)}, {s(SOFF)}, {s(T+2)}"]
    def kv_ld(self, u, k, SB=T):
        if k == 0: return f"global_load_dwordx4 {v(self.RKV+12*u,4)}, {v(self.RKA)}, {s(SB,2)} sc1"
        return f"global_load_dwordx4 {v(self.RKV+12*u+4*k,4)}, {v(self.RVA)}, {s(SB,2)} offset:{KVREC+(k-1)*2*KVREC} sc1"
    def attn(self):
        a = self.a
        RQ, RO, RS, RKV, RIDX, RKA, RVA = self.RQ, self.RO, self.RS, self.RKV, self.RIDX, self.RKA, self.RVA
        SB, SOFF, SCNT, SPASS = T, U+2, U+3, U
        def K(u): return v(RKV+12*u, 4)
        def V(u, h): return v(RKV+12*u+4+4*h, 4)
        addr_ops, ld = self.kv_ops, self.kv_ld
        a.c("---- attention")
        a(f"s_setprio {self.o.get('aprio', 1)}")
        a(f"ds_read_b128 {v(RQ,4)}, {v(self.V_EXR)}")
        a(f"ds_read_b128 {v(RQ+4,4)}, {v(self.V_EXR)} offset:1024")
        for k in range(3): a(self.kv_ld(2, k, 12))
        self.arrive(50)
        a(f"s_mov_b32 {s(SCNT)}, 6")
        if self.o.get("aprof"): a("s_mov_b32 m0, 0")
        al = 1
        self.newpage("attn0", "L_opB_stub")
        a(f"s_waitcnt vmcnt(6) lgkmcnt(0)")
        self.stamp(6)
        a(f"v_mfma_f32_32x32x16_bf16 {v(RS,16)}, {K(0)}, {v(RQ,4)}, 0")
        a("s_nop 3")
        L = a.label("attn")
        p2, p1 = self.o.get("pos", (3, 10))
        EXW = v(self.V_EXW)
        def body(last):
            for i in range(p1, 16): a(f"v_exp_f32 {v(RS+48+i)}, {v(RS+48+i)}")
            for u in range(4):
                for b in range(4):
                    if self.o.get("aprof") and b == 0:
                        a(f"""
                        s_memtime s[60:61]
                        s_waitcnt lgkmcnt(0)
                        v_writelane_b32 v55, s60, m0
                        s_add_u32 m0, m0, 1
                        """)
                    fill = [[], [], []]
                    if not last or u == 0:
                        if b == 0:
                            ops = addr_ops()
                            fill[0] = ops[0:1]; fill[1] = ops[1:3]; fill[2] = ops[3:5]
                        if b == 1:
                            fill[0] = addr_ops()[5:6]; fill[1] = [ld((u+3) % 4, 0)]; fill[2] = [ld((u+3) % 4, 1)]
                        if b == 2:
                            fill[1] = [ld((u+3) % 4, 2)]; fill[2] = ["s_waitcnt vmcnt(6)"]
                    elif b == 2 and u < 3:
                        fill[2] = [f"s_waitcnt vmcnt({6-3*u})"]
                    if not last and b == 3:
                        if u == 2: fill[1] = ["ds_read_b32 v50, v51"]
                        if u == 3:
                            fill[0] = ["s_waitcnt lgkmcnt(0)", f"v_cmp_gt_u32 vcc, {s(S_EPOCH)}, v50"]
                            fill[1] = ["s_cbranch_vccnz L_check", "L_checked:", f"s_sub_u32 {s(SCNT)}, {s(SCNT)}, 1"]
                            fill[2] = [f"s_cbranch_scc0 {L}"]
                    if last and u == 3 and b >= 2:
                        k = b - 2
                        fill[0] = [f"ds_write_b128 {EXW}, {v(RO+16*k,4)} offset:{2048*k}"]
                        fill[1] = [f"ds_write_b128 {EXW}, {v(RO+16*k+4,4)} offset:{2048*k+1024}",
                                   f"ds_write_b32 v48, {v(RO+16*k+8)} offset:{256*k}"]
                        if k: fill[1].append(f"ds_write_b32 {v(V_SLOT)}, v61")
                    nu, nb = (u, b+1) if b < 3 else ((u+1) % 4, 0)
                    pu, pb = (u, b-1) if b > 0 else ((u-1) % 4, 3)
                    S = RS + 16*b
                    if not (last and u == 3 and b == 3):
                        a(f"v_mfma_f32_32x32x16_bf16 {v(RS+16*nb,16)}, {K(nu)}, {v(RQ+4*nb,4)}, 0")
                    for x in fill[0]: a(x)
                    for i in range(0, p2): a(f"v_exp_f32 {v(S+i)}, {v(S+i)}")
                    a(f"v_smfmac_f32_32x32x32_bf16 {v(RO+16*pb,16)}, {V(pu,1)}, {v(RS+16*pb+8,8)}, {v(RIDX)}")
                    for x in fill[1]: a(x)
                    for i in range(p2, p1): a(f"v_exp_f32 {v(S+i)}, {v(S+i)}")
                    a(f"v_smfmac_f32_32x32x32_bf16 {v(RO+16*b,16)}, {V(u,0)}, {v(S,8)}, {v(RIDX)}")
                    for x in fill[2]: a(x)
                    if last or (u, b) != (3, 3):
                        for i in range(p1, 16): a(f"v_exp_f32 {v(S+i)}, {v(S+i)}")
        if not al: a(".p2align 6")
        a(f"{L}:")
        body(False)
        body(True)
        def check():
            a("L_check:")
            self.await_(50, vaddr=51)
            a("s_branch L_checked")
        self.check = check
        a(f"ds_read_b32 v50, v60")
        a(f"ds_read_b32 {v(RO+8)}, v49")
        a(f"v_smfmac_f32_32x32x32_bf16 {v(RO+48,16)}, {V(3,1)}, {v(RS+48+8,8)}, {v(RIDX)}")

    def tail_A(self):
        a = self.a
        RQ, RO = self.RQ, self.RO
        self.stamp(7)
        if self.o.get("aprof"):
            a(f"""
            s_lshl_b32 s60, s2, 2
            s_add_u32 s60, s60, {s(S_W)}
            s_lshl_b32 s60, s60, 8
            s_add_u32 s60, s60, {WS_STAMP+0x40000}
            v_lshl_add_u32 v56, v0, 2, s60
            global_store_dword v56, v55, {s(S_WS,2)}
            """)
        a.c("---- pair reduction of the two key halves")
        O2, O3 = RO+32, RO+48
        def rdpart():
            a(f"""
            ds_read_b32 {v(RO+24)}, v49 offset:256
            ds_read_b128 {v(RO,4)}, {v(self.V_EXR)}
            ds_read_b128 {v(RO+4,4)}, {v(self.V_EXR)} offset:1024
            ds_read_b128 {v(RO+16,4)}, {v(self.V_EXR)} offset:2048
            ds_read_b128 {v(RO+20,4)}, {v(self.V_EXR)} offset:3072
            """)
        rdpart()
        Lok, La = a.label("x"), a.label("x")
        a(f"""
        s_mov_b32 {s(T+2)}, {f32(2.0**-20)}
        s_mov_b32 {s(T+3)}, {f32(2.0**100)}
        s_waitcnt lgkmcnt(6)
        v_cmp_gt_u32 vcc, {E_CLR}, v50
        s_cmp_eq_u64 vcc, 0
        s_cbranch_scc1 {Lok}
        """)
        self.await_(50, vaddr=60, val=str(E_CLR), sleep=0)
        a(f"ds_read_b32 {v(RO+8)}, v49")
        rdpart()
        a(f"{Lok}:")
        self.stamp(11)
        a(f"""
        s_waitcnt lgkmcnt(2)
        v_add_f32 {v(O2+8)}, {v(O2+8)}, {v(RO+8)}
        v_add_f32 {v(O3+8)}, {v(O3+8)}, {v(RO+24)}
        v_cmp_le_f32 {s(T+4,2)}, {s(T+2)}, {v(O2+8)}
        v_cmp_le_f32 {s(T+6,2)}, {s(T+2)}, {v(O3+8)}
        v_add_f32 {v(RO+9)}, {v(O2+8)}, {v(O3+8)}
        """)
        for b in range(2):
            if b: a("s_waitcnt lgkmcnt(0)")
            for i in range(0, 8, 2):
                a(f"v_pk_add_f32 {v(O2+16*b+i,2)}, {v(O2+16*b+i,2)}, {v(RO+16*b+i,2)}")
        a.c("---- the zero shift is kept only if every row sum is in range and every sum is finite")
        a(f"""
        v_pk_add_f32 {v(RO,2)}, {v(O2,2)}, {v(O2+2,2)}
        v_pk_add_f32 {v(RO+2,2)}, {v(O2+4,2)}, {v(O2+6,2)}
        v_pk_add_f32 {v(RO+4,2)}, {v(O3,2)}, {v(O3+2,2)}
        v_pk_add_f32 {v(RO+6,2)}, {v(O3+4,2)}, {v(O3+6,2)}
        v_pk_add_f32 {v(RO,2)}, {v(RO,2)}, {v(RO+2,2)}
        v_pk_add_f32 {v(RO+4,2)}, {v(RO+4,2)}, {v(RO+6,2)}
        s_and_b64 {s(T+4,2)}, {s(T+4,2)}, {s(T+6,2)}
        v_pk_add_f32 {v(RO,2)}, {v(RO,2)}, {v(RO+4,2)}
        v_fma_f32 {v(RO+9)}, {v(RO)}, 0, {v(RO+9)}
        v_fma_f32 {v(RO+9)}, {v(RO+1)}, 0, {v(RO+9)}
        v_cmp_ge_f32 vcc, {s(T+3)}, {v(RO+9)}
        s_and_b64 vcc, vcc, {s(T+4,2)}
        s_cmp_eq_u64 vcc, -1
        s_cbranch_scc0 L_fallback
        L_norm:
        """)
        self.normalize([(O2, O2+8), (O3, O3+8)], 16)
        self.stamp(8)
        a.c("---- the linear-attention half of the output projection fills the hand-off wait")
        a("s_setprio 0")
        self.newpage("opB", "L_warmed")
        a("s_barrier")
        XF, WF, ACC = 128, 160, 64
        D = 4
        def rd(u):
            i = u % 8
            a(f"ds_read_b128 {v(XF+4*i,4)}, v14 offset:{u*1024}")
            for sx in range(2):
                a(f"ds_read_b64_tr_b16 {v(WF+4*i+2*sx,2)}, {v(self.V_WO)} offset:{(2*u+sx)*1024}")
        for u in range(D): rd(u)
        for u in range(32):
            if u + D < 32:
                rd(u+D); n = 3*D
            else:
                n = 3*(31-u)
            y2 = self.o.get("y2", 12)
            if u == y2:
                a("v_mov_b32 v50, 39")
                a("s_waitcnt vmcnt(0)")
                a(f"ds_write_b32 {v(V_SLOT)}, v50")
                self.stamp(9)
            a(f"s_waitcnt lgkmcnt({n})")
            i = u % 8
            a(f"v_mfma_f32_32x32x16_bf16 {v(ACC,16)}, {v(WF+4*i,4)}, {v(XF+4*i,4)}, {'0' if u == 0 else v(ACC,16)}")
        self.stamp(10)
        a(f"s_mov_b32 {s(S_EPOCH)}, 39")
        self.add64(T+2, S_OUTB, 16384)
        a("s_nop 7")
        a("s_nop 0")
        for h in range(2):
            for i in range(4*h, 4*h+4): a(f"v_cvt_pk_bf16_f32 {v(32+i)}, {v(ACC+2*i)}, {v(ACC+2*i+1)}")
            a(f"ds_write_b128 {v(57+h)}, {v(32+4*h,4)}")
        self.softbar(50, sleep=0)
        a("ds_read_b128 v[40:43], v59")
        a("ds_read_b128 v[44:47], v59 offset:1024")
        a.c("these stores queue behind the other waves' fetches, not in front of them")
        if self.o.get("sw", 1): self.await_(50, val="40", off=16, sleep=1)
        for h in range(2):
            a(f"s_waitcnt lgkmcnt({1-h})")
            a(f"global_store_dwordx4 {v(self.V_OUT)}, {v(40+4*h,4)}, {s(T+2 if h else S_OUTB,2)} {self.o.get('osta','sc1')}")
        a("s_branch L_fin")

    def normalize(self, blocks, P, guard=True):
        a = self.a
        for N, R in blocks: a(f"v_rcp_f32 {v(R)}, {v(R)}")
        for b, (N, R) in enumerate(blocks):
            for i in range(0, 8, 2):
                a(f"v_pk_mul_f32 {v(N+i,2)}, {v(N+i,2)}, {v(R,2)} op_sel_hi:[1,0]")
            for i in range(4):
                a(f"v_cvt_pk_bf16_f32 {v(P+4*b+i)}, {v(N+2*i)}, {v(N+2*i+1)}")
            if guard: a(f"v_min_u32 {v(P+4*b)}, -2, {v(P+4*b)}")
            a(f"global_store_dwordx4 {v(self.V_IMG)}, {v(P+4*b,4)}, {s(S_WS,2)} offset:{1024*b} {'' if guard and self.o.get('xplain') else 'sc1'}")

    def attn_fallback(self, Lret):
        a = self.a
        RQ, RO, RS, RKV, RIDX, RKA, RVA = self.RQ+8, self.RO+32, self.RS, self.RKV, self.RIDX, self.RKA, self.RVA
        SB, SCNT = T, U+3
        NM = RS + 32
        a("L_fallback:")
        a(f"v_mov_b32 {v(RKV+20)}, 0xff800000")
        a(f"v_mov_b32 {v(RKV+21)}, 0xff800000")
        for ps in (0, 1):
            L = a.label("fb")
            self.add64(SB, S_WS, WS_KV)
            a(f"""
            s_mov_b32 {s(SCNT)}, 64
            {L}:
            global_load_dwordx4 {v(RKV,4)}, {v(RKA)}, {s(SB,2)} sc1
            """)
            if ps:
                a(f"global_load_dwordx4 {v(RKV+4,4)}, {v(RVA)}, {s(SB,2)} offset:{KVREC} sc1")
                a(f"global_load_dwordx4 {v(RKV+8,4)}, {v(RVA)}, {s(SB,2)} offset:{3*KVREC} sc1")
            self.add64(SB, SB, KVTILE)
            a("s_waitcnt vmcnt(0)")
            for b in range(2):
                c = v(NM+16*b, 16) if ps else "0"
                a(f"v_mfma_f32_32x32x16_bf16 {v(RS+16*b,16)}, {v(RKV,4)}, {v(RQ+4*b,4)}, {c}")
            a("s_nop 7")
            a("s_nop 4")
            for b in range(2):
                S = RS + 16*b
                if not ps:
                    for i in range(0, 16, 2):
                        a(f"v_max3_f32 {v(RKV+20+b)}, {v(S+i)}, {v(S+i+1)}, {v(RKV+20+b)}")
                else:
                    for i in range(16): a(f"v_exp_f32 {v(S+i)}, {v(S+i)}")
                    a("s_nop 1")
                    a(f"v_smfmac_f32_32x32x32_bf16 {v(RO+16*b,16)}, {v(RKV+4,4)}, {v(S,8)}, {v(RIDX)}")
                    a(f"v_smfmac_f32_32x32x32_bf16 {v(RO+16*b,16)}, {v(RKV+8,4)}, {v(S+8,8)}, {v(RIDX)}")
            a(f"""
            s_sub_u32 {s(SCNT)}, {s(SCNT)}, 1
            s_cmp_lg_u32 {s(SCNT)}, 0
            s_cbranch_scc1 {L}
            """)
            if not ps:
                for b in range(2):
                    m = RKV+20+b
                    a(f"""
                    v_mov_b32 {v(RKV+22)}, {v(m)}
                    s_nop 1
                    v_permlane32_swap_b32 {v(m)}, {v(RKV+22)}
                    s_nop 1
                    v_max_f32 {v(m)}, {v(m)}, {v(RKV+22)}
                    """)
                    for i in range(16): a(f"v_sub_f32 {v(NM+16*b+i)}, 0, {v(m)}")
                for i in range(32): a(f"v_mov_b32 {v(RO+i)}, 0")
        a("s_nop 7")
        a("s_nop 4")
        a(f"s_branch {Lret}")

    def outproj_wfrags(self):
        a = self.a
        for p in range(4):
            a(f"""
            s_add_u32 {s(T)}, {s(S_J)}, {p}
            s_and_b32 {s(T)}, {s(T)}, 3
            s_lshl_b32 {s(T+1)}, {s(S_LO)}, 2
            s_add_u32 {s(T)}, {s(T)}, {s(T+1)}
            s_lshl_b32 {s(T+1)}, {s(S_G)}, 1
            s_sub_u32 {s(T)}, {s(T)}, {s(T+1)}
            s_and_b32 {s(T)}, {s(T)}, 7
            s_lshl_b32 {s(T)}, {s(T)}, 13
            v_add_u32 v21, {s(T)}, {v(self.V_WO)}
            """)
            for k in range(4):
                u = 4*p + k
                for nb in range(2):
                    for sx in range(2):
                        a(f"ds_read_b64_tr_b16 {v(128+8*u+4*nb+2*sx,2)}, v21 offset:{(2*k+sx)*1024+nb*512}")
    def gather_loads(self, p):
        for k in range(4):
            self.a(f"global_load_dwordx4 {v(32+16*p+4*k,4)}, {v(V_L16)}, {s(8+2*p,2)} offset:{k*1024} sc1")
    def outproj(self):
        a = self.a
        a.c("=========================== attention half of the output projection ===========================")
        def test(p):
            I = 32 + 16*p
            a(f"""
            v_max3_u32 v16, {v(I)}, {v(I+4)}, {v(I+8)}
            v_max_u32 v16, v16, {v(I+12)}
            v_cmp_eq_u32 vcc, -1, v16
            """)
        def mms(p):
            return [f"v_mfma_f32_32x32x16_bf16 {v(96+16*nb,16)}, {v(128+8*(4*p+k)+4*nb,4)}, {v(32+4*(4*p+k),4)}, {v(96+16*nb,16)}"
                    for k in range(4) for nb in range(2)]
        def consume(p, Ls):
            test(p)
            a(f"""
            s_cmp_lg_u64 vcc, 0
            s_cbranch_scc1 {Ls}
            s_bitset0_b32 {s(S_PEND)}, {p}
            """)
            self.emit(mms(p))
            a(f"{Ls}:")
        self.gather_loads(0); self.gather_loads(1)
        a("s_waitcnt vmcnt(4)")
        self.stamp(5)
        test(0)
        for p in range(4):
            a("s_cmp_lg_u64 vcc, 0")
            a(f"s_cbranch_scc1 L_miss")
            a(f"s_bitset0_b32 {s(S_PEND)}, {p}")
            M = mms(p)
            a(M[0])
            if p < 2: self.gather_loads(p+2)
            if p == 1: a(f"ds_write_b32 {v(V_SLOT)}, v19")
            if p == 3: a(f"ds_read_b32 v20, v21")
            self.emit(M[1:7])
            if p < 3:
                a(f"s_waitcnt vmcnt({4 if p < 2 else 0})")
                test(p+1)
            a(M[7])
        a("L_gathered:")
        self.stamp(10)
        Lok = a.label("k")
        a.c("the exchange tiles reuse LDS the A waves have finished reading")
        a(f"""
        s_waitcnt lgkmcnt(0)
        v_cmp_gt_u32 vcc, 40, v20
        s_cmp_eq_u64 vcc, 0
        s_cbranch_scc1 {Lok}
        """)
        self.await_(20, vaddr=21, val="40", sleep=0)
        a(f"{Lok}:")
        self.add64(T+2, S_OUTB, 16384)
        a("s_nop 5")
        for nb in range(2):
            for k, ad in enumerate((9, 14, 15, 17)):
                a(f"ds_write_b128 {v(ad)}, {v(96+16*nb+4*k,4)} offset:{128*nb}")
        self.softbar(16, sleep=0)
        for i in range(2):
            for pt in range(2):
                for e, ad in enumerate((3, 24)):
                    a(f"ds_read_b128 {v(32+16*i+8*pt+4*e,4)}, {v(ad)} offset:{2048*i+8192*pt}")
        for i in range(2):
            a(f"s_waitcnt lgkmcnt({4-4*i})")
            for k in range(0, 8, 2): a(f"v_pk_add_f32 {v(32+16*i+k,2)}, {v(32+16*i+k,2)}, {v(32+16*i+8+k,2)}")
            for k in range(4): a(f"v_cvt_pk_bf16_f32 {v(64+4*i+k)}, {v(32+16*i+2*k)}, {v(32+16*i+2*k+1)}")
            a(f"global_store_dwordx4 {v(self.V_OUT)}, {v(64+4*i,4)}, {s(T+2 if i else S_OUTB,2)} {self.o.get('ostb','sc1')}")
        def retry():
            a("L_miss:")
            a(f"ds_write_b32 {v(V_SLOT)}, v19")
            a("v_mov_b32 v20, 0")
            a("s_waitcnt vmcnt(0)")
            a("L_retry:")
            if self.o.get("rs", 2): a(f"s_sleep {self.o.get('rs', 2)}")
            for p in range(4):
                Ls = a.label("gs")
                a(f"s_bitcmp1_b32 {s(S_PEND)}, {p}")
                a(f"s_cbranch_scc0 {Ls}")
                self.gather_loads(p)
                a(f"{Ls}:")
            a("s_waitcnt vmcnt(0)")
            for p in range(4):
                Ls = a.label("cs")
                a(f"s_bitcmp1_b32 {s(S_PEND)}, {p}")
                a(f"s_cbranch_scc0 {Ls}")
                consume(p, Ls)
            a(f"""
            s_add_u32 {s(T+9)}, {s(T+9)}, 1
            s_cmp_eq_u32 {s(S_PEND)}, 0
            s_cbranch_scc1 L_gathered
            s_cmp_lt_u32 {s(T+9)}, {SPIN_MAX}
            s_cbranch_scc1 L_retry
            s_branch L_gathered
            """)
        self.retry = retry

    def kv_setup(self):
        self.a(f"""
        v_and_b32 v96, 15, v0
        v_and_b32 v97, 3, v0
        v_bfe_u32 v98, v0, 2, 1
        v_lshl_add_u32 v97, v98, 3, v97
        v_bfe_u32 v98, v0, 3, 1
        v_lshl_add_u32 v97, v98, 2, v97
        s_bitcmp1_b32 {s(S_J)}, 0
        s_cselect_b64 vcc, -1, 0
        s_cselect_b32 {s(T+8)}, 1.0, {f32(0.25*LOG2E)}
        v_cndmask_b32 v96, v96, v97, vcc
        v_lshrrev_b32 v98, 4, v0
        v_lshrrev_b32 v97, 1, v96
        v_xor_b32 v97, v97, v98
        v_lshlrev_b32 v96, 7, v96
        v_lshl_add_u32 v96, v97, 4, v96
        s_and_b32 {s(T)}, {s(S_J)}, 6
        s_lshl_b32 {s(T)}, {s(T)}, 10
        v_add_u32 v96, {s(T)}, v96
        v_xor_b32 v97, 64, v96
        v_bfe_u32 v99, v0, 2, 2
        v_lshl_add_u32 v99, v98, 3, v99
        v_lshlrev_b32 v99, 5, v99
        v_and_b32 v100, 3, v0
        v_lshl_add_u32 v99, v100, 3, v99
        v_add_u32 v99, {L_WKV}, v99
        """)
    def kv_compute(self):
        a = self.a
        XF, WF = 128, 160
        LV, LD = a.label("kvv"), a.label("kvd")
        order = [2*sl + h for par in range(2) for sl in range(par, 8, 2) for h in range(2)]
        def rd(n):
            t = order[n]
            a(f"ds_read_b128 {v(XF+4*(n%8),4)}, {v(96+(t&1))} offset:{(t//2)*8192}")
            a(f"ds_read_b64_tr_b16 {v(WF+4*(n%8),2)}, v99 offset:{t*1024}")
            a(f"ds_read_b64_tr_b16 {v(WF+4*(n%8)+2,2)}, v99 offset:{t*1024+128}")
        a(f"s_bitcmp1_b32 {s(S_J)}, 0")
        a(f"s_cbranch_scc1 {LV}")
        for isv in (0, 1):
            if isv: a(f"{LV}:")
            def mm(n):
                x, w = v(XF+4*(n%8),4), v(WF+4*(n%8),4)
                A, B = (x, w) if isv else (w, x)
                a(f"v_mfma_f32_16x16x32_bf16 v[104:107], {A}, {B}, {'0' if n == 0 else 'v[104:107]'}")
            for h in range(2):
                self.await_(20, vaddr=21, val="1", off=16-16*h, sleep=0)
                if h == 0:
                    self.stamp(2); self.stamp(5, "hd")
                for n in range(8*h, 8*h+4):
                    rd(n)
                    if h: mm(n-4)
                for n in range(8*h, 8*h+4):
                    rd(n+4)
                    a("s_waitcnt lgkmcnt(12)")
                    mm(n)
            for n in range(12, 16):
                a(f"s_waitcnt lgkmcnt({3*(15-n)})")
                mm(n)
            if not isv: a(f"s_branch {LD}")
        a(f"""
        {LD}:
        s_nop 7
        v_pk_mul_f32 v[104:105], v[104:105], {s(T+8,2)} op_sel_hi:[1,0]
        v_pk_mul_f32 v[106:107], v[106:107], {s(T+8,2)} op_sel_hi:[1,0]
        v_cvt_pk_bf16_f32 v108, v104, v105
        v_cvt_pk_bf16_f32 v109, v106, v107
        s_nop 1
        v_permlane32_swap_b32 v108, v110
        v_permlane32_swap_b32 v109, v111
        s_mov_b32 exec_hi, 0
        global_store_dwordx4 v101, v[108:111], {s(S_WS,2)} sc1
        s_mov_b32 exec_hi, -1
        """)

    def phi(self, R):
        a = self.a
        TMP = 80
        a(f"s_mov_b32 {s(T)}, {f32(LOG2E)}")
        a(f"s_mov_b32 {s(T+2)}, {f32(1e-6)}")
        for i in range(0, 16, 2): a(f"v_pk_fma_f32 {v(TMP+i,2)}, {v(R+i,2)}, {s(T,2)}, v[18:19] op_sel_hi:[1,0,0]")
        for i in range(16): a(f"v_exp_f32 {v(TMP+i)}, {v(TMP+i)} clamp")
        for i in range(16): a(f"v_max_f32 {v(R+i)}, {s(T+2)}, {v(R+i)}")
        for i in range(0, 16, 2): a(f"v_pk_add_f32 {v(R+i,2)}, {v(R+i,2)}, {v(TMP+i,2)}")
        for i in range(0, 16, 2): a(f"v_cvt_pk_bf16_f32 {v(R+i//2)}, {v(R+i)}, {v(R+i+1)}")

    def roleB(self):
        a = self.a
        RB, HP, WB = S_HI, S_LO, S_W3
        SXM, SWM, SXO, SWO = U, U+1, U+2, U+3
        VX, VW, VO = 26, 240, 28
        XA, WA = 244, 248
        AK, AV, AQ = 32, 48, 64
        F = (96, 160)
        XF = 96
        X, Y = 224, 232
        V_L128, V_SX, V_L4, V_F4 = 10, 11, 12, 15
        VL, SL, SLO, SF1 = 80, 96, 60, 62
        HI, LOW = "s_setprio 3", f"s_setprio {self.o.get('bmm', 0)}"
        a.c("=========================== role B ===========================")
        a("L_roleB:")
        self.inB = True
        Lj = a.label("b")
        a(f"""
        s_lshl_b32 {s(T)}, {s(S_C)}, 8
        s_add_u32 {s(T)}, {s(T)}, {WS_ACC}
        v_lshl_add_u32 v24, v0, 2, {s(T)}
        s_mul_i32 {s(T)}, {s(S_C)}, {KVREC}
        s_add_u32 {s(T)}, {s(T)}, {WS_KV}
        v_add_u32 v101, {s(T)}, {v(V_L16)}
        v_cmp_eq_u32 vcc, 32, v0
        v_mov_b32 v112, 0x3f803f80
        s_nop 0
        v_cndmask_b32 v112, 0, v112, vcc
        v_mov_b32 v113, v112
        v_mov_b32 v114, v112
        v_mov_b32 v115, v112
        """)
        for u in range(4): a(f"v_add_u32 {v(VL+u)}, {8192*u}, v3")
        a(f"s_lshl_b32 {s(T)}, {s(S_LO)}, 6")
        a(f"v_xor_b32 v20, {s(T)}, v2")
        for u in range(3):
            a(f"""
            s_add_u32 {s(T)}, {s(S_J)}, {2+2*u}
            s_and_b32 {s(T)}, {s(T)}, 6
            s_add_u32 {s(T)}, {s(T)}, {s(S_LO)}
            s_lshl_b32 {s(SL+u)}, {s(T)}, 10
            s_lshl_b32 {s(T)}, {s(T)}, 13
            v_add_u32 {v(VL+4+u)}, {s(T)}, v20
            """)
        a(f"""
        s_lshl_b32 {s(SL+3)}, {s(S_LO)}, 12
        s_lshl_b32 {s(SL+4)}, {s(S_G)}, 16
        s_lshl_b32 {s(SLO)}, {s(S_J)}, 7
        s_lshl_b32 {s(T)}, {s(S_LO)}, 15
        s_add_u32 {s(SLO)}, {s(SLO)}, {s(T)}
        """)
        ta = self.o.get("ta", 0)
        if ta:
            a.c("first touch (one dword per line) of this CU's share of what the die reads for the A-side projections")
            a(f"""
            s_and_b32 {s(T)}, {s(S_G)}, 3
            s_lshl_b32 {s(T+1)}, {s(T)}, 10
            s_lshl_b32 {s(T+2)}, {s(S_J)}, 7
            s_add_u32 {s(T+1)}, {s(T+1)}, {s(T+2)}
            s_lshl_b32 {s(T+2)}, {s(S_LO)}, 18
            s_add_u32 {s(T+1)}, {s(T+1)}, {s(T+2)}
            s_lshl_b32 {s(T+2)}, {s(S_C)}, 13
            s_lshl_b32 {s(T)}, {s(T)}, 2
            s_lshr_b32 {s(T+3)}, {s(S_J)}, 1
            s_add_u32 {s(T)}, {s(T)}, {s(T+3)}
            s_lshl_b32 {s(T)}, {s(T)}, 10
            s_cmp_eq_u32 {s(S_W)}, 5
            s_cselect_b32 {s(T)}, {s(T+2)}, {s(T)}
            s_cmp_ge_u32 {s(S_W)}, 6
            s_cselect_b32 {s(T)}, {s(T+1)}, {s(T)}
            s_cselect_b32 {s(T+1)}, 12, 7
            v_lshlrev_b32 v19, {s(T+1)}, v0
            v_add_u32 v19, {s(T)}, v19
            """)
        a("s_waitcnt lgkmcnt(0)")
        if ta:
            Lt4, Lt5, Lte = a.label("t"), a.label("t"), a.label("t")
            a(f"""
            s_cmp_eq_u32 {s(S_W)}, 4
            s_cbranch_scc1 {Lt4}
            s_cmp_eq_u32 {s(S_W)}, 5
            s_cbranch_scc1 {Lt5}
            {f"global_load_dword v19, v19, {s(S_WQ,2)}" if ta != 4 else ""}
            s_branch {Lte}
            {Lt5}:
            {f"global_load_dword v19, v19, {s(S_AX,2)}" if ta == 1 else ""}
            s_branch {Lte}
            {Lt4}:
            s_bitcmp1_b32 {s(S_J)}, 0
            s_cselect_b32 {s(S_WK)}, {s(S_WV)}, {s(S_WK)}
            s_cselect_b32 {s(S_WK+1)}, {s(S_WV+1)}, {s(S_WK+1)}
            s_mov_b64 exec, 0xff
            {f"global_load_dword v19, v19, {s(S_WK,2)}" if ta in (1, 3) else ""}
            s_mov_b64 exec, -1
            {Lte}:
            """)
        Lz = a.label("b")
        a.c("clear this CU's share of the state accumulators (ordered before the K/V flag)")
        a(f"""
        s_cmp_lg_u32 {s(S_W)}, 4
        s_cbranch_scc1 {Lz}
        global_store_dword v24, {v(V_ZERO)}, {s(S_WS,2)} sc1
        s_mov_b32 exec_lo, {-1 if self.o.get("pre", 1) == 1 else 0}
        s_mov_b32 exec_hi, 0xff
        global_store_dwordx4 v101, v[112:115], {s(S_WS,2)} sc1
        s_mov_b64 exec, -1
        {Lz}:
        s_lshr_b32 {s(T)}, {s(S_C)}, 2
        s_lshl_b32 {s(T)}, {s(T)}, 7
        s_and_b32 {s(T+1)}, {s(S_C)}, 3
        s_lshl_b32 {s(T+1)}, {s(T+1)}, 2
        s_add_u32 {s(T)}, {s(T)}, {s(T+1)}
        s_add_u32 {s(T)}, {s(T)}, {WS_F1}
        s_add_u32 {s(S_WV)}, {s(S_WS)}, {s(T)}
        s_addc_u32 {s(S_WV+1)}, {s(S_WS+1)}, 0
        s_load_dword s53, {s(S_WV,2)}, 0
        s_load_dword {s(S_TAG)}, {s(S_WS,2)}, {WS_G}
        """)
        a(f"s_getpc_b64 {s(S_PC,2)}")
        self.stamp(1)
        a("s_barrier")
        self.stamp(1, "hd")
        def setup():
            a.c("---- B-side setup, all in the shadow of the head")
            a(f"""
            v_mov_b32 {v(VX)}, v2
            v_xor_b32 {v(VX+1)}, 64, v2
            v_add_u32 {v(VX+1)}, 8192, {v(VX+1)}
            v_mul_u32_u24 {v(VW)}, 3072, v8
            v_add_u32 {v(VW)}, {v(VW)}, v9
            v_mov_b32 {v(VO)}, v3
            """)
            for i in range(1, 4):
                a(f"v_add_u32 {v(VW+i)}, {24576*i}, {v(VW)}")
                a(f"v_add_u32 {v(VO+i)}, {8192*i}, v3")
            self.xfrag_addr(XA, RB, 20)
            self.wfrag_addr(WA, 20)
            self.tail_addr(L_X, 0, WS_OB, 0, 20)
            a(f"""
            s_lshl_b32 {s(T)}, {s(S_W3)}, 13
            s_add_u32 {s(T)}, {s(T)}, {L_W}
            v_lshrrev_b32 v20, 5, v0
            v_lshlrev_b32 v20, 2, v20
            v_and_b32 v21, 7, v0
            v_xor_b32 v20, v20, v21
            v_and_b32 v22, 31, v0
            v_lshl_add_u32 v22, v22, 8, {s(T)}
            v_lshl_add_u32 v9, v20, 4, v22
            v_xor_b32 v14, 16, v9
            v_xor_b32 v15, 32, v9
            v_xor_b32 v17, 48, v9
            s_lshl_b32 {s(T)}, {s(S_HI)}, 14
            s_lshl_b32 {s(T+1)}, {s(S_LO)}, 12
            s_add_u32 {s(T)}, {s(T)}, {s(T+1)}
            s_add_u32 {s(T)}, {s(T)}, {L_W}
            v_lshrrev_b32 v20, 3, v0
            v_lshlrev_b32 v21, 1, v21
            v_xor_b32 v21, v21, v20
            v_lshl_add_u32 v20, v20, 8, {s(T)}
            v_lshl_add_u32 v3, v21, 4, v20
            v_xor_b32 v24, 16, v3
            """)
            a(f"""
            s_lshl_b32 {s(SXM)}, {s(WB)}, 11
            s_lshl_b32 {s(SWM)}, {s(WB)}, 12
            s_lshl_b32 {s(SXO)}, {s(S_G)}, 16
            s_lshl_b32 {s(T)}, {s(WB)}, 14
            s_add_u32 {s(SXO)}, {s(SXO)}, {s(T)}
            s_mul_i32 {s(SWO)}, {s(HP)}, {32*3072}
            s_lshl_b32 {s(T)}, {s(S_J)}, 7
            s_add_u32 {s(SWO)}, {s(SWO)}, {s(T)}
            s_mov_b32 {s(T)}, {f32(1e-6)}
            s_mov_b32 {s(T+1)}, {f32(1e-6)}
            s_mov_b32 {s(T+2)}, 0x3f803f80
            s_mov_b32 {s(T+3)}, 0x3f803f80
            """)
            for i in range(0, 16, 2):
                a(f"v_mov_b64 {v(AK+i,2)}, {s(T,2)}")
                a(f"v_mov_b64 {v(AQ+i,2)}, {s(T,2)}")
                if i < 4: a(f"v_mov_b64 {v(X+i,2)}, {s(T+2,2)}")
            a(f"""
            v_mov_b32 v18, {f32(-1e-6*LOG2E)}
            v_mov_b64 v[252:253], -1
            v_mov_b64 v[254:255], -1
            v_mov_b32 v25, 63
            v_mul_u32_u24 v250, 12288, v0
            v_lshlrev_b32 v251, 12, v0
            v_lshlrev_b32 {v(V_L128)}, 7, v0
            s_lshl_b32 {s(T)}, {s(WB)}, 10
            s_add_u32 {s(T)}, {s(T)}, {L_MISC+0x1000}
            v_add_u32 {v(V_SX)}, {s(T)}, {v(V_L16)}
            v_xor_b32 {v(X+4)}, 2048, {v(V_SX)}
            v_and_b32 v20, 15, v0
            v_bfe_u32 v21, v0, 4, 1
            v_lshlrev_b32 v22, 11, v21
            v_lshl_add_u32 {v(X+5)}, v20, 2, v22
            v_lshrrev_b32 v22, 5, v0
            v_lshl_add_u32 {v(X+6)}, v22, 8, {v(X+5)}
            s_lshl_b32 {s(T)}, {s(RB)}, 9
            v_add_u32 {v(X+6)}, {s(T)}, {v(X+6)}
            v_and_b32 v20, 31, v0
            v_min_u32 v20, 16, v20
            v_lshlrev_b32 v20, 6, v20
            v_lshl_add_u32 {v(V_L4)}, v22, 4, v20
                """)
            self.add64(SF1, S_WS, WS_F1)
        def tag():
            a(f"""
            s_waitcnt lgkmcnt(0)
            s_add_u32 {s(S_TAG)}, {s(S_TAG)}, 0x9e3779b9
            v_mov_b32 {v(V_TAG)}, {s(S_TAG)}
            """)
        def touch(spec):
            kind, lo, hi = spec
            if kind == "x":
                m = sum(1 << e for e in range(lo, hi)) * 0x01010101
                a(f"s_lshl_b32 {s(T)}, {s(S_C)}, 13")
                self.add64(T+2, S_BX, s(T))
                mlo = mhi = m; vr = V_L128
            else:
                base, rs, col = {"q": (S_WQKV, 3072, 0), "k": (S_WQKV, 3072, 1024), "v": (S_WQKV, 3072, 2048),
                                 "a": (S_AWO, 1024, 0), "b": (S_BWO, 1024, 0)}[kind]
                h = lo // 4
                m = sum(0xffff << (16*(e - 4*h)) for e in range(lo, hi))
                mlo, mhi = m & 0xffffffff, m >> 32
                a(f"""
                s_and_b32 {s(T)}, {s(S_G)}, 3
                s_mul_i32 {s(T)}, {s(T)}, {rs}
                s_lshl_b32 {s(T+1)}, {s(S_J)}, 7
                s_add_u32 {s(T)}, {s(T)}, {s(T+1)}
                s_add_u32 {s(T)}, {s(T)}, {h*256*rs + col}
                """)
                self.add64(T+2, base, s(T))
                vr = 250 if rs == 3072 else 251
            a(f"s_mov_b32 exec_lo, {mlo:#x}")
            a(f"s_mov_b32 exec_hi, {mhi:#x}")
            a(f"global_load_dword v19, {v(vr)}, {s(T+2,2)}")
            a("s_mov_b64 exec, -1")
        def touch_round(specs):
            Le = a.label("t")
            for w, sp in enumerate(specs):
                Ln = a.label("t")
                if w < 3:
                    a(f"s_cmp_lg_u32 {s(WB)}, {w}")
                    a(f"s_cbranch_scc1 {Ln}")
                if sp: touch(sp)
                else: a(f"global_load_dword v19, {v(V_ZERO)}, {s(S_WQKV,2)}")
                if w < 3: a(f"s_branch {Le}")
                a(f"{Ln}:")
            a(f"{Le}:")
        M4, M5, Mc, Ms = a.label("b"), a.label("b"), a.label("b"), a.label("b")
        self.stamp(2, "hd")
        a(f"""
        s_cmp_lt_u32 {s(S_W)}, 6
        s_cbranch_scc1 {M4}
        """)
        a.c("---- waves 6, 7 stream the rest of x and wq, one k-slot at a time")
        if ta == 4: a(f"global_load_dword v19, v19, {s(S_WQ,2)}")
        Ll = a.label("ld")
        a(f"""
        s_mov_b32 {s(T+6)}, 0
        s_lshl_b32 {s(T+7)}, {s(S_W3)}, 2
        {Ll}:
        s_add_u32 {s(T)}, {s(S_KC0)}, {s(T+6)}
        s_and_b32 {s(T)}, {s(T)}, 7
        s_lshl_b32 {s(T+1)}, {s(T)}, 16
        s_add_u32 {s(T+1)}, {s(T+1)}, {s(SLO)}
        """)
        self.add64(T+2, S_WQ, s(T+1))
        a(f"s_lshl_b32 {s(T)}, {s(T)}, 7")
        a(f"s_add_u32 {s(T)}, {s(T)}, {s(SL+4)}")
        self.add64(T+4, S_AX, s(T))
        for u in range(4): self.emit(self.dma(VL+u, T+2, SL+3, L_W + u*1024))
        for u in range(3):
            a(f"s_mov_b32 m0, {s(SL+u)}")
            a(f"s_add_u32 {s(SL+u)}, {s(SL+u)}, 8192")
            a(f"global_load_lds_dwordx4 {v(VL+4+u)}, {s(T+4,2)}")
        a(f"""
        s_add_u32 m0, {s(T+7)}, {L_MK}
        s_mov_b64 exec, 1
        global_load_lds_dword {v(V_ZERO)}, {s(S_PC,2)}
        s_mov_b64 exec, -1
        s_add_u32 {s(T+7)}, {s(T+7)}, 16
        s_add_u32 {s(SL+3)}, {s(SL+3)}, 8192
        s_add_u32 {s(T+6)}, {s(T+6)}, 1
        """)
        if self.o.get("hb"):
            Lh = a.label("h")
            a(f"s_cmp_lg_u32 {s(T+6)}, {self.o['hb']}")
            a(f"s_cbranch_scc1 {Lh}")
            a(f"v_mov_b32 v21, {L_MK+112}")
            self.await_(20, vaddr=21, val="1", sleep=0)
            a(f"{Lh}:")
        a(f"""
        s_waitcnt vmcnt(48)
        s_cmp_lt_u32 {s(T+6)}, 8
        s_cbranch_scc1 {Ll}
        {M4}:
        """)
        self.stamp(3, "hd")
        a(f"s_cmp_lg_u32 {s(S_W)}, 4")
        a(f"s_cbranch_scc1 {M5}")
        a.c("---- wave 4: this CU's 16 x 16 piece of K or V")
        a("s_setprio 3")
        a(f"v_mov_b32 v102, {L_MK}")
        self.kv_setup()
        a(f"v_add_u32 v21, {L_MK-L_SYNC+128-16}, {v(V_ALL)}")
        self.stamp(4, "hd")
        self.kv_compute()
        self.stamp(6, "hd")
        a("ds_write_b32 v102, v102 offset:112")
        a.c("publish: only this wave writes the word, so adding the difference sets it to the tag")
        a(f"s_sub_u32 s53, {s(S_TAG)}, s53")
        a(f"s_add_u32 s53, s53, 0x9e3779b9")
        a("s_setprio 0")
        a("s_waitcnt vmcnt(0)")
        a(f"s_atomic_add s53, {s(S_WV,2)}, 0 glc")
        self.stamp(11)
        self.stamp(7, "hd")
        a(f"{M5}:")
        setup()
        tag()
        a(f"s_cmp_lg_u32 {s(S_W)}, 5")
        a(f"s_cbranch_scc1 {Mc}")
        a.c("---- wave 5: the first key tiles must have been published")
        a(f"""
        s_add_u32 {s(T)}, {s(S_XCD)}, 1
        s_lshl_b32 {s(T)}, {s(T)}, 3
        v_add_u32 v22, {s(T)}, v0
        v_and_b32 v22, 63, v22
        v_lshlrev_b32 v22, 7, v22
        v_mov_b32 v21, {L_MK+8}
        """)
        self.await_(20, vaddr=21, val="1", off=16*self.o.get("pw", 6), sleep=1)
        self.stamp(8, "hd")
        a("s_mov_b64 exec, 0xffff")
        self.poll4(22, SF1, 88, sleep=self.o.get("ps1", 1))
        self.stamp(9, "hd")
        a("s_mov_b64 exec, -1")
        a(f"{Mc}:")
        a("s_barrier")
        a(f"s_mov_b32 {s(S_EPOCH)}, 8")
        rb = self.o.get("rotB", 1)
        if rb == 0: a(f"s_mov_b32 {s(S_KC0)}, 0")
        if rb == 2:
            a(f"s_and_b32 {s(S_KC0)}, {s(S_G)}, 3")
            a(f"s_lshl_b32 {s(S_KC0)}, {s(S_KC0)}, 1")
        a(f"s_lshl_b32 {s(T)}, {s(WB)}, 11")
        self.add64(SF1, SF1, s(T))
        a(f"""
        s_lshl_b32 {s(T)}, {s(S_J)}, 12
        s_add_u32 {s(T)}, {s(T)}, {WS_F2}
        """)
        self.add64(8, S_WS, s(T))
        a(f"""
        s_lshl_b32 {s(T)}, {s(S_G)}, 1
        s_add_u32 {s(T)}, {s(T)}, {s(RB)}
        s_lshl_b32 {s(T)}, {s(T)}, 1
        s_lshr_b32 {s(T+1)}, {s(S_J)}, 2
        s_add_u32 {s(T+1)}, {s(T+1)}, {s(T)}
        s_mul_i32 {s(T+1)}, {s(T+1)}, {2*KVREC}
        s_add_u32 {s(T+1)}, {s(T+1)}, {WS_KV+C4_OFF}
        """)
        self.add64(10, S_WS, s(T+1))
        a(f"""
        s_add_u32 {s(T)}, {s(T)}, {s(HP)}
        s_mul_i32 {s(T)}, {s(T)}, {2*KVREC}
        s_add_u32 {s(T)}, {s(T)}, {WS_KV+C4_OFF}
        """)
        self.add64(12, S_WS, s(T))
        self.stamp(4)
        a("s_barrier")
        self.stamp(5)
        a("s_branch L_bodyB")
        a("L_cutB:")
        a("L_bodyB:")
        a(LOW)
        if self.o.get("noB"):
            a(f"ds_write_b32 {v(V_SLOT)}, v25 offset:48")
            a(f"s_mov_b32 {s(S_EPOCH)}, {E_CLR-1}")
            self.arrive(20)
            a("s_branch L_Bend")
        vm = []
        def vmwait(label):
            n = len(vm) - 1 - max(i for i, x in enumerate(vm) if x == label)
            a(f"s_waitcnt vmcnt({n})")
            return n
        def loads(st):
            G = []
            slot = L_W + (st % 4)*16384
            if st < 8:
                pre = [f"s_add_u32 {s(T)}, {s(S_KC0)}, {st}",
                       f"s_and_b32 {s(T)}, {s(T)}, 7",
                       f"s_lshl_b32 {s(T+1)}, {s(T)}, 7",
                       f"s_add_u32 {s(T+1)}, {s(T+1)}, {s(SXO)}",
                       f"s_add_u32 {s(T+2)}, {s(S_BX)}, {s(T+1)}",
                       f"s_addc_u32 {s(T+3)}, {s(S_BX+1)}, 0"]
                G.append(pre + self.dma(VX, T+2, SXM, L_X + st*8192))
                G.append(self.dma(VX+1, T+2, SXM, L_X + st*8192 + 1024))
                pre = [f"s_mul_i32 {s(T)}, {s(T)}, {64*3072}",
                       f"s_add_u32 {s(T)}, {s(T)}, {s(SWO)}",
                       f"s_lshl_b32 {s(T+1)}, {s(RB)}, 10",
                       f"s_add_u32 {s(T)}, {s(T)}, {s(T+1)}",
                       f"s_add_u32 {s(T)}, {s(T)}, 1024",
                       f"s_add_u32 {s(T+2)}, {s(S_WQKV)}, {s(T)}",
                       f"s_addc_u32 {s(T+3)}, {s(S_WQKV+1)}, 0"]
                for i in range(4): G.append((pre if i == 0 else []) + self.dma(VW+i, T+2, SWM, slot + i*1024))
            elif st < 12:
                pre = [f"s_add_u32 {s(T)}, {s(S_KC0)}, {s(RB)}",
                       f"s_add_u32 {s(T)}, {s(T)}, {2*(st-8)}",
                       f"s_and_b32 {s(T)}, {s(T)}, 7",
                       f"s_mul_i32 {s(T)}, {s(T)}, {64*3072}",
                       f"s_add_u32 {s(T)}, {s(T)}, {s(SWO)}",
                       f"s_add_u32 {s(T+2)}, {s(S_WQKV)}, {s(T)}",
                       f"s_addc_u32 {s(T+3)}, {s(S_WQKV+1)}, 0"]
                for i in range(4): G.append((pre if i == 0 else []) + self.dma(VW+i, T+2, SWM, slot + i*1024))
            else:
                base, L = (S_AWO, L_X) if st < 16 else (S_BWO, L_W)
                u = st % 4
                pre = [f"s_add_u32 {s(T)}, {s(S_G)}, {u}",
                       f"s_and_b32 {s(T)}, {s(T)}, 3",
                       f"s_lshl_b32 {s(T)}, {s(T)}, 2",
                       f"s_add_u32 {s(T)}, {s(T)}, {s(WB)}",
                       f"s_lshl_b32 {s(T)}, {s(T)}, 8",
                       f"s_add_u32 {s(T)}, {s(T)}, {s(S_J)}",
                       f"s_lshl_b32 {s(T)}, {s(T)}, 7",
                       f"s_add_u32 {s(T+2)}, {s(base)}, {s(T)}",
                       f"s_addc_u32 {s(T+3)}, {s(base+1)}, 0"]
                for i in range(4): G.append((pre if i == 0 else []) + self.dma(VO+i, T+2, SWM, L + u*16384 + i*1024))
            return G
        done = set()
        def put(st, g):
            thr = self.o.get("thr", 5) if st < 12 else self.o.get("wthr", 4)
            done.add(st)
            if thr: g = [x if x != "s_nop 0" else f"s_waitcnt vmcnt({thr-1})" for x in g]
            self.emit(g); vm.append(st)
        def reads(st):
            R = []; B = F[st % 2]; slot = (st % 4)*16384
            if st < 8:
                for t in range(4):
                    R.append(f"ds_read_b128 {v(B+12*t,4)}, {v(XA+t)} offset:{st*8192}")
                    for k in range(2):
                        for sx in range(2):
                            R.append(f"ds_read_b64_tr_b16 {v(B+12*t+4+4*k+2*sx,2)}, {v(WA)} offset:{slot + k*8192 + t*2048 + sx*256}")
            else:
                for t in range(8):
                    R.append(f"ds_read_b128 {v(B+8*t,4)}, {v(XA+(t&3))} offset:{(2*(st-8)+t//4)*8192}")
                    for sx in range(2):
                        R.append(f"ds_read_b64_tr_b16 {v(B+8*t+4+2*sx,2)}, {v(WA)} offset:{slot + t*2048 + sx*256}")
            return R
        def mfmas(st):
            M = []; B = F[st % 2]
            if st < 8:
                for t in range(4):
                    for k, acc in enumerate((AK, AV)):
                        c = "0" if (acc == AV and st == 0 and t == 0) else v(acc,16)
                        M.append(f"v_mfma_f32_32x32x16_bf16 {v(acc,16)}, {v(B+12*t,4)}, {v(B+12*t+4+4*k,4)}, {c}")
            else:
                for t in range(8):
                    M.append(f"v_mfma_f32_32x32x16_bf16 {v(AQ,16)}, {v(B+8*t+4,4)}, {v(B+8*t,4)}, {v(AQ,16)}")
            return M
        def arrive():
            a(HI); self.arrive(20); a(LOW)
        def iteration(i, after=None):
            M = mfmas(i)
            R = reads(i+1) if i < 11 else []
            G = [(st, g) for st in self.o.get("sched", {9: [12], 10: [13], 11: [14]}).get(i, [i+4] if i < 8 else []) for g in loads(st)]
            Lok = a.label("ok")
            self.stamp(i+1, "it")
            a(f"ds_read_b32 v21, {v(V_ALL)}")
            a("s_waitcnt lgkmcnt(2)")
            a(M[0])
            a(f"""
            s_waitcnt lgkmcnt(0)
            {HI}
            v_cmp_gt_u32 vcc, {s(S_EPOCH)}, v21
            s_cmp_eq_u64 vcc, 0
            s_cbranch_scc1 {Lok}
            """)
            self.await_(21)
            a(f"{Lok}:")
            a(LOW)
            if i == self.o.get("fi", 8) + 1:
                Lf = a.label("b")
                a(f"s_cmp_lg_u32 {s(WB)}, 0")
                a(f"s_cbranch_scc1 {Lf}")
                a(f"s_lshl_b32 {s(T)}, {s(S_G)}, 7")
                self.add64(T+2, 8, s(T))
                a("s_mov_b64 exec, 1")
                a(f"global_store_dword {v(V_ZERO)}, {v(V_TAG)}, {s(T+2,2)} sc1")
                a("s_mov_b64 exec, -1")
                a(f"{Lf}:")
                self.stamp(7)
            nr = -(-len(R) // 5); ng = -(-len(G) // 5)
            for k in range(1, 8):
                if k <= 5:
                    for x in R[(k-1)*nr:k*nr]: a(x)
                    for st, g in G[(k-1)*ng:k*ng]: put(st, g)
                if k == 6 and i < 11:
                    if i < 6: self.stamp(2*i+1, "vm")
                    if i == self.o.get("fi", 8):
                        vmwait("part")
                        a(f"s_mov_b32 {s(S_EPOCH)}, {E_CLR-1}")
                    elif i + 2 <= 11 and i < self.o.get("fi", 8): vmwait(i+2)
                    if i < 6: self.stamp(2*i+2, "vm")
                    arrive()
                a(M[k])
            if i in self.o.get("tr", {}):
                touch_round(self.o["tr"][i]); vm.append("t")
            if after: after()
        a.c("---- B: k,v projections")
        a("s_mov_b64 exec, 0xffff")
        a(f"global_load_dwordx4 v[88:91], {v(V_L128)}, {s(SF1,2)} sc1"); vm.append("poll")
        a("s_mov_b64 exec, -1")
        G0 = [(st, g) for st in (0, 1) for g in loads(st)]
        for st, g in G0[:2]: put(st, g)
        Lr = a.label("b")
        vmwait("poll")
        a(HI)
        a("s_mov_b64 exec, 0xffff")
        self.check4(88)
        a(f"s_cbranch_scc1 {Lr}")
        self.poll4(V_L128, SF1, 88, sleep=4)
        a(f"{Lr}:")
        a("s_mov_b64 exec, -1")
        a(f"ds_write_b32 {v(V_SLOT)}, v25 offset:48")
        a(LOW)
        for st, g in G0[2:]: put(st, g)
        vmwait(0)
        a(HI)
        self.arrive(20)
        pro = self.o.get("pro", 4)
        if pro >= 3:
            for g in loads(2): put(2, g)
        self.await_(21)
        self.stamp(6)
        self.emit(reads(0))
        vmwait(1)
        self.arrive(20)
        a(LOW)
        if pro >= 4:
            for g in loads(3): put(3, g)
        if -1 in self.o.get("tr", {}):
            touch_round(self.o["tr"][-1]); vm.append("t")
        def clr():
            a.c("mark the A-side output images of the matching wave as not yet written")
            a(f"s_sub_u32 {s(T)}, {s(S_WS)}, {WS_OB-WS_OA}")
            a(f"s_subb_u32 {s(T+1)}, {s(S_WS+1)}, 0")
            a(f"global_store_dwordx4 {v(self.V_IMG)}, v[252:255], {s(T,2)} sc1")
            a(f"global_store_dwordx4 {v(self.V_IMG)}, v[252:255], {s(T,2)} offset:1024 sc1")
            vm.append("clr"); vm.append("clr")
        for i in range(8): iteration(i, clr if i == self.o.get("ci", 7) else None)
        a.c("---- B: phi(k), partial state: rows (head, e) x columns (head, d), and the column sums z")
        a(f"""
        s_lshl_b32 {s(T)}, {s(S_J)}, 1
        s_add_u32 {s(T)}, {s(T)}, {s(HP)}
        s_lshl_b32 {s(T)}, {s(T)}, 12
        s_add_u32 {s(T)}, {s(T)}, {WS_ACC}
        """)
        self.add64(T+4, S_WS, s(T))
        a("s_nop 3")
        a(HI)
        self.phi(AK)
        for i in range(8): a(f"v_cvt_pk_bf16_f32 {v(AV+i)}, {v(AV+2*i)}, {v(AV+2*i+1)}")
        D0, D1 = F[1], F[1]+16
        LK, LJ, LK2, LJ2 = a.label("k1"), a.label("kj"), a.label("k2"), a.label("kj2")
        a(f"""
        {LOW}
        s_nop 0
        v_mfma_f32_32x32x16_bf16 {v(D0,16)}, {v(AV,4)}, {v(AK,4)}, 0
        v_mfma_f32_32x32x16_bf16 {v(D0,16)}, {v(AV+4,4)}, {v(AK+4,4)}, {v(D0,16)}
        v_mfma_f32_32x32x16_bf16 {v(D1,16)}, {v(X,4)}, {v(AK,4)}, 0
        v_mfma_f32_32x32x16_bf16 {v(D1,16)}, {v(X,4)}, {v(AK+4,4)}, {v(D1,16)}
        s_nop 4
        {HI}
        s_mov_b32 exec_lo, 0xffff
        s_mov_b32 exec_hi, 0xffff
        s_cmp_eq_u32 {s(RB)}, 0
        s_cbranch_scc0 {LK}
        ds_write_b128 {v(V_SX)}, {v(D0+4,4)}
        s_not_b64 exec, exec
        ds_write_b128 {v(V_SX)}, {v(D0+12,4)}
        s_branch {LJ}
        {LK}:
        ds_write_b128 {v(V_SX)}, {v(D0,4)}
        s_not_b64 exec, exec
        ds_write_b128 {v(V_SX)}, {v(D0+8,4)}
        {LJ}:
        s_mov_b64 exec, -1
        """)
        self.softbar(20)
        a(f"""
        ds_read_b128 {v(AK,4)}, {v(X+4)}
        s_mov_b32 exec_lo, 0xffff
        s_mov_b32 exec_hi, 0xffff
        s_cmp_eq_u32 {s(RB)}, 0
        s_waitcnt lgkmcnt(0)
        s_cbranch_scc0 {LK2}
        """)
        for rbv, lab in ((0, None), (1, LK2)):
            if lab: a(f"{lab}:")
            for h in range(2):
                for i in (0, 2): a(f"v_pk_add_f32 {v(AK+i,2)}, {v(AK+i,2)}, {v(D0+8*h+4*rbv+i,2)}")
                if h == 0: a("s_not_b64 exec, exec")
            if not lab: a(f"s_branch {LJ2}")
        a(f"{LJ2}:")
        a("s_mov_b64 exec, -1")
        for i in range(4):
            a(f"global_atomic_add_f32 {v(X+6)}, {v(AK+i)}, {s(T+4,2)} offset:{64*i} sc1"); vm.append("part")
        a("s_mov_b32 exec_hi, 0")
        a(f"global_atomic_add_f32 {v(X+5)}, {v(D1)}, {s(T+4,2)} offset:1024 sc1"); vm.append("part")
        a("s_mov_b32 exec_hi, -1")
        a(LOW)
        self.stamp(3)
        a.c("---- B: q projection")
        for i in range(8, 12): iteration(i)
        todo = [st for st in range(12, 20) if st not in done]
        def more(n=1):
            for _ in range(n):
                if todo:
                    st = todo.pop(0)
                    for g in loads(st): put(st, g)
        self.stamp(1, "hop")
        a("s_nop 8")
        more()
        a(HI); self.phi(AQ); a(LOW)
        more(self.o.get("pre2", 0))
        self.stamp(2, "hop")
        a.c("---- B: the summed state, the normalised output images")
        D0, D1 = AK, AV
        a(f"""
        s_lshl_b32 {s(T)}, {s(S_J)}, 1
        s_add_u32 {s(T)}, {s(T)}, {s(HP)}
        s_lshl_b32 {s(T)}, {s(T)}, 12
        s_add_u32 {s(T)}, {s(T)}, {WS_ACC}
        """)
        self.add64(T+4, S_WS, s(T))
        LR = a.label("nr")
        a(f"""
        {HI}
        s_cmp_lg_u32 {s(WB)}, 1
        s_cbranch_scc1 {LR}
        s_mov_b32 exec_hi, 0
        """)
        self.poll(V_L128, 8, [0], 21, sleep=8)
        a("s_mov_b32 exec_hi, -1")
        a(f"{LR}:")
        self.softbar(20, sleep=2)
        a(LOW)
        self.stamp(3, "hop")
        self.stamp(8)
        for i in range(4):
            a(f"global_load_dwordx4 {v(XF+4*i,4)}, {v(V_L4)}, {s(T+4,2)} offset:{2048*(i//2)+32*(i%2)} sc1"); vm.append("state")
        more()
        vmwait("state")
        self.stamp(4, "hop")
        a(HI)
        for i in range(8): a(f"v_cvt_pk_bf16_f32 {v(XF+i)}, {v(XF+2*i)}, {v(XF+2*i+1)}")
        a(f"""
        s_nop 1
        v_mfma_f32_32x32x16_bf16 {v(D0,16)}, {v(XF,4)}, {v(AQ,4)}, 0
        v_mfma_f32_32x32x16_bf16 {v(D1,16)}, {v(XF+4,4)}, {v(AQ+4,4)}, 0
        s_nop 7
        s_nop 3
        v_add_f32 {v(D0+8)}, {f32(1e-6)}, {v(D0+8)}
        v_add_f32 {v(D1+8)}, {f32(1e-6)}, {v(D1+8)}
        """)
        self.normalize([(D0, D0+8), (D1, D1+8)], 80, guard=False)
        vm.append("ob"); vm.append("ob")
        a(LOW)
        self.stamp(5, "hop")
        more()
        vmwait("ob")
        self.count(10)
        self.stamp(6, "hop")
        self.stamp(12)
        while any(st < 16 for st in todo): more()
        more()
        vmwait(15)
        arrive()
        more()
        a(HI)
        self.await_(20)
        self.outproj_wfrags()
        self.arrive(20)
        a(LOW)
        more()
        if self.o.get("touch", 0):
            a(HI)
            a("v_lshlrev_b32 v22, 10, v0")
            a(LOW)
            a("s_mov_b32 exec_hi, 0")
            a(f"global_load_dword v22, v22, {s(S_OUTB,2)}")
            a("s_mov_b32 exec_hi, -1")
        self.count_peek(12, T+8)
        more(4)
        self.stamp(7, "hop")
        self.count_wait(12, T+8, 8)
        a(HI)
        self.await_(20)
        self.stamp(8, "hop")
        a.c("---- B: the group's o_B images go to LDS for the A waves")
        a(f"""
        s_lshl_b32 {s(SWM)}, {s(RB)}, 15
        s_lshl_b32 {s(SWO)}, {s(HP)}, 14
        s_lshl_b32 {s(T)}, {s(S_G)}, 13
        s_sub_u32 {s(SWO)}, {s(SWO)}, {s(T)}
        """)
        ot = self.o.get("othr", 6)
        for p in range(4):
            a(f"""
            s_add_u32 {s(T)}, {s(S_J)}, {p}
            s_and_b32 {s(T)}, {s(T)}, 3
            s_lshl_b32 {s(T)}, {s(T)}, 12
            s_add_u32 {s(T+1)}, {s(T)}, {s(SWO)}
            s_and_b32 {s(T+1)}, {s(T+1)}, 0x7fff
            s_add_u32 m0, {s(SWM)}, {s(T+1)}
            s_add_u32 {s(T)}, {s(T)}, {WS_OB-WS_OA}
            """)
            self.add64(T+2, S_IMG, s(T))
            for k in range(4):
                a(f"s_waitcnt vmcnt({ot-1})")
                a(f"global_load_lds_dwordx4 {v(V_L16)}, {s(T+2,2)} offset:{k*1024} sc1")

        self.newpage("Bend")
        for p in range(4):
            a(f"s_add_u32 {s(T)}, {s(S_J)}, {p}")
            a(f"s_and_b32 {s(T)}, {s(T)}, 3")
            a(f"s_lshl_b32 {s(T)}, {s(T)}, 12")
            self.add64(8+2*p, S_IMG, s(T))
        a(f"s_mov_b32 {s(S_PEND)}, 15")
        a(f"s_mov_b32 {s(T+9)}, 0")
        a(f"v_add_u32 v21, -16, {v(V_ALL)}")
        a(f"s_mul_i32 {s(T)}, {s(S_G)}, {8*KVREC}")
        a(f"s_add_u32 {s(T)}, {s(T)}, {WS_KV+C4_OFF+32}")
        self.add64(T+4, S_WS, s(T))
        a(HI)
        a("s_waitcnt vmcnt(0) lgkmcnt(0)")
        self.stamp(9)
        self.stamp(9, "hop")
        a.c("tell the group when this CU is about to publish (a timing hint only)")
        Ln = a.label("b")
        a(f"s_cmp_lg_u32 {s(WB)}, 1")
        a(f"s_cbranch_scc1 {Ln}")
        self.await_(20, vaddr=21, val=str(E_CLR), sleep=self.o.get("aws", 1))
        self.count(T+4)
        a(f"{Ln}:")
        a("s_barrier")
        a.c("every wave of the grid has used this launch's tag by now: advance the generation word")
        Lg = a.label("b")
        a(f"""
        s_lshl_b32 {s(T)}, s2, 2
        s_add_u32 {s(T)}, {s(T)}, {s(WB)}
        s_cmp_lg_u32 {s(T)}, 0
        s_cbranch_scc1 {Lg}
        s_mov_b64 exec, 1
        global_store_dword {v(V_ZERO)}, {v(V_TAG)}, {s(S_WS,2)} offset:{WS_G} sc1
        s_mov_b64 exec, -1
        {Lg}:
        """)
        a.c("start fetching only when the whole group is about to publish (reads that meet the writes are slow)")
        for i in range(0, 32, 2): a(f"v_mov_b64 {v(96+i,2)}, 0")
        a(f"v_and_b32 v22, 4, v0")
        a(f"v_lshl_add_u32 v22, v22, 2, v21")
        Ln = a.label("b")
        a(f"s_cmp_lg_u32 {s(WB)}, 1")
        a(f"s_cbranch_scc1 {Ln}")
        a("s_waitcnt lgkmcnt(0)")
        a(f"s_add_u32 {s(T+8)}, {s(T+11)}, 1")
        self.count_wait(T+4, T+8, 8, sleep=self.o.get("anns", 0))
        a(f"{Ln}:")
        a(f"s_mov_b32 {s(S_EPOCH)}, 38")
        self.arrive(20)
        a("v_mov_b32 v19, 40")
        self.await_(20, vaddr=22, sleep=0)
        a(f"s_mov_b32 {s(S_EPOCH)}, 40")
        self.stamp(4)

    def finish(self):
        a = self.a
        a("L_fin:")
        if self.o.get("spin"):
            m = self.o.get("meas")
            a(f"s_mov_b32 s72, {self.o['spin']}")
            if m:
                if 13 in m[:2]:
                    a("s_waitcnt vmcnt(0)")
                    self.stamp(13)
                a(f"""
                s_waitcnt lgkmcnt(0)
                s_sub_u32 s70, s70, s68
                s_mul_i32 s70, s70, 10
                s_min_u32 s70, s70, 30000
                s_cmp_eq_u32 {s(S_W)}, {m[2]}
                s_cselect_b32 s70, s70, 0
                s_lshr_b32 s73, s2, 3
                s_cmp_eq_u32 s73, {m[3]}
                s_cselect_b32 s70, s70, 0
                s_add_u32 s72, s72, s70
                """)
            a(f"""
            L_spin:
            s_memrealtime s[66:67]
            s_waitcnt lgkmcnt(0)
            s_sub_u32 s66, s66, s64
            s_cmp_lt_u32 s66, s72
            s_cbranch_scc1 L_spin
            """)
        if self.stamps:
            a("s_waitcnt vmcnt(0)")
            self.stamp(13)
            a(f"""
            s_waitcnt lgkmcnt(0)
            s_cmp_ge_u32 {s(S_W)}, 4
            s_cselect_b32 {s(S_ST+28)}, {s(T+9)}, {s(S_ST+28)}
            s_lshl_b32 {s(T)}, s2, 3
            s_add_u32 {s(T)}, {s(T)}, {s(S_W)}
            s_lshl_b32 {s(T)}, {s(T)}, 6
            s_add_u32 {s(T)}, {s(T)}, {WS_STAMP}
            v_mov_b32 v20, {s(T)}
            """)
            for i in range(16): a(f"v_mov_b32 {v(32+i)}, {s(S_ST+2*i)}")
            for i in range(4): a(f"global_store_dwordx4 v20, {v(32+4*i,4)}, {s(S_WS,2)} offset:{16*i}")
        a("L_end:")
        a("s_endpgm")

    def build(self):
        self.entry()
        self.head_A()
        self.attn()
        self.tail_A()
        self.roleB()
        self.outproj()
        self.finish()
        self.check()
        self.retry()
        self.a("L_last:")
        self.attn_fallback("L_norm")
        L = self.a.lines
        ia, ib, ic = L.index("L_cutA:"), L.index("L_roleB:"), L.index("L_cutB:")
        self.a.lines = L[:ia] + L[ib:ic] + L[ia+1:ib] + L[ic+1:]
        return self.wrap()

    def wrap(self):
        hdr = open("cdna_kernels/%s.s.ref" % NAME).read().split("; Override launch")[0]
        return hdr + f"""; Override launch geometry by editing the next line (default: block=256,
; grid=ceil(out_elems/256), lds=0). Harness parses it; keep it on one line.
; @launch grid=(256,1,1) block=(512,1,1) lds={LDS_BYTES}
.amdgcn_target "amdgcn-amd-amdhsa--gfx950"
.text
.globl {NAME}_kernel
.p2align 8
.type {NAME}_kernel,@function
{NAME}_kernel:
""" + self.a.text() + f""".section .rodata,"a"
.p2align 6
.amdhsa_kernel {NAME}_kernel
  .amdhsa_next_free_vgpr 256
  .amdhsa_next_free_sgpr 102
  .amdhsa_accum_offset 256
  .amdhsa_group_segment_fixed_size 0
  .amdhsa_kernarg_size 88
  .amdhsa_user_sgpr_count 2
  .amdhsa_user_sgpr_kernarg_segment_ptr 1
  .amdhsa_system_sgpr_workgroup_id_x 1
  .amdhsa_dx10_clamp 0
.end_amdhsa_kernel
"""

if __name__ == "__main__":
    out = sys.argv[1]
    stamps = "--stamps" in sys.argv
    opts = {}
    for x in sys.argv[2:]:
        if "=" in x:
            k, val = x.split("=", 1); opts[k] = eval(val)
    open(out, "w").write(Gen(stamps=stamps, opts=opts).build())
```

```python
import sys, struct
from asmlib import *

NAME = "concat_heads__grouped_kv_mqa__linear_attn_block__prompt"
def f32(x): return "0x%08x" % struct.unpack("<I", struct.pack("<f", x))[0]
LOG2E = 1.4426950408889634

WS_G   = 0x0
WS_F1  = 0x8000
WS_ACC = 0x10000
WS_KV  = 0x20000
C4_OFF = 576
WS_F2  = 0x60000
WS_OA  = 0x100000
WS_OB  = 0x300000
WS_STAMP = 0x800000
KVREC = 640
KVTILE = 4*KVREC
L_X   = 0
L_W   = 0x10000
L_WKV = 0x20000
L_MISC= 0x24000
L_SYNC= L_MISC + 0x3f00
LDS_BYTES = 0x28000
SPIN_MAX = 200000

S_AX, S_WQ, S_WK, S_WV, S_AWO, S_BX, S_WQKV, S_BWO = 8, 10, 12, 14, 16, 18, 20, 22
S_OUT, S_WS = 24, 26
S_W, S_G, S_J, S_C, S_TAG, S_XCD, S_KC0, S_EPOCH = 28, 29, 30, 31, 32, 33, 34, 35
T = 36
S_HI, S_LO, S_W3 = 50, 51, 52
S_IMG = 54
S_OUTB = 56
S_EX = 58
S_PEND = 59
S_PC = 0
E_CLR = 30
L_MK = L_SYNC + 80
U = 4
S_ST = 64
V_L16, V_SLOT, V_ALL, V_TAG, V_ZERO = 4, 5, 6, 7, 1

class Gen:
    def __init__(self, stamps=False, opts=None):
        self.a = Asm()
        self.stamps = stamps
        self.o = opts or {}
        self.inB = False
    def stamp(self, i, grp=None):
        m = self.o.get("meas")
        if m and grp is None and i in m[:2]: self.a(f"s_memrealtime s[{68+2*m.index(i)}:{69+2*m.index(i)}]")
        if grp != self.o.get("stg") and (grp or (self.inB and self.o.get("stg") and i not in (0, 13))): return
        if self.stamps:
            self.a(f"s_memrealtime {s(S_ST+2*i,2)}")
            cyc = self.o.get("cyc", (6, 7))
            if i in cyc:
                self.a(f"s_memtime {s(S_ST+2*(14+list(cyc).index(i)),2)}")
    def add64(self, dst, base, off):
        self.a(f"s_add_u32 {s(dst)}, {s(base)}, {off}")
        self.a(f"s_addc_u32 {s(dst+1)}, {s(base+1)}, 0")
    def dma(self, vreg, pair, m0s, m0i, off=0):
        return [f"s_add_u32 m0, {s(m0s)}, {m0i}", "s_nop 0",
                f"global_load_lds_dwordx4 {v(vreg)}, {s(pair,2)}" + (f" offset:{off}" if off else "")]
    def marker(self, idx):
        self.a(f"""
        s_lshl_b32 {s(T)}, {s(S_W3)}, 2
        s_add_u32 m0, {s(T)}, {L_MK + 4*idx}
        s_mov_b64 exec, 1
        global_load_lds_dword {v(V_ZERO)}, {s(S_PC,2)}
        s_mov_b64 exec, -1
        """)
    def newpage(self, name, back=None):
        a = self.a
        a(f"s_branch L_{name}")
        a(".p2align 12")
        if back:
            a(f"L_{name}_stub:")
            a(f"s_branch {back}")
            a("s_nop 0")
        a(f"L_{name}:")
    def emit(self, L):
        for x in L: self.a(x)
    def poll(self, vaddr, pair, offs, vt, sleep=2):
        a = self.a
        Lp, Ld = a.label("poll"), a.label("polld")
        a(f"s_mov_b32 {s(T+10)}, 0")
        a(f"{Lp}:")
        for i, o in enumerate(offs):
            a(f"global_load_dword {v(vt+i)}, {v(vaddr)}, {s(pair,2)} offset:{o} sc1")
        a("s_waitcnt vmcnt(0)")
        for i in range(len(offs)):
            if i == 0:
                a(f"v_cmp_ne_u32 vcc, {s(S_TAG)}, {v(vt)}")
            else:
                a(f"v_cmp_ne_u32 {s(T+12,2)}, {s(S_TAG)}, {v(vt+i)}")
                a(f"s_or_b64 vcc, vcc, {s(T+12,2)}")
        a(f"s_add_u32 {s(T+10)}, {s(T+10)}, 1")
        a(f"s_cmp_eq_u64 vcc, 0")
        a(f"s_cbranch_scc1 {Ld}")
        if sleep: a(f"s_sleep {sleep}")
        a(f"s_cmp_lt_u32 {s(T+10)}, {SPIN_MAX}")
        a(f"s_cbranch_scc1 {Lp}")
        a(f"{Ld}:")
    def check4(self, vt):
        a = self.a
        a(f"v_cmp_ne_u32 vcc, {s(S_TAG)}, {v(vt)}")
        for i in range(1, 4):
            a(f"v_cmp_ne_u32 {s(T+12,2)}, {s(S_TAG)}, {v(vt+i)}")
            a(f"s_or_b64 vcc, vcc, {s(T+12,2)}")
        a(f"s_cmp_eq_u64 vcc, 0")
    def poll4(self, vaddr, pair, vt, sleep):
        a = self.a
        Lp, Ld = a.label("poll"), a.label("polld")
        a(f"s_mov_b32 {s(T+10)}, 0")
        a(f"{Lp}:")
        a(f"global_load_dwordx4 {v(vt,4)}, {v(vaddr)}, {s(pair,2)} sc1")
        a(f"s_add_u32 {s(T+10)}, {s(T+10)}, 1")
        a("s_waitcnt vmcnt(0)")
        self.check4(vt)
        a(f"s_cbranch_scc1 {Ld}")
        if sleep: a(f"s_sleep {sleep}")
        a(f"s_cmp_lt_u32 {s(T+10)}, {SPIN_MAX}")
        a(f"s_cbranch_scc1 {Lp}")
        a(f"{Ld}:")
    def count(self, pair):
        a = self.a
        a(f"s_mov_b32 {s(T+11)}, 1")
        a(f"s_atomic_add {s(T+11)}, {s(pair,2)}, 0 glc")
    def count_peek(self, pair, sd):
        self.a(f"s_load_dword {s(sd)}, {s(pair,2)}, 0 glc")
    def count_wait(self, pair, sd, n, sleep=8):
        a = self.a
        Lp, Ld = a.label("cw"), a.label("cwd")
        a(f"""
        s_mov_b32 {s(T+10)}, 0
        {Lp}:
        s_waitcnt lgkmcnt(0)
        s_cmp_ge_u32 {s(sd)}, {n}
        s_cbranch_scc1 {Ld}
        {f"s_sleep {sleep}" if sleep else ""}
        s_load_dword {s(sd)}, {s(pair,2)}, 0 glc
        s_add_u32 {s(T+10)}, {s(T+10)}, 1
        s_cmp_lt_u32 {s(T+10)}, {SPIN_MAX}
        s_cbranch_scc1 {Lp}
        s_waitcnt lgkmcnt(0)
        {Ld}:
        """)
    def flag(self, base, sidx, vm=0, shift=7):
        a = self.a
        a(f"s_lshl_b32 {s(T+10)}, {s(sidx)}, {shift}")
        a(f"s_add_u32 {s(T+10)}, {s(T+10)}, {base}")
        self.add64(T+12, S_WS, s(T+10))
        if vm is not None: a(f"s_waitcnt vmcnt({vm})")
        a("s_mov_b64 exec, 1")
        a(f"global_store_dword {v(V_ZERO)}, {v(V_TAG)}, {s(T+12,2)} sc1")
        a("s_mov_b64 exec, -1")
    def arrive(self, vt):
        a = self.a
        a(f"s_add_u32 {s(S_EPOCH)}, {s(S_EPOCH)}, 1")
        a(f"v_mov_b32 {v(vt)}, {s(S_EPOCH)}")
        a(f"ds_write_b32 {v(V_SLOT)}, {v(vt)}")
    def await_(self, vt, vaddr=V_ALL, val=None, off=0, sleep=1):
        a = self.a
        Lp, Ld = a.label("sb"), a.label("sbd")
        a(f"s_mov_b32 {s(T+10)}, 0")
        a(f"{Lp}:")
        a(f"ds_read_b32 {v(vt)}, {v(vaddr)} offset:{off}")
        a("s_waitcnt lgkmcnt(0)")
        a(f"v_cmp_gt_u32 vcc, {val or s(S_EPOCH)}, {v(vt)}")
        a(f"s_add_u32 {s(T+10)}, {s(T+10)}, 1")
        a(f"s_cmp_eq_u64 vcc, 0")
        a(f"s_cbranch_scc1 {Ld}")
        if sleep: a(f"s_sleep {sleep}")
        a(f"s_cmp_lt_u32 {s(T+10)}, {SPIN_MAX*8}")
        a(f"s_cbranch_scc1 {Lp}")
        a(f"{Ld}:")
    def softbar(self, vt, sleep=1):
        self.arrive(vt); self.await_(vt, sleep=sleep)

    def entry(self):
        a = self.a
        a(f"""
        s_cmpk_ge_u32 s2, 256
        s_cbranch_scc1 L_end
        """)
        self.stamp(0)
        if self.o.get("spin"): a("s_memrealtime s[64:65]")
        Lp = a.label("p")
        a.c("wave 0: pull the code and this CU's share of x into the die's L2 right away")
        a(f"""
        s_load_dwordx16 s[8:23], s[0:1], 0
        s_load_dwordx2 {s(S_WS,2)}, s[0:1], 80
        s_getpc_b64 {s(U,2)}
        L_pc:
        s_lshr_b32 {s(S_C)}, s2, 3
        v_lshl_add_u32 v23, v0, 5, {s(S_C)}
        v_lshlrev_b32 v23, 7, v23
        s_and_b32 {s(S_XCD)}, s2, 7
        s_lshl_b32 {s(S_G)}, {s(S_XCD)}, 5
        s_add_u32 {s(S_C)}, {s(S_C)}, {s(S_G)}
        v_cmp_gt_u32 vcc, L_last-L_pc, v23
        s_and_b64 exec, exec, vcc
        s_cbranch_execz {Lp}
        {f"global_load_dword v18, v23, {s(U,2)}" if self.o.get("cpf", 1) else ""}
        s_mov_b64 exec, -1
        """)
        if self.o.get("xt", 0):
            a(f"""
            s_lshl_b32 {s(S_G)}, {s(S_C)}, 13
            v_lshl_add_u32 v19, v0, 7, {s(S_G)}
            s_waitcnt lgkmcnt(0)
            global_load_dword v19, v19, {s(S_AX,2)}
            """)
            if self.o.get("kt", 1):
                a(f"""
                s_mov_b64 exec, 15
                global_load_dword v17, v23, {s(S_WK,2)}
                global_load_dword v23, v23, {s(S_WV,2)}
                """)
        a(f"""
        {Lp}:
        s_mov_b64 exec, -1
        s_load_dwordx2 {s(S_OUT,2)}, s[0:1], 64
        v_lshrrev_b32 v1, 6, v0
        v_and_b32 v0, 63, v0
        v_readfirstlane_b32 {s(S_W)}, v1
        s_lshr_b32 {s(T)}, s2, 6
        s_lshr_b32 {s(S_G)}, {s(S_C)}, 3
        s_and_b32 {s(S_J)}, {s(S_C)}, 7
        s_lshl_b32 {s(T)}, {s(T)}, 1
        s_add_u32 {s(S_KC0)}, {s(T)}, {s(S_J)}
        s_and_b32 {s(S_KC0)}, {s(S_KC0)}, {7 if self.o.get('rot', 1) else 0}
        s_mov_b32 {s(S_EPOCH)}, 0
        s_and_b32 {s(S_W3)}, {s(S_W)}, 3
        s_lshr_b32 {s(S_HI)}, {s(S_W3)}, 1
        s_and_b32 {s(S_LO)}, {s(S_W)}, 1
        v_mov_b32 {v(V_ZERO)}, 0
        v_lshlrev_b32 {v(V_L16)}, 4, v0
        s_cmp_ge_u32 {s(S_W)}, 4
        s_cselect_b32 {s(T)}, 11, 3
        s_cselect_b32 {s(T+1)}, 1, 13
        s_lshl_b32 {s(T+2)}, {s(S_W3)}, 2
        s_add_u32 {s(T+2)}, {s(T+2)}, {L_SYNC}
        v_min_u32 v9, {s(T)}, v0
        v_add_u32 v9, {s(T+1)}, v9
        v_and_b32 v9, 15, v9
        v_lshl_add_u32 v9, v9, 4, {s(T+2)}
        ds_write_b32 v9, {v(V_ZERO)}
        """)
        a(f"""
        v_lshrrev_b32 v8, 3, v0
        v_lshlrev_b32 v2, 10, v8
        v_and_b32 v9, 7, v0
        v_lshrrev_b32 v10, 4, v0
        v_xor_b32 v9, v9, v10
        v_lshl_add_u32 v2, v9, 4, v2
        s_lshl_b32 {s(T)}, {s(S_W)}, 2
        s_add_u32 {s(T)}, {s(T)}, {L_SYNC}
        v_mov_b32 {v(V_SLOT)}, {s(T)}
        s_and_b32 {s(T)}, {s(T)}, -16
        v_and_b32 v9, 3, v0
        v_lshl_add_u32 {v(V_ALL)}, v9, 2, {s(T)}
        v_bfe_u32 v8, v0, 2, 3
        v_lshlrev_b32 v9, 4, v9
        v_lshrrev_b32 v10, 5, v0
        v_lshl_add_u32 v9, v10, 6, v9
        v_lshl_add_u32 v3, v8, 10, v9
        s_cmp_ge_u32 {s(S_W)}, 4
        s_cbranch_scc1 L_roleB
        """)

    def xfrag_addr(self, dst, sblk, vt):
        self.a(f"""
        v_and_b32 {v(vt)}, 31, v0
        v_lshlrev_b32 {v(vt+1)}, 7, {v(vt)}
        s_lshl_b32 {s(T)}, {s(sblk)}, 12
        v_add_u32 {v(vt+1)}, {s(T)}, {v(vt+1)}
        v_bfe_u32 {v(vt)}, v0, 1, 3
        v_lshrrev_b32 {v(vt+2)}, 5, v0
        v_xor_b32 {v(vt)}, {v(vt)}, {v(vt+2)}
        v_lshl_add_u32 {v(dst)}, {v(vt)}, 4, {v(vt+1)}
        v_xor_b32 {v(dst+1)}, 32, {v(dst)}
        v_xor_b32 {v(dst+2)}, 64, {v(dst)}
        v_xor_b32 {v(dst+3)}, 0x60, {v(dst)}
        """)
    def wfrag_addr(self, dst, vt):
        self.a(f"""
        v_bfe_u32 {v(vt)}, v0, 2, 2
        v_lshlrev_b32 {v(vt)}, 6, {v(vt)}
        v_bfe_u32 {v(vt+1)}, v0, 4, 1
        v_lshl_add_u32 {v(vt)}, {v(vt+1)}, 5, {v(vt)}
        v_and_b32 {v(vt+1)}, 3, v0
        v_lshl_add_u32 {v(vt)}, {v(vt+1)}, 3, {v(vt)}
        v_lshrrev_b32 {v(vt+1)}, 5, v0
        v_lshl_add_u32 {v(vt)}, {v(vt+1)}, 10, {v(vt)}
        s_lshl_b32 {s(T)}, {s(S_LO)}, 9
        s_add_u32 {s(T)}, {s(T)}, {L_W}
        v_add_u32 {v(dst)}, {s(T)}, {v(vt)}
        """)
    V_WO, V_EXW, V_EXR, V_OUT, V_IMG = 8, 9, 3, 2, 13
    def tail_addr(self, lbase, loshift, ownimg, colbytes, vt):
        a = self.a
        a(f"""
        v_bfe_u32 {v(vt)}, v0, 2, 2
        v_lshlrev_b32 {v(vt)}, 6, {v(vt)}
        v_lshrrev_b32 {v(vt+1)}, 5, v0
        v_lshl_add_u32 {v(vt)}, {v(vt+1)}, 8, {v(vt)}
        v_and_b32 {v(vt+2)}, 1, v0
        v_lshl_add_u32 {v(vt)}, {v(vt+2)}, 5, {v(vt)}
        v_bfe_u32 {v(vt+2)}, v0, 1, 1
        v_lshl_add_u32 {v(vt)}, {v(vt+2)}, 3, {v(vt)}
        v_bfe_u32 {v(vt+2)}, v0, 4, 1
        v_lshl_add_u32 {v(vt)}, {v(vt+2)}, 4, {v(vt)}
        s_mul_i32 {s(T)}, {s(S_LO)}, {loshift}
        s_add_u32 {s(T)}, {s(T)}, {lbase}
        v_add_u32 {v(self.V_WO)}, {s(T)}, {v(vt)}
        s_lshl_b32 {s(T)}, {s(S_W3)}, 12
        s_add_u32 {s(T)}, {s(T)}, {L_WKV}
        v_add_u32 {v(self.V_EXW)}, {s(T)}, {v(V_L16)}
        v_xor_b32 {v(self.V_EXR)}, 4096, {v(self.V_EXW)}
        v_lshrrev_b32 {v(vt)}, 3, v0
        v_lshlrev_b32 {v(vt)}, 11, {v(vt)}
        v_and_b32 {v(vt+1)}, 7, v0
        v_lshl_add_u32 {v(self.V_OUT)}, {v(vt+1)}, 4, {v(vt)}
        s_lshl_b32 {s(T)}, {s(S_G)}, 1
        s_add_u32 {s(T)}, {s(T)}, {s(S_HI)}
        s_lshl_b32 {s(T+1)}, {s(T)}, 16
        s_lshl_b32 {s(T+2)}, {s(S_J)}, 1
        s_add_u32 {s(T+2)}, {s(T+2)}, {s(S_LO)}
        s_lshl_b32 {s(T+3)}, {s(S_J)}, 7
        s_add_u32 {s(T+1)}, {s(T+1)}, {s(T+3)}
        s_lshl_b32 {s(T+3)}, {s(S_LO)}, 15
        s_add_u32 {s(T+1)}, {s(T+1)}, {s(T+3)}
        s_add_u32 {s(T+1)}, {s(T+1)}, {colbytes}
        """)
        self.add64(S_OUTB, S_OUT, s(T+1))
        a(f"""
        s_lshl_b32 {s(T)}, {s(T)}, 15
        s_lshl_b32 {s(T+2)}, {s(T+2)}, 11
        s_add_u32 {s(T+2)}, {s(T+2)}, {s(T)}
        s_add_u32 {s(T+2)}, {s(T+2)}, {ownimg}
        v_add_u32 {v(self.V_IMG)}, {s(T+2)}, {v(V_L16)}
        s_lshl_b32 {s(T+1)}, {s(S_LO)}, 14
        s_add_u32 {s(T)}, {s(T)}, {s(T+1)}
        s_add_u32 {s(T)}, {s(T)}, {WS_OA}
        """)
        self.add64(S_IMG, S_WS, s(T))

    RQ, RO, RS, RKV = 16, 64, 128, 192
    RIDX, RKA, RVA = 10, 11, 12
    def head_A(self):
        a = self.a
        RQ, RO, RS, RKV, RIDX, RKA, RVA = self.RQ, self.RO, self.RS, self.RKV, self.RIDX, self.RKA, self.RVA
        XA, WA = 248, 252
        a.c("=========================== role A ===========================")
        a.c("---- what the K/V producer needs goes first")
        a(f"""
        v_xor_b32 v10, 64, v2
        v_add_u32 v10, 8192, v10
        s_and_b32 {s(T+1)}, {s(S_J)}, 6
        s_lshl_b32 {s(T+6)}, {s(S_G)}, 16
        s_lshl_b32 {s(T+2)}, {s(T+1)}, 13
        s_add_u32 {s(T+6)}, {s(T+6)}, {s(T+2)}
        s_lshl_b32 {s(T+7)}, {s(S_W)}, 14
        s_lshl_b32 {s(T+2)}, {s(T+1)}, 10
        s_add_u32 {s(T+7)}, {s(T+7)}, {s(T+2)}
        s_lshl_b32 {s(T+8)}, {s(S_W)}, 12
        s_lshl_b32 {s(T+9)}, {s(S_W)}, 1
        s_add_u32 {s(T+9)}, {s(T+9)}, {s(S_KC0)}
        s_mov_b32 {s(S_EPOCH)}, 7
        s_waitcnt lgkmcnt(0)
        """)
        self.stamp(1)
        a(f"""
        s_bitcmp1_b32 {s(S_J)}, 0
        s_cselect_b32 {s(S_WK)}, {s(S_WV)}, {s(S_WK)}
        s_cselect_b32 {s(S_WK+1)}, {s(S_WV+1)}, {s(S_WK+1)}
        """)
        for i in range(2):
            a(f"""
            s_add_u32 {s(T)}, {s(T+9)}, {i}
            s_and_b32 {s(T)}, {s(T)}, 7
            s_lshl_b32 {s(T+1)}, {s(T)}, 7
            s_add_u32 {s(T+1)}, {s(T+1)}, {s(T+6)}
            """)
            self.add64(T+2, S_AX, s(T+1))
            a(f"s_lshl_b32 {s(T)}, {s(T)}, 11")
            self.add64(T+4, S_WK, s(T))
            self.emit(self.dma(2, T+2, T+7, L_X + i*8192))
            self.emit(self.dma(10, T+2, T+7, L_X + i*8192 + 1024))
            self.emit(self.dma(V_L16, T+4, T+8, L_WKV + i*2048))
            a(f"global_load_lds_dwordx4 {v(V_L16)}, {s(T+4,2)} offset:1024")
            if i == 0: a(f"s_getpc_b64 {s(S_PC,2)}")
            self.marker(36 - 4*i)
        a("s_barrier")
        a("s_branch L_bodyA")
        a("L_cutA:")
        a("L_bodyA:")
        XF, WF = RS, RS+32
        def rd(t):
            i = t % 8
            a(f"ds_read_b128 {v(XF+4*i,4)}, {v(XA+(t&3))} offset:{(t//4)*8192}")
            a(f"ds_read_b64_tr_b16 {v(WF+4*i,2)}, {v(WA)} offset:{t*2048}")
            a(f"ds_read_b64_tr_b16 {v(WF+4*i+2,2)}, {v(WA)} offset:{t*2048+256}")
        def mm(t):
            i = t % 8
            a(f"v_mfma_f32_32x32x16_bf16 v[32:47], {v(WF+4*i,4)}, {v(XF+4*i,4)}, {'0' if t == 0 else 'v[32:47]'}")
        def qproj():
            chk = self.o.get("chk", {0: 0, 4: 1, 8: 3, 16: 5, 24: 6, 28: 7})
            self.await_(20, vaddr=52, val="1", off=128, sleep=1)
            self.await_(20, vaddr=53, val="1", off=16*chk[0], sleep=0)
            self.stamp(2)
            for t in range(4): rd(t)
            for tb in range(4, 32, 4):
                if tb not in chk:
                    for t in range(tb-4, tb):
                        rd(t+4)
                        a("s_waitcnt lgkmcnt(12)")
                        mm(t)
                    continue
                Lok, Lj = a.label("a"), a.label("a")
                ad = 54 if chk[tb] == 7 else 53
                a(f"ds_read_b32 v20, {v(ad)} offset:{16*chk[tb]}")
                a("s_waitcnt lgkmcnt(10)")
                mm(tb-4)
                a("s_waitcnt lgkmcnt(7)")
                mm(tb-3)
                a(f"""
                s_waitcnt lgkmcnt(0)
                v_cmp_gt_u32 vcc, 1, v20
                s_cmp_eq_u64 vcc, 0
                s_cbranch_scc1 {Lok}
                """)
                mm(tb-2); mm(tb-1)
                self.await_(20, vaddr=ad, val="1", off=16*chk[tb], sleep=0)
                for t in range(tb, tb+4): rd(t)
                a(f"s_branch {Lj}")
                a(f"{Lok}:")
                rd(tb); rd(tb+1)
                mm(tb-2)
                rd(tb+2); rd(tb+3)
                mm(tb-1)
                a(f"{Lj}:")
                if tb == 28: self.stamp(3)
            a.c("the first key tiles are published: their fetch overlaps the end of the projection")
            a("s_barrier")
            self.stamp(5)
            for t in range(28, 32):
                if t == 28:
                    for k in range(3): a(self.kv_ld(0, k, 8))
                a(f"s_waitcnt lgkmcnt({3*(31-t)})")
                mm(t)
        self.xfrag_addr(XA, S_HI, 20)
        self.wfrag_addr(WA, 20)
        for i in range(0, 64, 2): a(f"v_mov_b64 {v(RO+i,2)}, 0")
        for i in range(0, 4, 2): a(f"v_mov_b64 {v(RKV+36+8+i,2)}, 0")
        a(f"""
        v_and_b32 v20, 15, v0
        v_lshlrev_b32 v20, 4, v20
        v_lshrrev_b32 v21, 5, v0
        v_lshl_add_u32 v20, v21, 8, v20
        v_bfe_u32 v21, v0, 4, 1
        v_mul_u32_u24 v22, {2*KVREC}, v21
        v_add_u32 {v(RKA)}, v20, v22
        v_cmp_eq_u32 vcc, 0, v21
        v_and_b32 v22, 11, v0
        v_min_u32 v22, 1, v22
        v_lshlrev_b32 v22, 4, v22
        v_add_u32 v22, 512, v22
        v_mov_b32 {v(RIDX)}, 0xdddd
        v_cndmask_b32 {v(RVA)}, v22, v20, vcc
        s_lshl_b32 {s(T)}, {s(S_W)}, 9
        s_add_u32 {s(T)}, {s(T)}, {L_MISC}
        v_lshl_add_u32 v48, v0, 2, {s(T)}
        v_xor_b32 v49, 512, v48
        v_and_b32 v60, 1, v0
        v_mul_u32_u24 v60, 12, v60
        v_add_u32 v60, 4, v60
        v_xor_b32 v60, v60, {v(V_SLOT)}
        v_mov_b32 v61, {E_CLR}
        v_and_b32 v51, 4, v0
        v_add_u32 v52, {L_MK-L_SYNC}, {v(V_ALL)}
        v_or_b32 v53, 8, v52
        v_and_b32 v54, 3, v0
        v_cmp_eq_u32 vcc, 0, v54
        s_nop 1
        v_cndmask_b32 v54, v53, v52, vcc
        v_lshl_add_u32 v51, v51, 4, {v(V_ALL)}
        s_lshl_b32 {s(T)}, {s(S_HI)}, 15
        v_add_u32 v14, {s(T)}, {v(V_L16)}
        """)
        self.tail_addr(L_W, 512, WS_OA, 1024, 20)
        a(f"""
        s_lshl_b32 {s(T)}, {s(S_HI)}, 12
        s_add_u32 {s(T)}, {s(T)}, {L_MISC+0x1000}
        v_lshrrev_b32 v20, 5, v0
        v_lshlrev_b32 v20, 1, v20
        s_lshl_b32 {s(T+1)}, {s(S_LO)}, 2
        v_add_u32 v20, {s(T+1)}, v20
        v_and_b32 v21, 7, v0
        v_xor_b32 v20, v20, v21
        v_and_b32 v22, 31, v0
        v_lshl_add_u32 v22, v22, 7, {s(T)}
        v_lshl_add_u32 v57, v20, 4, v22
        v_xor_b32 v58, 16, v57
        v_lshrrev_b32 v20, 3, v0
        v_xor_b32 v21, v21, v20
        s_lshl_b32 {s(T+1)}, {s(S_LO)}, 11
        s_add_u32 {s(T)}, {s(T)}, {s(T+1)}
        v_lshl_add_u32 v20, v20, 7, {s(T)}
        v_lshl_add_u32 v59, v21, 4, v20
        """)
        a(f"""
        s_add_u32 {s(U+2)}, {s(S_XCD)}, 1
        s_and_b32 {s(U+2)}, {s(U+2)}, 7
        s_lshl_b32 {s(U+2)}, {s(U+2)}, 3
        s_add_u32 {s(U+2)}, {s(U+2)}, {s(S_LO)}
        s_mul_i32 {s(U+2)}, {s(U+2)}, {KVTILE}
        s_add_u32 {s(U+2)}, {s(U+2)}, {WS_KV}
        """)
        for u in range(3):
            self.add64(8+2*u, S_WS, s(U+2))
            a(f"s_add_u32 {s(U+2)}, {s(U+2)}, {2*KVTILE}")
        if self.o.get("warm", 1): a("s_branch L_attn0_stub")
        a("L_warmed:")
        qproj()
        for i in range(0, 8, 2): a(f"v_mov_b64 {v(RS+48+8+i,2)}, 0")
        for k in range(3): a(self.kv_ld(1, k, 10))
        a("s_nop 4")
        for i in range(8):
            a(f"v_cvt_pk_bf16_f32 {v(RQ+8+i)}, {v(32+2*i)}, {v(33+2*i)}")
        a(f"ds_write_b128 {v(self.V_EXW)}, {v(RQ+8,4)}")
        a(f"ds_write_b128 {v(self.V_EXW)}, {v(RQ+12,4)} offset:1024")
        a("s_waitcnt lgkmcnt(0)")
        self.stamp(4)
        a("s_barrier")

    def kv_ops(self):
        SB, SOFF = T, U+2
        return [f"s_add_u32 {s(SB)}, {s(S_WS)}, {s(SOFF)}",
                f"s_addc_u32 {s(SB+1)}, {s(S_WS+1)}, 0",
                f"s_add_u32 {s(SOFF)}, {s(SOFF)}, {2*KVTILE}",
                f"s_cmp_ge_u32 {s(SOFF)}, {WS_KV+64*KVTILE}",
                f"s_cselect_b32 {s(T+2)}, {64*KVTILE}, 0",
                f"s_sub_u32 {s(SOFF)}, {s(SOFF)}, {s(T+2)}"]
    def kv_ld(self, u, k, SB=T):
        if k == 0: return f"global_load_dwordx4 {v(self.RKV+12*u,4)}, {v(self.RKA)}, {s(SB,2)} sc1"
        return f"global_load_dwordx4 {v(self.RKV+12*u+4*k,4)}, {v(self.RVA)}, {s(SB,2)} offset:{KVREC+(k-1)*2*KVREC} sc1"
    def attn(self):
        a = self.a
        RQ, RO, RS, RKV, RIDX, RKA, RVA = self.RQ, self.RO, self.RS, self.RKV, self.RIDX, self.RKA, self.RVA
        SB, SOFF, SCNT, SPASS = T, U+2, U+3, U
        def K(u): return v(RKV+12*u, 4)
        def V(u, h): return v(RKV+12*u+4+4*h, 4)
        addr_ops, ld = self.kv_ops, self.kv_ld
        a.c("---- attention")
        a(f"s_setprio {self.o.get('aprio', 1)}")
        a(f"ds_read_b128 {v(RQ,4)}, {v(self.V_EXR)}")
        a(f"ds_read_b128 {v(RQ+4,4)}, {v(self.V_EXR)} offset:1024")
        for k in range(3): a(self.kv_ld(2, k, 12))
        self.arrive(50)
        a(f"s_mov_b32 {s(SCNT)}, 6")
        if self.o.get("aprof"): a("s_mov_b32 m0, 0")
        al = 1
        self.newpage("attn0", "L_opB_stub")
        a(f"s_waitcnt vmcnt(6) lgkmcnt(0)")
        self.stamp(6)
        a(f"v_mfma_f32_32x32x16_bf16 {v(RS,16)}, {K(0)}, {v(RQ,4)}, 0")
        a("s_nop 3")
        L = a.label("attn")
        p2, p1 = self.o.get("pos", (3, 10))
        EXW = v(self.V_EXW)
        def body(last):
            for i in range(p1, 16): a(f"v_exp_f32 {v(RS+48+i)}, {v(RS+48+i)}")
            for u in range(4):
                for b in range(4):
                    if self.o.get("aprof") and b == 0:
                        a(f"""
                        s_memtime s[60:61]
                        s_waitcnt lgkmcnt(0)
                        v_writelane_b32 v55, s60, m0
                        s_add_u32 m0, m0, 1
                        """)
                    fill = [[], [], []]
                    if not last or u == 0:
                        if b == 0:
                            ops = addr_ops()
                            fill[0] = ops[0:1]; fill[1] = ops[1:3]; fill[2] = ops[3:5]
                        if b == 1:
                            fill[0] = addr_ops()[5:6]; fill[1] = [ld((u+3) % 4, 0)]; fill[2] = [ld((u+3) % 4, 1)]
                        if b == 2:
                            fill[1] = [ld((u+3) % 4, 2)]; fill[2] = ["s_waitcnt vmcnt(6)"]
                    elif b == 2 and u < 3:
                        fill[2] = [f"s_waitcnt vmcnt({6-3*u})"]
                    if not last and b == 3:
                        if u == 2: fill[1] = ["ds_read_b32 v50, v51"]
                        if u == 3:
                            fill[0] = ["s_waitcnt lgkmcnt(0)", f"v_cmp_gt_u32 vcc, {s(S_EPOCH)}, v50"]
                            fill[1] = ["s_cbranch_vccnz L_check", "L_checked:", f"s_sub_u32 {s(SCNT)}, {s(SCNT)}, 1"]
                            fill[2] = [f"s_cbranch_scc0 {L}"]
                    if last and u == 3 and b >= 2:
                        k = b - 2
                        fill[0] = [f"ds_write_b128 {EXW}, {v(RO+16*k,4)} offset:{2048*k}"]
                        fill[1] = [f"ds_write_b128 {EXW}, {v(RO+16*k+4,4)} offset:{2048*k+1024}",
                                   f"ds_write_b32 v48, {v(RO+16*k+8)} offset:{256*k}"]
                        if k: fill[1].append(f"ds_write_b32 {v(V_SLOT)}, v61")
                    nu, nb = (u, b+1) if b < 3 else ((u+1) % 4, 0)
                    pu, pb = (u, b-1) if b > 0 else ((u-1) % 4, 3)
                    S = RS + 16*b
                    if not (last and u == 3 and b == 3):
                        a(f"v_mfma_f32_32x32x16_bf16 {v(RS+16*nb,16)}, {K(nu)}, {v(RQ+4*nb,4)}, 0")
                    for x in fill[0]: a(x)
                    for i in range(0, p2): a(f"v_exp_f32 {v(S+i)}, {v(S+i)}")
                    a(f"v_smfmac_f32_32x32x32_bf16 {v(RO+16*pb,16)}, {V(pu,1)}, {v(RS+16*pb+8,8)}, {v(RIDX)}")
                    for x in fill[1]: a(x)
                    for i in range(p2, p1): a(f"v_exp_f32 {v(S+i)}, {v(S+i)}")
                    a(f"v_smfmac_f32_32x32x32_bf16 {v(RO+16*b,16)}, {V(u,0)}, {v(S,8)}, {v(RIDX)}")
                    for x in fill[2]: a(x)
                    if last or (u, b) != (3, 3):
                        for i in range(p1, 16): a(f"v_exp_f32 {v(S+i)}, {v(S+i)}")
        if not al: a(".p2align 6")
        a(f"{L}:")
        body(False)
        body(True)
        def check():
            a("L_check:")
            self.await_(50, vaddr=51)
            a("s_branch L_checked")
        self.check = check
        a(f"ds_read_b32 v50, v60")
        a(f"ds_read_b32 {v(RO+8)}, v49")
        a(f"v_smfmac_f32_32x32x32_bf16 {v(RO+48,16)}, {V(3,1)}, {v(RS+48+8,8)}, {v(RIDX)}")

    def tail_A(self):
        a = self.a
        RQ, RO = self.RQ, self.RO
        self.stamp(7)
        if self.o.get("aprof"):
            a(f"""
            s_lshl_b32 s60, s2, 2
            s_add_u32 s60, s60, {s(S_W)}
            s_lshl_b32 s60, s60, 8
            s_add_u32 s60, s60, {WS_STAMP+0x40000}
            v_lshl_add_u32 v56, v0, 2, s60
            global_store_dword v56, v55, {s(S_WS,2)}
            """)
        a.c("---- pair reduction of the two key halves")
        O2, O3 = RO+32, RO+48
        def rdpart():
            a(f"""
            ds_read_b32 {v(RO+24)}, v49 offset:256
            ds_read_b128 {v(RO,4)}, {v(self.V_EXR)}
            ds_read_b128 {v(RO+4,4)}, {v(self.V_EXR)} offset:1024
            ds_read_b128 {v(RO+16,4)}, {v(self.V_EXR)} offset:2048
            ds_read_b128 {v(RO+20,4)}, {v(self.V_EXR)} offset:3072
            """)
        rdpart()
        Lok, La = a.label("x"), a.label("x")
        a(f"""
        s_mov_b32 {s(T+2)}, {f32(2.0**-20)}
        s_mov_b32 {s(T+3)}, {f32(2.0**100)}
        s_waitcnt lgkmcnt(6)
        v_cmp_gt_u32 vcc, {E_CLR}, v50
        s_cmp_eq_u64 vcc, 0
        s_cbranch_scc1 {Lok}
        """)
        self.await_(50, vaddr=60, val=str(E_CLR), sleep=0)
        a(f"ds_read_b32 {v(RO+8)}, v49")
        rdpart()
        a(f"{Lok}:")
        self.stamp(11)
        a(f"""
        s_waitcnt lgkmcnt(2)
        v_add_f32 {v(O2+8)}, {v(O2+8)}, {v(RO+8)}
        v_add_f32 {v(O3+8)}, {v(O3+8)}, {v(RO+24)}
        v_cmp_le_f32 {s(T+4,2)}, {s(T+2)}, {v(O2+8)}
        v_cmp_le_f32 {s(T+6,2)}, {s(T+2)}, {v(O3+8)}
        v_add_f32 {v(RO+9)}, {v(O2+8)}, {v(O3+8)}
        """)
        for b in range(2):
            if b: a("s_waitcnt lgkmcnt(0)")
            for i in range(0, 8, 2):
                a(f"v_pk_add_f32 {v(O2+16*b+i,2)}, {v(O2+16*b+i,2)}, {v(RO+16*b+i,2)}")
        a.c("---- the zero shift is kept only if every row sum is in range and every sum is finite")
        a(f"""
        v_pk_add_f32 {v(RO,2)}, {v(O2,2)}, {v(O2+2,2)}
        v_pk_add_f32 {v(RO+2,2)}, {v(O2+4,2)}, {v(O2+6,2)}
        v_pk_add_f32 {v(RO+4,2)}, {v(O3,2)}, {v(O3+2,2)}
        v_pk_add_f32 {v(RO+6,2)}, {v(O3+4,2)}, {v(O3+6,2)}
        v_pk_add_f32 {v(RO,2)}, {v(RO,2)}, {v(RO+2,2)}
        v_pk_add_f32 {v(RO+4,2)}, {v(RO+4,2)}, {v(RO+6,2)}
        s_and_b64 {s(T+4,2)}, {s(T+4,2)}, {s(T+6,2)}
        v_pk_add_f32 {v(RO,2)}, {v(RO,2)}, {v(RO+4,2)}
        v_fma_f32 {v(RO+9)}, {v(RO)}, 0, {v(RO+9)}
        v_fma_f32 {v(RO+9)}, {v(RO+1)}, 0, {v(RO+9)}
        v_cmp_ge_f32 vcc, {s(T+3)}, {v(RO+9)}
        s_and_b64 vcc, vcc, {s(T+4,2)}
        s_cmp_eq_u64 vcc, -1
        s_cbranch_scc0 L_fallback
        L_norm:
        """)
        self.normalize([(O2, O2+8), (O3, O3+8)], 16)
        self.stamp(8)
        a.c("---- the linear-attention half of the output projection fills the hand-off wait")
        a("s_setprio 0")
        self.newpage("opB", "L_warmed")
        a("s_barrier")
        XF, WF, ACC = 128, 160, 64
        D = 4
        def rd(u):
            i = u % 8
            a(f"ds_read_b128 {v(XF+4*i,4)}, v14 offset:{u*1024}")
            for sx in range(2):
                a(f"ds_read_b64_tr_b16 {v(WF+4*i+2*sx,2)}, {v(self.V_WO)} offset:{(2*u+sx)*1024}")
        for u in range(D): rd(u)
        for u in range(32):
            if u + D < 32:
                rd(u+D); n = 3*D
            else:
                n = 3*(31-u)
            y2 = self.o.get("y2", 12)
            if u == y2:
                a("v_mov_b32 v50, 39")
                a("s_waitcnt vmcnt(0)")
                a(f"ds_write_b32 {v(V_SLOT)}, v50")
                self.stamp(9)
            a(f"s_waitcnt lgkmcnt({n})")
            i = u % 8
            a(f"v_mfma_f32_32x32x16_bf16 {v(ACC,16)}, {v(WF+4*i,4)}, {v(XF+4*i,4)}, {'0' if u == 0 else v(ACC,16)}")
        self.stamp(10)
        a(f"s_mov_b32 {s(S_EPOCH)}, 39")
        self.add64(T+2, S_OUTB, 16384)
        a("s_nop 7")
        a("s_nop 0")
        for h in range(2):
            for i in range(4*h, 4*h+4): a(f"v_cvt_pk_bf16_f32 {v(32+i)}, {v(ACC+2*i)}, {v(ACC+2*i+1)}")
            a(f"ds_write_b128 {v(57+h)}, {v(32+4*h,4)}")
        self.softbar(50, sleep=0)
        a("ds_read_b128 v[40:43], v59")
        a("ds_read_b128 v[44:47], v59 offset:1024")
        a.c("these stores queue behind the other waves' fetches, not in front of them")
        if self.o.get("sw", 1): self.await_(50, val="40", off=16, sleep=1)
        for h in range(2):
            a(f"s_waitcnt lgkmcnt({1-h})")
            a(f"global_store_dwordx4 {v(self.V_OUT)}, {v(40+4*h,4)}, {s(T+2 if h else S_OUTB,2)} {self.o.get('osta','sc1')}")
        a("s_barrier")
        a("s_branch L_fin")

    def normalize(self, blocks, P, guard=True):
        a = self.a
        for N, R in blocks: a(f"v_rcp_f32 {v(R)}, {v(R)}")
        for b, (N, R) in enumerate(blocks):
            for i in range(0, 8, 2):
                a(f"v_pk_mul_f32 {v(N+i,2)}, {v(N+i,2)}, {v(R,2)} op_sel_hi:[1,0]")
            for i in range(4):
                a(f"v_cvt_pk_bf16_f32 {v(P+4*b+i)}, {v(N+2*i)}, {v(N+2*i+1)}")
            if guard: a(f"v_min_u32 {v(P+4*b)}, -2, {v(P+4*b)}")
            a(f"global_store_dwordx4 {v(self.V_IMG)}, {v(P+4*b,4)}, {s(S_WS,2)} offset:{1024*b} {'' if guard and self.o.get('xplain') else 'sc1'}")

    def attn_fallback(self, Lret):
        a = self.a
        RQ, RO, RS, RKV, RIDX, RKA, RVA = self.RQ+8, self.RO+32, self.RS, self.RKV, self.RIDX, self.RKA, self.RVA
        SB, SCNT = T, U+3
        NM = RS + 32
        a("L_fallback:")
        a(f"v_mov_b32 {v(RKV+20)}, 0xff800000")
        a(f"v_mov_b32 {v(RKV+21)}, 0xff800000")
        for ps in (0, 1):
            L = a.label("fb")
            self.add64(SB, S_WS, WS_KV)
            a(f"""
            s_mov_b32 {s(SCNT)}, 64
            {L}:
            global_load_dwordx4 {v(RKV,4)}, {v(RKA)}, {s(SB,2)} sc1
            """)
            if ps:
                a(f"global_load_dwordx4 {v(RKV+4,4)}, {v(RVA)}, {s(SB,2)} offset:{KVREC} sc1")
                a(f"global_load_dwordx4 {v(RKV+8,4)}, {v(RVA)}, {s(SB,2)} offset:{3*KVREC} sc1")
            self.add64(SB, SB, KVTILE)
            a("s_waitcnt vmcnt(0)")
            for b in range(2):
                c = v(NM+16*b, 16) if ps else "0"
                a(f"v_mfma_f32_32x32x16_bf16 {v(RS+16*b,16)}, {v(RKV,4)}, {v(RQ+4*b,4)}, {c}")
            a("s_nop 7")
            a("s_nop 4")
            for b in range(2):
                S = RS + 16*b
                if not ps:
                    for i in range(0, 16, 2):
                        a(f"v_max3_f32 {v(RKV+20+b)}, {v(S+i)}, {v(S+i+1)}, {v(RKV+20+b)}")
                else:
                    for i in range(16): a(f"v_exp_f32 {v(S+i)}, {v(S+i)}")
                    a("s_nop 1")
                    a(f"v_smfmac_f32_32x32x32_bf16 {v(RO+16*b,16)}, {v(RKV+4,4)}, {v(S,8)}, {v(RIDX)}")
                    a(f"v_smfmac_f32_32x32x32_bf16 {v(RO+16*b,16)}, {v(RKV+8,4)}, {v(S+8,8)}, {v(RIDX)}")
            a(f"""
            s_sub_u32 {s(SCNT)}, {s(SCNT)}, 1
            s_cmp_lg_u32 {s(SCNT)}, 0
            s_cbranch_scc1 {L}
            """)
            if not ps:
                for b in range(2):
                    m = RKV+20+b
                    a(f"""
                    v_mov_b32 {v(RKV+22)}, {v(m)}
                    s_nop 1
                    v_permlane32_swap_b32 {v(m)}, {v(RKV+22)}
                    s_nop 1
                    v_max_f32 {v(m)}, {v(m)}, {v(RKV+22)}
                    """)
                    for i in range(16): a(f"v_sub_f32 {v(NM+16*b+i)}, 0, {v(m)}")
                for i in range(32): a(f"v_mov_b32 {v(RO+i)}, 0")
        a("s_nop 7")
        a("s_nop 4")
        a(f"s_branch {Lret}")

    def outproj_wfrags(self):
        a = self.a
        for p in range(4):
            a(f"""
            s_add_u32 {s(T)}, {s(S_J)}, {p}
            s_and_b32 {s(T)}, {s(T)}, 3
            s_lshl_b32 {s(T+1)}, {s(S_LO)}, 2
            s_add_u32 {s(T)}, {s(T)}, {s(T+1)}
            s_lshl_b32 {s(T+1)}, {s(S_G)}, 1
            s_sub_u32 {s(T)}, {s(T)}, {s(T+1)}
            s_and_b32 {s(T)}, {s(T)}, 7
            s_lshl_b32 {s(T)}, {s(T)}, 13
            v_add_u32 v21, {s(T)}, {v(self.V_WO)}
            """)
            for k in range(4):
                u = 4*p + k
                for nb in range(2):
                    for sx in range(2):
                        a(f"ds_read_b64_tr_b16 {v(128+8*u+4*nb+2*sx,2)}, v21 offset:{(2*k+sx)*1024+nb*512}")
    def gather_loads(self, p):
        for k in range(4):
            self.a(f"global_load_dwordx4 {v(32+16*p+4*k,4)}, {v(V_L16)}, {s(8+2*p,2)} offset:{k*1024} sc1")
    def outproj(self):
        a = self.a
        a.c("=========================== attention half of the output projection ===========================")
        def test(p):
            I = 32 + 16*p
            a(f"""
            v_max3_u32 v16, {v(I)}, {v(I+4)}, {v(I+8)}
            v_max_u32 v16, v16, {v(I+12)}
            v_cmp_eq_u32 vcc, -1, v16
            """)
        def mms(p):
            return [f"v_mfma_f32_32x32x16_bf16 {v(96+16*nb,16)}, {v(128+8*(4*p+k)+4*nb,4)}, {v(32+4*(4*p+k),4)}, {v(96+16*nb,16)}"
                    for k in range(4) for nb in range(2)]
        def consume(p, Ls):
            test(p)
            a(f"""
            s_cmp_lg_u64 vcc, 0
            s_cbranch_scc1 {Ls}
            s_bitset0_b32 {s(S_PEND)}, {p}
            """)
            self.emit(mms(p))
            a(f"{Ls}:")
        def wr(nb, lo=0, hi=4):
            for k, ad in list(enumerate((9, 14, 15, 17)))[lo:hi]:
                a(f"ds_write_b128 {v(ad)}, {v(96+16*nb+4*k,4)} offset:{128*nb}")
        self.gather_loads(0); self.gather_loads(1)
        self.add64(T+2, S_OUTB, 16384)
        a("s_waitcnt vmcnt(4)")
        self.stamp(5)
        test(0)
        for p in range(4):
            a("s_cmp_lg_u64 vcc, 0")
            a(f"s_cbranch_scc1 L_miss")
            a(f"s_bitset0_b32 {s(S_PEND)}, {p}")
            M = mms(p)
            if p == 3: break
            a(M[0])
            if p < 2: self.gather_loads(p+2)
            if p == 1: a(f"ds_write_b32 {v(V_SLOT)}, v19")
            if p == 2: a(f"ds_read_b32 v20, v21")
            self.emit(M[1:7])
            a(f"s_waitcnt vmcnt({4 if p < 2 else 0})")
            test(p+1)
            a(M[7])
        a.c("the exchange tiles reuse LDS the A waves have finished reading")
        Lok = a.label("k")
        self.emit(M[0::2])
        a(M[1])
        a(f"""
        s_waitcnt lgkmcnt(0)
        v_cmp_gt_u32 vcc, 40, v20
        s_cmp_eq_u64 vcc, 0
        s_cbranch_scc1 {Lok}
        """)
        self.await_(20, vaddr=21, val="40", sleep=0)
        a(f"{Lok}:")
        a(M[3])
        a("s_nop 5")
        wr(0, 0, 1)
        a(M[5])
        wr(0, 1, 2)
        a(M[7])
        self.stamp(10)
        wr(0, 2, 4)
        a("s_nop 9")
        a("L_gathered:")
        wr(1)
        a("s_waitcnt lgkmcnt(0)")
        a("s_barrier")
        for i in range(2):
            for pt in range(2):
                for e, ad in enumerate((3, 24)):
                    a(f"ds_read_b128 {v(32+16*i+8*pt+4*e,4)}, {v(ad)} offset:{2048*i+8192*pt}")
        for i in range(2):
            a(f"s_waitcnt lgkmcnt({4-4*i})")
            for k in range(0, 8, 2): a(f"v_pk_add_f32 {v(32+16*i+k,2)}, {v(32+16*i+k,2)}, {v(32+16*i+8+k,2)}")
            for k in range(4): a(f"v_cvt_pk_bf16_f32 {v(64+4*i+k)}, {v(32+16*i+2*k)}, {v(32+16*i+2*k+1)}")
            a(f"global_store_dwordx4 {v(self.V_OUT)}, {v(64+4*i,4)}, {s(T+2 if i else S_OUTB,2)} {self.o.get('ostb','sc1')}")
        def retry():
            a("L_miss:")
            a(f"ds_write_b32 {v(V_SLOT)}, v19")
            a("s_waitcnt vmcnt(0)")
            a("L_retry:")
            if self.o.get("rs", 2): a(f"s_sleep {self.o.get('rs', 2)}")
            for p in range(4):
                Ls = a.label("gs")
                a(f"s_bitcmp1_b32 {s(S_PEND)}, {p}")
                a(f"s_cbranch_scc0 {Ls}")
                self.gather_loads(p)
                a(f"{Ls}:")
            a("s_waitcnt vmcnt(0)")
            for p in range(4):
                Ls = a.label("cs")
                a(f"s_bitcmp1_b32 {s(S_PEND)}, {p}")
                a(f"s_cbranch_scc0 {Ls}")
                consume(p, Ls)
            a(f"""
            s_add_u32 {s(T+9)}, {s(T+9)}, 1
            s_cmp_eq_u32 {s(S_PEND)}, 0
            s_cbranch_scc1 L_rdone
            s_cmp_lt_u32 {s(T+9)}, {SPIN_MAX}
            s_cbranch_scc1 L_retry
            L_rdone:
            """)
            self.await_(20, vaddr=21, val="40", sleep=0)
            a("s_nop 3")
            wr(0)
            a("s_branch L_gathered")
        self.retry = retry

    def kv_setup(self):
        self.a(f"""
        v_and_b32 v96, 15, v0
        v_and_b32 v97, 3, v0
        v_bfe_u32 v98, v0, 2, 1
        v_lshl_add_u32 v97, v98, 3, v97
        v_bfe_u32 v98, v0, 3, 1
        v_lshl_add_u32 v97, v98, 2, v97
        s_bitcmp1_b32 {s(S_J)}, 0
        s_cselect_b64 vcc, -1, 0
        s_cselect_b32 {s(T+8)}, 1.0, {f32(0.25*LOG2E)}
        v_cndmask_b32 v96, v96, v97, vcc
        v_lshrrev_b32 v98, 4, v0
        v_lshrrev_b32 v97, 1, v96
        v_xor_b32 v97, v97, v98
        v_lshlrev_b32 v96, 7, v96
        v_lshl_add_u32 v96, v97, 4, v96
        s_and_b32 {s(T)}, {s(S_J)}, 6
        s_lshl_b32 {s(T)}, {s(T)}, 10
        v_add_u32 v96, {s(T)}, v96
        v_xor_b32 v97, 64, v96
        v_bfe_u32 v99, v0, 2, 2
        v_lshl_add_u32 v99, v98, 3, v99
        v_lshlrev_b32 v99, 5, v99
        v_and_b32 v100, 3, v0
        v_lshl_add_u32 v99, v100, 3, v99
        v_add_u32 v99, {L_WKV}, v99
        """)
    def kv_compute(self):
        a = self.a
        XF, WF = 128, 160
        LV, LD = a.label("kvv"), a.label("kvd")
        order = [2*sl + h for par in range(2) for sl in range(par, 8, 2) for h in range(2)]
        def rd(n):
            t = order[n]
            a(f"ds_read_b128 {v(XF+4*(n%8),4)}, {v(96+(t&1))} offset:{(t//2)*8192}")
            a(f"ds_read_b64_tr_b16 {v(WF+4*(n%8),2)}, v99 offset:{t*1024}")
            a(f"ds_read_b64_tr_b16 {v(WF+4*(n%8)+2,2)}, v99 offset:{t*1024+128}")
        a(f"s_bitcmp1_b32 {s(S_J)}, 0")
        a(f"s_cbranch_scc1 {LV}")
        for isv in (0, 1):
            if isv: a(f"{LV}:")
            def mm(n):
                x, w = v(XF+4*(n%8),4), v(WF+4*(n%8),4)
                A, B = (x, w) if isv else (w, x)
                a(f"v_mfma_f32_16x16x32_bf16 v[104:107], {A}, {B}, {'0' if n == 0 else 'v[104:107]'}")
            for h in range(2):
                self.await_(20, vaddr=21, val="1", off=16-16*h, sleep=0)
                if h == 0:
                    self.stamp(2); self.stamp(5, "hd")
                for n in range(8*h, 8*h+4):
                    rd(n)
                    if h: mm(n-4)
                for n in range(8*h, 8*h+4):
                    rd(n+4)
                    a("s_waitcnt lgkmcnt(12)")
                    mm(n)
            for n in range(12, 16):
                a(f"s_waitcnt lgkmcnt({3*(15-n)})")
                mm(n)
            if not isv: a(f"s_branch {LD}")
        a(f"""
        {LD}:
        s_nop 7
        v_pk_mul_f32 v[104:105], v[104:105], {s(T+8,2)} op_sel_hi:[1,0]
        v_pk_mul_f32 v[106:107], v[106:107], {s(T+8,2)} op_sel_hi:[1,0]
        v_cvt_pk_bf16_f32 v108, v104, v105
        v_cvt_pk_bf16_f32 v109, v106, v107
        s_nop 1
        v_permlane32_swap_b32 v108, v110
        v_permlane32_swap_b32 v109, v111
        s_mov_b32 exec_hi, 0
        global_store_dwordx4 v101, v[108:111], {s(S_WS,2)} sc1
        s_mov_b32 exec_hi, -1
        """)

    def phi(self, R):
        a = self.a
        TMP = 80
        a(f"s_mov_b32 {s(T)}, {f32(LOG2E)}")
        a(f"s_mov_b32 {s(T+2)}, {f32(1e-6)}")
        for i in range(0, 16, 2): a(f"v_pk_fma_f32 {v(TMP+i,2)}, {v(R+i,2)}, {s(T,2)}, v[18:19] op_sel_hi:[1,0,0]")
        for i in range(16): a(f"v_exp_f32 {v(TMP+i)}, {v(TMP+i)} clamp")
        for i in range(16): a(f"v_max_f32 {v(R+i)}, {s(T+2)}, {v(R+i)}")
        for i in range(0, 16, 2): a(f"v_pk_add_f32 {v(R+i,2)}, {v(R+i,2)}, {v(TMP+i,2)}")
        for i in range(0, 16, 2): a(f"v_cvt_pk_bf16_f32 {v(R+i//2)}, {v(R+i)}, {v(R+i+1)}")

    def roleB(self):
        a = self.a
        RB, HP, WB = S_HI, S_LO, S_W3
        SXM, SWM, SXO, SWO = U, U+1, U+2, U+3
        VX, VW, VO = 26, 240, 28
        XA, WA = 244, 248
        AK, AV, AQ = 32, 48, 64
        F = (96, 160)
        XF = 96
        X, Y = 224, 232
        V_L128, V_SX, V_L4, V_F4 = 10, 11, 12, 15
        VL, SL, SLO, SF1 = 80, 96, 60, 62
        HI, LOW = "s_setprio 3", f"s_setprio {self.o.get('bmm', 0)}"
        a.c("=========================== role B ===========================")
        a("L_roleB:")
        self.inB = True
        Lj = a.label("b")
        a(f"""
        s_lshl_b32 {s(T)}, {s(S_C)}, 8
        s_add_u32 {s(T)}, {s(T)}, {WS_ACC}
        v_lshl_add_u32 v24, v0, 2, {s(T)}
        s_mul_i32 {s(T)}, {s(S_C)}, {KVREC}
        s_add_u32 {s(T)}, {s(T)}, {WS_KV}
        v_add_u32 v101, {s(T)}, {v(V_L16)}
        v_cmp_eq_u32 vcc, 32, v0
        v_mov_b32 v112, 0x3f803f80
        s_nop 0
        v_cndmask_b32 v112, 0, v112, vcc
        v_mov_b32 v113, v112
        v_mov_b32 v114, v112
        v_mov_b32 v115, v112
        """)
        for u in range(4): a(f"v_add_u32 {v(VL+u)}, {8192*u}, v3")
        a(f"s_lshl_b32 {s(T)}, {s(S_LO)}, 6")
        a(f"v_xor_b32 v20, {s(T)}, v2")
        for u in range(3):
            a(f"""
            s_add_u32 {s(T)}, {s(S_J)}, {2+2*u}
            s_and_b32 {s(T)}, {s(T)}, 6
            s_add_u32 {s(T)}, {s(T)}, {s(S_LO)}
            s_lshl_b32 {s(SL+u)}, {s(T)}, 10
            s_lshl_b32 {s(T)}, {s(T)}, 13
            v_add_u32 {v(VL+4+u)}, {s(T)}, v20
            """)
        a(f"""
        s_lshl_b32 {s(SL+3)}, {s(S_LO)}, 12
        s_lshl_b32 {s(SL+4)}, {s(S_G)}, 16
        s_lshl_b32 {s(SLO)}, {s(S_J)}, 7
        s_lshl_b32 {s(T)}, {s(S_LO)}, 15
        s_add_u32 {s(SLO)}, {s(SLO)}, {s(T)}
        """)
        ta = self.o.get("ta", 0)
        if ta:
            a.c("first touch (one dword per line) of this CU's share of what the die reads for the A-side projections")
            a(f"""
            s_and_b32 {s(T)}, {s(S_G)}, 3
            s_lshl_b32 {s(T+1)}, {s(T)}, 10
            s_lshl_b32 {s(T+2)}, {s(S_J)}, 7
            s_add_u32 {s(T+1)}, {s(T+1)}, {s(T+2)}
            s_lshl_b32 {s(T+2)}, {s(S_LO)}, 18
            s_add_u32 {s(T+1)}, {s(T+1)}, {s(T+2)}
            s_lshl_b32 {s(T+2)}, {s(S_C)}, 13
            s_lshl_b32 {s(T)}, {s(T)}, 2
            s_lshr_b32 {s(T+3)}, {s(S_J)}, 1
            s_add_u32 {s(T)}, {s(T)}, {s(T+3)}
            s_lshl_b32 {s(T)}, {s(T)}, 10
            s_cmp_eq_u32 {s(S_W)}, 5
            s_cselect_b32 {s(T)}, {s(T+2)}, {s(T)}
            s_cmp_ge_u32 {s(S_W)}, 6
            s_cselect_b32 {s(T)}, {s(T+1)}, {s(T)}
            s_cselect_b32 {s(T+1)}, 12, 7
            v_lshlrev_b32 v19, {s(T+1)}, v0
            v_add_u32 v19, {s(T)}, v19
            """)
        a("s_waitcnt lgkmcnt(0)")
        if ta:
            Lt4, Lt5, Lte = a.label("t"), a.label("t"), a.label("t")
            a(f"""
            s_cmp_eq_u32 {s(S_W)}, 4
            s_cbranch_scc1 {Lt4}
            s_cmp_eq_u32 {s(S_W)}, 5
            s_cbranch_scc1 {Lt5}
            {f"global_load_dword v19, v19, {s(S_WQ,2)}" if ta != 4 else ""}
            s_branch {Lte}
            {Lt5}:
            {f"global_load_dword v19, v19, {s(S_AX,2)}" if ta == 1 else ""}
            s_branch {Lte}
            {Lt4}:
            s_bitcmp1_b32 {s(S_J)}, 0
            s_cselect_b32 {s(S_WK)}, {s(S_WV)}, {s(S_WK)}
            s_cselect_b32 {s(S_WK+1)}, {s(S_WV+1)}, {s(S_WK+1)}
            s_mov_b64 exec, 0xff
            {f"global_load_dword v19, v19, {s(S_WK,2)}" if ta in (1, 3) else ""}
            s_mov_b64 exec, -1
            {Lte}:
            """)
        Lz = a.label("b")
        a.c("clear this CU's share of the state accumulators (ordered before the K/V flag)")
        a(f"""
        s_cmp_lg_u32 {s(S_W)}, 4
        s_cbranch_scc1 {Lz}
        global_store_dword v24, {v(V_ZERO)}, {s(S_WS,2)} sc1
        s_mov_b32 exec_lo, {-1 if self.o.get("pre", 1) == 1 else 0}
        s_mov_b32 exec_hi, 0xff
        global_store_dwordx4 v101, v[112:115], {s(S_WS,2)} sc1
        s_mov_b64 exec, -1
        {Lz}:
        s_lshr_b32 {s(T)}, {s(S_C)}, 2
        s_lshl_b32 {s(T)}, {s(T)}, 7
        s_and_b32 {s(T+1)}, {s(S_C)}, 3
        s_lshl_b32 {s(T+1)}, {s(T+1)}, 2
        s_add_u32 {s(T)}, {s(T)}, {s(T+1)}
        s_add_u32 {s(T)}, {s(T)}, {WS_F1}
        s_add_u32 {s(S_WV)}, {s(S_WS)}, {s(T)}
        s_addc_u32 {s(S_WV+1)}, {s(S_WS+1)}, 0
        s_load_dword s53, {s(S_WV,2)}, 0
        s_load_dword {s(S_TAG)}, {s(S_WS,2)}, {WS_G}
        """)
        a(f"s_getpc_b64 {s(S_PC,2)}")
        self.stamp(1)
        a("s_barrier")
        self.stamp(1, "hd")
        def setup():
            a.c("---- B-side setup, all in the shadow of the head")
            a(f"""
            v_mov_b32 {v(VX)}, v2
            v_xor_b32 {v(VX+1)}, 64, v2
            v_add_u32 {v(VX+1)}, 8192, {v(VX+1)}
            v_mul_u32_u24 {v(VW)}, 3072, v8
            v_add_u32 {v(VW)}, {v(VW)}, v9
            v_mov_b32 {v(VO)}, v3
            """)
            for i in range(1, 4):
                a(f"v_add_u32 {v(VW+i)}, {24576*i}, {v(VW)}")
                a(f"v_add_u32 {v(VO+i)}, {8192*i}, v3")
            self.xfrag_addr(XA, RB, 20)
            self.wfrag_addr(WA, 20)
            self.tail_addr(L_X, 0, WS_OB, 0, 20)
            a(f"""
            s_lshl_b32 {s(T)}, {s(S_W3)}, 13
            s_add_u32 {s(T)}, {s(T)}, {L_W}
            v_lshrrev_b32 v20, 5, v0
            v_lshlrev_b32 v20, 2, v20
            v_and_b32 v21, 7, v0
            v_xor_b32 v20, v20, v21
            v_and_b32 v22, 31, v0
            v_lshl_add_u32 v22, v22, 8, {s(T)}
            v_lshl_add_u32 v9, v20, 4, v22
            v_xor_b32 v14, 16, v9
            v_xor_b32 v15, 32, v9
            v_xor_b32 v17, 48, v9
            s_lshl_b32 {s(T)}, {s(S_HI)}, 14
            s_lshl_b32 {s(T+1)}, {s(S_LO)}, 12
            s_add_u32 {s(T)}, {s(T)}, {s(T+1)}
            s_add_u32 {s(T)}, {s(T)}, {L_W}
            v_lshrrev_b32 v20, 3, v0
            v_lshlrev_b32 v21, 1, v21
            v_xor_b32 v21, v21, v20
            v_lshl_add_u32 v20, v20, 8, {s(T)}
            v_lshl_add_u32 v3, v21, 4, v20
            v_xor_b32 v24, 16, v3
            """)
            a(f"""
            s_lshl_b32 {s(SXM)}, {s(WB)}, 11
            s_lshl_b32 {s(SWM)}, {s(WB)}, 12
            s_lshl_b32 {s(SXO)}, {s(S_G)}, 16
            s_lshl_b32 {s(T)}, {s(WB)}, 14
            s_add_u32 {s(SXO)}, {s(SXO)}, {s(T)}
            s_mul_i32 {s(SWO)}, {s(HP)}, {32*3072}
            s_lshl_b32 {s(T)}, {s(S_J)}, 7
            s_add_u32 {s(SWO)}, {s(SWO)}, {s(T)}
            s_mov_b32 {s(T)}, {f32(1e-6)}
            s_mov_b32 {s(T+1)}, {f32(1e-6)}
            s_mov_b32 {s(T+2)}, 0x3f803f80
            s_mov_b32 {s(T+3)}, 0x3f803f80
            """)
            for i in range(0, 16, 2):
                a(f"v_mov_b64 {v(AK+i,2)}, {s(T,2)}")
                a(f"v_mov_b64 {v(AQ+i,2)}, {s(T,2)}")
                if i < 4: a(f"v_mov_b64 {v(X+i,2)}, {s(T+2,2)}")
            a(f"""
            v_mov_b32 v18, {f32(-1e-6*LOG2E)}
            v_mov_b64 v[252:253], -1
            v_mov_b64 v[254:255], -1
            v_mov_b32 v25, 63
            v_mul_u32_u24 v250, 12288, v0
            v_lshlrev_b32 v251, 12, v0
            v_lshlrev_b32 {v(V_L128)}, 7, v0
            s_lshl_b32 {s(T)}, {s(WB)}, 10
            s_add_u32 {s(T)}, {s(T)}, {L_MISC+0x1000}
            v_add_u32 {v(V_SX)}, {s(T)}, {v(V_L16)}
            v_xor_b32 {v(X+4)}, 2048, {v(V_SX)}
            v_and_b32 v20, 15, v0
            v_bfe_u32 v21, v0, 4, 1
            v_lshlrev_b32 v22, 11, v21
            v_lshl_add_u32 {v(X+5)}, v20, 2, v22
            v_lshrrev_b32 v22, 5, v0
            v_lshl_add_u32 {v(X+6)}, v22, 8, {v(X+5)}
            s_lshl_b32 {s(T)}, {s(RB)}, 9
            v_add_u32 {v(X+6)}, {s(T)}, {v(X+6)}
            v_and_b32 v20, 31, v0
            v_min_u32 v20, 16, v20
            v_lshlrev_b32 v20, 6, v20
            v_lshl_add_u32 {v(V_L4)}, v22, 4, v20
                """)
            self.add64(SF1, S_WS, WS_F1)
        def tag():
            a(f"""
            s_waitcnt lgkmcnt(0)
            s_add_u32 {s(S_TAG)}, {s(S_TAG)}, 0x9e3779b9
            v_mov_b32 {v(V_TAG)}, {s(S_TAG)}
            """)
        def touch(spec):
            kind, lo, hi = spec
            if kind == "x":
                m = sum(1 << e for e in range(lo, hi)) * 0x01010101
                a(f"s_lshl_b32 {s(T)}, {s(S_C)}, 13")
                self.add64(T+2, S_BX, s(T))
                mlo = mhi = m; vr = V_L128
            else:
                base, rs, col = {"q": (S_WQKV, 3072, 0), "k": (S_WQKV, 3072, 1024), "v": (S_WQKV, 3072, 2048),
                                 "a": (S_AWO, 1024, 0), "b": (S_BWO, 1024, 0)}[kind]
                h = lo // 4
                m = sum(0xffff << (16*(e - 4*h)) for e in range(lo, hi))
                mlo, mhi = m & 0xffffffff, m >> 32
                a(f"""
                s_and_b32 {s(T)}, {s(S_G)}, 3
                s_mul_i32 {s(T)}, {s(T)}, {rs}
                s_lshl_b32 {s(T+1)}, {s(S_J)}, 7
                s_add_u32 {s(T)}, {s(T)}, {s(T+1)}
                s_add_u32 {s(T)}, {s(T)}, {h*256*rs + col}
                """)
                self.add64(T+2, base, s(T))
                vr = 250 if rs == 3072 else 251
            a(f"s_mov_b32 exec_lo, {mlo:#x}")
            a(f"s_mov_b32 exec_hi, {mhi:#x}")
            a(f"global_load_dword v19, {v(vr)}, {s(T+2,2)}")
            a("s_mov_b64 exec, -1")
        def touch_round(specs):
            Le = a.label("t")
            for w, sp in enumerate(specs):
                Ln = a.label("t")
                if w < 3:
                    a(f"s_cmp_lg_u32 {s(WB)}, {w}")
                    a(f"s_cbranch_scc1 {Ln}")
                if sp: touch(sp)
                else: a(f"global_load_dword v19, {v(V_ZERO)}, {s(S_WQKV,2)}")
                if w < 3: a(f"s_branch {Le}")
                a(f"{Ln}:")
            a(f"{Le}:")
        M4, M5, Mc, Ms = a.label("b"), a.label("b"), a.label("b"), a.label("b")
        self.stamp(2, "hd")
        a(f"""
        s_cmp_lt_u32 {s(S_W)}, 6
        s_cbranch_scc1 {M4}
        """)
        a.c("---- waves 6, 7 stream the rest of x and wq, one k-slot at a time")
        if ta == 4: a(f"global_load_dword v19, v19, {s(S_WQ,2)}")
        Ll = a.label("ld")
        a(f"""
        s_mov_b32 {s(T+6)}, 0
        s_lshl_b32 {s(T+7)}, {s(S_W3)}, 2
        {Ll}:
        s_add_u32 {s(T)}, {s(S_KC0)}, {s(T+6)}
        s_and_b32 {s(T)}, {s(T)}, 7
        s_lshl_b32 {s(T+1)}, {s(T)}, 16
        s_add_u32 {s(T+1)}, {s(T+1)}, {s(SLO)}
        """)
        self.add64(T+2, S_WQ, s(T+1))
        a(f"s_lshl_b32 {s(T)}, {s(T)}, 7")
        a(f"s_add_u32 {s(T)}, {s(T)}, {s(SL+4)}")
        self.add64(T+4, S_AX, s(T))
        for u in range(4): self.emit(self.dma(VL+u, T+2, SL+3, L_W + u*1024))
        for u in range(3):
            a(f"s_mov_b32 m0, {s(SL+u)}")
            a(f"s_add_u32 {s(SL+u)}, {s(SL+u)}, 8192")
            a(f"global_load_lds_dwordx4 {v(VL+4+u)}, {s(T+4,2)}")
        a(f"""
        s_add_u32 m0, {s(T+7)}, {L_MK}
        s_mov_b64 exec, 1
        global_load_lds_dword {v(V_ZERO)}, {s(S_PC,2)}
        s_mov_b64 exec, -1
        s_add_u32 {s(T+7)}, {s(T+7)}, 16
        s_add_u32 {s(SL+3)}, {s(SL+3)}, 8192
        s_add_u32 {s(T+6)}, {s(T+6)}, 1
        """)
        if self.o.get("hb", 2):
            Lh = a.label("h")
            a(f"s_cmp_lg_u32 {s(T+6)}, {self.o.get('hb', 2)}")
            a(f"s_cbranch_scc1 {Lh}")
            a(f"v_mov_b32 v21, {L_MK+112}")
            self.await_(20, vaddr=21, val="1", sleep=0)
            a(f"{Lh}:")
        a(f"""
        s_waitcnt vmcnt(48)
        s_cmp_lt_u32 {s(T+6)}, 8
        s_cbranch_scc1 {Ll}
        {M4}:
        """)
        self.stamp(3, "hd")
        a(f"s_cmp_lg_u32 {s(S_W)}, 4")
        a(f"s_cbranch_scc1 {M5}")
        a.c("---- wave 4: this CU's 16 x 16 piece of K or V")
        a("s_setprio 3")
        a(f"v_mov_b32 v102, {L_MK}")
        self.kv_setup()
        a(f"v_add_u32 v21, {L_MK-L_SYNC+128-16}, {v(V_ALL)}")
        self.stamp(4, "hd")
        self.kv_compute()
        self.stamp(6, "hd")
        a("ds_write_b32 v102, v102 offset:112")
        a.c("publish: only this wave writes the word, so adding the difference sets it to the tag")
        a(f"s_sub_u32 s53, {s(S_TAG)}, s53")
        a(f"s_add_u32 s53, s53, 0x9e3779b9")
        a("s_setprio 0")
        a("s_waitcnt vmcnt(0)")
        a(f"s_atomic_add s53, {s(S_WV,2)}, 0 glc")
        self.stamp(11)
        self.stamp(7, "hd")
        a(f"{M5}:")
        setup()
        tag()
        a(f"s_cmp_lg_u32 {s(S_W)}, 5")
        a(f"s_cbranch_scc1 {Mc}")
        a.c("---- wave 5: the first key tiles must have been published")
        a(f"""
        s_add_u32 {s(T)}, {s(S_XCD)}, 1
        s_lshl_b32 {s(T)}, {s(T)}, 3
        v_add_u32 v22, {s(T)}, v0
        v_and_b32 v22, 63, v22
        v_lshlrev_b32 v22, 7, v22
        v_mov_b32 v21, {L_MK+8}
        """)
        self.await_(20, vaddr=21, val="1", off=16*self.o.get("pw", 4), sleep=1)
        self.stamp(8, "hd")
        a("s_mov_b64 exec, 0xffff")
        self.poll4(22, SF1, 88, sleep=self.o.get("ps1", 1))
        self.stamp(9, "hd")
        a("s_mov_b64 exec, -1")
        a(f"{Mc}:")
        a("s_barrier")
        a(f"s_mov_b32 {s(S_EPOCH)}, 8")
        rb = self.o.get("rotB", 1)
        if rb == 0: a(f"s_mov_b32 {s(S_KC0)}, 0")
        if rb == 2:
            a(f"s_and_b32 {s(S_KC0)}, {s(S_G)}, 3")
            a(f"s_lshl_b32 {s(S_KC0)}, {s(S_KC0)}, 1")
        a(f"s_lshl_b32 {s(T)}, {s(WB)}, 11")
        self.add64(SF1, SF1, s(T))
        a(f"""
        s_lshl_b32 {s(T)}, {s(S_J)}, 12
        s_add_u32 {s(T)}, {s(T)}, {WS_F2}
        """)
        self.add64(8, S_WS, s(T))
        a(f"""
        s_lshl_b32 {s(T)}, {s(S_G)}, 1
        s_add_u32 {s(T)}, {s(T)}, {s(RB)}
        s_lshl_b32 {s(T)}, {s(T)}, 1
        s_lshr_b32 {s(T+1)}, {s(S_J)}, 2
        s_add_u32 {s(T+1)}, {s(T+1)}, {s(T)}
        s_mul_i32 {s(T+1)}, {s(T+1)}, {2*KVREC}
        s_add_u32 {s(T+1)}, {s(T+1)}, {WS_KV+C4_OFF}
        """)
        self.add64(10, S_WS, s(T+1))
        a(f"""
        s_add_u32 {s(T)}, {s(T)}, {s(HP)}
        s_mul_i32 {s(T)}, {s(T)}, {2*KVREC}
        s_add_u32 {s(T)}, {s(T)}, {WS_KV+C4_OFF}
        """)
        self.add64(12, S_WS, s(T))
        self.stamp(4)
        a("s_barrier")
        self.stamp(5)
        a("s_branch L_bodyB")
        a("L_cutB:")
        a("L_bodyB:")
        a(LOW)
        if self.o.get("noB"):
            a(f"ds_write_b32 {v(V_SLOT)}, v25 offset:48")
            a(f"s_mov_b32 {s(S_EPOCH)}, {E_CLR-1}")
            self.arrive(20)
            a("s_branch L_Bend")
        vm = []
        def vmwait(label):
            n = len(vm) - 1 - max(i for i, x in enumerate(vm) if x == label)
            a(f"s_waitcnt vmcnt({n})")
            return n
        def loads(st):
            G = []
            slot = L_W + (st % 4)*16384
            if st < 8:
                pre = [f"s_add_u32 {s(T)}, {s(S_KC0)}, {st}",
                       f"s_and_b32 {s(T)}, {s(T)}, 7",
                       f"s_lshl_b32 {s(T+1)}, {s(T)}, 7",
                       f"s_add_u32 {s(T+1)}, {s(T+1)}, {s(SXO)}",
                       f"s_add_u32 {s(T+2)}, {s(S_BX)}, {s(T+1)}",
                       f"s_addc_u32 {s(T+3)}, {s(S_BX+1)}, 0"]
                G.append(pre + self.dma(VX, T+2, SXM, L_X + st*8192))
                G.append(self.dma(VX+1, T+2, SXM, L_X + st*8192 + 1024))
                pre = [f"s_mul_i32 {s(T)}, {s(T)}, {64*3072}",
                       f"s_add_u32 {s(T)}, {s(T)}, {s(SWO)}",
                       f"s_lshl_b32 {s(T+1)}, {s(RB)}, 10",
                       f"s_add_u32 {s(T)}, {s(T)}, {s(T+1)}",
                       f"s_add_u32 {s(T)}, {s(T)}, 1024",
                       f"s_add_u32 {s(T+2)}, {s(S_WQKV)}, {s(T)}",
                       f"s_addc_u32 {s(T+3)}, {s(S_WQKV+1)}, 0"]
                for i in range(4): G.append((pre if i == 0 else []) + self.dma(VW+i, T+2, SWM, slot + i*1024))
            elif st < 12:
                pre = [f"s_add_u32 {s(T)}, {s(S_KC0)}, {s(RB)}",
                       f"s_add_u32 {s(T)}, {s(T)}, {2*(st-8)}",
                       f"s_and_b32 {s(T)}, {s(T)}, 7",
                       f"s_mul_i32 {s(T)}, {s(T)}, {64*3072}",
                       f"s_add_u32 {s(T)}, {s(T)}, {s(SWO)}",
                       f"s_add_u32 {s(T+2)}, {s(S_WQKV)}, {s(T)}",
                       f"s_addc_u32 {s(T+3)}, {s(S_WQKV+1)}, 0"]
                for i in range(4): G.append((pre if i == 0 else []) + self.dma(VW+i, T+2, SWM, slot + i*1024))
            else:
                base, L = (S_AWO, L_X) if st < 16 else (S_BWO, L_W)
                u = st % 4
                pre = [f"s_add_u32 {s(T)}, {s(S_G)}, {u}",
                       f"s_and_b32 {s(T)}, {s(T)}, 3",
                       f"s_lshl_b32 {s(T)}, {s(T)}, 2",
                       f"s_add_u32 {s(T)}, {s(T)}, {s(WB)}",
                       f"s_lshl_b32 {s(T)}, {s(T)}, 8",
                       f"s_add_u32 {s(T)}, {s(T)}, {s(S_J)}",
                       f"s_lshl_b32 {s(T)}, {s(T)}, 7",
                       f"s_add_u32 {s(T+2)}, {s(base)}, {s(T)}",
                       f"s_addc_u32 {s(T+3)}, {s(base+1)}, 0"]
                for i in range(4): G.append((pre if i == 0 else []) + self.dma(VO+i, T+2, SWM, L + u*16384 + i*1024))
            return G
        done = set()
        def put(st, g):
            thr = self.o.get("thr", 5) if st < 12 else self.o.get("wthr", 4)
            done.add(st)
            if thr: g = [x if x != "s_nop 0" else f"s_waitcnt vmcnt({thr-1})" for x in g]
            self.emit(g); vm.append(st)
        def reads(st):
            R = []; B = F[st % 2]; slot = (st % 4)*16384
            if st < 8:
                for t in range(4):
                    R.append(f"ds_read_b128 {v(B+12*t,4)}, {v(XA+t)} offset:{st*8192}")
                    for k in range(2):
                        for sx in range(2):
                            R.append(f"ds_read_b64_tr_b16 {v(B+12*t+4+4*k+2*sx,2)}, {v(WA)} offset:{slot + k*8192 + t*2048 + sx*256}")
            else:
                for t in range(8):
                    R.append(f"ds_read_b128 {v(B+8*t,4)}, {v(XA+(t&3))} offset:{(2*(st-8)+t//4)*8192}")
                    for sx in range(2):
                        R.append(f"ds_read_b64_tr_b16 {v(B+8*t+4+2*sx,2)}, {v(WA)} offset:{slot + t*2048 + sx*256}")
            return R
        def mfmas(st):
            M = []; B = F[st % 2]
            if st < 8:
                for t in range(4):
                    for k, acc in enumerate((AK, AV)):
                        c = "0" if (acc == AV and st == 0 and t == 0) else v(acc,16)
                        M.append(f"v_mfma_f32_32x32x16_bf16 {v(acc,16)}, {v(B+12*t,4)}, {v(B+12*t+4+4*k,4)}, {c}")
            else:
                for t in range(8):
                    M.append(f"v_mfma_f32_32x32x16_bf16 {v(AQ,16)}, {v(B+8*t+4,4)}, {v(B+8*t,4)}, {v(AQ,16)}")
            return M
        def arrive():
            a(HI); self.arrive(20); a(LOW)
        def iteration(i, after=None):
            M = mfmas(i)
            R = reads(i+1) if i < 11 else []
            G = [(st, g) for st in self.o.get("sched", {9: [12], 10: [13], 11: [14]}).get(i, [i+4] if i < 8 else []) for g in loads(st)]
            fi = self.o.get("fi", 8)
            Lok = a.label("ok")
            self.stamp(i+1, "it")
            a("s_waitcnt lgkmcnt(14)")
            a(M[0])
            if self.o.get("pf1", 1): a(f"ds_read_b32 v21, {v(V_ALL)}")
            if G:
                self.emit(G[0][1][:-3]); G[0] = (G[0][0], G[0][1][-3:])
            if self.o.get("pf1", 1): a("s_waitcnt lgkmcnt(0)")
            else: a(f"ds_read_b32 v21, {v(V_ALL)}")
            a(M[1])
            a(f"""
            s_waitcnt lgkmcnt(0)
            {HI}
            v_cmp_gt_u32 vcc, {s(S_EPOCH)}, v21
            s_cbranch_vccz {Lok}
            """)
            self.await_(21)
            a(f"{Lok}:")
            a(LOW)
            if i == fi + 1:
                Lf = a.label("b")
                a(f"s_cmp_lg_u32 {s(WB)}, 0")
                a(f"s_cbranch_scc1 {Lf}")
                a(f"s_lshl_b32 {s(T+6)}, {s(S_G)}, 7")
                self.add64(T+6, 8, s(T+6))
                a("s_mov_b64 exec, 1")
                a(f"global_store_dword {v(V_ZERO)}, {v(V_TAG)}, {s(T+6,2)} sc1")
                a("s_mov_b64 exec, -1")
                a(f"{Lf}:")
                self.stamp(7)
            items = []
            nG, nR = len(G), len(R)
            gi = 0
            for k, x in enumerate(R):
                items.append((1.3, x))
                while gi < nG and (gi+1)*nR <= (k+1)*nG:
                    items.append((len(G[gi][1]), G[gi])); gi += 1
            items += [(len(g[1]), g) for g in G[gi:]]
            pre = [5, 0, 0, 0, 0, 0, 6]
            tot = sum(w for w, _ in items) + sum(pre)
            for k in range(7):
                acc = pre[k]
                left = (sum(w for w, _ in items) + sum(pre[k:])) / (7 - k)
                while items and (k == 6 or acc + items[0][0]/2 <= left):
                    w, x = items.pop(0); acc += w
                    if isinstance(x, str): a(x)
                    else: put(*x)
                if k < 6 and R: a(f"s_waitcnt lgkmcnt({self.o.get('lw', 3)})")
                if k < 6: a(M[k+2])
            if i < 11:
                if i == fi:
                    vmwait("part")
                    a(f"s_mov_b32 {s(S_EPOCH)}, {E_CLR-1}")
                elif i + 2 <= 11 and i < fi: vmwait(i+2)
                arrive()
            if i in self.o.get("tr", {}):
                touch_round(self.o["tr"][i]); vm.append("t")
            if after: after()
        a.c("---- B: k,v projections")
        a("s_mov_b64 exec, 0xffff")
        a(f"global_load_dwordx4 v[88:91], {v(V_L128)}, {s(SF1,2)} sc1"); vm.append("poll")
        a("s_mov_b64 exec, -1")
        G0 = [(st, g) for st in (0, 1) for g in loads(st)]
        for st, g in G0[:2]: put(st, g)
        Lr = a.label("b")
        vmwait("poll")
        a(HI)
        a("s_mov_b64 exec, 0xffff")
        self.check4(88)
        a(f"s_cbranch_scc1 {Lr}")
        self.poll4(V_L128, SF1, 88, sleep=4)
        a(f"{Lr}:")
        a("s_mov_b64 exec, -1")
        a(f"ds_write_b32 {v(V_SLOT)}, v25 offset:48")
        a(LOW)
        for st, g in G0[2:]: put(st, g)
        vmwait(0)
        a(HI)
        self.arrive(20)
        pro = self.o.get("pro", 4)
        if pro >= 3:
            for g in loads(2): put(2, g)
        self.await_(21)
        self.stamp(6)
        self.emit(reads(0))
        vmwait(1)
        self.arrive(20)
        a(LOW)
        if pro >= 4:
            for g in loads(3): put(3, g)
        if -1 in self.o.get("tr", {}):
            touch_round(self.o["tr"][-1]); vm.append("t")
        def clr():
            a.c("mark the A-side output images of the matching wave as not yet written")
            a(f"s_sub_u32 {s(T)}, {s(S_WS)}, {WS_OB-WS_OA}")
            a(f"s_subb_u32 {s(T+1)}, {s(S_WS+1)}, 0")
            a(f"global_store_dwordx4 {v(self.V_IMG)}, v[252:255], {s(T,2)} sc1")
            a(f"global_store_dwordx4 {v(self.V_IMG)}, v[252:255], {s(T,2)} offset:1024 sc1")
            vm.append("clr"); vm.append("clr")
        for i in range(8): iteration(i, clr if i == self.o.get("ci", 7) else None)
        a.c("---- B: phi(k), partial state: rows (head, e) x columns (head, d), and the column sums z")
        a(f"""
        s_lshl_b32 {s(T)}, {s(S_J)}, 1
        s_add_u32 {s(T)}, {s(T)}, {s(HP)}
        s_lshl_b32 {s(T)}, {s(T)}, 12
        s_add_u32 {s(T)}, {s(T)}, {WS_ACC}
        """)
        self.add64(T+4, S_WS, s(T))
        a("s_nop 3")
        a(HI)
        self.phi(AK)
        for i in range(8): a(f"v_cvt_pk_bf16_f32 {v(AV+i)}, {v(AV+2*i)}, {v(AV+2*i+1)}")
        D0, D1 = F[1], F[1]+16
        LK, LJ, LK2, LJ2 = a.label("k1"), a.label("kj"), a.label("k2"), a.label("kj2")
        a(f"""
        {LOW}
        s_nop 0
        v_mfma_f32_32x32x16_bf16 {v(D0,16)}, {v(AV,4)}, {v(AK,4)}, 0
        v_mfma_f32_32x32x16_bf16 {v(D0,16)}, {v(AV+4,4)}, {v(AK+4,4)}, {v(D0,16)}
        v_mfma_f32_32x32x16_bf16 {v(D1,16)}, {v(X,4)}, {v(AK,4)}, 0
        v_mfma_f32_32x32x16_bf16 {v(D1,16)}, {v(X,4)}, {v(AK+4,4)}, {v(D1,16)}
        s_nop 4
        {HI}
        s_mov_b32 exec_lo, 0xffff
        s_mov_b32 exec_hi, 0xffff
        s_cmp_eq_u32 {s(RB)}, 0
        s_cbranch_scc0 {LK}
        ds_write_b128 {v(V_SX)}, {v(D0+4,4)}
        s_not_b64 exec, exec
        ds_write_b128 {v(V_SX)}, {v(D0+12,4)}
        s_branch {LJ}
        {LK}:
        ds_write_b128 {v(V_SX)}, {v(D0,4)}
        s_not_b64 exec, exec
        ds_write_b128 {v(V_SX)}, {v(D0+8,4)}
        {LJ}:
        s_mov_b64 exec, -1
        """)
        self.softbar(20)
        a(f"""
        ds_read_b128 {v(AK,4)}, {v(X+4)}
        s_mov_b32 exec_lo, 0xffff
        s_mov_b32 exec_hi, 0xffff
        s_cmp_eq_u32 {s(RB)}, 0
        s_waitcnt lgkmcnt(0)
        s_cbranch_scc0 {LK2}
        """)
        for rbv, lab in ((0, None), (1, LK2)):
            if lab: a(f"{lab}:")
            for h in range(2):
                for i in (0, 2): a(f"v_pk_add_f32 {v(AK+i,2)}, {v(AK+i,2)}, {v(D0+8*h+4*rbv+i,2)}")
                if h == 0: a("s_not_b64 exec, exec")
            if not lab: a(f"s_branch {LJ2}")
        a(f"{LJ2}:")
        a("s_mov_b64 exec, -1")
        for i in range(4):
            a(f"global_atomic_add_f32 {v(X+6)}, {v(AK+i)}, {s(T+4,2)} offset:{64*i} sc1"); vm.append("part")
        a("s_mov_b32 exec_hi, 0")
        a(f"global_atomic_add_f32 {v(X+5)}, {v(D1)}, {s(T+4,2)} offset:1024 sc1"); vm.append("part")
        a("s_mov_b32 exec_hi, -1")
        a(LOW)
        self.stamp(3)
        a.c("---- B: q projection")
        for i in range(8, 12): iteration(i)
        todo = [st for st in range(12, 20) if st not in done]
        def more(n=1):
            for _ in range(n):
                if todo:
                    st = todo.pop(0)
                    for g in loads(st): put(st, g)
        self.stamp(1, "hop")
        a("s_nop 8")
        more()
        a(HI); self.phi(AQ); a(LOW)
        more(self.o.get("pre2", 0))
        self.stamp(2, "hop")
        a.c("---- B: the summed state, the normalised output images")
        D0, D1 = AK, AV
        a(f"""
        s_lshl_b32 {s(T)}, {s(S_J)}, 1
        s_add_u32 {s(T)}, {s(T)}, {s(HP)}
        s_lshl_b32 {s(T)}, {s(T)}, 12
        s_add_u32 {s(T)}, {s(T)}, {WS_ACC}
        """)
        self.add64(T+4, S_WS, s(T))
        LR = a.label("nr")
        a(f"""
        {HI}
        s_cmp_lg_u32 {s(WB)}, 1
        s_cbranch_scc1 {LR}
        s_mov_b32 exec_hi, 0
        """)
        self.poll(V_L128, 8, [0], 21, sleep=8)
        a("s_mov_b32 exec_hi, -1")
        a(f"{LR}:")
        self.softbar(20, sleep=2)
        a(LOW)
        self.stamp(3, "hop")
        self.stamp(8)
        for i in range(4):
            a(f"global_load_dwordx4 {v(XF+4*i,4)}, {v(V_L4)}, {s(T+4,2)} offset:{2048*(i//2)+32*(i%2)} sc1"); vm.append("state")
        more()
        vmwait("state")
        self.stamp(4, "hop")
        a(HI)
        for i in range(8): a(f"v_cvt_pk_bf16_f32 {v(XF+i)}, {v(XF+2*i)}, {v(XF+2*i+1)}")
        a(f"""
        s_nop 1
        v_mfma_f32_32x32x16_bf16 {v(D0,16)}, {v(XF,4)}, {v(AQ,4)}, 0
        v_mfma_f32_32x32x16_bf16 {v(D1,16)}, {v(XF+4,4)}, {v(AQ+4,4)}, 0
        s_nop 7
        s_nop 3
        v_add_f32 {v(D0+8)}, {f32(1e-6)}, {v(D0+8)}
        v_add_f32 {v(D1+8)}, {f32(1e-6)}, {v(D1+8)}
        """)
        self.normalize([(D0, D0+8), (D1, D1+8)], 80, guard=False)
        vm.append("ob"); vm.append("ob")
        a(LOW)
        self.stamp(5, "hop")
        more()
        vmwait("ob")
        self.count(10)
        self.stamp(6, "hop")
        self.stamp(12)
        while any(st < 16 for st in todo): more()
        more()
        vmwait(15)
        arrive()
        more()
        a(HI)
        self.await_(20)
        self.outproj_wfrags()
        self.arrive(20)
        a(LOW)
        more()
        if self.o.get("touch", 0):
            a(HI)
            a("v_lshlrev_b32 v22, 10, v0")
            a(LOW)
            a("s_mov_b32 exec_hi, 0")
            a(f"global_load_dword v22, v22, {s(S_OUTB,2)}")
            a("s_mov_b32 exec_hi, -1")
        self.count_peek(12, T+8)
        more(4)
        self.stamp(7, "hop")
        self.count_wait(12, T+8, 8)
        a(HI)
        self.await_(20)
        self.stamp(8, "hop")
        a.c("---- B: the group's o_B images go to LDS for the A waves")
        a(f"""
        s_lshl_b32 {s(SWM)}, {s(RB)}, 15
        s_lshl_b32 {s(SWO)}, {s(HP)}, 14
        s_lshl_b32 {s(T)}, {s(S_G)}, 13
        s_sub_u32 {s(SWO)}, {s(SWO)}, {s(T)}
        """)
        ot = self.o.get("othr", 6)
        for p in range(4):
            a(f"""
            s_add_u32 {s(T)}, {s(S_J)}, {p}
            s_and_b32 {s(T)}, {s(T)}, 3
            s_lshl_b32 {s(T)}, {s(T)}, 12
            s_add_u32 {s(T+1)}, {s(T)}, {s(SWO)}
            s_and_b32 {s(T+1)}, {s(T+1)}, 0x7fff
            s_add_u32 m0, {s(SWM)}, {s(T+1)}
            s_add_u32 {s(T)}, {s(T)}, {WS_OB-WS_OA}
            """)
            self.add64(T+2, S_IMG, s(T))
            for k in range(4):
                a(f"s_waitcnt vmcnt({ot-1})")
                a(f"global_load_lds_dwordx4 {v(V_L16)}, {s(T+2,2)} offset:{k*1024} sc1")

        self.newpage("Bend")
        for p in range(4):
            a(f"s_add_u32 {s(T)}, {s(S_J)}, {p}")
            a(f"s_and_b32 {s(T)}, {s(T)}, 3")
            a(f"s_lshl_b32 {s(T)}, {s(T)}, 12")
            self.add64(8+2*p, S_IMG, s(T))
        a(f"s_mov_b32 {s(S_PEND)}, 15")
        a(f"s_mov_b32 {s(T+9)}, 0")
        a(f"v_add_u32 v21, -16, {v(V_ALL)}")
        a(f"s_mul_i32 {s(T)}, {s(S_G)}, {8*KVREC}")
        a(f"s_add_u32 {s(T)}, {s(T)}, {WS_KV+C4_OFF+32}")
        self.add64(T+4, S_WS, s(T))
        a(HI)
        a("s_waitcnt vmcnt(0) lgkmcnt(0)")
        self.stamp(9)
        self.stamp(9, "hop")
        a.c("tell the group when this CU is about to publish (a timing hint only)")
        Ln = a.label("b")
        a(f"s_cmp_lg_u32 {s(WB)}, 1")
        a(f"s_cbranch_scc1 {Ln}")
        self.await_(20, vaddr=21, val=str(E_CLR), sleep=self.o.get("aws", 1))
        self.count(T+4)
        a(f"{Ln}:")
        a("s_barrier")
        a.c("every wave of the grid has used this launch's tag by now: advance the generation word")
        Lg = a.label("b")
        a(f"""
        s_lshl_b32 {s(T)}, s2, 2
        s_add_u32 {s(T)}, {s(T)}, {s(WB)}
        s_cmp_lg_u32 {s(T)}, 0
        s_cbranch_scc1 {Lg}
        s_mov_b64 exec, 1
        global_store_dword {v(V_ZERO)}, {v(V_TAG)}, {s(S_WS,2)} offset:{WS_G} sc1
        s_mov_b64 exec, -1
        {Lg}:
        """)
        a.c("start fetching only when the whole group is about to publish (reads that meet the writes are slow)")
        for i in range(0, 32, 2): a(f"v_mov_b64 {v(96+i,2)}, 0")
        a(f"v_and_b32 v22, 4, v0")
        a(f"v_lshl_add_u32 v22, v22, 2, v21")
        Ln = a.label("b")
        a(f"s_cmp_lg_u32 {s(WB)}, 1")
        a(f"s_cbranch_scc1 {Ln}")
        a("s_waitcnt lgkmcnt(0)")
        a(f"s_add_u32 {s(T+8)}, {s(T+11)}, 1")
        self.count_wait(T+4, T+8, 8, sleep=self.o.get("anns", 0))
        a(f"{Ln}:")
        a(f"s_mov_b32 {s(S_EPOCH)}, 38")
        self.arrive(20)
        a("v_mov_b32 v19, 40")
        self.await_(20, vaddr=22, sleep=0)
        a(f"s_mov_b32 {s(S_EPOCH)}, 40")
        self.stamp(4)

    def finish(self):
        a = self.a
        a("L_fin:")
        if self.o.get("spin"):
            m = self.o.get("meas")
            a(f"s_mov_b32 s72, {self.o['spin']}")
            if m:
                if 13 in m[:2]:
                    a("s_waitcnt vmcnt(0)")
                    self.stamp(13)
                a(f"""
                s_waitcnt lgkmcnt(0)
                s_sub_u32 s70, s70, s68
                s_mul_i32 s70, s70, 10
                s_min_u32 s70, s70, 30000
                s_cmp_eq_u32 {s(S_W)}, {m[2]}
                s_cselect_b32 s70, s70, 0
                s_lshr_b32 s73, s2, 3
                s_cmp_eq_u32 s73, {m[3]}
                s_cselect_b32 s70, s70, 0
                s_add_u32 s72, s72, s70
                """)
            a(f"""
            L_spin:
            s_memrealtime s[66:67]
            s_waitcnt lgkmcnt(0)
            s_sub_u32 s66, s66, s64
            s_cmp_lt_u32 s66, s72
            s_cbranch_scc1 L_spin
            """)
        if self.stamps:
            a("s_waitcnt vmcnt(0)")
            self.stamp(13)
            a(f"""
            s_waitcnt lgkmcnt(0)
            s_cmp_ge_u32 {s(S_W)}, 4
            s_cselect_b32 {s(S_ST+28)}, {s(T+9)}, {s(S_ST+28)}
            s_lshl_b32 {s(T)}, s2, 3
            s_add_u32 {s(T)}, {s(T)}, {s(S_W)}
            s_lshl_b32 {s(T)}, {s(T)}, 6
            s_add_u32 {s(T)}, {s(T)}, {WS_STAMP}
            v_mov_b32 v20, {s(T)}
            """)
            for i in range(16): a(f"v_mov_b32 {v(32+i)}, {s(S_ST+2*i)}")
            for i in range(4): a(f"global_store_dwordx4 v20, {v(32+4*i,4)}, {s(S_WS,2)} offset:{16*i}")
        a("L_end:")
        a("s_endpgm")

    def build(self):
        self.entry()
        self.head_A()
        self.attn()
        self.tail_A()
        self.roleB()
        self.outproj()
        self.finish()
        self.check()
        self.retry()
        self.a("L_last:")
        self.attn_fallback("L_norm")
        L = self.a.lines
        ia, ib, ic = L.index("L_cutA:"), L.index("L_roleB:"), L.index("L_cutB:")
        self.a.lines = L[:ia] + L[ib:ic] + L[ia+1:ib] + L[ic+1:]
        return self.wrap()

    def wrap(self):
        hdr = open("cdna_kernels/%s.s.ref" % NAME).read().split("; Override launch")[0]
        return hdr + f"""; Override launch geometry by editing the next line (default: block=256,
; grid=ceil(out_elems/256), lds=0). Harness parses it; keep it on one line.
; @launch grid=(256,1,1) block=(512,1,1) lds={LDS_BYTES}
.amdgcn_target "amdgcn-amd-amdhsa--gfx950"
.text
.globl {NAME}_kernel
.p2align 8
.type {NAME}_kernel,@function
{NAME}_kernel:
""" + self.a.text() + f""".section .rodata,"a"
.p2align 6
.amdhsa_kernel {NAME}_kernel
  .amdhsa_next_free_vgpr 256
  .amdhsa_next_free_sgpr 102
  .amdhsa_accum_offset 256
  .amdhsa_group_segment_fixed_size 0
  .amdhsa_kernarg_size 88
  .amdhsa_user_sgpr_count 2
  .amdhsa_user_sgpr_kernarg_segment_ptr 1
  .amdhsa_system_sgpr_workgroup_id_x 1
  .amdhsa_dx10_clamp 0
.end_amdhsa_kernel
"""

if __name__ == "__main__":
    out = sys.argv[1]
    stamps = "--stamps" in sys.argv
    opts = {}
    for x in sys.argv[2:]:
        if "=" in x:
            k, val = x.split("=", 1); opts[k] = eval(val)
    open(out, "w").write(Gen(stamps=stamps, opts=opts).build())
```

```python
import sys, struct
from asmlib import *

NAME = "concat_heads__grouped_kv_mqa__linear_attn_block__prompt"
def f32(x): return "0x%08x" % struct.unpack("<I", struct.pack("<f", x))[0]
LOG2E = 1.4426950408889634

WS_G   = 0x0
WS_F1  = 0x8000
WS_ACC = 0x10000
WS_KV  = 0x20000
C4_OFF = 576
WS_F2  = 0x60000
WS_OA  = 0x100000
WS_OB  = 0x300000
WS_STAMP = 0x800000
KVREC = 640
KVTILE = 4*KVREC
L_X   = 0
L_W   = 0x10000
L_WKV = 0x20000
L_MISC= 0x24000
L_SYNC= L_MISC + 0x3f00
LDS_BYTES = 0x28000
SPIN_MAX = 200000

S_AX, S_WQ, S_WK, S_WV, S_AWO, S_BX, S_WQKV, S_BWO = 8, 10, 12, 14, 16, 18, 20, 22
S_OUT, S_WS = 24, 26
S_W, S_G, S_J, S_C, S_TAG, S_XCD, S_KC0, S_EPOCH = 28, 29, 30, 31, 32, 33, 34, 35
T = 36
S_HI, S_LO, S_W3 = 50, 51, 52
S_IMG = 54
S_OUTB = 56
S_EX = 58
S_PEND = 59
S_PC = 0
E_CLR = 30
L_MK = L_SYNC + 80
U = 4
S_ST = 64
V_L16, V_SLOT, V_ALL, V_TAG, V_ZERO = 4, 5, 6, 7, 1

class Gen:
    def __init__(self, stamps=False, opts=None):
        self.a = Asm()
        self.stamps = stamps
        self.o = opts or {}
        self.inB = False
    def stamp(self, i, grp=None):
        m = self.o.get("meas")
        if m and grp is None and i in m[:2]: self.a(f"s_memrealtime s[{68+2*m.index(i)}:{69+2*m.index(i)}]")
        if grp != self.o.get("stg") and (grp or (self.inB and self.o.get("stg") and i not in (0, 13))): return
        if self.stamps:
            self.a(f"s_memrealtime {s(S_ST+2*i,2)}")
            cyc = self.o.get("cyc", (6, 7))
            if i in cyc:
                self.a(f"s_memtime {s(S_ST+2*(14+list(cyc).index(i)),2)}")
    def add64(self, dst, base, off):
        self.a(f"s_add_u32 {s(dst)}, {s(base)}, {off}")
        self.a(f"s_addc_u32 {s(dst+1)}, {s(base+1)}, 0")
    def dma(self, vreg, pair, m0s, m0i, off=0):
        return [f"s_add_u32 m0, {s(m0s)}, {m0i}", "s_nop 0",
                f"global_load_lds_dwordx4 {v(vreg)}, {s(pair,2)}" + (f" offset:{off}" if off else "")]
    def marker(self, idx):
        self.a(f"""
        s_lshl_b32 {s(T)}, {s(S_W3)}, 2
        s_add_u32 m0, {s(T)}, {L_MK + 4*idx}
        s_mov_b64 exec, 1
        global_load_lds_dword {v(V_ZERO)}, {s(S_PC,2)}
        s_mov_b64 exec, -1
        """)
    def newpage(self, name, back=None):
        a = self.a
        a(f"s_branch L_{name}")
        a(".p2align 12")
        if back:
            a(f"L_{name}_stub:")
            a(f"s_branch {back}")
            a("s_nop 0")
        a(f"L_{name}:")
    def emit(self, L):
        for x in L: self.a(x)
    def poll(self, vaddr, pair, offs, vt, sleep=2):
        a = self.a
        Lp, Ld = a.label("poll"), a.label("polld")
        a(f"s_mov_b32 {s(T+10)}, 0")
        a(f"{Lp}:")
        for i, o in enumerate(offs):
            a(f"global_load_dword {v(vt+i)}, {v(vaddr)}, {s(pair,2)} offset:{o} sc1")
        a("s_waitcnt vmcnt(0)")
        for i in range(len(offs)):
            if i == 0:
                a(f"v_cmp_ne_u32 vcc, {s(S_TAG)}, {v(vt)}")
            else:
                a(f"v_cmp_ne_u32 {s(T+12,2)}, {s(S_TAG)}, {v(vt+i)}")
                a(f"s_or_b64 vcc, vcc, {s(T+12,2)}")
        a(f"s_add_u32 {s(T+10)}, {s(T+10)}, 1")
        a(f"s_cmp_eq_u64 vcc, 0")
        a(f"s_cbranch_scc1 {Ld}")
        if sleep: a(f"s_sleep {sleep}")
        a(f"s_cmp_lt_u32 {s(T+10)}, {SPIN_MAX}")
        a(f"s_cbranch_scc1 {Lp}")
        a(f"{Ld}:")
    def check4(self, vt):
        a = self.a
        a(f"v_cmp_ne_u32 vcc, {s(S_TAG)}, {v(vt)}")
        for i in range(1, 4):
            a(f"v_cmp_ne_u32 {s(T+12,2)}, {s(S_TAG)}, {v(vt+i)}")
            a(f"s_or_b64 vcc, vcc, {s(T+12,2)}")
        a(f"s_cmp_eq_u64 vcc, 0")
    def poll4(self, vaddr, pair, vt, sleep):
        a = self.a
        Lp, Ld = a.label("poll"), a.label("polld")
        a(f"s_mov_b32 {s(T+10)}, 0")
        a(f"{Lp}:")
        a(f"global_load_dwordx4 {v(vt,4)}, {v(vaddr)}, {s(pair,2)} sc1")
        a(f"s_add_u32 {s(T+10)}, {s(T+10)}, 1")
        a("s_waitcnt vmcnt(0)")
        self.check4(vt)
        a(f"s_cbranch_scc1 {Ld}")
        if sleep: a(f"s_sleep {sleep}")
        a(f"s_cmp_lt_u32 {s(T+10)}, {SPIN_MAX}")
        a(f"s_cbranch_scc1 {Lp}")
        a(f"{Ld}:")
    def count(self, pair):
        a = self.a
        a(f"s_mov_b32 {s(T+11)}, 1")
        a(f"s_atomic_add {s(T+11)}, {s(pair,2)}, 0 glc")
    def count_peek(self, pair, sd):
        self.a(f"s_load_dword {s(sd)}, {s(pair,2)}, 0 glc")
    def count_wait(self, pair, sd, n, sleep=8):
        a = self.a
        Lp, Ld = a.label("cw"), a.label("cwd")
        a(f"""
        s_mov_b32 {s(T+10)}, 0
        {Lp}:
        s_waitcnt lgkmcnt(0)
        s_cmp_ge_u32 {s(sd)}, {n}
        s_cbranch_scc1 {Ld}
        {f"s_sleep {sleep}" if sleep else ""}
        s_load_dword {s(sd)}, {s(pair,2)}, 0 glc
        s_add_u32 {s(T+10)}, {s(T+10)}, 1
        s_cmp_lt_u32 {s(T+10)}, {SPIN_MAX}
        s_cbranch_scc1 {Lp}
        s_waitcnt lgkmcnt(0)
        {Ld}:
        """)
    def flag(self, base, sidx, vm=0, shift=7):
        a = self.a
        a(f"s_lshl_b32 {s(T+10)}, {s(sidx)}, {shift}")
        a(f"s_add_u32 {s(T+10)}, {s(T+10)}, {base}")
        self.add64(T+12, S_WS, s(T+10))
        if vm is not None: a(f"s_waitcnt vmcnt({vm})")
        a("s_mov_b64 exec, 1")
        a(f"global_store_dword {v(V_ZERO)}, {v(V_TAG)}, {s(T+12,2)} sc1")
        a("s_mov_b64 exec, -1")
    def arrive(self, vt):
        a = self.a
        a(f"s_add_u32 {s(S_EPOCH)}, {s(S_EPOCH)}, 1")
        a(f"v_mov_b32 {v(vt)}, {s(S_EPOCH)}")
        a(f"ds_write_b32 {v(V_SLOT)}, {v(vt)}")
    def await_(self, vt, vaddr=V_ALL, val=None, off=0, sleep=1):
        a = self.a
        Lp, Ld = a.label("sb"), a.label("sbd")
        a(f"s_mov_b32 {s(T+10)}, 0")
        a(f"{Lp}:")
        a(f"ds_read_b32 {v(vt)}, {v(vaddr)} offset:{off}")
        a("s_waitcnt lgkmcnt(0)")
        a(f"v_cmp_gt_u32 vcc, {val or s(S_EPOCH)}, {v(vt)}")
        a(f"s_add_u32 {s(T+10)}, {s(T+10)}, 1")
        a(f"s_cmp_eq_u64 vcc, 0")
        a(f"s_cbranch_scc1 {Ld}")
        if sleep: a(f"s_sleep {sleep}")
        a(f"s_cmp_lt_u32 {s(T+10)}, {SPIN_MAX*8}")
        a(f"s_cbranch_scc1 {Lp}")
        a(f"{Ld}:")
    def softbar(self, vt, sleep=1):
        self.arrive(vt); self.await_(vt, sleep=sleep)

    def entry(self):
        a = self.a
        a(f"""
        s_cmpk_ge_u32 s2, 256
        s_cbranch_scc1 L_end
        """)
        self.stamp(0)
        if self.o.get("spin"): a("s_memrealtime s[64:65]")
        Lp = a.label("p")
        a.c("wave 0: pull the code and this CU's share of x into the die's L2 right away")
        a(f"""
        s_load_dwordx16 s[8:23], s[0:1], 0
        s_load_dwordx2 {s(S_WS,2)}, s[0:1], 80
        s_getpc_b64 {s(U,2)}
        L_pc:
        s_lshr_b32 {s(S_C)}, s2, 3
        v_lshl_add_u32 v23, v0, 5, {s(S_C)}
        v_lshlrev_b32 v23, 7, v23
        s_and_b32 {s(S_XCD)}, s2, 7
        s_lshl_b32 {s(S_G)}, {s(S_XCD)}, 5
        s_add_u32 {s(S_C)}, {s(S_C)}, {s(S_G)}
        v_cmp_gt_u32 vcc, L_last-L_pc, v23
        s_and_b64 exec, exec, vcc
        s_cbranch_execz {Lp}
        {f"global_load_dword v18, v23, {s(U,2)}" if self.o.get("cpf", 1) else ""}
        s_mov_b64 exec, -1
        """)
        if self.o.get("xt", 0):
            a(f"""
            s_lshl_b32 {s(S_G)}, {s(S_C)}, 13
            v_lshl_add_u32 v19, v0, 7, {s(S_G)}
            s_waitcnt lgkmcnt(0)
            global_load_dword v19, v19, {s(S_AX,2)}
            """)
            if self.o.get("kt", 1):
                a(f"""
                s_mov_b64 exec, 15
                global_load_dword v17, v23, {s(S_WK,2)}
                global_load_dword v23, v23, {s(S_WV,2)}
                """)
        a(f"""
        {Lp}:
        s_mov_b64 exec, -1
        s_load_dwordx2 {s(S_OUT,2)}, s[0:1], 64
        v_lshrrev_b32 v1, 6, v0
        v_and_b32 v0, 63, v0
        v_readfirstlane_b32 {s(S_W)}, v1
        s_lshr_b32 {s(T)}, s2, 6
        s_lshr_b32 {s(S_G)}, {s(S_C)}, 3
        s_and_b32 {s(S_J)}, {s(S_C)}, 7
        s_lshl_b32 {s(T)}, {s(T)}, 1
        s_add_u32 {s(S_KC0)}, {s(T)}, {s(S_J)}
        s_and_b32 {s(S_KC0)}, {s(S_KC0)}, {7 if self.o.get('rot', 1) else 0}
        s_mov_b32 {s(S_EPOCH)}, 0
        s_and_b32 {s(S_W3)}, {s(S_W)}, 3
        s_lshr_b32 {s(S_HI)}, {s(S_W3)}, 1
        s_and_b32 {s(S_LO)}, {s(S_W)}, 1
        v_mov_b32 {v(V_ZERO)}, 0
        v_lshlrev_b32 {v(V_L16)}, 4, v0
        s_cmp_ge_u32 {s(S_W)}, 4
        s_cselect_b32 {s(T)}, 11, 3
        s_cselect_b32 {s(T+1)}, 1, 13
        s_lshl_b32 {s(T+2)}, {s(S_W3)}, 2
        s_add_u32 {s(T+2)}, {s(T+2)}, {L_SYNC}
        v_min_u32 v9, {s(T)}, v0
        v_add_u32 v9, {s(T+1)}, v9
        v_and_b32 v9, 15, v9
        v_lshl_add_u32 v9, v9, 4, {s(T+2)}
        ds_write_b32 v9, {v(V_ZERO)}
        """)
        a(f"""
        v_lshrrev_b32 v8, 3, v0
        v_lshlrev_b32 v2, 10, v8
        v_and_b32 v9, 7, v0
        v_lshrrev_b32 v10, 4, v0
        v_xor_b32 v9, v9, v10
        v_lshl_add_u32 v2, v9, 4, v2
        s_lshl_b32 {s(T)}, {s(S_W)}, 2
        s_add_u32 {s(T)}, {s(T)}, {L_SYNC}
        v_mov_b32 {v(V_SLOT)}, {s(T)}
        s_and_b32 {s(T)}, {s(T)}, -16
        v_and_b32 v9, 3, v0
        v_lshl_add_u32 {v(V_ALL)}, v9, 2, {s(T)}
        v_bfe_u32 v8, v0, 2, 3
        v_lshlrev_b32 v9, 4, v9
        v_lshrrev_b32 v10, 5, v0
        v_lshl_add_u32 v9, v10, 6, v9
        v_lshl_add_u32 v3, v8, 10, v9
        s_cmp_ge_u32 {s(S_W)}, 4
        s_cbranch_scc1 L_roleB
        """)

    def xfrag_addr(self, dst, sblk, vt):
        self.a(f"""
        v_and_b32 {v(vt)}, 31, v0
        v_lshlrev_b32 {v(vt+1)}, 7, {v(vt)}
        s_lshl_b32 {s(T)}, {s(sblk)}, 12
        v_add_u32 {v(vt+1)}, {s(T)}, {v(vt+1)}
        v_bfe_u32 {v(vt)}, v0, 1, 3
        v_lshrrev_b32 {v(vt+2)}, 5, v0
        v_xor_b32 {v(vt)}, {v(vt)}, {v(vt+2)}
        v_lshl_add_u32 {v(dst)}, {v(vt)}, 4, {v(vt+1)}
        v_xor_b32 {v(dst+1)}, 32, {v(dst)}
        v_xor_b32 {v(dst+2)}, 64, {v(dst)}
        v_xor_b32 {v(dst+3)}, 0x60, {v(dst)}
        """)
    def wfrag_addr(self, dst, vt):
        self.a(f"""
        v_bfe_u32 {v(vt)}, v0, 2, 2
        v_lshlrev_b32 {v(vt)}, 6, {v(vt)}
        v_bfe_u32 {v(vt+1)}, v0, 4, 1
        v_lshl_add_u32 {v(vt)}, {v(vt+1)}, 5, {v(vt)}
        v_and_b32 {v(vt+1)}, 3, v0
        v_lshl_add_u32 {v(vt)}, {v(vt+1)}, 3, {v(vt)}
        v_lshrrev_b32 {v(vt+1)}, 5, v0
        v_lshl_add_u32 {v(vt)}, {v(vt+1)}, 10, {v(vt)}
        s_lshl_b32 {s(T)}, {s(S_LO)}, 9
        s_add_u32 {s(T)}, {s(T)}, {L_W}
        v_add_u32 {v(dst)}, {s(T)}, {v(vt)}
        """)
    V_WO, V_EXW, V_EXR, V_OUT, V_IMG = 8, 9, 3, 2, 13
    def tail_addr(self, lbase, loshift, ownimg, colbytes, vt):
        a = self.a
        a(f"""
        v_bfe_u32 {v(vt)}, v0, 2, 2
        v_lshlrev_b32 {v(vt)}, 6, {v(vt)}
        v_lshrrev_b32 {v(vt+1)}, 5, v0
        v_lshl_add_u32 {v(vt)}, {v(vt+1)}, 8, {v(vt)}
        v_and_b32 {v(vt+2)}, 1, v0
        v_lshl_add_u32 {v(vt)}, {v(vt+2)}, 5, {v(vt)}
        v_bfe_u32 {v(vt+2)}, v0, 1, 1
        v_lshl_add_u32 {v(vt)}, {v(vt+2)}, 3, {v(vt)}
        v_bfe_u32 {v(vt+2)}, v0, 4, 1
        v_lshl_add_u32 {v(vt)}, {v(vt+2)}, 4, {v(vt)}
        s_mul_i32 {s(T)}, {s(S_LO)}, {loshift}
        s_add_u32 {s(T)}, {s(T)}, {lbase}
        v_add_u32 {v(self.V_WO)}, {s(T)}, {v(vt)}
        s_lshl_b32 {s(T)}, {s(S_W3)}, 12
        s_add_u32 {s(T)}, {s(T)}, {L_WKV}
        v_add_u32 {v(self.V_EXW)}, {s(T)}, {v(V_L16)}
        v_xor_b32 {v(self.V_EXR)}, 4096, {v(self.V_EXW)}
        v_lshrrev_b32 {v(vt)}, 3, v0
        v_lshlrev_b32 {v(vt)}, 11, {v(vt)}
        v_and_b32 {v(vt+1)}, 7, v0
        v_lshl_add_u32 {v(self.V_OUT)}, {v(vt+1)}, 4, {v(vt)}
        s_lshl_b32 {s(T)}, {s(S_G)}, 1
        s_add_u32 {s(T)}, {s(T)}, {s(S_HI)}
        s_lshl_b32 {s(T+1)}, {s(T)}, 16
        s_lshl_b32 {s(T+2)}, {s(S_J)}, 1
        s_add_u32 {s(T+2)}, {s(T+2)}, {s(S_LO)}
        s_lshl_b32 {s(T+3)}, {s(S_J)}, 7
        s_add_u32 {s(T+1)}, {s(T+1)}, {s(T+3)}
        s_lshl_b32 {s(T+3)}, {s(S_LO)}, 15
        s_add_u32 {s(T+1)}, {s(T+1)}, {s(T+3)}
        s_add_u32 {s(T+1)}, {s(T+1)}, {colbytes}
        """)
        self.add64(S_OUTB, S_OUT, s(T+1))
        a(f"""
        s_lshl_b32 {s(T)}, {s(T)}, 15
        s_lshl_b32 {s(T+2)}, {s(T+2)}, 11
        s_add_u32 {s(T+2)}, {s(T+2)}, {s(T)}
        s_add_u32 {s(T+2)}, {s(T+2)}, {ownimg}
        v_add_u32 {v(self.V_IMG)}, {s(T+2)}, {v(V_L16)}
        s_lshl_b32 {s(T+1)}, {s(S_LO)}, 14
        s_add_u32 {s(T)}, {s(T)}, {s(T+1)}
        s_add_u32 {s(T)}, {s(T)}, {WS_OA}
        """)
        self.add64(S_IMG, S_WS, s(T))

    RQ, RO, RS, RKV = 16, 64, 128, 192
    RIDX, RKA, RVA = 10, 11, 12
    def head_A(self):
        a = self.a
        RQ, RO, RS, RKV, RIDX, RKA, RVA = self.RQ, self.RO, self.RS, self.RKV, self.RIDX, self.RKA, self.RVA
        XA, WA = 248, 252
        a.c("=========================== role A ===========================")
        a.c("---- what the K/V producer needs goes first")
        a(f"""
        v_xor_b32 v10, 64, v2
        v_add_u32 v10, 8192, v10
        s_and_b32 {s(T+1)}, {s(S_J)}, 6
        s_lshl_b32 {s(T+6)}, {s(S_G)}, 16
        s_lshl_b32 {s(T+2)}, {s(T+1)}, 13
        s_add_u32 {s(T+6)}, {s(T+6)}, {s(T+2)}
        s_lshl_b32 {s(T+7)}, {s(S_W)}, 14
        s_lshl_b32 {s(T+2)}, {s(T+1)}, 10
        s_add_u32 {s(T+7)}, {s(T+7)}, {s(T+2)}
        s_lshl_b32 {s(T+8)}, {s(S_W)}, 12
        s_lshl_b32 {s(T+9)}, {s(S_W)}, 1
        s_add_u32 {s(T+9)}, {s(T+9)}, {s(S_KC0)}
        s_mov_b32 {s(S_EPOCH)}, 7
        s_waitcnt lgkmcnt(0)
        """)
        self.stamp(1)
        a(f"""
        s_bitcmp1_b32 {s(S_J)}, 0
        s_cselect_b32 {s(S_WK)}, {s(S_WV)}, {s(S_WK)}
        s_cselect_b32 {s(S_WK+1)}, {s(S_WV+1)}, {s(S_WK+1)}
        """)
        for i in range(2):
            a(f"""
            s_add_u32 {s(T)}, {s(T+9)}, {i}
            s_and_b32 {s(T)}, {s(T)}, 7
            s_lshl_b32 {s(T+1)}, {s(T)}, 7
            s_add_u32 {s(T+1)}, {s(T+1)}, {s(T+6)}
            """)
            self.add64(T+2, S_AX, s(T+1))
            a(f"s_lshl_b32 {s(T)}, {s(T)}, 11")
            self.add64(T+4, S_WK, s(T))
            self.emit(self.dma(2, T+2, T+7, L_X + i*8192))
            self.emit(self.dma(10, T+2, T+7, L_X + i*8192 + 1024))
            self.emit(self.dma(V_L16, T+4, T+8, L_WKV + i*2048))
            a(f"global_load_lds_dwordx4 {v(V_L16)}, {s(T+4,2)} offset:1024")
            if i == 0: a(f"s_getpc_b64 {s(S_PC,2)}")
            self.marker(36 - 4*i)
        a("s_barrier")
        a("s_branch L_bodyA")
        a("L_cutA:")
        a("L_bodyA:")
        XF, WF = RS, RS+32
        def rd(t):
            i = t % 8
            a(f"ds_read_b128 {v(XF+4*i,4)}, {v(XA+(t&3))} offset:{(t//4)*8192}")
            a(f"ds_read_b64_tr_b16 {v(WF+4*i,2)}, {v(WA)} offset:{t*2048}")
            a(f"ds_read_b64_tr_b16 {v(WF+4*i+2,2)}, {v(WA)} offset:{t*2048+256}")
        def mm(t):
            i = t % 8
            a(f"v_mfma_f32_32x32x16_bf16 v[32:47], {v(WF+4*i,4)}, {v(XF+4*i,4)}, {'0' if t == 0 else 'v[32:47]'}")
        def qproj():
            chk = self.o.get("chk", {0: 0, 4: 1, 8: 3, 16: 5, 24: 6, 28: 7})
            self.await_(20, vaddr=52, val="1", off=128, sleep=1)
            self.await_(20, vaddr=53, val="1", off=16*chk[0], sleep=0)
            self.stamp(2)
            for t in range(4): rd(t)
            for tb in range(4, 32, 4):
                if tb not in chk:
                    for t in range(tb-4, tb):
                        rd(t+4)
                        a("s_waitcnt lgkmcnt(12)")
                        mm(t)
                    continue
                Lok, Lj = a.label("a"), a.label("a")
                ad = 54 if chk[tb] == 7 else 53
                a(f"ds_read_b32 v20, {v(ad)} offset:{16*chk[tb]}")
                a("s_waitcnt lgkmcnt(10)")
                mm(tb-4)
                a("s_waitcnt lgkmcnt(7)")
                mm(tb-3)
                a(f"""
                s_waitcnt lgkmcnt(0)
                v_cmp_gt_u32 vcc, 1, v20
                s_cmp_eq_u64 vcc, 0
                s_cbranch_scc1 {Lok}
                """)
                mm(tb-2); mm(tb-1)
                self.await_(20, vaddr=ad, val="1", off=16*chk[tb], sleep=0)
                for t in range(tb, tb+4): rd(t)
                a(f"s_branch {Lj}")
                a(f"{Lok}:")
                rd(tb); rd(tb+1)
                mm(tb-2)
                rd(tb+2); rd(tb+3)
                mm(tb-1)
                a(f"{Lj}:")
                if tb == 28: self.stamp(3)
            a.c("the first key tiles are published: their fetch overlaps the end of the projection")
            a("s_barrier")
            self.stamp(5)
            for t in range(28, 32):
                if t == 28:
                    for k in range(3): a(self.kv_ld(0, k, 8))
                a(f"s_waitcnt lgkmcnt({3*(31-t)})")
                mm(t)
        self.xfrag_addr(XA, S_HI, 20)
        self.wfrag_addr(WA, 20)
        for i in range(0, 64, 2): a(f"v_mov_b64 {v(RO+i,2)}, 0")
        for i in range(0, 4, 2): a(f"v_mov_b64 {v(RKV+36+8+i,2)}, 0")
        a(f"""
        v_and_b32 v20, 15, v0
        v_lshlrev_b32 v20, 4, v20
        v_lshrrev_b32 v21, 5, v0
        v_lshl_add_u32 v20, v21, 8, v20
        v_bfe_u32 v21, v0, 4, 1
        v_mul_u32_u24 v22, {2*KVREC}, v21
        v_add_u32 {v(RKA)}, v20, v22
        v_cmp_eq_u32 vcc, 0, v21
        v_and_b32 v22, 11, v0
        v_min_u32 v22, 1, v22
        v_lshlrev_b32 v22, 4, v22
        v_add_u32 v22, 512, v22
        v_mov_b32 {v(RIDX)}, 0xdddd
        v_cndmask_b32 {v(RVA)}, v22, v20, vcc
        s_lshl_b32 {s(T)}, {s(S_W)}, 9
        s_add_u32 {s(T)}, {s(T)}, {L_MISC}
        v_lshl_add_u32 v48, v0, 2, {s(T)}
        v_xor_b32 v49, 512, v48
        v_and_b32 v60, 1, v0
        v_mul_u32_u24 v60, 12, v60
        v_add_u32 v60, 4, v60
        v_xor_b32 v60, v60, {v(V_SLOT)}
        v_mov_b32 v61, {E_CLR}
        v_and_b32 v51, 4, v0
        v_add_u32 v52, {L_MK-L_SYNC}, {v(V_ALL)}
        v_or_b32 v53, 8, v52
        v_and_b32 v54, 3, v0
        v_cmp_eq_u32 vcc, 0, v54
        s_nop 1
        v_cndmask_b32 v54, v53, v52, vcc
        v_lshl_add_u32 v51, v51, 4, {v(V_ALL)}
        s_lshl_b32 {s(T)}, {s(S_HI)}, 15
        v_add_u32 v14, {s(T)}, {v(V_L16)}
        """)
        self.tail_addr(L_W, 512, WS_OA, 1024, 20)
        a(f"""
        s_lshl_b32 {s(T)}, {s(S_HI)}, 12
        s_add_u32 {s(T)}, {s(T)}, {L_MISC+0x1000}
        v_lshrrev_b32 v20, 5, v0
        v_lshlrev_b32 v20, 1, v20
        s_lshl_b32 {s(T+1)}, {s(S_LO)}, 2
        v_add_u32 v20, {s(T+1)}, v20
        v_and_b32 v21, 7, v0
        v_xor_b32 v20, v20, v21
        v_and_b32 v22, 31, v0
        v_lshl_add_u32 v22, v22, 7, {s(T)}
        v_lshl_add_u32 v57, v20, 4, v22
        v_xor_b32 v58, 16, v57
        v_lshrrev_b32 v20, 3, v0
        v_xor_b32 v21, v21, v20
        s_lshl_b32 {s(T+1)}, {s(S_LO)}, 11
        s_add_u32 {s(T)}, {s(T)}, {s(T+1)}
        v_lshl_add_u32 v20, v20, 7, {s(T)}
        v_lshl_add_u32 v59, v21, 4, v20
        """)
        a(f"""
        s_add_u32 {s(U+2)}, {s(S_XCD)}, 1
        s_and_b32 {s(U+2)}, {s(U+2)}, 7
        s_lshl_b32 {s(U+2)}, {s(U+2)}, 3
        s_add_u32 {s(U+2)}, {s(U+2)}, {s(S_LO)}
        s_mul_i32 {s(U+2)}, {s(U+2)}, {KVTILE}
        s_add_u32 {s(U+2)}, {s(U+2)}, {WS_KV}
        """)
        for u in range(3):
            self.add64(8+2*u, S_WS, s(U+2))
            a(f"s_add_u32 {s(U+2)}, {s(U+2)}, {2*KVTILE}")
        if self.o.get("warm", 1): a("s_branch L_attn0_stub")
        a("L_warmed:")
        qproj()
        for i in range(0, 8, 2): a(f"v_mov_b64 {v(RS+48+8+i,2)}, 0")
        for k in range(3): a(self.kv_ld(1, k, 10))
        a("s_nop 4")
        for i in range(8):
            a(f"v_cvt_pk_bf16_f32 {v(RQ+8+i)}, {v(32+2*i)}, {v(33+2*i)}")
        a(f"ds_write_b128 {v(self.V_EXW)}, {v(RQ+8,4)}")
        a(f"ds_write_b128 {v(self.V_EXW)}, {v(RQ+12,4)} offset:1024")
        a("s_waitcnt lgkmcnt(0)")
        self.stamp(4)
        a("s_barrier")

    def kv_ops(self):
        SB, SOFF = T, U+2
        return [f"s_add_u32 {s(SB)}, {s(S_WS)}, {s(SOFF)}",
                f"s_addc_u32 {s(SB+1)}, {s(S_WS+1)}, 0",
                f"s_add_u32 {s(SOFF)}, {s(SOFF)}, {2*KVTILE}",
                f"s_cmp_ge_u32 {s(SOFF)}, {WS_KV+64*KVTILE}",
                f"s_cselect_b32 {s(T+2)}, {64*KVTILE}, 0",
                f"s_sub_u32 {s(SOFF)}, {s(SOFF)}, {s(T+2)}"]
    def kv_ld(self, u, k, SB=T):
        if k == 0: return f"global_load_dwordx4 {v(self.RKV+12*u,4)}, {v(self.RKA)}, {s(SB,2)} sc1"
        return f"global_load_dwordx4 {v(self.RKV+12*u+4*k,4)}, {v(self.RVA)}, {s(SB,2)} offset:{KVREC+(k-1)*2*KVREC} sc1"
    def attn(self):
        a = self.a
        RQ, RO, RS, RKV, RIDX, RKA, RVA = self.RQ, self.RO, self.RS, self.RKV, self.RIDX, self.RKA, self.RVA
        SB, SOFF, SCNT, SPASS = T, U+2, U+3, U
        def K(u): return v(RKV+12*u, 4)
        def V(u, h): return v(RKV+12*u+4+4*h, 4)
        addr_ops, ld = self.kv_ops, self.kv_ld
        a.c("---- attention")
        a(f"s_setprio {self.o.get('aprio', 1)}")
        a(f"ds_read_b128 {v(RQ,4)}, {v(self.V_EXR)}")
        a(f"ds_read_b128 {v(RQ+4,4)}, {v(self.V_EXR)} offset:1024")
        for k in range(3): a(self.kv_ld(2, k, 12))
        self.arrive(50)
        a(f"s_mov_b32 {s(SCNT)}, 6")
        if self.o.get("aprof"): a("s_mov_b32 m0, 0")
        al = 1
        self.newpage("attn0", "L_opB_stub")
        a(f"s_waitcnt vmcnt(6) lgkmcnt(0)")
        self.stamp(6)
        a(f"v_mfma_f32_32x32x16_bf16 {v(RS,16)}, {K(0)}, {v(RQ,4)}, 0")
        a("s_nop 3")
        L = a.label("attn")
        p2, p1 = self.o.get("pos", (3, 10))
        EXW = v(self.V_EXW)
        def body(last):
            for i in range(p1, 16): a(f"v_exp_f32 {v(RS+48+i)}, {v(RS+48+i)}")
            for u in range(4):
                for b in range(4):
                    if self.o.get("aprof") and b == 0:
                        a(f"""
                        s_memtime s[60:61]
                        s_waitcnt lgkmcnt(0)
                        v_writelane_b32 v55, s60, m0
                        s_add_u32 m0, m0, 1
                        """)
                    fill = [[], [], []]
                    if not last or u == 0:
                        if b == 0:
                            ops = addr_ops()
                            fill[0] = ops[0:1]; fill[1] = ops[1:3]; fill[2] = ops[3:5]
                        if b == 1:
                            fill[0] = addr_ops()[5:6]; fill[1] = [ld((u+3) % 4, 0)]; fill[2] = [ld((u+3) % 4, 1)]
                        if b == 2:
                            fill[1] = [ld((u+3) % 4, 2)]; fill[2] = ["s_waitcnt vmcnt(6)"]
                    elif b == 2 and u < 3:
                        fill[2] = [f"s_waitcnt vmcnt({6-3*u})"]
                    if not last and b == 3:
                        if u == 2: fill[1] = ["ds_read_b32 v50, v51"]
                        if u == 3:
                            fill[0] = ["s_waitcnt lgkmcnt(0)", f"v_cmp_gt_u32 vcc, {s(S_EPOCH)}, v50"]
                            fill[1] = ["s_cbranch_vccnz L_check", "L_checked:", f"s_sub_u32 {s(SCNT)}, {s(SCNT)}, 1"]
                            fill[2] = [f"s_cbranch_scc0 {L}"]
                    if last and u == 3 and b >= 2:
                        k = b - 2
                        fill[0] = [f"ds_write_b128 {EXW}, {v(RO+16*k,4)} offset:{2048*k}"]
                        fill[1] = [f"ds_write_b128 {EXW}, {v(RO+16*k+4,4)} offset:{2048*k+1024}",
                                   f"ds_write_b32 v48, {v(RO+16*k+8)} offset:{256*k}"]
                        if k: fill[1].append(f"ds_write_b32 {v(V_SLOT)}, v61")
                    nu, nb = (u, b+1) if b < 3 else ((u+1) % 4, 0)
                    pu, pb = (u, b-1) if b > 0 else ((u-1) % 4, 3)
                    S = RS + 16*b
                    if not (last and u == 3 and b == 3):
                        a(f"v_mfma_f32_32x32x16_bf16 {v(RS+16*nb,16)}, {K(nu)}, {v(RQ+4*nb,4)}, 0")
                    for x in fill[0]: a(x)
                    for i in range(0, p2): a(f"v_exp_f32 {v(S+i)}, {v(S+i)}")
                    a(f"v_smfmac_f32_32x32x32_bf16 {v(RO+16*pb,16)}, {V(pu,1)}, {v(RS+16*pb+8,8)}, {v(RIDX)}")
                    for x in fill[1]: a(x)
                    for i in range(p2, p1): a(f"v_exp_f32 {v(S+i)}, {v(S+i)}")
                    a(f"v_smfmac_f32_32x32x32_bf16 {v(RO+16*b,16)}, {V(u,0)}, {v(S,8)}, {v(RIDX)}")
                    for x in fill[2]: a(x)
                    if last or (u, b) != (3, 3):
                        for i in range(p1, 16): a(f"v_exp_f32 {v(S+i)}, {v(S+i)}")
        if not al: a(".p2align 6")
        a(f"{L}:")
        body(False)
        body(True)
        def check():
            a("L_check:")
            self.await_(50, vaddr=51)
            a("s_branch L_checked")
        self.check = check
        a(f"ds_read_b32 v50, v60")
        a(f"ds_read_b32 {v(RO+8)}, v49")
        a(f"v_smfmac_f32_32x32x32_bf16 {v(RO+48,16)}, {V(3,1)}, {v(RS+48+8,8)}, {v(RIDX)}")

    def tail_A(self):
        a = self.a
        RQ, RO = self.RQ, self.RO
        self.stamp(7)
        if self.o.get("aprof"):
            a(f"""
            s_lshl_b32 s60, s2, 2
            s_add_u32 s60, s60, {s(S_W)}
            s_lshl_b32 s60, s60, 8
            s_add_u32 s60, s60, {WS_STAMP+0x40000}
            v_lshl_add_u32 v56, v0, 2, s60
            global_store_dword v56, v55, {s(S_WS,2)}
            """)
        a.c("---- pair reduction of the two key halves")
        O2, O3 = RO+32, RO+48
        def rdpart():
            a(f"""
            ds_read_b32 {v(RO+24)}, v49 offset:256
            ds_read_b128 {v(RO,4)}, {v(self.V_EXR)}
            ds_read_b128 {v(RO+4,4)}, {v(self.V_EXR)} offset:1024
            ds_read_b128 {v(RO+16,4)}, {v(self.V_EXR)} offset:2048
            ds_read_b128 {v(RO+20,4)}, {v(self.V_EXR)} offset:3072
            """)
        rdpart()
        Lok, La = a.label("x"), a.label("x")
        a(f"""
        s_mov_b32 {s(T+2)}, {f32(2.0**-20)}
        s_mov_b32 {s(T+3)}, {f32(2.0**100)}
        s_waitcnt lgkmcnt(6)
        v_cmp_gt_u32 vcc, {E_CLR}, v50
        s_cmp_eq_u64 vcc, 0
        s_cbranch_scc1 {Lok}
        """)
        self.await_(50, vaddr=60, val=str(E_CLR), sleep=0)
        a(f"ds_read_b32 {v(RO+8)}, v49")
        rdpart()
        a(f"{Lok}:")
        self.stamp(11)
        a(f"""
        s_waitcnt lgkmcnt(2)
        v_add_f32 {v(O2+8)}, {v(O2+8)}, {v(RO+8)}
        v_add_f32 {v(O3+8)}, {v(O3+8)}, {v(RO+24)}
        v_cmp_le_f32 {s(T+4,2)}, {s(T+2)}, {v(O2+8)}
        v_cmp_le_f32 {s(T+6,2)}, {s(T+2)}, {v(O3+8)}
        v_add_f32 {v(RO+9)}, {v(O2+8)}, {v(O3+8)}
        """)
        for b in range(2):
            if b: a("s_waitcnt lgkmcnt(0)")
            for i in range(0, 8, 2):
                a(f"v_pk_add_f32 {v(O2+16*b+i,2)}, {v(O2+16*b+i,2)}, {v(RO+16*b+i,2)}")
        a.c("---- the zero shift is kept only if every row sum is in range and every sum is finite")
        a(f"""
        v_pk_add_f32 {v(RO,2)}, {v(O2,2)}, {v(O2+2,2)}
        v_pk_add_f32 {v(RO+2,2)}, {v(O2+4,2)}, {v(O2+6,2)}
        v_pk_add_f32 {v(RO+4,2)}, {v(O3,2)}, {v(O3+2,2)}
        v_pk_add_f32 {v(RO+6,2)}, {v(O3+4,2)}, {v(O3+6,2)}
        v_pk_add_f32 {v(RO,2)}, {v(RO,2)}, {v(RO+2,2)}
        v_pk_add_f32 {v(RO+4,2)}, {v(RO+4,2)}, {v(RO+6,2)}
        s_and_b64 {s(T+4,2)}, {s(T+4,2)}, {s(T+6,2)}
        v_pk_add_f32 {v(RO,2)}, {v(RO,2)}, {v(RO+4,2)}
        v_fma_f32 {v(RO+9)}, {v(RO)}, 0, {v(RO+9)}
        v_fma_f32 {v(RO+9)}, {v(RO+1)}, 0, {v(RO+9)}
        v_cmp_ge_f32 vcc, {s(T+3)}, {v(RO+9)}
        s_and_b64 vcc, vcc, {s(T+4,2)}
        s_cmp_eq_u64 vcc, -1
        s_cbranch_scc0 L_fallback
        L_norm:
        """)
        self.normalize([(O2, O2+8), (O3, O3+8)], 16)
        self.stamp(8)
        a.c("---- the linear-attention half of the output projection fills the hand-off wait")
        a("s_setprio 0")
        self.newpage("opB", "L_warmed")
        a("s_barrier")
        XF, WF, ACC = 128, 160, 64
        D = 4
        def rd(u):
            i = u % 8
            a(f"ds_read_b128 {v(XF+4*i,4)}, v14 offset:{u*1024}")
            for sx in range(2):
                a(f"ds_read_b64_tr_b16 {v(WF+4*i+2*sx,2)}, {v(self.V_WO)} offset:{(2*u+sx)*1024}")
        for u in range(D): rd(u)
        for u in range(32):
            if u + D < 32:
                rd(u+D); n = 3*D
            else:
                n = 3*(31-u)
            y2 = self.o.get("y2", 12)
            if u == y2:
                a("v_mov_b32 v50, 39")
                a("s_waitcnt vmcnt(0)")
                a(f"ds_write_b32 {v(V_SLOT)}, v50")
                self.stamp(9)
            a(f"s_waitcnt lgkmcnt({n})")
            i = u % 8
            a(f"v_mfma_f32_32x32x16_bf16 {v(ACC,16)}, {v(WF+4*i,4)}, {v(XF+4*i,4)}, {'0' if u == 0 else v(ACC,16)}")
        self.stamp(10)
        a(f"s_mov_b32 {s(S_EPOCH)}, 39")
        self.add64(T+2, S_OUTB, 16384)
        a("s_nop 7")
        a("s_nop 0")
        for h in range(2):
            for i in range(4*h, 4*h+4): a(f"v_cvt_pk_bf16_f32 {v(32+i)}, {v(ACC+2*i)}, {v(ACC+2*i+1)}")
            a(f"ds_write_b128 {v(57+h)}, {v(32+4*h,4)}")
        self.softbar(50, sleep=0)
        a("ds_read_b128 v[40:43], v59")
        a("ds_read_b128 v[44:47], v59 offset:1024")
        a.c("these stores queue behind the other waves' fetches, not in front of them")
        if self.o.get("sw", 1): self.await_(50, val="40", off=16, sleep=1)
        for h in range(2):
            a(f"s_waitcnt lgkmcnt({1-h})")
            a(f"global_store_dwordx4 {v(self.V_OUT)}, {v(40+4*h,4)}, {s(T+2 if h else S_OUTB,2)} {self.o.get('osta','sc1')}")
        a("s_barrier")
        a("s_branch L_fin")

    def normalize(self, blocks, P, guard=True):
        a = self.a
        for N, R in blocks: a(f"v_rcp_f32 {v(R)}, {v(R)}")
        for b, (N, R) in enumerate(blocks):
            for i in range(0, 8, 2):
                a(f"v_pk_mul_f32 {v(N+i,2)}, {v(N+i,2)}, {v(R,2)} op_sel_hi:[1,0]")
            for i in range(4):
                a(f"v_cvt_pk_bf16_f32 {v(P+4*b+i)}, {v(N+2*i)}, {v(N+2*i+1)}")
            if guard: a(f"v_min_u32 {v(P+4*b)}, -2, {v(P+4*b)}")
            a(f"global_store_dwordx4 {v(self.V_IMG)}, {v(P+4*b,4)}, {s(S_WS,2)} offset:{1024*b} {'' if guard and self.o.get('xplain') else 'sc1'}")

    def attn_fallback(self, Lret):
        a = self.a
        RQ, RO, RS, RKV, RIDX, RKA, RVA = self.RQ+8, self.RO+32, self.RS, self.RKV, self.RIDX, self.RKA, self.RVA
        SB, SCNT = T, U+3
        NM = RS + 32
        a("L_fallback:")
        a(f"v_mov_b32 {v(RKV+20)}, 0xff800000")
        a(f"v_mov_b32 {v(RKV+21)}, 0xff800000")
        for ps in (0, 1):
            L = a.label("fb")
            self.add64(SB, S_WS, WS_KV)
            a(f"""
            s_mov_b32 {s(SCNT)}, 64
            {L}:
            global_load_dwordx4 {v(RKV,4)}, {v(RKA)}, {s(SB,2)} sc1
            """)
            if ps:
                a(f"global_load_dwordx4 {v(RKV+4,4)}, {v(RVA)}, {s(SB,2)} offset:{KVREC} sc1")
                a(f"global_load_dwordx4 {v(RKV+8,4)}, {v(RVA)}, {s(SB,2)} offset:{3*KVREC} sc1")
            self.add64(SB, SB, KVTILE)
            a("s_waitcnt vmcnt(0)")
            for b in range(2):
                c = v(NM+16*b, 16) if ps else "0"
                a(f"v_mfma_f32_32x32x16_bf16 {v(RS+16*b,16)}, {v(RKV,4)}, {v(RQ+4*b,4)}, {c}")
            a("s_nop 7")
            a("s_nop 4")
            for b in range(2):
                S = RS + 16*b
                if not ps:
                    for i in range(0, 16, 2):
                        a(f"v_max3_f32 {v(RKV+20+b)}, {v(S+i)}, {v(S+i+1)}, {v(RKV+20+b)}")
                else:
                    for i in range(16): a(f"v_exp_f32 {v(S+i)}, {v(S+i)}")
                    a("s_nop 1")
                    a(f"v_smfmac_f32_32x32x32_bf16 {v(RO+16*b,16)}, {v(RKV+4,4)}, {v(S,8)}, {v(RIDX)}")
                    a(f"v_smfmac_f32_32x32x32_bf16 {v(RO+16*b,16)}, {v(RKV+8,4)}, {v(S+8,8)}, {v(RIDX)}")
            a(f"""
            s_sub_u32 {s(SCNT)}, {s(SCNT)}, 1
            s_cmp_lg_u32 {s(SCNT)}, 0
            s_cbranch_scc1 {L}
            """)
            if not ps:
                for b in range(2):
                    m = RKV+20+b
                    a(f"""
                    v_mov_b32 {v(RKV+22)}, {v(m)}
                    s_nop 1
                    v_permlane32_swap_b32 {v(m)}, {v(RKV+22)}
                    s_nop 1
                    v_max_f32 {v(m)}, {v(m)}, {v(RKV+22)}
                    """)
                    for i in range(16): a(f"v_sub_f32 {v(NM+16*b+i)}, 0, {v(m)}")
                for i in range(32): a(f"v_mov_b32 {v(RO+i)}, 0")
        a("s_nop 7")
        a("s_nop 4")
        a(f"s_branch {Lret}")

    def outproj_wfrags(self):
        a = self.a
        for p in range(4):
            a(f"""
            s_add_u32 {s(T)}, {s(S_J)}, {p}
            s_and_b32 {s(T)}, {s(T)}, 3
            s_lshl_b32 {s(T+1)}, {s(S_LO)}, 2
            s_add_u32 {s(T)}, {s(T)}, {s(T+1)}
            s_lshl_b32 {s(T+1)}, {s(S_G)}, 1
            s_sub_u32 {s(T)}, {s(T)}, {s(T+1)}
            s_and_b32 {s(T)}, {s(T)}, 7
            s_lshl_b32 {s(T)}, {s(T)}, 13
            v_add_u32 v21, {s(T)}, {v(self.V_WO)}
            """)
            for k in range(4):
                u = 4*p + k
                for nb in range(2):
                    for sx in range(2):
                        a(f"ds_read_b64_tr_b16 {v(128+8*u+4*nb+2*sx,2)}, v21 offset:{(2*k+sx)*1024+nb*512}")
    def gather_loads(self, p):
        for k in range(4):
            self.a(f"global_load_dwordx4 {v(32+16*p+4*k,4)}, {v(V_L16)}, {s(8+2*p,2)} offset:{k*1024} sc1")
    def outproj(self):
        a = self.a
        a.c("=========================== attention half of the output projection ===========================")
        def test(p):
            I = 32 + 16*p
            a(f"""
            v_max3_u32 v16, {v(I)}, {v(I+4)}, {v(I+8)}
            v_max_u32 v16, v16, {v(I+12)}
            v_cmp_eq_u32 vcc, -1, v16
            """)
        def mms(p):
            return [f"v_mfma_f32_32x32x16_bf16 {v(96+16*nb,16)}, {v(128+8*(4*p+k)+4*nb,4)}, {v(32+4*(4*p+k),4)}, {v(96+16*nb,16)}"
                    for k in range(4) for nb in range(2)]
        def consume(p, Ls):
            test(p)
            a(f"""
            s_cmp_lg_u64 vcc, 0
            s_cbranch_scc1 {Ls}
            s_bitset0_b32 {s(S_PEND)}, {p}
            """)
            self.emit(mms(p))
            a(f"{Ls}:")
        def wr(nb, lo=0, hi=4):
            for k, ad in list(enumerate((9, 14, 15, 17)))[lo:hi]:
                a(f"ds_write_b128 {v(ad)}, {v(96+16*nb+4*k,4)} offset:{128*nb}")
        self.gather_loads(0); self.gather_loads(1)
        self.add64(T+2, S_OUTB, 16384)
        a("s_waitcnt vmcnt(4)")
        self.stamp(5)
        test(0)
        for p in range(4):
            a("s_cmp_lg_u64 vcc, 0")
            a(f"s_cbranch_scc1 L_miss")
            a(f"s_bitset0_b32 {s(S_PEND)}, {p}")
            M = mms(p)
            if p == 3: break
            a(M[0])
            if p < 2: self.gather_loads(p+2)
            if p == 1: a(f"ds_write_b32 {v(V_SLOT)}, v19")
            if p == 2: a(f"ds_read_b32 v20, v21")
            self.emit(M[1:7])
            a(f"s_waitcnt vmcnt({4 if p < 2 else 0})")
            test(p+1)
            a(M[7])
        a.c("the exchange tiles reuse LDS the A waves have finished reading")
        Lok = a.label("k")
        self.emit(M[0::2])
        a(M[1])
        a(f"""
        s_waitcnt lgkmcnt(0)
        v_cmp_gt_u32 vcc, 40, v20
        s_cmp_eq_u64 vcc, 0
        s_cbranch_scc1 {Lok}
        """)
        self.await_(20, vaddr=21, val="40", sleep=0)
        a(f"{Lok}:")
        a(M[3])
        a("s_nop 5")
        wr(0, 0, 1)
        a(M[5])
        wr(0, 1, 2)
        a(M[7])
        self.stamp(10)
        wr(0, 2, 4)
        a("s_nop 9")
        a("L_gathered:")
        wr(1)
        a("s_waitcnt lgkmcnt(0)")
        a("s_barrier")
        for i in range(2):
            for pt in range(2):
                for e, ad in enumerate((3, 24)):
                    a(f"ds_read_b128 {v(32+16*i+8*pt+4*e,4)}, {v(ad)} offset:{2048*i+8192*pt}")
        for i in range(2):
            a(f"s_waitcnt lgkmcnt({4-4*i})")
            for k in range(0, 8, 2): a(f"v_pk_add_f32 {v(32+16*i+k,2)}, {v(32+16*i+k,2)}, {v(32+16*i+8+k,2)}")
            for k in range(4): a(f"v_cvt_pk_bf16_f32 {v(64+4*i+k)}, {v(32+16*i+2*k)}, {v(32+16*i+2*k+1)}")
            a(f"global_store_dwordx4 {v(self.V_OUT)}, {v(64+4*i,4)}, {s(T+2 if i else S_OUTB,2)} {self.o.get('ostb','sc1')}")
        def retry():
            a("L_miss:")
            a(f"ds_write_b32 {v(V_SLOT)}, v19")
            a("s_waitcnt vmcnt(0)")
            a("L_retry:")
            if self.o.get("rs", 2): a(f"s_sleep {self.o.get('rs', 2)}")
            for p in range(4):
                Ls = a.label("gs")
                a(f"s_bitcmp1_b32 {s(S_PEND)}, {p}")
                a(f"s_cbranch_scc0 {Ls}")
                self.gather_loads(p)
                a(f"{Ls}:")
            a("s_waitcnt vmcnt(0)")
            for p in range(4):
                Ls = a.label("cs")
                a(f"s_bitcmp1_b32 {s(S_PEND)}, {p}")
                a(f"s_cbranch_scc0 {Ls}")
                consume(p, Ls)
            a(f"""
            s_add_u32 {s(T+9)}, {s(T+9)}, 1
            s_cmp_eq_u32 {s(S_PEND)}, 0
            s_cbranch_scc1 L_rdone
            s_cmp_lt_u32 {s(T+9)}, {SPIN_MAX}
            s_cbranch_scc1 L_retry
            L_rdone:
            """)
            self.await_(20, vaddr=21, val="40", sleep=0)
            a("s_nop 3")
            wr(0)
            a("s_branch L_gathered")
        self.retry = retry

    def kv_setup(self):
        self.a(f"""
        v_and_b32 v96, 15, v0
        v_and_b32 v97, 3, v0
        v_bfe_u32 v98, v0, 2, 1
        v_lshl_add_u32 v97, v98, 3, v97
        v_bfe_u32 v98, v0, 3, 1
        v_lshl_add_u32 v97, v98, 2, v97
        s_bitcmp1_b32 {s(S_J)}, 0
        s_cselect_b64 vcc, -1, 0
        s_cselect_b32 {s(T+8)}, 1.0, {f32(0.25*LOG2E)}
        v_cndmask_b32 v96, v96, v97, vcc
        v_lshrrev_b32 v98, 4, v0
        v_lshrrev_b32 v97, 1, v96
        v_xor_b32 v97, v97, v98
        v_lshlrev_b32 v96, 7, v96
        v_lshl_add_u32 v96, v97, 4, v96
        s_and_b32 {s(T)}, {s(S_J)}, 6
        s_lshl_b32 {s(T)}, {s(T)}, 10
        v_add_u32 v96, {s(T)}, v96
        v_xor_b32 v97, 64, v96
        v_bfe_u32 v99, v0, 2, 2
        v_lshl_add_u32 v99, v98, 3, v99
        v_lshlrev_b32 v99, 5, v99
        v_and_b32 v100, 3, v0
        v_lshl_add_u32 v99, v100, 3, v99
        v_add_u32 v99, {L_WKV}, v99
        """)
    def kv_compute(self):
        a = self.a
        XF, WF = 128, 160
        LV, LD = a.label("kvv"), a.label("kvd")
        order = [2*sl + h for par in range(2) for sl in range(par, 8, 2) for h in range(2)]
        def rd(n):
            t = order[n]
            a(f"ds_read_b128 {v(XF+4*(n%8),4)}, {v(96+(t&1))} offset:{(t//2)*8192}")
            a(f"ds_read_b64_tr_b16 {v(WF+4*(n%8),2)}, v99 offset:{t*1024}")
            a(f"ds_read_b64_tr_b16 {v(WF+4*(n%8)+2,2)}, v99 offset:{t*1024+128}")
        a(f"s_bitcmp1_b32 {s(S_J)}, 0")
        a(f"s_cbranch_scc1 {LV}")
        for isv in (0, 1):
            if isv: a(f"{LV}:")
            def mm(n):
                x, w = v(XF+4*(n%8),4), v(WF+4*(n%8),4)
                A, B = (x, w) if isv else (w, x)
                a(f"v_mfma_f32_16x16x32_bf16 v[104:107], {A}, {B}, {'0' if n == 0 else 'v[104:107]'}")
            for h in range(2):
                self.await_(20, vaddr=21, val="1", off=16-16*h, sleep=0)
                if h == 0:
                    self.stamp(2); self.stamp(5, "hd")
                for n in range(8*h, 8*h+4):
                    rd(n)
                    if h: mm(n-4)
                for n in range(8*h, 8*h+4):
                    rd(n+4)
                    a("s_waitcnt lgkmcnt(12)")
                    mm(n)
            for n in range(12, 16):
                a(f"s_waitcnt lgkmcnt({3*(15-n)})")
                mm(n)
            if not isv: a(f"s_branch {LD}")
        a(f"""
        {LD}:
        s_nop 7
        v_pk_mul_f32 v[104:105], v[104:105], {s(T+8,2)} op_sel_hi:[1,0]
        v_pk_mul_f32 v[106:107], v[106:107], {s(T+8,2)} op_sel_hi:[1,0]
        v_cvt_pk_bf16_f32 v108, v104, v105
        v_cvt_pk_bf16_f32 v109, v106, v107
        s_nop 1
        v_permlane32_swap_b32 v108, v110
        v_permlane32_swap_b32 v109, v111
        s_mov_b32 exec_hi, 0
        global_store_dwordx4 v101, v[108:111], {s(S_WS,2)} sc1
        s_mov_b32 exec_hi, -1
        """)

    def phi(self, R):
        a = self.a
        TMP = 80
        a(f"s_mov_b32 {s(T)}, {f32(LOG2E)}")
        a(f"s_mov_b32 {s(T+2)}, {f32(1e-6)}")
        for i in range(0, 16, 2): a(f"v_pk_fma_f32 {v(TMP+i,2)}, {v(R+i,2)}, {s(T,2)}, v[18:19] op_sel_hi:[1,0,0]")
        for i in range(16): a(f"v_exp_f32 {v(TMP+i)}, {v(TMP+i)} clamp")
        for i in range(16): a(f"v_max_f32 {v(R+i)}, {s(T+2)}, {v(R+i)}")
        for i in range(0, 16, 2): a(f"v_pk_add_f32 {v(R+i,2)}, {v(R+i,2)}, {v(TMP+i,2)}")
        for i in range(0, 16, 2): a(f"v_cvt_pk_bf16_f32 {v(R+i//2)}, {v(R+i)}, {v(R+i+1)}")

    def roleB(self):
        a = self.a
        RB, HP, WB = S_HI, S_LO, S_W3
        SXM, SWM, SXO, SWO = U, U+1, U+2, U+3
        VX, VW, VO = 26, 240, 28
        XA, WA = 244, 248
        AK, AV, AQ = 32, 48, 64
        F = (96, 160)
        XF = 96
        X, Y = 224, 232
        V_L128, V_SX, V_L4, V_F4 = 10, 11, 12, 15
        VL, SL, SLO, SF1 = 80, 96, 60, 62
        HI, LOW = "s_setprio 3", f"s_setprio {self.o.get('bmm', 0)}"
        a.c("=========================== role B ===========================")
        a("L_roleB:")
        self.inB = True
        Lj = a.label("b")
        a(f"""
        s_lshl_b32 {s(T)}, {s(S_C)}, 8
        s_add_u32 {s(T)}, {s(T)}, {WS_ACC}
        v_lshl_add_u32 v24, v0, 2, {s(T)}
        s_mul_i32 {s(T)}, {s(S_C)}, {KVREC}
        s_add_u32 {s(T)}, {s(T)}, {WS_KV}
        v_add_u32 v101, {s(T)}, {v(V_L16)}
        v_cmp_eq_u32 vcc, 32, v0
        v_mov_b32 v112, 0x3f803f80
        s_nop 0
        v_cndmask_b32 v112, 0, v112, vcc
        v_mov_b32 v113, v112
        v_mov_b32 v114, v112
        v_mov_b32 v115, v112
        """)
        for u in range(4): a(f"v_add_u32 {v(VL+u)}, {8192*u}, v3")
        a(f"s_lshl_b32 {s(T)}, {s(S_LO)}, 6")
        a(f"v_xor_b32 v20, {s(T)}, v2")
        for u in range(3):
            a(f"""
            s_add_u32 {s(T)}, {s(S_J)}, {2+2*u}
            s_and_b32 {s(T)}, {s(T)}, 6
            s_add_u32 {s(T)}, {s(T)}, {s(S_LO)}
            s_lshl_b32 {s(SL+u)}, {s(T)}, 10
            s_lshl_b32 {s(T)}, {s(T)}, 13
            v_add_u32 {v(VL+4+u)}, {s(T)}, v20
            """)
        a(f"""
        s_add_u32 {s(T)}, {s(S_XCD)}, 1
        s_lshl_b32 {s(T)}, {s(T)}, 3
        v_add_u32 v92, {s(T)}, v0
        v_and_b32 v92, 63, v92
        v_lshlrev_b32 v92, 7, v92
        v_add_u32 v92, {WS_F1}, v92
        s_lshl_b32 {s(SL+3)}, {s(S_LO)}, 12
        s_lshl_b32 {s(SL+4)}, {s(S_G)}, 16
        s_lshl_b32 {s(SLO)}, {s(S_J)}, 7
        s_lshl_b32 {s(T)}, {s(S_LO)}, 15
        s_add_u32 {s(SLO)}, {s(SLO)}, {s(T)}
        """)
        ta = self.o.get("ta", 0)
        if ta:
            a.c("first touch (one dword per line) of this CU's share of what the die reads for the A-side projections")
            a(f"""
            s_and_b32 {s(T)}, {s(S_G)}, 3
            s_lshl_b32 {s(T+1)}, {s(T)}, 10
            s_lshl_b32 {s(T+2)}, {s(S_J)}, 7
            s_add_u32 {s(T+1)}, {s(T+1)}, {s(T+2)}
            s_lshl_b32 {s(T+2)}, {s(S_LO)}, 18
            s_add_u32 {s(T+1)}, {s(T+1)}, {s(T+2)}
            s_lshl_b32 {s(T+2)}, {s(S_C)}, 13
            s_lshl_b32 {s(T)}, {s(T)}, 2
            s_lshr_b32 {s(T+3)}, {s(S_J)}, 1
            s_add_u32 {s(T)}, {s(T)}, {s(T+3)}
            s_lshl_b32 {s(T)}, {s(T)}, 10
            s_cmp_eq_u32 {s(S_W)}, 5
            s_cselect_b32 {s(T)}, {s(T+2)}, {s(T)}
            s_cmp_ge_u32 {s(S_W)}, 6
            s_cselect_b32 {s(T)}, {s(T+1)}, {s(T)}
            s_cselect_b32 {s(T+1)}, 12, 7
            v_lshlrev_b32 v19, {s(T+1)}, v0
            v_add_u32 v19, {s(T)}, v19
            """)
        a("s_waitcnt lgkmcnt(0)")
        if ta:
            Lt4, Lt5, Lte = a.label("t"), a.label("t"), a.label("t")
            a(f"""
            s_cmp_eq_u32 {s(S_W)}, 4
            s_cbranch_scc1 {Lt4}
            s_cmp_eq_u32 {s(S_W)}, 5
            s_cbranch_scc1 {Lt5}
            {f"global_load_dword v19, v19, {s(S_WQ,2)}" if ta != 4 else ""}
            s_branch {Lte}
            {Lt5}:
            {f"global_load_dword v19, v19, {s(S_AX,2)}" if ta == 1 else ""}
            s_branch {Lte}
            {Lt4}:
            s_bitcmp1_b32 {s(S_J)}, 0
            s_cselect_b32 {s(S_WK)}, {s(S_WV)}, {s(S_WK)}
            s_cselect_b32 {s(S_WK+1)}, {s(S_WV+1)}, {s(S_WK+1)}
            s_mov_b64 exec, 0xff
            {f"global_load_dword v19, v19, {s(S_WK,2)}" if ta in (1, 3) else ""}
            s_mov_b64 exec, -1
            {Lte}:
            """)
        Lz = a.label("b")
        a.c("clear this CU's share of the state accumulators (ordered before the K/V flag)")
        a(f"""
        s_cmp_lg_u32 {s(S_W)}, 4
        s_cbranch_scc1 {Lz}
        global_store_dword v24, {v(V_ZERO)}, {s(S_WS,2)} sc1
        s_mov_b32 exec_lo, {-1 if self.o.get("pre", 1) == 1 else 0}
        s_mov_b32 exec_hi, 0xff
        global_store_dwordx4 v101, v[112:115], {s(S_WS,2)} sc1
        s_mov_b64 exec, -1
        {Lz}:
        s_lshr_b32 {s(T)}, {s(S_C)}, 2
        s_lshl_b32 {s(T)}, {s(T)}, 7
        s_and_b32 {s(T+1)}, {s(S_C)}, 3
        s_lshl_b32 {s(T+1)}, {s(T+1)}, 2
        s_add_u32 {s(T)}, {s(T)}, {s(T+1)}
        s_add_u32 {s(T)}, {s(T)}, {WS_F1}
        s_add_u32 {s(S_WV)}, {s(S_WS)}, {s(T)}
        s_addc_u32 {s(S_WV+1)}, {s(S_WS+1)}, 0
        s_load_dword s53, {s(S_WV,2)}, 0
        s_load_dword {s(S_TAG)}, {s(S_WS,2)}, {WS_G}
        """)
        a(f"s_getpc_b64 {s(S_PC,2)}")
        self.stamp(1)
        a("s_barrier")
        self.stamp(1, "hd")
        def setup():
            a.c("---- B-side setup, all in the shadow of the head")
            a(f"""
            v_mov_b32 {v(VX)}, v2
            v_xor_b32 {v(VX+1)}, 64, v2
            v_add_u32 {v(VX+1)}, 8192, {v(VX+1)}
            v_mul_u32_u24 {v(VW)}, 3072, v8
            v_add_u32 {v(VW)}, {v(VW)}, v9
            v_mov_b32 {v(VO)}, v3
            """)
            for i in range(1, 4):
                a(f"v_add_u32 {v(VW+i)}, {24576*i}, {v(VW)}")
                a(f"v_add_u32 {v(VO+i)}, {8192*i}, v3")
            self.xfrag_addr(XA, RB, 20)
            self.wfrag_addr(WA, 20)
            self.tail_addr(L_X, 0, WS_OB, 0, 20)
            a(f"""
            s_lshl_b32 {s(T)}, {s(S_W3)}, 13
            s_add_u32 {s(T)}, {s(T)}, {L_W}
            v_lshrrev_b32 v20, 5, v0
            v_lshlrev_b32 v20, 2, v20
            v_and_b32 v21, 7, v0
            v_xor_b32 v20, v20, v21
            v_and_b32 v22, 31, v0
            v_lshl_add_u32 v22, v22, 8, {s(T)}
            v_lshl_add_u32 v9, v20, 4, v22
            v_xor_b32 v14, 16, v9
            v_xor_b32 v15, 32, v9
            v_xor_b32 v17, 48, v9
            s_lshl_b32 {s(T)}, {s(S_HI)}, 14
            s_lshl_b32 {s(T+1)}, {s(S_LO)}, 12
            s_add_u32 {s(T)}, {s(T)}, {s(T+1)}
            s_add_u32 {s(T)}, {s(T)}, {L_W}
            v_lshrrev_b32 v20, 3, v0
            v_lshlrev_b32 v21, 1, v21
            v_xor_b32 v21, v21, v20
            v_lshl_add_u32 v20, v20, 8, {s(T)}
            v_lshl_add_u32 v3, v21, 4, v20
            v_xor_b32 v24, 16, v3
            """)
            a(f"""
            s_lshl_b32 {s(SXM)}, {s(WB)}, 11
            s_lshl_b32 {s(SWM)}, {s(WB)}, 12
            s_lshl_b32 {s(SXO)}, {s(S_G)}, 16
            s_lshl_b32 {s(T)}, {s(WB)}, 14
            s_add_u32 {s(SXO)}, {s(SXO)}, {s(T)}
            s_mul_i32 {s(SWO)}, {s(HP)}, {32*3072}
            s_lshl_b32 {s(T)}, {s(S_J)}, 7
            s_add_u32 {s(SWO)}, {s(SWO)}, {s(T)}
            s_mov_b32 {s(T)}, {f32(1e-6)}
            s_mov_b32 {s(T+1)}, {f32(1e-6)}
            s_mov_b32 {s(T+2)}, 0x3f803f80
            s_mov_b32 {s(T+3)}, 0x3f803f80
            """)
            for i in range(0, 16, 2):
                a(f"v_mov_b64 {v(AK+i,2)}, {s(T,2)}")
                a(f"v_mov_b64 {v(AQ+i,2)}, {s(T,2)}")
                if i < 4: a(f"v_mov_b64 {v(X+i,2)}, {s(T+2,2)}")
            a(f"""
            v_mov_b32 v18, {f32(-1e-6*LOG2E)}
            v_mov_b64 v[252:253], -1
            v_mov_b64 v[254:255], -1
            v_mov_b32 v25, 63
            v_mul_u32_u24 v250, 12288, v0
            v_lshlrev_b32 v251, 12, v0
            v_lshlrev_b32 {v(V_L128)}, 7, v0
            s_lshl_b32 {s(T)}, {s(WB)}, 10
            s_add_u32 {s(T)}, {s(T)}, {L_MISC+0x1000}
            v_add_u32 {v(V_SX)}, {s(T)}, {v(V_L16)}
            v_xor_b32 {v(X+4)}, 2048, {v(V_SX)}
            v_and_b32 v20, 15, v0
            v_bfe_u32 v21, v0, 4, 1
            v_lshlrev_b32 v22, 11, v21
            v_lshl_add_u32 {v(X+5)}, v20, 2, v22
            v_lshrrev_b32 v22, 5, v0
            v_lshl_add_u32 {v(X+6)}, v22, 8, {v(X+5)}
            s_lshl_b32 {s(T)}, {s(RB)}, 9
            v_add_u32 {v(X+6)}, {s(T)}, {v(X+6)}
            v_and_b32 v20, 31, v0
            v_min_u32 v20, 16, v20
            v_lshlrev_b32 v20, 6, v20
            v_lshl_add_u32 {v(V_L4)}, v22, 4, v20
                """)
            self.add64(SF1, S_WS, WS_F1)
        def tag():
            a(f"""
            s_waitcnt lgkmcnt(0)
            s_add_u32 {s(S_TAG)}, {s(S_TAG)}, 0x2f1b4c6d
            v_mov_b32 {v(V_TAG)}, {s(S_TAG)}
            """)
        def touch(spec):
            kind, lo, hi = spec
            if kind == "x":
                m = sum(1 << e for e in range(lo, hi)) * 0x01010101
                a(f"s_lshl_b32 {s(T)}, {s(S_C)}, 13")
                self.add64(T+2, S_BX, s(T))
                mlo = mhi = m; vr = V_L128
            else:
                base, rs, col = {"q": (S_WQKV, 3072, 0), "k": (S_WQKV, 3072, 1024), "v": (S_WQKV, 3072, 2048),
                                 "a": (S_AWO, 1024, 0), "b": (S_BWO, 1024, 0)}[kind]
                h = lo // 4
                m = sum(0xffff << (16*(e - 4*h)) for e in range(lo, hi))
                mlo, mhi = m & 0xffffffff, m >> 32
                a(f"""
                s_and_b32 {s(T)}, {s(S_G)}, 3
                s_mul_i32 {s(T)}, {s(T)}, {rs}
                s_lshl_b32 {s(T+1)}, {s(S_J)}, 7
                s_add_u32 {s(T)}, {s(T)}, {s(T+1)}
                s_add_u32 {s(T)}, {s(T)}, {h*256*rs + col}
                """)
                self.add64(T+2, base, s(T))
                vr = 250 if rs == 3072 else 251
            a(f"s_mov_b32 exec_lo, {mlo:#x}")
            a(f"s_mov_b32 exec_hi, {mhi:#x}")
            a(f"global_load_dword v19, {v(vr)}, {s(T+2,2)}")
            a("s_mov_b64 exec, -1")
        def touch_round(specs):
            Le = a.label("t")
            for w, sp in enumerate(specs):
                Ln = a.label("t")
                if w < 3:
                    a(f"s_cmp_lg_u32 {s(WB)}, {w}")
                    a(f"s_cbranch_scc1 {Ln}")
                if sp: touch(sp)
                else: a(f"global_load_dword v19, {v(V_ZERO)}, {s(S_WQKV,2)}")
                if w < 3: a(f"s_branch {Le}")
                a(f"{Ln}:")
            a(f"{Le}:")
        M4, M5, Mc, Ms = a.label("b"), a.label("b"), a.label("b"), a.label("b")
        self.stamp(2, "hd")
        a(f"""
        s_cmp_lt_u32 {s(S_W)}, 6
        s_cbranch_scc1 {M4}
        """)
        a.c("---- waves 6, 7 stream the rest of x and wq, one k-slot at a time")
        if ta == 4: a(f"global_load_dword v19, v19, {s(S_WQ,2)}")
        Ll = a.label("ld")
        a(f"""
        s_mov_b32 {s(T+6)}, 0
        s_mov_b32 s101, {self.o.get('hb', 2)}
        s_lshl_b32 {s(T+7)}, {s(S_W3)}, 2
        {Ll}:
        s_add_u32 {s(T)}, {s(S_KC0)}, {s(T+6)}
        s_and_b32 {s(T)}, {s(T)}, 7
        s_lshl_b32 {s(T+1)}, {s(T)}, 16
        s_add_u32 {s(T+1)}, {s(T+1)}, {s(SLO)}
        """)
        self.add64(T+2, S_WQ, s(T+1))
        a(f"s_lshl_b32 {s(T)}, {s(T)}, 7")
        a(f"s_add_u32 {s(T)}, {s(T)}, {s(SL+4)}")
        self.add64(T+4, S_AX, s(T))
        for u in range(4): self.emit(self.dma(VL+u, T+2, SL+3, L_W + u*1024))
        for u in range(3):
            a(f"s_mov_b32 m0, {s(SL+u)}")
            a(f"s_add_u32 {s(SL+u)}, {s(SL+u)}, 8192")
            a(f"global_load_lds_dwordx4 {v(VL+4+u)}, {s(T+4,2)}")
        a(f"""
        s_add_u32 m0, {s(T+7)}, {L_MK}
        s_mov_b64 exec, 1
        global_load_lds_dword {v(V_ZERO)}, {s(S_PC,2)}
        s_mov_b64 exec, -1
        s_add_u32 {s(T+7)}, {s(T+7)}, 16
        s_add_u32 {s(SL+3)}, {s(SL+3)}, 8192
        s_add_u32 {s(T+6)}, {s(T+6)}, 1
        """)
        a(f"""
        s_waitcnt vmcnt(48)
        s_cmp_lt_u32 {s(T+6)}, s101
        s_cbranch_scc1 {Ll}
        s_cmp_lg_u32 s101, 8
        s_cbranch_scc1 {M5}
        """)
        self.stamp(8, "hd")
        a.c("wave 6: have the first key tiles been published? (asked behind the last load)")
        a(f"""
        s_cmp_lg_u32 {s(S_W)}, 6
        s_cbranch_scc1 {Mc}
        s_mov_b64 exec, 0xffff
        """)
        self.poll4(92, S_WS, 88, sleep=self.o.get("ps1", 0))
        self.stamp(9, "hd")
        a("s_mov_b64 exec, -1")
        a(f"s_branch {Mc}")
        a(f"{M4}:")
        self.stamp(3, "hd")
        a(f"s_cmp_lg_u32 {s(S_W)}, 4")
        a(f"s_cbranch_scc1 {M5}")
        a.c("---- wave 4: this CU's 16 x 16 piece of K or V")
        a("s_setprio 3")
        a(f"v_mov_b32 v102, {L_MK}")
        self.kv_setup()
        a(f"v_add_u32 v21, {L_MK-L_SYNC+128-16}, {v(V_ALL)}")
        self.stamp(4, "hd")
        self.kv_compute()
        self.stamp(6, "hd")
        a("ds_write_b32 v102, v102 offset:112")
        a.c("publish: only this wave writes the word, so adding the difference sets it to the tag")
        a(f"s_sub_u32 s53, {s(S_TAG)}, s53")
        a(f"s_add_u32 s53, s53, 0x2f1b4c6d")
        a("s_setprio 0")
        a("s_waitcnt vmcnt(0)")
        a(f"s_atomic_add s53, {s(S_WV,2)}, 0 glc")
        self.stamp(11)
        self.stamp(7, "hd")
        a(f"{M5}:")
        setup()
        tag()
        a(f"s_cmp_lt_u32 {s(S_W)}, 6")
        a(f"s_cbranch_scc1 {Mc}")
        a.c("the rest of the stream waits until the K/V piece is on its way out")
        self.stamp(4, "hd")
        a(f"v_mov_b32 v21, {L_MK+112}")
        self.await_(20, vaddr=21, val="1", sleep=0)
        self.stamp(5, "hd")
        a(f"s_mov_b32 s101, 8")
        a(f"s_branch {Ll}")
        a(f"{Mc}:")
        a("s_barrier")
        a(f"s_mov_b32 {s(S_EPOCH)}, 8")
        rb = self.o.get("rotB", 1)
        if rb == 0: a(f"s_mov_b32 {s(S_KC0)}, 0")
        if rb == 2:
            a(f"s_and_b32 {s(S_KC0)}, {s(S_G)}, 3")
            a(f"s_lshl_b32 {s(S_KC0)}, {s(S_KC0)}, 1")
        a(f"s_lshl_b32 {s(T)}, {s(WB)}, 11")
        self.add64(SF1, SF1, s(T))
        a(f"""
        s_lshl_b32 {s(T)}, {s(S_J)}, 12
        s_add_u32 {s(T)}, {s(T)}, {WS_F2}
        """)
        self.add64(8, S_WS, s(T))
        a(f"""
        s_lshl_b32 {s(T)}, {s(S_G)}, 1
        s_add_u32 {s(T)}, {s(T)}, {s(RB)}
        s_lshl_b32 {s(T)}, {s(T)}, 1
        s_lshr_b32 {s(T+1)}, {s(S_J)}, 2
        s_add_u32 {s(T+1)}, {s(T+1)}, {s(T)}
        s_mul_i32 {s(T+1)}, {s(T+1)}, {2*KVREC}
        s_add_u32 {s(T+1)}, {s(T+1)}, {WS_KV+C4_OFF}
        """)
        self.add64(10, S_WS, s(T+1))
        a(f"""
        s_add_u32 {s(T)}, {s(T)}, {s(HP)}
        s_mul_i32 {s(T)}, {s(T)}, {2*KVREC}
        s_add_u32 {s(T)}, {s(T)}, {WS_KV+C4_OFF}
        """)
        self.add64(12, S_WS, s(T))
        self.stamp(4)
        a("s_barrier")
        self.stamp(5)
        a("s_branch L_bodyB")
        a("L_cutB:")
        a("L_bodyB:")
        a(LOW)
        if self.o.get("noB"):
            a(f"ds_write_b32 {v(V_SLOT)}, v25 offset:48")
            a(f"s_mov_b32 {s(S_EPOCH)}, {E_CLR-1}")
            self.arrive(20)
            a("s_branch L_Bend")
        vm = []
        def vmwait(label):
            n = len(vm) - 1 - max(i for i, x in enumerate(vm) if x == label)
            a(f"s_waitcnt vmcnt({n})")
            return n
        def loads(st):
            G = []
            slot = L_W + (st % 4)*16384
            if st < 8:
                pre = [f"s_add_u32 {s(T)}, {s(S_KC0)}, {st}",
                       f"s_and_b32 {s(T)}, {s(T)}, 7",
                       f"s_lshl_b32 {s(T+1)}, {s(T)}, 7",
                       f"s_add_u32 {s(T+1)}, {s(T+1)}, {s(SXO)}",
                       f"s_add_u32 {s(T+2)}, {s(S_BX)}, {s(T+1)}",
                       f"s_addc_u32 {s(T+3)}, {s(S_BX+1)}, 0"]
                G.append(pre + self.dma(VX, T+2, SXM, L_X + st*8192))
                G.append(self.dma(VX+1, T+2, SXM, L_X + st*8192 + 1024))
                pre = [f"s_mul_i32 {s(T)}, {s(T)}, {64*3072}",
                       f"s_add_u32 {s(T)}, {s(T)}, {s(SWO)}",
                       f"s_lshl_b32 {s(T+1)}, {s(RB)}, 10",
                       f"s_add_u32 {s(T)}, {s(T)}, {s(T+1)}",
                       f"s_add_u32 {s(T)}, {s(T)}, 1024",
                       f"s_add_u32 {s(T+2)}, {s(S_WQKV)}, {s(T)}",
                       f"s_addc_u32 {s(T+3)}, {s(S_WQKV+1)}, 0"]
                for i in range(4): G.append((pre if i == 0 else []) + self.dma(VW+i, T+2, SWM, slot + i*1024))
            elif st < 12:
                pre = [f"s_add_u32 {s(T)}, {s(S_KC0)}, {s(RB)}",
                       f"s_add_u32 {s(T)}, {s(T)}, {2*(st-8)}",
                       f"s_and_b32 {s(T)}, {s(T)}, 7",
                       f"s_mul_i32 {s(T)}, {s(T)}, {64*3072}",
                       f"s_add_u32 {s(T)}, {s(T)}, {s(SWO)}",
                       f"s_add_u32 {s(T+2)}, {s(S_WQKV)}, {s(T)}",
                       f"s_addc_u32 {s(T+3)}, {s(S_WQKV+1)}, 0"]
                for i in range(4): G.append((pre if i == 0 else []) + self.dma(VW+i, T+2, SWM, slot + i*1024))
            else:
                base, L = (S_AWO, L_X) if st < 16 else (S_BWO, L_W)
                u = st % 4
                pre = [f"s_add_u32 {s(T)}, {s(S_G)}, {u}",
                       f"s_and_b32 {s(T)}, {s(T)}, 3",
                       f"s_lshl_b32 {s(T)}, {s(T)}, 2",
                       f"s_add_u32 {s(T)}, {s(T)}, {s(WB)}",
                       f"s_lshl_b32 {s(T)}, {s(T)}, 8",
                       f"s_add_u32 {s(T)}, {s(T)}, {s(S_J)}",
                       f"s_lshl_b32 {s(T)}, {s(T)}, 7",
                       f"s_add_u32 {s(T+2)}, {s(base)}, {s(T)}",
                       f"s_addc_u32 {s(T+3)}, {s(base+1)}, 0"]
                for i in range(4): G.append((pre if i == 0 else []) + self.dma(VO+i, T+2, SWM, L + u*16384 + i*1024))
            return G
        done = set()
        def put(st, g):
            thr = self.o.get("thr", 5) if st < 12 else self.o.get("wthr", 4)
            if st < 4: thr = self.o.get("thr0", thr)
            done.add(st)
            if thr: g = [x if x != "s_nop 0" else f"s_waitcnt vmcnt({thr-1})" for x in g]
            self.emit(g); vm.append(st)
        def reads(st):
            R = []; B = F[st % 2]; slot = (st % 4)*16384
            if st < 8:
                for t in range(4):
                    R.append(f"ds_read_b128 {v(B+12*t,4)}, {v(XA+t)} offset:{st*8192}")
                    for k in range(2):
                        for sx in range(2):
                            R.append(f"ds_read_b64_tr_b16 {v(B+12*t+4+4*k+2*sx,2)}, {v(WA)} offset:{slot + k*8192 + t*2048 + sx*256}")
            else:
                for t in range(8):
                    R.append(f"ds_read_b128 {v(B+8*t,4)}, {v(XA+(t&3))} offset:{(2*(st-8)+t//4)*8192}")
                    for sx in range(2):
                        R.append(f"ds_read_b64_tr_b16 {v(B+8*t+4+2*sx,2)}, {v(WA)} offset:{slot + t*2048 + sx*256}")
            return R
        def mfmas(st):
            M = []; B = F[st % 2]
            if st < 8:
                for t in range(4):
                    for k, acc in enumerate((AK, AV)):
                        c = "0" if (acc == AV and st == 0 and t == 0) else v(acc,16)
                        M.append(f"v_mfma_f32_32x32x16_bf16 {v(acc,16)}, {v(B+12*t,4)}, {v(B+12*t+4+4*k,4)}, {c}")
            else:
                for t in range(8):
                    M.append(f"v_mfma_f32_32x32x16_bf16 {v(AQ,16)}, {v(B+8*t+4,4)}, {v(B+8*t,4)}, {v(AQ,16)}")
            return M
        def arrive():
            a(HI); self.arrive(20); a(LOW)
        def iteration(i, after=None):
            M = mfmas(i)
            R = reads(i+1) if i < 11 else []
            G = [(st, g) for st in self.o.get("sched", {9: [12], 10: [13], 11: [14]}).get(i, [i+4] if i < 8 else []) for g in loads(st)]
            fi = self.o.get("fi", 8)
            Lok = a.label("ok")
            self.stamp(i+1, "it")
            a("s_waitcnt lgkmcnt(14)")
            a(M[0])
            if self.o.get("pf1", 1): a(f"ds_read_b32 v21, {v(V_ALL)}")
            if G:
                self.emit(G[0][1][:-3]); G[0] = (G[0][0], G[0][1][-3:])
            if self.o.get("pf1", 1): a("s_waitcnt lgkmcnt(0)")
            else: a(f"ds_read_b32 v21, {v(V_ALL)}")
            a(M[1])
            a(f"""
            s_waitcnt lgkmcnt(0)
            {HI}
            v_cmp_gt_u32 vcc, {s(S_EPOCH)}, v21
            s_cbranch_vccz {Lok}
            """)
            self.await_(21)
            a(f"{Lok}:")
            a(LOW)
            if i == fi + 1:
                Lf = a.label("b")
                a(f"s_cmp_lg_u32 {s(WB)}, 0")
                a(f"s_cbranch_scc1 {Lf}")
                a(f"s_lshl_b32 {s(T+6)}, {s(S_G)}, 7")
                self.add64(T+6, 8, s(T+6))
                a("s_mov_b64 exec, 1")
                a(f"global_store_dword {v(V_ZERO)}, {v(V_TAG)}, {s(T+6,2)} sc1")
                a("s_mov_b64 exec, -1")
                a(f"{Lf}:")
                self.stamp(7)
            items = []
            nG, nR = len(G), len(R)
            gi = 0
            for k, x in enumerate(R):
                items.append((1.3, x))
                while gi < nG and (gi+1)*nR <= (k+1)*nG:
                    items.append((len(G[gi][1]), G[gi])); gi += 1
            items += [(len(g[1]), g) for g in G[gi:]]
            pre = [5, 0, 0, 0, 0, 0, 6]
            tot = sum(w for w, _ in items) + sum(pre)
            for k in range(7):
                acc = pre[k]
                left = (sum(w for w, _ in items) + sum(pre[k:])) / (7 - k)
                while items and (k == 6 or acc + items[0][0]/2 <= left):
                    w, x = items.pop(0); acc += w
                    if isinstance(x, str): a(x)
                    else: put(*x)
                if k < 6 and R: a(f"s_waitcnt lgkmcnt({self.o.get('lw', 3)})")
                if k < 6: a(M[k+2])
            if i < 11:
                if i == fi:
                    vmwait("part")
                    a(f"s_mov_b32 {s(S_EPOCH)}, {E_CLR-1}")
                elif i + 2 <= 11 and i < fi: vmwait(i+2)
                arrive()
            if i in self.o.get("tr", {}):
                touch_round(self.o["tr"][i]); vm.append("t")
            if after: after()
        a.c("---- B: k,v projections")
        a("s_mov_b64 exec, 0xffff")
        a(f"global_load_dwordx4 v[88:91], {v(V_L128)}, {s(SF1,2)} sc1"); vm.append("poll")
        a("s_mov_b64 exec, -1")
        G0 = [(st, g) for st in (0, 1) for g in loads(st)]
        for st, g in G0[:2]: put(st, g)
        Lr = a.label("b")
        vmwait("poll")
        a(HI)
        a("s_mov_b64 exec, 0xffff")
        self.check4(88)
        a(f"s_cbranch_scc1 {Lr}")
        self.poll4(V_L128, SF1, 88, sleep=4)
        a(f"{Lr}:")
        a("s_mov_b64 exec, -1")
        a(f"ds_write_b32 {v(V_SLOT)}, v25 offset:48")
        a(LOW)
        for st, g in G0[2:]: put(st, g)
        vmwait(0)
        a(HI)
        self.arrive(20)
        pro = self.o.get("pro", 4)
        if pro >= 3:
            for g in loads(2): put(2, g)
        self.await_(21)
        self.stamp(6)
        self.emit(reads(0))
        vmwait(1)
        self.arrive(20)
        a(LOW)
        if pro >= 4:
            for g in loads(3): put(3, g)
        if -1 in self.o.get("tr", {}):
            touch_round(self.o["tr"][-1]); vm.append("t")
        def clr():
            a.c("mark the A-side output images of the matching wave as not yet written")
            a(f"s_sub_u32 {s(T)}, {s(S_WS)}, {WS_OB-WS_OA}")
            a(f"s_subb_u32 {s(T+1)}, {s(S_WS+1)}, 0")
            a(f"global_store_dwordx4 {v(self.V_IMG)}, v[252:255], {s(T,2)} sc1")
            a(f"global_store_dwordx4 {v(self.V_IMG)}, v[252:255], {s(T,2)} offset:1024 sc1")
            vm.append("clr"); vm.append("clr")
        for i in range(8): iteration(i, clr if i == self.o.get("ci", 7) else None)
        a.c("---- B: phi(k), partial state: rows (head, e) x columns (head, d), and the column sums z")
        a(f"""
        s_lshl_b32 {s(T)}, {s(S_J)}, 1
        s_add_u32 {s(T)}, {s(T)}, {s(HP)}
        s_lshl_b32 {s(T)}, {s(T)}, 12
        s_add_u32 {s(T)}, {s(T)}, {WS_ACC}
        """)
        self.add64(T+4, S_WS, s(T))
        a("s_nop 3")
        a(HI)
        self.phi(AK)
        for i in range(8): a(f"v_cvt_pk_bf16_f32 {v(AV+i)}, {v(AV+2*i)}, {v(AV+2*i+1)}")
        D0, D1 = F[1], F[1]+16
        LK, LJ, LK2, LJ2 = a.label("k1"), a.label("kj"), a.label("k2"), a.label("kj2")
        a(f"""
        {LOW}
        s_nop 0
        v_mfma_f32_32x32x16_bf16 {v(D0,16)}, {v(AV,4)}, {v(AK,4)}, 0
        v_mfma_f32_32x32x16_bf16 {v(D0,16)}, {v(AV+4,4)}, {v(AK+4,4)}, {v(D0,16)}
        v_mfma_f32_32x32x16_bf16 {v(D1,16)}, {v(X,4)}, {v(AK,4)}, 0
        v_mfma_f32_32x32x16_bf16 {v(D1,16)}, {v(X,4)}, {v(AK+4,4)}, {v(D1,16)}
        s_nop 4
        {HI}
        s_mov_b32 exec_lo, 0xffff
        s_mov_b32 exec_hi, 0xffff
        s_cmp_eq_u32 {s(RB)}, 0
        s_cbranch_scc0 {LK}
        ds_write_b128 {v(V_SX)}, {v(D0+4,4)}
        s_not_b64 exec, exec
        ds_write_b128 {v(V_SX)}, {v(D0+12,4)}
        s_branch {LJ}
        {LK}:
        ds_write_b128 {v(V_SX)}, {v(D0,4)}
        s_not_b64 exec, exec
        ds_write_b128 {v(V_SX)}, {v(D0+8,4)}
        {LJ}:
        s_mov_b64 exec, -1
        """)
        self.softbar(20)
        a(f"""
        ds_read_b128 {v(AK,4)}, {v(X+4)}
        s_mov_b32 exec_lo, 0xffff
        s_mov_b32 exec_hi, 0xffff
        s_cmp_eq_u32 {s(RB)}, 0
        s_waitcnt lgkmcnt(0)
        s_cbranch_scc0 {LK2}
        """)
        for rbv, lab in ((0, None), (1, LK2)):
            if lab: a(f"{lab}:")
            for h in range(2):
                for i in (0, 2): a(f"v_pk_add_f32 {v(AK+i,2)}, {v(AK+i,2)}, {v(D0+8*h+4*rbv+i,2)}")
                if h == 0: a("s_not_b64 exec, exec")
            if not lab: a(f"s_branch {LJ2}")
        a(f"{LJ2}:")
        a("s_mov_b64 exec, -1")
        for i in range(4):
            a(f"global_atomic_add_f32 {v(X+6)}, {v(AK+i)}, {s(T+4,2)} offset:{64*i} sc1"); vm.append("part")
        a("s_mov_b32 exec_hi, 0")
        a(f"global_atomic_add_f32 {v(X+5)}, {v(D1)}, {s(T+4,2)} offset:1024 sc1"); vm.append("part")
        a("s_mov_b32 exec_hi, -1")
        a(LOW)
        self.stamp(3)
        a.c("---- B: q projection")
        for i in range(8, 12): iteration(i)
        todo = [st for st in range(12, 20) if st not in done]
        def more(n=1):
            for _ in range(n):
                if todo:
                    st = todo.pop(0)
                    for g in loads(st): put(st, g)
        self.stamp(1, "hop")
        a("s_nop 8")
        more()
        a(HI); self.phi(AQ); a(LOW)
        more(self.o.get("pre2", 0))
        self.stamp(2, "hop")
        a.c("---- B: the summed state, the normalised output images")
        D0, D1 = AK, AV
        a(f"""
        s_lshl_b32 {s(T)}, {s(S_J)}, 1
        s_add_u32 {s(T)}, {s(T)}, {s(HP)}
        s_lshl_b32 {s(T)}, {s(T)}, 12
        s_add_u32 {s(T)}, {s(T)}, {WS_ACC}
        """)
        self.add64(T+4, S_WS, s(T))
        LR = a.label("nr")
        a(f"""
        {HI}
        s_cmp_lg_u32 {s(WB)}, 1
        s_cbranch_scc1 {LR}
        s_mov_b32 exec_hi, 0
        """)
        self.poll(V_L128, 8, [0], 21, sleep=8)
        a("s_mov_b32 exec_hi, -1")
        a(f"{LR}:")
        self.softbar(20, sleep=2)
        a(LOW)
        self.stamp(3, "hop")
        self.stamp(8)
        for i in range(4):
            a(f"global_load_dwordx4 {v(XF+4*i,4)}, {v(V_L4)}, {s(T+4,2)} offset:{2048*(i//2)+32*(i%2)} sc1"); vm.append("state")
        more()
        vmwait("state")
        self.stamp(4, "hop")
        a(HI)
        for i in range(8): a(f"v_cvt_pk_bf16_f32 {v(XF+i)}, {v(XF+2*i)}, {v(XF+2*i+1)}")
        a(f"""
        s_nop 1
        v_mfma_f32_32x32x16_bf16 {v(D0,16)}, {v(XF,4)}, {v(AQ,4)}, 0
        v_mfma_f32_32x32x16_bf16 {v(D1,16)}, {v(XF+4,4)}, {v(AQ+4,4)}, 0
        s_nop 7
        s_nop 3
        v_add_f32 {v(D0+8)}, {f32(1e-6)}, {v(D0+8)}
        v_add_f32 {v(D1+8)}, {f32(1e-6)}, {v(D1+8)}
        """)
        self.normalize([(D0, D0+8), (D1, D1+8)], 80, guard=False)
        vm.append("ob"); vm.append("ob")
        a(LOW)
        self.stamp(5, "hop")
        more()
        vmwait("ob")
        self.count(10)
        self.stamp(6, "hop")
        self.stamp(12)
        while any(st < 16 for st in todo): more()
        more()
        vmwait(15)
        arrive()
        more()
        a(HI)
        self.await_(20)
        self.outproj_wfrags()
        self.arrive(20)
        a(LOW)
        more()
        if self.o.get("touch", 0):
            a(HI)
            a("v_lshlrev_b32 v22, 10, v0")
            a(LOW)
            a("s_mov_b32 exec_hi, 0")
            a(f"global_load_dword v22, v22, {s(S_OUTB,2)}")
            a("s_mov_b32 exec_hi, -1")
        self.count_peek(12, T+8)
        more(4)
        self.stamp(7, "hop")
        self.count_wait(12, T+8, 8)
        a(HI)
        self.await_(20)
        self.stamp(8, "hop")
        a.c("---- B: the group's o_B images go to LDS for the A waves")
        a(f"""
        s_lshl_b32 {s(SWM)}, {s(RB)}, 15
        s_lshl_b32 {s(SWO)}, {s(HP)}, 14
        s_lshl_b32 {s(T)}, {s(S_G)}, 13
        s_sub_u32 {s(SWO)}, {s(SWO)}, {s(T)}
        """)
        ot = self.o.get("othr", 6)
        for p in range(4):
            a(f"""
            s_add_u32 {s(T)}, {s(S_J)}, {p}
            s_and_b32 {s(T)}, {s(T)}, 3
            s_lshl_b32 {s(T)}, {s(T)}, 12
            s_add_u32 {s(T+1)}, {s(T)}, {s(SWO)}
            s_and_b32 {s(T+1)}, {s(T+1)}, 0x7fff
            s_add_u32 m0, {s(SWM)}, {s(T+1)}
            s_add_u32 {s(T)}, {s(T)}, {WS_OB-WS_OA}
            """)
            self.add64(T+2, S_IMG, s(T))
            for k in range(4):
                a(f"s_waitcnt vmcnt({ot-1})")
                a(f"global_load_lds_dwordx4 {v(V_L16)}, {s(T+2,2)} offset:{k*1024} sc1")

        self.newpage("Bend")
        for p in range(4):
            a(f"s_add_u32 {s(T)}, {s(S_J)}, {p}")
            a(f"s_and_b32 {s(T)}, {s(T)}, 3")
            a(f"s_lshl_b32 {s(T)}, {s(T)}, 12")
            self.add64(8+2*p, S_IMG, s(T))
        a(f"s_mov_b32 {s(S_PEND)}, 15")
        a(f"s_mov_b32 {s(T+9)}, 0")
        a(f"v_add_u32 v21, -16, {v(V_ALL)}")
        a(f"s_mul_i32 {s(T)}, {s(S_G)}, {8*KVREC}")
        a(f"s_add_u32 {s(T)}, {s(T)}, {WS_KV+C4_OFF+32}")
        self.add64(T+4, S_WS, s(T))
        a(HI)
        a("s_waitcnt vmcnt(0) lgkmcnt(0)")
        self.stamp(9)
        self.stamp(9, "hop")
        a.c("tell the group when this CU is about to publish (a timing hint only)")
        Ln = a.label("b")
        a(f"s_cmp_lg_u32 {s(WB)}, 1")
        a(f"s_cbranch_scc1 {Ln}")
        self.await_(20, vaddr=21, val=str(E_CLR), sleep=self.o.get("aws", 1))
        self.count(T+4)
        a(f"{Ln}:")
        a("s_barrier")
        a.c("every wave of the grid has used this launch's tag by now: advance the generation word")
        Lg = a.label("b")
        a(f"""
        s_lshl_b32 {s(T)}, s2, 2
        s_add_u32 {s(T)}, {s(T)}, {s(WB)}
        s_cmp_lg_u32 {s(T)}, 0
        s_cbranch_scc1 {Lg}
        s_mov_b64 exec, 1
        global_store_dword {v(V_ZERO)}, {v(V_TAG)}, {s(S_WS,2)} offset:{WS_G} sc1
        s_mov_b64 exec, -1
        {Lg}:
        """)
        a.c("start fetching only when the whole group is about to publish (reads that meet the writes are slow)")
        for i in range(0, 32, 2): a(f"v_mov_b64 {v(96+i,2)}, 0")
        a(f"v_and_b32 v22, 4, v0")
        a(f"v_lshl_add_u32 v22, v22, 2, v21")
        Ln = a.label("b")
        a(f"s_cmp_lg_u32 {s(WB)}, 1")
        a(f"s_cbranch_scc1 {Ln}")
        if not self.o.get("xplain"): a("s_waitcnt lgkmcnt(0)")
        a(f"s_add_u32 {s(T+8)}, {s(T+11)}, 1")
        if not self.o.get("xplain"): self.count_wait(T+4, T+8, 8, sleep=self.o.get("anns", 0))
        a(f"{Ln}:")
        a(f"s_mov_b32 {s(S_EPOCH)}, 38")
        self.arrive(20)
        a("v_mov_b32 v19, 40")
        if self.o.get("xplain") != 2: self.await_(20, vaddr=22, sleep=0)
        a(f"s_mov_b32 {s(S_EPOCH)}, 40")
        self.stamp(4)

    def finish(self):
        a = self.a
        a("L_fin:")
        if self.o.get("spin"):
            m = self.o.get("meas")
            a(f"s_mov_b32 s72, {self.o['spin']}")
            if m:
                if 13 in m[:2]:
                    a("s_waitcnt vmcnt(0)")
                    self.stamp(13)
                a(f"""
                s_waitcnt lgkmcnt(0)
                s_sub_u32 s70, s70, s68
                s_mul_i32 s70, s70, 10
                s_min_u32 s70, s70, 30000
                s_cmp_eq_u32 {s(S_W)}, {m[2]}
                s_cselect_b32 s70, s70, 0
                s_lshr_b32 s73, s2, 3
                s_cmp_eq_u32 s73, {m[3] if m[3] >= 0 else 's73'}
                s_cselect_b32 s70, s70, 0
                s_add_u32 s72, s72, s70
                """)
            a(f"""
            L_spin:
            s_memrealtime s[66:67]
            s_waitcnt lgkmcnt(0)
            s_sub_u32 s66, s66, s64
            s_cmp_lt_u32 s66, s72
            s_cbranch_scc1 L_spin
            """)
        if self.stamps:
            a("s_waitcnt vmcnt(0)")
            self.stamp(13)
            a(f"""
            s_waitcnt lgkmcnt(0)
            s_cmp_ge_u32 {s(S_W)}, 4
            s_cselect_b32 {s(S_ST+28)}, {s(T+9)}, {s(S_ST+28)}
            s_lshl_b32 {s(T)}, s2, 3
            s_add_u32 {s(T)}, {s(T)}, {s(S_W)}
            s_lshl_b32 {s(T)}, {s(T)}, 6
            s_add_u32 {s(T)}, {s(T)}, {WS_STAMP}
            v_mov_b32 v20, {s(T)}
            """)
            for i in range(16): a(f"v_mov_b32 {v(32+i)}, {s(S_ST+2*i)}")
            for i in range(4): a(f"global_store_dwordx4 v20, {v(32+4*i,4)}, {s(S_WS,2)} offset:{16*i}")
        a("L_end:")
        a("s_endpgm")

    def build(self):
        self.entry()
        self.head_A()
        self.attn()
        self.tail_A()
        self.roleB()
        self.outproj()
        self.finish()
        self.check()
        self.retry()
        self.a("L_last:")
        self.attn_fallback("L_norm")
        L = self.a.lines
        ia, ib, ic = L.index("L_cutA:"), L.index("L_roleB:"), L.index("L_cutB:")
        self.a.lines = L[:ia] + L[ib:ic] + L[ia+1:ib] + L[ic+1:]
        return self.wrap()

    def wrap(self):
        hdr = open("cdna_kernels/%s.s.ref" % NAME).read().split("; Override launch")[0]
        return hdr + f"""; Override launch geometry by editing the next line (default: block=256,
; grid=ceil(out_elems/256), lds=0). Harness parses it; keep it on one line.
; @launch grid=(256,1,1) block=(512,1,1) lds={LDS_BYTES}
.amdgcn_target "amdgcn-amd-amdhsa--gfx950"
.text
.globl {NAME}_kernel
.p2align 8
.type {NAME}_kernel,@function
{NAME}_kernel:
""" + self.a.text() + f""".section .rodata,"a"
.p2align 6
.amdhsa_kernel {NAME}_kernel
  .amdhsa_next_free_vgpr 256
  .amdhsa_next_free_sgpr 102
  .amdhsa_accum_offset 256
  .amdhsa_group_segment_fixed_size 0
  .amdhsa_kernarg_size 88
  .amdhsa_user_sgpr_count 2
  .amdhsa_user_sgpr_kernarg_segment_ptr 1
  .amdhsa_system_sgpr_workgroup_id_x 1
  .amdhsa_dx10_clamp 0
.end_amdhsa_kernel
"""

if __name__ == "__main__":
    out = sys.argv[1]
    stamps = "--stamps" in sys.argv
    opts = {}
    for x in sys.argv[2:]:
        if "=" in x:
            k, val = x.split("=", 1); opts[k] = eval(val)
    open(out, "w").write(Gen(stamps=stamps, opts=opts).build())
```

```python
import sys, struct
from asmlib import *

NAME = "concat_heads__grouped_kv_mqa__linear_attn_block__prompt"
def f32(x): return "0x%08x" % struct.unpack("<I", struct.pack("<f", x))[0]
LOG2E = 1.4426950408889634

WS_G   = 0x0
WS_F1  = 0x8000
WS_ACC = 0x10000
WS_KV  = 0x20000
C4_OFF = 576
WS_F2  = 0x60000
WS_OA  = 0x100000
WS_OB  = 0x300000
WS_STAMP = 0x800000
KVREC = 640
KVTILE = 4*KVREC
L_X   = 0
L_W   = 0x10000
L_WKV = 0x20000
L_MISC= 0x24000
L_SYNC= L_MISC + 0x3f00
LDS_BYTES = 0x28000
SPIN_MAX = 200000

S_AX, S_WQ, S_WK, S_WV, S_AWO, S_BX, S_WQKV, S_BWO = 8, 10, 12, 14, 16, 18, 20, 22
S_OUT, S_WS = 24, 26
S_W, S_G, S_J, S_C, S_TAG, S_XCD, S_KC0, S_EPOCH = 28, 29, 30, 31, 32, 33, 34, 35
T = 36
S_HI, S_LO, S_W3 = 50, 51, 52
S_IMG = 54
S_OUTB = 56
S_EX = 58
S_PEND = 59
S_PC = 0
E_CLR = 30
L_MK = L_SYNC + 80
U = 4
S_ST = 64
V_L16, V_SLOT, V_ALL, V_TAG, V_ZERO = 4, 5, 6, 7, 1

class Gen:
    def __init__(self, stamps=False, opts=None):
        self.a = Asm()
        self.stamps = stamps
        self.o = opts or {}
        self.inB = False
    def stamp(self, i, grp=None):
        m = self.o.get("meas")
        if m and grp is None and i in m[:2]: self.a(f"s_memrealtime s[{68+2*m.index(i)}:{69+2*m.index(i)}]")
        if grp != self.o.get("stg") and (grp or (self.inB and self.o.get("stg") and i not in (0, 13))): return
        if self.stamps:
            self.a(f"s_memrealtime {s(S_ST+2*i,2)}")
            cyc = self.o.get("cyc", (6, 7))
            if i in cyc:
                self.a(f"s_memtime {s(S_ST+2*(14+list(cyc).index(i)),2)}")
    def add64(self, dst, base, off):
        self.a(f"s_add_u32 {s(dst)}, {s(base)}, {off}")
        self.a(f"s_addc_u32 {s(dst+1)}, {s(base+1)}, 0")
    def dma(self, vreg, pair, m0s, m0i, off=0):
        return [f"s_add_u32 m0, {s(m0s)}, {m0i}", "s_nop 0",
                f"global_load_lds_dwordx4 {v(vreg)}, {s(pair,2)}" + (f" offset:{off}" if off else "")]
    def marker(self, idx):
        self.a(f"""
        s_lshl_b32 {s(T)}, {s(S_W3)}, 2
        s_add_u32 m0, {s(T)}, {L_MK + 4*idx}
        s_mov_b64 exec, 1
        global_load_lds_dword {v(V_ZERO)}, {s(S_PC,2)}
        s_mov_b64 exec, -1
        """)
    def newpage(self, name, back=None):
        a = self.a
        a(f"s_branch L_{name}")
        a(".p2align 12")
        if back:
            a(f"L_{name}_stub:")
            a(f"s_branch {back}")
            a("s_nop 0")
        a(f"L_{name}:")
    def emit(self, L):
        for x in L: self.a(x)
    def poll(self, vaddr, pair, offs, vt, sleep=2):
        a = self.a
        Lp, Ld = a.label("poll"), a.label("polld")
        a(f"s_mov_b32 {s(T+10)}, 0")
        a(f"{Lp}:")
        for i, o in enumerate(offs):
            a(f"global_load_dword {v(vt+i)}, {v(vaddr)}, {s(pair,2)} offset:{o} sc1")
        a("s_waitcnt vmcnt(0)")
        for i in range(len(offs)):
            if i == 0:
                a(f"v_cmp_ne_u32 vcc, {s(S_TAG)}, {v(vt)}")
            else:
                a(f"v_cmp_ne_u32 {s(T+12,2)}, {s(S_TAG)}, {v(vt+i)}")
                a(f"s_or_b64 vcc, vcc, {s(T+12,2)}")
        a(f"s_add_u32 {s(T+10)}, {s(T+10)}, 1")
        a(f"s_cmp_eq_u64 vcc, 0")
        a(f"s_cbranch_scc1 {Ld}")
        if sleep: a(f"s_sleep {sleep}")
        a(f"s_cmp_lt_u32 {s(T+10)}, {SPIN_MAX}")
        a(f"s_cbranch_scc1 {Lp}")
        a(f"{Ld}:")
    def check4(self, vt):
        a = self.a
        a(f"v_cmp_ne_u32 vcc, {s(S_TAG)}, {v(vt)}")
        for i in range(1, 4):
            a(f"v_cmp_ne_u32 {s(T+12,2)}, {s(S_TAG)}, {v(vt+i)}")
            a(f"s_or_b64 vcc, vcc, {s(T+12,2)}")
        a(f"s_cmp_eq_u64 vcc, 0")
    def poll4(self, vaddr, pair, vt, sleep):
        a = self.a
        Lp, Ld = a.label("poll"), a.label("polld")
        a(f"s_mov_b32 {s(T+10)}, 0")
        a(f"{Lp}:")
        a(f"global_load_dwordx4 {v(vt,4)}, {v(vaddr)}, {s(pair,2)} sc1")
        a(f"s_add_u32 {s(T+10)}, {s(T+10)}, 1")
        a("s_waitcnt vmcnt(0)")
        self.check4(vt)
        a(f"s_cbranch_scc1 {Ld}")
        if sleep: a(f"s_sleep {sleep}")
        a(f"s_cmp_lt_u32 {s(T+10)}, {SPIN_MAX}")
        a(f"s_cbranch_scc1 {Lp}")
        a(f"{Ld}:")
    def count(self, pair):
        a = self.a
        a(f"s_mov_b32 {s(T+11)}, 1")
        a(f"s_atomic_add {s(T+11)}, {s(pair,2)}, 0 glc")
    def count_peek(self, pair, sd):
        self.a(f"s_load_dword {s(sd)}, {s(pair,2)}, 0 glc")
    def count_wait(self, pair, sd, n, sleep=8):
        a = self.a
        Lp, Ld = a.label("cw"), a.label("cwd")
        a(f"""
        s_mov_b32 {s(T+10)}, 0
        {Lp}:
        s_waitcnt lgkmcnt(0)
        s_cmp_ge_u32 {s(sd)}, {n}
        s_cbranch_scc1 {Ld}
        {f"s_sleep {sleep}" if sleep else ""}
        s_load_dword {s(sd)}, {s(pair,2)}, 0 glc
        s_add_u32 {s(T+10)}, {s(T+10)}, 1
        s_cmp_lt_u32 {s(T+10)}, {SPIN_MAX}
        s_cbranch_scc1 {Lp}
        s_waitcnt lgkmcnt(0)
        {Ld}:
        """)
    def flag(self, base, sidx, vm=0, shift=7):
        a = self.a
        a(f"s_lshl_b32 {s(T+10)}, {s(sidx)}, {shift}")
        a(f"s_add_u32 {s(T+10)}, {s(T+10)}, {base}")
        self.add64(T+12, S_WS, s(T+10))
        if vm is not None: a(f"s_waitcnt vmcnt({vm})")
        a("s_mov_b64 exec, 1")
        a(f"global_store_dword {v(V_ZERO)}, {v(V_TAG)}, {s(T+12,2)} sc1")
        a("s_mov_b64 exec, -1")
    def arrive(self, vt):
        a = self.a
        a(f"s_add_u32 {s(S_EPOCH)}, {s(S_EPOCH)}, 1")
        a(f"v_mov_b32 {v(vt)}, {s(S_EPOCH)}")
        a(f"ds_write_b32 {v(V_SLOT)}, {v(vt)}")
    def await_(self, vt, vaddr=V_ALL, val=None, off=0, sleep=1):
        a = self.a
        Lp, Ld = a.label("sb"), a.label("sbd")
        a(f"s_mov_b32 {s(T+10)}, 0")
        a(f"{Lp}:")
        a(f"ds_read_b32 {v(vt)}, {v(vaddr)} offset:{off}")
        a("s_waitcnt lgkmcnt(0)")
        a(f"v_cmp_gt_u32 vcc, {val or s(S_EPOCH)}, {v(vt)}")
        a(f"s_add_u32 {s(T+10)}, {s(T+10)}, 1")
        a(f"s_cmp_eq_u64 vcc, 0")
        a(f"s_cbranch_scc1 {Ld}")
        if sleep: a(f"s_sleep {sleep}")
        a(f"s_cmp_lt_u32 {s(T+10)}, {SPIN_MAX*8}")
        a(f"s_cbranch_scc1 {Lp}")
        a(f"{Ld}:")
    def softbar(self, vt, sleep=1):
        self.arrive(vt); self.await_(vt, sleep=sleep)

    def entry(self):
        a = self.a
        a(f"""
        s_cmpk_ge_u32 s2, 256
        s_cbranch_scc1 L_end
        """)
        self.stamp(0)
        if self.o.get("spin"): a("s_memrealtime s[64:65]")
        Lp = a.label("p")
        a.c("wave 0: pull the code and this CU's share of x into the die's L2 right away")
        a(f"""
        s_load_dwordx16 s[8:23], s[0:1], 0
        s_load_dwordx2 {s(S_WS,2)}, s[0:1], 80
        s_getpc_b64 {s(U,2)}
        L_pc:
        s_lshr_b32 {s(S_C)}, s2, 3
        v_lshl_add_u32 v23, v0, 5, {s(S_C)}
        v_lshlrev_b32 v23, 7, v23
        s_and_b32 {s(S_XCD)}, s2, 7
        s_lshl_b32 {s(S_G)}, {s(S_XCD)}, 5
        s_add_u32 {s(S_C)}, {s(S_C)}, {s(S_G)}
        v_cmp_gt_u32 vcc, L_last-L_pc, v23
        s_and_b64 exec, exec, vcc
        s_cbranch_execz {Lp}
        {f"global_load_dword v18, v23, {s(U,2)}" if self.o.get("cpf", 1) else ""}
        s_mov_b64 exec, -1
        """)
        if self.o.get("xt", 0):
            a(f"""
            s_lshl_b32 {s(S_G)}, {s(S_C)}, 13
            v_lshl_add_u32 v19, v0, 7, {s(S_G)}
            s_waitcnt lgkmcnt(0)
            global_load_dword v19, v19, {s(S_AX,2)}
            """)
            if self.o.get("kt", 1):
                a(f"""
                s_mov_b64 exec, 15
                global_load_dword v17, v23, {s(S_WK,2)}
                global_load_dword v23, v23, {s(S_WV,2)}
                """)
        a(f"""
        {Lp}:
        s_mov_b64 exec, -1
        s_load_dwordx2 {s(S_OUT,2)}, s[0:1], 64
        v_lshrrev_b32 v1, 6, v0
        v_and_b32 v0, 63, v0
        v_readfirstlane_b32 {s(S_W)}, v1
        s_lshr_b32 {s(T)}, s2, 6
        s_lshr_b32 {s(S_G)}, {s(S_C)}, 3
        s_and_b32 {s(S_J)}, {s(S_C)}, 7
        s_lshl_b32 {s(T)}, {s(T)}, 1
        s_add_u32 {s(S_KC0)}, {s(T)}, {s(S_J)}
        s_and_b32 {s(S_KC0)}, {s(S_KC0)}, {7 if self.o.get('rot', 1) else 0}
        s_mov_b32 {s(S_EPOCH)}, 0
        s_and_b32 {s(S_W3)}, {s(S_W)}, 3
        s_lshr_b32 {s(S_HI)}, {s(S_W3)}, 1
        s_and_b32 {s(S_LO)}, {s(S_W)}, 1
        v_mov_b32 {v(V_ZERO)}, 0
        v_lshlrev_b32 {v(V_L16)}, 4, v0
        s_cmp_ge_u32 {s(S_W)}, 4
        s_cselect_b32 {s(T)}, 11, 3
        s_cselect_b32 {s(T+1)}, 1, 13
        s_lshl_b32 {s(T+2)}, {s(S_W3)}, 2
        s_add_u32 {s(T+2)}, {s(T+2)}, {L_SYNC}
        v_min_u32 v9, {s(T)}, v0
        v_add_u32 v9, {s(T+1)}, v9
        v_and_b32 v9, 15, v9
        v_lshl_add_u32 v9, v9, 4, {s(T+2)}
        ds_write_b32 v9, {v(V_ZERO)}
        """)
        a(f"""
        v_lshrrev_b32 v8, 3, v0
        v_lshlrev_b32 v2, 10, v8
        v_and_b32 v9, 7, v0
        v_lshrrev_b32 v10, 4, v0
        v_xor_b32 v9, v9, v10
        v_lshl_add_u32 v2, v9, 4, v2
        s_lshl_b32 {s(T)}, {s(S_W)}, 2
        s_add_u32 {s(T)}, {s(T)}, {L_SYNC}
        v_mov_b32 {v(V_SLOT)}, {s(T)}
        s_and_b32 {s(T)}, {s(T)}, -16
        v_and_b32 v9, 3, v0
        v_lshl_add_u32 {v(V_ALL)}, v9, 2, {s(T)}
        v_bfe_u32 v8, v0, 2, 3
        v_lshlrev_b32 v9, 4, v9
        v_lshrrev_b32 v10, 5, v0
        v_lshl_add_u32 v9, v10, 6, v9
        v_lshl_add_u32 v3, v8, 10, v9
        s_cmp_ge_u32 {s(S_W)}, 4
        s_cbranch_scc1 L_roleB
        """)

    def xfrag_addr(self, dst, sblk, vt):
        self.a(f"""
        v_and_b32 {v(vt)}, 31, v0
        v_lshlrev_b32 {v(vt+1)}, 7, {v(vt)}
        s_lshl_b32 {s(T)}, {s(sblk)}, 12
        v_add_u32 {v(vt+1)}, {s(T)}, {v(vt+1)}
        v_bfe_u32 {v(vt)}, v0, 1, 3
        v_lshrrev_b32 {v(vt+2)}, 5, v0
        v_xor_b32 {v(vt)}, {v(vt)}, {v(vt+2)}
        v_lshl_add_u32 {v(dst)}, {v(vt)}, 4, {v(vt+1)}
        v_xor_b32 {v(dst+1)}, 32, {v(dst)}
        v_xor_b32 {v(dst+2)}, 64, {v(dst)}
        v_xor_b32 {v(dst+3)}, 0x60, {v(dst)}
        """)
    def wfrag_addr(self, dst, vt):
        self.a(f"""
        v_bfe_u32 {v(vt)}, v0, 2, 2
        v_lshlrev_b32 {v(vt)}, 6, {v(vt)}
        v_bfe_u32 {v(vt+1)}, v0, 4, 1
        v_lshl_add_u32 {v(vt)}, {v(vt+1)}, 5, {v(vt)}
        v_and_b32 {v(vt+1)}, 3, v0
        v_lshl_add_u32 {v(vt)}, {v(vt+1)}, 3, {v(vt)}
        v_lshrrev_b32 {v(vt+1)}, 5, v0
        v_lshl_add_u32 {v(vt)}, {v(vt+1)}, 10, {v(vt)}
        s_lshl_b32 {s(T)}, {s(S_LO)}, 9
        s_add_u32 {s(T)}, {s(T)}, {L_W}
        v_add_u32 {v(dst)}, {s(T)}, {v(vt)}
        """)
    V_WO, V_EXW, V_EXR, V_OUT, V_IMG = 8, 9, 3, 2, 13
    def tail_addr(self, lbase, loshift, ownimg, colbytes, vt):
        a = self.a
        a(f"""
        v_bfe_u32 {v(vt)}, v0, 2, 2
        v_lshlrev_b32 {v(vt)}, 6, {v(vt)}
        v_lshrrev_b32 {v(vt+1)}, 5, v0
        v_lshl_add_u32 {v(vt)}, {v(vt+1)}, 8, {v(vt)}
        v_and_b32 {v(vt+2)}, 1, v0
        v_lshl_add_u32 {v(vt)}, {v(vt+2)}, 5, {v(vt)}
        v_bfe_u32 {v(vt+2)}, v0, 1, 1
        v_lshl_add_u32 {v(vt)}, {v(vt+2)}, 3, {v(vt)}
        v_bfe_u32 {v(vt+2)}, v0, 4, 1
        v_lshl_add_u32 {v(vt)}, {v(vt+2)}, 4, {v(vt)}
        s_mul_i32 {s(T)}, {s(S_LO)}, {loshift}
        s_add_u32 {s(T)}, {s(T)}, {lbase}
        v_add_u32 {v(self.V_WO)}, {s(T)}, {v(vt)}
        s_lshl_b32 {s(T)}, {s(S_W3)}, 12
        s_add_u32 {s(T)}, {s(T)}, {L_WKV}
        v_add_u32 {v(self.V_EXW)}, {s(T)}, {v(V_L16)}
        v_xor_b32 {v(self.V_EXR)}, 4096, {v(self.V_EXW)}
        v_lshrrev_b32 {v(vt)}, 3, v0
        v_lshlrev_b32 {v(vt)}, 11, {v(vt)}
        v_and_b32 {v(vt+1)}, 7, v0
        v_lshl_add_u32 {v(self.V_OUT)}, {v(vt+1)}, 4, {v(vt)}
        s_lshl_b32 {s(T)}, {s(S_G)}, 1
        s_add_u32 {s(T)}, {s(T)}, {s(S_HI)}
        s_lshl_b32 {s(T+1)}, {s(T)}, 16
        s_lshl_b32 {s(T+2)}, {s(S_J)}, 1
        s_add_u32 {s(T+2)}, {s(T+2)}, {s(S_LO)}
        s_lshl_b32 {s(T+3)}, {s(S_J)}, 7
        s_add_u32 {s(T+1)}, {s(T+1)}, {s(T+3)}
        s_lshl_b32 {s(T+3)}, {s(S_LO)}, 15
        s_add_u32 {s(T+1)}, {s(T+1)}, {s(T+3)}
        s_add_u32 {s(T+1)}, {s(T+1)}, {colbytes}
        """)
        self.add64(S_OUTB, S_OUT, s(T+1))
        a(f"""
        s_lshl_b32 {s(T)}, {s(T)}, 15
        s_lshl_b32 {s(T+2)}, {s(T+2)}, 11
        s_add_u32 {s(T+2)}, {s(T+2)}, {s(T)}
        s_add_u32 {s(T+2)}, {s(T+2)}, {ownimg}
        v_add_u32 {v(self.V_IMG)}, {s(T+2)}, {v(V_L16)}
        s_lshl_b32 {s(T+1)}, {s(S_LO)}, 14
        s_add_u32 {s(T)}, {s(T)}, {s(T+1)}
        s_add_u32 {s(T)}, {s(T)}, {WS_OA}
        """)
        self.add64(S_IMG, S_WS, s(T))

    RQ, RO, RS, RKV = 16, 64, 128, 192
    RIDX, RKA, RVA = 10, 11, 12
    def head_A(self):
        a = self.a
        RQ, RO, RS, RKV, RIDX, RKA, RVA = self.RQ, self.RO, self.RS, self.RKV, self.RIDX, self.RKA, self.RVA
        XA, WA = 248, 252
        a.c("=========================== role A ===========================")
        a.c("---- what the K/V producer needs goes first")
        a(f"""
        v_xor_b32 v10, 64, v2
        v_add_u32 v10, 8192, v10
        s_and_b32 {s(T+1)}, {s(S_J)}, 6
        s_lshl_b32 {s(T+6)}, {s(S_G)}, 16
        s_lshl_b32 {s(T+2)}, {s(T+1)}, 13
        s_add_u32 {s(T+6)}, {s(T+6)}, {s(T+2)}
        s_lshl_b32 {s(T+7)}, {s(S_W)}, 14
        s_lshl_b32 {s(T+2)}, {s(T+1)}, 10
        s_add_u32 {s(T+7)}, {s(T+7)}, {s(T+2)}
        s_lshl_b32 {s(T+8)}, {s(S_W)}, 12
        s_lshl_b32 {s(T+9)}, {s(S_W)}, 1
        s_add_u32 {s(T+9)}, {s(T+9)}, {s(S_KC0)}
        s_mov_b32 {s(S_EPOCH)}, 7
        s_waitcnt lgkmcnt(0)
        """)
        self.stamp(1)
        a(f"""
        s_bitcmp1_b32 {s(S_J)}, 0
        s_cselect_b32 {s(S_WK)}, {s(S_WV)}, {s(S_WK)}
        s_cselect_b32 {s(S_WK+1)}, {s(S_WV+1)}, {s(S_WK+1)}
        """)
        for i in range(2):
            a(f"""
            s_add_u32 {s(T)}, {s(T+9)}, {i}
            s_and_b32 {s(T)}, {s(T)}, 7
            s_lshl_b32 {s(T+1)}, {s(T)}, 7
            s_add_u32 {s(T+1)}, {s(T+1)}, {s(T+6)}
            """)
            self.add64(T+2, S_AX, s(T+1))
            a(f"s_lshl_b32 {s(T)}, {s(T)}, 11")
            self.add64(T+4, S_WK, s(T))
            self.emit(self.dma(2, T+2, T+7, L_X + i*8192))
            self.emit(self.dma(10, T+2, T+7, L_X + i*8192 + 1024))
            self.emit(self.dma(V_L16, T+4, T+8, L_WKV + i*2048))
            a(f"global_load_lds_dwordx4 {v(V_L16)}, {s(T+4,2)} offset:1024")
            if i == 0: a(f"s_getpc_b64 {s(S_PC,2)}")
            self.marker(36 - 4*i)
        a("s_barrier")
        a("s_branch L_bodyA")
        a("L_cutA:")
        a("L_bodyA:")
        XF, WF = RS, RS+32
        def rd(t):
            i = t % 8
            a(f"ds_read_b128 {v(XF+4*i,4)}, {v(XA+(t&3))} offset:{(t//4)*8192}")
            a(f"ds_read_b64_tr_b16 {v(WF+4*i,2)}, {v(WA)} offset:{t*2048}")
            a(f"ds_read_b64_tr_b16 {v(WF+4*i+2,2)}, {v(WA)} offset:{t*2048+256}")
        def mm(t):
            i = t % 8
            a(f"v_mfma_f32_32x32x16_bf16 v[32:47], {v(WF+4*i,4)}, {v(XF+4*i,4)}, {'0' if t == 0 else 'v[32:47]'}")
        def qproj():
            chk = self.o.get("chk", {0: 0, 4: 1, 8: 3, 16: 5, 24: 6, 28: 7})
            self.await_(20, vaddr=52, val="1", off=128, sleep=1)
            self.await_(20, vaddr=53, val="1", off=16*chk[0], sleep=0)
            self.stamp(2)
            for t in range(4): rd(t)
            for tb in range(4, 32, 4):
                if tb not in chk:
                    for t in range(tb-4, tb):
                        rd(t+4)
                        a("s_waitcnt lgkmcnt(12)")
                        mm(t)
                    continue
                Lok, Lj = a.label("a"), a.label("a")
                ad = 54 if chk[tb] == 7 else 53
                a(f"ds_read_b32 v20, {v(ad)} offset:{16*chk[tb]}")
                a("s_waitcnt lgkmcnt(10)")
                mm(tb-4)
                a("s_waitcnt lgkmcnt(7)")
                mm(tb-3)
                a(f"""
                s_waitcnt lgkmcnt(0)
                v_cmp_gt_u32 vcc, 1, v20
                s_cmp_eq_u64 vcc, 0
                s_cbranch_scc1 {Lok}
                """)
                mm(tb-2); mm(tb-1)
                self.await_(20, vaddr=ad, val="1", off=16*chk[tb], sleep=0)
                for t in range(tb, tb+4): rd(t)
                a(f"s_branch {Lj}")
                a(f"{Lok}:")
                rd(tb); rd(tb+1)
                mm(tb-2)
                rd(tb+2); rd(tb+3)
                mm(tb-1)
                a(f"{Lj}:")
                if tb == 28: self.stamp(3)
            a.c("the first key tiles are published: their fetch overlaps the end of the projection")
            a("s_barrier")
            self.stamp(5)
            for t in range(28, 32):
                if t == 28:
                    for k in range(3): a(self.kv_ld(0, k, 8))
                a(f"s_waitcnt lgkmcnt({3*(31-t)})")
                mm(t)
        self.xfrag_addr(XA, S_HI, 20)
        self.wfrag_addr(WA, 20)
        for i in range(0, 64, 2): a(f"v_mov_b64 {v(RO+i,2)}, 0")
        for i in range(0, 4, 2): a(f"v_mov_b64 {v(RKV+36+8+i,2)}, 0")
        a(f"""
        v_and_b32 v20, 15, v0
        v_lshlrev_b32 v20, 4, v20
        v_lshrrev_b32 v21, 5, v0
        v_lshl_add_u32 v20, v21, 8, v20
        v_bfe_u32 v21, v0, 4, 1
        v_mul_u32_u24 v22, {2*KVREC}, v21
        v_add_u32 {v(RKA)}, v20, v22
        v_cmp_eq_u32 vcc, 0, v21
        v_and_b32 v22, 11, v0
        v_min_u32 v22, 1, v22
        v_lshlrev_b32 v22, 4, v22
        v_add_u32 v22, 512, v22
        v_mov_b32 {v(RIDX)}, 0xdddd
        v_cndmask_b32 {v(RVA)}, v22, v20, vcc
        s_lshl_b32 {s(T)}, {s(S_W)}, 9
        s_add_u32 {s(T)}, {s(T)}, {L_MISC}
        v_lshl_add_u32 v48, v0, 2, {s(T)}
        v_xor_b32 v49, 512, v48
        v_and_b32 v60, 1, v0
        v_mul_u32_u24 v60, 12, v60
        v_add_u32 v60, 4, v60
        v_xor_b32 v60, v60, {v(V_SLOT)}
        v_mov_b32 v61, {E_CLR}
        v_and_b32 v51, 4, v0
        v_add_u32 v52, {L_MK-L_SYNC}, {v(V_ALL)}
        v_or_b32 v53, 8, v52
        v_and_b32 v54, 3, v0
        v_cmp_eq_u32 vcc, 0, v54
        s_nop 1
        v_cndmask_b32 v54, v53, v52, vcc
        v_lshl_add_u32 v51, v51, 4, {v(V_ALL)}
        s_lshl_b32 {s(T)}, {s(S_HI)}, 15
        v_add_u32 v14, {s(T)}, {v(V_L16)}
        """)
        self.tail_addr(L_W, 512, WS_OA, 1024, 20)
        a(f"""
        s_lshl_b32 {s(T)}, {s(S_HI)}, 12
        s_add_u32 {s(T)}, {s(T)}, {L_MISC+0x1000}
        v_lshrrev_b32 v20, 5, v0
        v_lshlrev_b32 v20, 1, v20
        s_lshl_b32 {s(T+1)}, {s(S_LO)}, 2
        v_add_u32 v20, {s(T+1)}, v20
        v_and_b32 v21, 7, v0
        v_xor_b32 v20, v20, v21
        v_and_b32 v22, 31, v0
        v_lshl_add_u32 v22, v22, 7, {s(T)}
        v_lshl_add_u32 v57, v20, 4, v22
        v_xor_b32 v58, 16, v57
        v_lshrrev_b32 v20, 3, v0
        v_xor_b32 v21, v21, v20
        s_lshl_b32 {s(T+1)}, {s(S_LO)}, 11
        s_add_u32 {s(T)}, {s(T)}, {s(T+1)}
        v_lshl_add_u32 v20, v20, 7, {s(T)}
        v_lshl_add_u32 v59, v21, 4, v20
        """)
        a(f"""
        s_add_u32 {s(U+2)}, {s(S_XCD)}, 1
        s_and_b32 {s(U+2)}, {s(U+2)}, 7
        s_lshl_b32 {s(U+2)}, {s(U+2)}, 3
        s_add_u32 {s(U+2)}, {s(U+2)}, {s(S_LO)}
        s_mul_i32 {s(U+2)}, {s(U+2)}, {KVTILE}
        s_add_u32 {s(U+2)}, {s(U+2)}, {WS_KV}
        """)
        for u in range(3):
            self.add64(8+2*u, S_WS, s(U+2))
            a(f"s_add_u32 {s(U+2)}, {s(U+2)}, {2*KVTILE}")
        if self.o.get("warm", 1): a("s_branch L_attn0_stub")
        a("L_warmed:")
        qproj()
        for i in range(0, 8, 2): a(f"v_mov_b64 {v(RS+48+8+i,2)}, 0")
        for k in range(3): a(self.kv_ld(1, k, 10))
        a("s_nop 4")
        for i in range(8):
            a(f"v_cvt_pk_bf16_f32 {v(RQ+8+i)}, {v(32+2*i)}, {v(33+2*i)}")
        a(f"ds_write_b128 {v(self.V_EXW)}, {v(RQ+8,4)}")
        a(f"ds_write_b128 {v(self.V_EXW)}, {v(RQ+12,4)} offset:1024")
        a("s_waitcnt lgkmcnt(0)")
        self.stamp(4)
        a("s_barrier")

    def kv_ops(self):
        SB, SOFF = T, U+2
        return [f"s_add_u32 {s(SB)}, {s(S_WS)}, {s(SOFF)}",
                f"s_addc_u32 {s(SB+1)}, {s(S_WS+1)}, 0",
                f"s_add_u32 {s(SOFF)}, {s(SOFF)}, {2*KVTILE}",
                f"s_cmp_ge_u32 {s(SOFF)}, {WS_KV+64*KVTILE}",
                f"s_cselect_b32 {s(T+2)}, {64*KVTILE}, 0",
                f"s_sub_u32 {s(SOFF)}, {s(SOFF)}, {s(T+2)}"]
    def kv_ld(self, u, k, SB=T):
        if k == 0: return f"global_load_dwordx4 {v(self.RKV+12*u,4)}, {v(self.RKA)}, {s(SB,2)} sc1"
        return f"global_load_dwordx4 {v(self.RKV+12*u+4*k,4)}, {v(self.RVA)}, {s(SB,2)} offset:{KVREC+(k-1)*2*KVREC} sc1"
    def attn(self):
        a = self.a
        RQ, RO, RS, RKV, RIDX, RKA, RVA = self.RQ, self.RO, self.RS, self.RKV, self.RIDX, self.RKA, self.RVA
        SB, SOFF, SCNT, SPASS = T, U+2, U+3, U
        def K(u): return v(RKV+12*u, 4)
        def V(u, h): return v(RKV+12*u+4+4*h, 4)
        addr_ops, ld = self.kv_ops, self.kv_ld
        a.c("---- attention")
        a(f"s_setprio {self.o.get('aprio', 1)}")
        a(f"ds_read_b128 {v(RQ,4)}, {v(self.V_EXR)}")
        a(f"ds_read_b128 {v(RQ+4,4)}, {v(self.V_EXR)} offset:1024")
        for k in range(3): a(self.kv_ld(2, k, 12))
        self.arrive(50)
        a(f"s_mov_b32 {s(SCNT)}, 6")
        if self.o.get("aprof"): a("s_mov_b32 m0, 0")
        al = 1
        self.newpage("attn0", "L_opB_stub")
        a(f"s_waitcnt vmcnt(6) lgkmcnt(0)")
        self.stamp(6)
        a(f"v_mfma_f32_32x32x16_bf16 {v(RS,16)}, {K(0)}, {v(RQ,4)}, 0")
        a("s_nop 3")
        L = a.label("attn")
        p2, p1 = self.o.get("pos", (3, 10))
        EXW = v(self.V_EXW)
        def body(last):
            for i in range(p1, 16): a(f"v_exp_f32 {v(RS+48+i)}, {v(RS+48+i)}")
            for u in range(4):
                for b in range(4):
                    if self.o.get("aprof") and b == 0:
                        a(f"""
                        s_memtime s[60:61]
                        s_waitcnt lgkmcnt(0)
                        v_writelane_b32 v55, s60, m0
                        s_add_u32 m0, m0, 1
                        """)
                    fill = [[], [], []]
                    if not last or u == 0:
                        if b == 0:
                            ops = addr_ops()
                            fill[0] = ops[0:1]; fill[1] = ops[1:3]; fill[2] = ops[3:5]
                        if b == 1:
                            fill[0] = addr_ops()[5:6]; fill[1] = [ld((u+3) % 4, 0)]; fill[2] = [ld((u+3) % 4, 1)]
                        if b == 2:
                            fill[1] = [ld((u+3) % 4, 2)]; fill[2] = ["s_waitcnt vmcnt(6)"]
                    elif b == 2 and u < 3:
                        fill[2] = [f"s_waitcnt vmcnt({6-3*u})"]
                    if not last and b == 3:
                        if u == 2: fill[1] = ["ds_read_b32 v50, v51"]
                        if u == 3:
                            fill[0] = ["s_waitcnt lgkmcnt(0)", f"v_cmp_gt_u32 vcc, {s(S_EPOCH)}, v50"]
                            fill[1] = ["s_cbranch_vccnz L_check", "L_checked:", f"s_sub_u32 {s(SCNT)}, {s(SCNT)}, 1"]
                            fill[2] = [f"s_cbranch_scc0 {L}"]
                    if last and u == 3 and b >= 2:
                        k = b - 2
                        fill[0] = [f"ds_write_b128 {EXW}, {v(RO+16*k,4)} offset:{2048*k}"]
                        fill[1] = [f"ds_write_b128 {EXW}, {v(RO+16*k+4,4)} offset:{2048*k+1024}",
                                   f"ds_write_b32 v48, {v(RO+16*k+8)} offset:{256*k}"]
                        if k: fill[1].append(f"ds_write_b32 {v(V_SLOT)}, v61")
                    nu, nb = (u, b+1) if b < 3 else ((u+1) % 4, 0)
                    pu, pb = (u, b-1) if b > 0 else ((u-1) % 4, 3)
                    S = RS + 16*b
                    if not (last and u == 3 and b == 3):
                        a(f"v_mfma_f32_32x32x16_bf16 {v(RS+16*nb,16)}, {K(nu)}, {v(RQ+4*nb,4)}, 0")
                    for x in fill[0]: a(x)
                    for i in range(0, p2): a(f"v_exp_f32 {v(S+i)}, {v(S+i)}")
                    a(f"v_smfmac_f32_32x32x32_bf16 {v(RO+16*pb,16)}, {V(pu,1)}, {v(RS+16*pb+8,8)}, {v(RIDX)}")
                    for x in fill[1]: a(x)
                    for i in range(p2, p1): a(f"v_exp_f32 {v(S+i)}, {v(S+i)}")
                    a(f"v_smfmac_f32_32x32x32_bf16 {v(RO+16*b,16)}, {V(u,0)}, {v(S,8)}, {v(RIDX)}")
                    for x in fill[2]: a(x)
                    if last or (u, b) != (3, 3):
                        for i in range(p1, 16): a(f"v_exp_f32 {v(S+i)}, {v(S+i)}")
        if not al: a(".p2align 6")
        a(f"{L}:")
        body(False)
        body(True)
        def check():
            a("L_check:")
            self.await_(50, vaddr=51)
            a("s_branch L_checked")
        self.check = check
        a(f"ds_read_b32 v50, v60")
        a(f"ds_read_b32 {v(RO+8)}, v49")
        a(f"v_smfmac_f32_32x32x32_bf16 {v(RO+48,16)}, {V(3,1)}, {v(RS+48+8,8)}, {v(RIDX)}")

    def tail_A(self):
        a = self.a
        RQ, RO = self.RQ, self.RO
        self.stamp(7)
        if self.o.get("aprof"):
            a(f"""
            s_lshl_b32 s60, s2, 2
            s_add_u32 s60, s60, {s(S_W)}
            s_lshl_b32 s60, s60, 8
            s_add_u32 s60, s60, {WS_STAMP+0x40000}
            v_lshl_add_u32 v56, v0, 2, s60
            global_store_dword v56, v55, {s(S_WS,2)}
            """)
        a.c("---- pair reduction of the two key halves")
        O2, O3 = RO+32, RO+48
        def rdpart():
            a(f"""
            ds_read_b32 {v(RO+24)}, v49 offset:256
            ds_read_b128 {v(RO,4)}, {v(self.V_EXR)}
            ds_read_b128 {v(RO+4,4)}, {v(self.V_EXR)} offset:1024
            ds_read_b128 {v(RO+16,4)}, {v(self.V_EXR)} offset:2048
            ds_read_b128 {v(RO+20,4)}, {v(self.V_EXR)} offset:3072
            """)
        rdpart()
        Lok, La = a.label("x"), a.label("x")
        a(f"""
        s_mov_b32 {s(T+2)}, {f32(2.0**-20)}
        s_mov_b32 {s(T+3)}, {f32(2.0**100)}
        s_waitcnt lgkmcnt(6)
        v_cmp_gt_u32 vcc, {E_CLR}, v50
        s_cmp_eq_u64 vcc, 0
        s_cbranch_scc1 {Lok}
        """)
        self.await_(50, vaddr=60, val=str(E_CLR), sleep=0)
        a(f"ds_read_b32 {v(RO+8)}, v49")
        rdpart()
        a(f"{Lok}:")
        self.stamp(11)
        a(f"""
        s_waitcnt lgkmcnt(2)
        v_add_f32 {v(O2+8)}, {v(O2+8)}, {v(RO+8)}
        v_add_f32 {v(O3+8)}, {v(O3+8)}, {v(RO+24)}
        v_cmp_le_f32 {s(T+4,2)}, {s(T+2)}, {v(O2+8)}
        v_cmp_le_f32 {s(T+6,2)}, {s(T+2)}, {v(O3+8)}
        v_add_f32 {v(RO+9)}, {v(O2+8)}, {v(O3+8)}
        """)
        for b in range(2):
            if b: a("s_waitcnt lgkmcnt(0)")
            for i in range(0, 8, 2):
                a(f"v_pk_add_f32 {v(O2+16*b+i,2)}, {v(O2+16*b+i,2)}, {v(RO+16*b+i,2)}")
        a.c("---- the zero shift is kept only if every row sum is in range and every sum is finite")
        a(f"""
        v_pk_add_f32 {v(RO,2)}, {v(O2,2)}, {v(O2+2,2)}
        v_pk_add_f32 {v(RO+2,2)}, {v(O2+4,2)}, {v(O2+6,2)}
        v_pk_add_f32 {v(RO+4,2)}, {v(O3,2)}, {v(O3+2,2)}
        v_pk_add_f32 {v(RO+6,2)}, {v(O3+4,2)}, {v(O3+6,2)}
        v_pk_add_f32 {v(RO,2)}, {v(RO,2)}, {v(RO+2,2)}
        v_pk_add_f32 {v(RO+4,2)}, {v(RO+4,2)}, {v(RO+6,2)}
        s_and_b64 {s(T+4,2)}, {s(T+4,2)}, {s(T+6,2)}
        v_pk_add_f32 {v(RO,2)}, {v(RO,2)}, {v(RO+4,2)}
        v_fma_f32 {v(RO+9)}, {v(RO)}, 0, {v(RO+9)}
        v_fma_f32 {v(RO+9)}, {v(RO+1)}, 0, {v(RO+9)}
        v_cmp_ge_f32 vcc, {s(T+3)}, {v(RO+9)}
        s_and_b64 vcc, vcc, {s(T+4,2)}
        s_cmp_eq_u64 vcc, -1
        s_cbranch_scc0 L_fallback
        L_norm:
        """)
        self.normalize([(O2, O2+8), (O3, O3+8)], 16)
        self.stamp(8)
        a.c("---- the linear-attention half of the output projection fills the hand-off wait")
        a("s_setprio 0")
        self.newpage("opB", "L_warmed")
        a("s_barrier")
        XF, WF, ACC = 128, 160, 64
        D = 4
        def rd(u):
            i = u % 8
            a(f"ds_read_b128 {v(XF+4*i,4)}, v14 offset:{u*1024}")
            for sx in range(2):
                a(f"ds_read_b64_tr_b16 {v(WF+4*i+2*sx,2)}, {v(self.V_WO)} offset:{(2*u+sx)*1024}")
        for u in range(D): rd(u)
        for u in range(32):
            if u + D < 32:
                rd(u+D); n = 3*D
            else:
                n = 3*(31-u)
            y2 = self.o.get("y2", 14)
            if u == y2:
                a("v_mov_b32 v50, 39")
                a("s_waitcnt vmcnt(0)")
                a(f"ds_write_b32 {v(V_SLOT)}, v50")
                self.stamp(9)
            a(f"s_waitcnt lgkmcnt({n})")
            i = u % 8
            a(f"v_mfma_f32_32x32x16_bf16 {v(ACC,16)}, {v(WF+4*i,4)}, {v(XF+4*i,4)}, {'0' if u == 0 else v(ACC,16)}")
        self.stamp(10)
        a(f"s_mov_b32 {s(S_EPOCH)}, 39")
        self.add64(T+2, S_OUTB, 16384)
        a("s_nop 7")
        a("s_nop 0")
        for h in range(2):
            for i in range(4*h, 4*h+4): a(f"v_cvt_pk_bf16_f32 {v(32+i)}, {v(ACC+2*i)}, {v(ACC+2*i+1)}")
            a(f"ds_write_b128 {v(57+h)}, {v(32+4*h,4)}")
        self.softbar(50, sleep=0)
        a("ds_read_b128 v[40:43], v59")
        a("ds_read_b128 v[44:47], v59 offset:1024")
        a.c("these stores queue behind the other waves' fetches, not in front of them")
        if self.o.get("sw", 1): self.await_(50, val="40", off=16, sleep=1)
        for h in range(2):
            a(f"s_waitcnt lgkmcnt({1-h})")
            a(f"global_store_dwordx4 {v(self.V_OUT)}, {v(40+4*h,4)}, {s(T+2 if h else S_OUTB,2)} {self.o.get('osta','sc1')}")
        a("s_barrier")
        a("s_branch L_fin")

    def normalize(self, blocks, P, guard=True):
        a = self.a
        for N, R in blocks: a(f"v_rcp_f32 {v(R)}, {v(R)}")
        for b, (N, R) in enumerate(blocks):
            for i in range(0, 8, 2):
                a(f"v_pk_mul_f32 {v(N+i,2)}, {v(N+i,2)}, {v(R,2)} op_sel_hi:[1,0]")
            for i in range(4):
                a(f"v_cvt_pk_bf16_f32 {v(P+4*b+i)}, {v(N+2*i)}, {v(N+2*i+1)}")
            if guard: a(f"v_min_u32 {v(P+4*b)}, -2, {v(P+4*b)}")
            a(f"global_store_dwordx4 {v(self.V_IMG)}, {v(P+4*b,4)}, {s(S_WS,2)} offset:{1024*b} {'' if guard and self.o.get('xplain') else 'sc1'}")

    def attn_fallback(self, Lret):
        a = self.a
        RQ, RO, RS, RKV, RIDX, RKA, RVA = self.RQ+8, self.RO+32, self.RS, self.RKV, self.RIDX, self.RKA, self.RVA
        SB, SCNT = T, U+3
        NM = RS + 32
        a("L_fallback:")
        a(f"v_mov_b32 {v(RKV+20)}, 0xff800000")
        a(f"v_mov_b32 {v(RKV+21)}, 0xff800000")
        for ps in (0, 1):
            L = a.label("fb")
            self.add64(SB, S_WS, WS_KV)
            a(f"""
            s_mov_b32 {s(SCNT)}, 64
            {L}:
            global_load_dwordx4 {v(RKV,4)}, {v(RKA)}, {s(SB,2)} sc1
            """)
            if ps:
                a(f"global_load_dwordx4 {v(RKV+4,4)}, {v(RVA)}, {s(SB,2)} offset:{KVREC} sc1")
                a(f"global_load_dwordx4 {v(RKV+8,4)}, {v(RVA)}, {s(SB,2)} offset:{3*KVREC} sc1")
            self.add64(SB, SB, KVTILE)
            a("s_waitcnt vmcnt(0)")
            for b in range(2):
                c = v(NM+16*b, 16) if ps else "0"
                a(f"v_mfma_f32_32x32x16_bf16 {v(RS+16*b,16)}, {v(RKV,4)}, {v(RQ+4*b,4)}, {c}")
            a("s_nop 7")
            a("s_nop 4")
            for b in range(2):
                S = RS + 16*b
                if not ps:
                    for i in range(0, 16, 2):
                        a(f"v_max3_f32 {v(RKV+20+b)}, {v(S+i)}, {v(S+i+1)}, {v(RKV+20+b)}")
                else:
                    for i in range(16): a(f"v_exp_f32 {v(S+i)}, {v(S+i)}")
                    a("s_nop 1")
                    a(f"v_smfmac_f32_32x32x32_bf16 {v(RO+16*b,16)}, {v(RKV+4,4)}, {v(S,8)}, {v(RIDX)}")
                    a(f"v_smfmac_f32_32x32x32_bf16 {v(RO+16*b,16)}, {v(RKV+8,4)}, {v(S+8,8)}, {v(RIDX)}")
            a(f"""
            s_sub_u32 {s(SCNT)}, {s(SCNT)}, 1
            s_cmp_lg_u32 {s(SCNT)}, 0
            s_cbranch_scc1 {L}
            """)
            if not ps:
                for b in range(2):
                    m = RKV+20+b
                    a(f"""
                    v_mov_b32 {v(RKV+22)}, {v(m)}
                    s_nop 1
                    v_permlane32_swap_b32 {v(m)}, {v(RKV+22)}
                    s_nop 1
                    v_max_f32 {v(m)}, {v(m)}, {v(RKV+22)}
                    """)
                    for i in range(16): a(f"v_sub_f32 {v(NM+16*b+i)}, 0, {v(m)}")
                for i in range(32): a(f"v_mov_b32 {v(RO+i)}, 0")
        a("s_nop 7")
        a("s_nop 4")
        a(f"s_branch {Lret}")

    def outproj_wfrags(self):
        a = self.a
        for p in range(4):
            a(f"""
            s_add_u32 {s(T)}, {s(S_J)}, {p}
            s_and_b32 {s(T)}, {s(T)}, 3
            s_lshl_b32 {s(T+1)}, {s(S_LO)}, 2
            s_add_u32 {s(T)}, {s(T)}, {s(T+1)}
            s_lshl_b32 {s(T+1)}, {s(S_G)}, 1
            s_sub_u32 {s(T)}, {s(T)}, {s(T+1)}
            s_and_b32 {s(T)}, {s(T)}, 7
            s_lshl_b32 {s(T)}, {s(T)}, 13
            v_add_u32 v21, {s(T)}, {v(self.V_WO)}
            """)
            for k in range(4):
                u = 4*p + k
                for nb in range(2):
                    for sx in range(2):
                        a(f"ds_read_b64_tr_b16 {v(128+8*u+4*nb+2*sx,2)}, v21 offset:{(2*k+sx)*1024+nb*512}")
    def gather_loads(self, p):
        for k in range(4):
            self.a(f"global_load_dwordx4 {v(32+16*p+4*k,4)}, {v(V_L16)}, {s(8+2*p,2)} offset:{k*1024} sc1")
    def outproj(self):
        a = self.a
        a.c("=========================== attention half of the output projection ===========================")
        def test(p):
            I = 32 + 16*p
            a(f"""
            v_max3_u32 v16, {v(I)}, {v(I+4)}, {v(I+8)}
            v_max_u32 v16, v16, {v(I+12)}
            v_cmp_eq_u32 vcc, -1, v16
            """)
        def mms(p):
            return [f"v_mfma_f32_32x32x16_bf16 {v(96+16*nb,16)}, {v(128+8*(4*p+k)+4*nb,4)}, {v(32+4*(4*p+k),4)}, {v(96+16*nb,16)}"
                    for k in range(4) for nb in range(2)]
        def consume(p, Ls):
            test(p)
            a(f"""
            s_cmp_lg_u64 vcc, 0
            s_cbranch_scc1 {Ls}
            s_bitset0_b32 {s(S_PEND)}, {p}
            """)
            self.emit(mms(p))
            a(f"{Ls}:")
        def wr(nb, lo=0, hi=4):
            for k, ad in list(enumerate((9, 14, 15, 17)))[lo:hi]:
                a(f"ds_write_b128 {v(ad)}, {v(96+16*nb+4*k,4)} offset:{128*nb}")
        self.gather_loads(0); self.gather_loads(1)
        self.add64(T+2, S_OUTB, 16384)
        a("s_waitcnt vmcnt(4)")
        self.stamp(5)
        test(0)
        for p in range(4):
            a("s_cmp_lg_u64 vcc, 0")
            a(f"s_cbranch_scc1 L_miss")
            a(f"s_bitset0_b32 {s(S_PEND)}, {p}")
            M = mms(p)
            if p == 3: break
            a(M[0])
            if p < 2: self.gather_loads(p+2)
            if p == 1: a(f"ds_write_b32 {v(V_SLOT)}, v19")
            if p == 2: a(f"ds_read_b32 v20, v21")
            self.emit(M[1:7])
            a(f"s_waitcnt vmcnt({4 if p < 2 else 0})")
            test(p+1)
            a(M[7])
        a.c("the exchange tiles reuse LDS the A waves have finished reading")
        Lok = a.label("k")
        self.emit(M[0::2])
        a(M[1])
        a(f"""
        s_waitcnt lgkmcnt(0)
        v_cmp_gt_u32 vcc, 40, v20
        s_cmp_eq_u64 vcc, 0
        s_cbranch_scc1 {Lok}
        """)
        self.await_(20, vaddr=21, val="40", sleep=0)
        a(f"{Lok}:")
        a(M[3])
        a("s_nop 5")
        wr(0, 0, 1)
        a(M[5])
        wr(0, 1, 2)
        a(M[7])
        self.stamp(10)
        wr(0, 2, 4)
        a("s_nop 9")
        a("L_gathered:")
        wr(1)
        a("s_waitcnt lgkmcnt(0)")
        a("s_barrier")
        for i in range(2):
            for pt in range(2):
                for e, ad in enumerate((3, 24)):
                    a(f"ds_read_b128 {v(32+16*i+8*pt+4*e,4)}, {v(ad)} offset:{2048*i+8192*pt}")
        for i in range(2):
            a(f"s_waitcnt lgkmcnt({4-4*i})")
            for k in range(0, 8, 2): a(f"v_pk_add_f32 {v(32+16*i+k,2)}, {v(32+16*i+k,2)}, {v(32+16*i+8+k,2)}")
            for k in range(4): a(f"v_cvt_pk_bf16_f32 {v(64+4*i+k)}, {v(32+16*i+2*k)}, {v(32+16*i+2*k+1)}")
            a(f"global_store_dwordx4 {v(self.V_OUT)}, {v(64+4*i,4)}, {s(T+2 if i else S_OUTB,2)} {self.o.get('ostb','sc1')}")
        def retry():
            a("L_miss:")
            a(f"ds_write_b32 {v(V_SLOT)}, v19")
            a("s_waitcnt vmcnt(0)")
            a("L_retry:")
            if self.o.get("rs", 2): a(f"s_sleep {self.o.get('rs', 2)}")
            for p in range(4):
                Ls = a.label("gs")
                a(f"s_bitcmp1_b32 {s(S_PEND)}, {p}")
                a(f"s_cbranch_scc0 {Ls}")
                self.gather_loads(p)
                a(f"{Ls}:")
            a("s_waitcnt vmcnt(0)")
            for p in range(4):
                Ls = a.label("cs")
                a(f"s_bitcmp1_b32 {s(S_PEND)}, {p}")
                a(f"s_cbranch_scc0 {Ls}")
                consume(p, Ls)
            a(f"""
            s_add_u32 {s(T+9)}, {s(T+9)}, 1
            s_cmp_eq_u32 {s(S_PEND)}, 0
            s_cbranch_scc1 L_rdone
            s_cmp_lt_u32 {s(T+9)}, {SPIN_MAX}
            s_cbranch_scc1 L_retry
            L_rdone:
            """)
            self.await_(20, vaddr=21, val="40", sleep=0)
            a("s_nop 3")
            wr(0)
            a("s_branch L_gathered")
        self.retry = retry

    def kv_setup(self):
        self.a(f"""
        v_and_b32 v96, 15, v0
        v_and_b32 v97, 3, v0
        v_bfe_u32 v98, v0, 2, 1
        v_lshl_add_u32 v97, v98, 3, v97
        v_bfe_u32 v98, v0, 3, 1
        v_lshl_add_u32 v97, v98, 2, v97
        s_bitcmp1_b32 {s(S_J)}, 0
        s_cselect_b64 vcc, -1, 0
        s_cselect_b32 {s(T+8)}, 1.0, {f32(0.25*LOG2E)}
        v_cndmask_b32 v96, v96, v97, vcc
        v_lshrrev_b32 v98, 4, v0
        v_lshrrev_b32 v97, 1, v96
        v_xor_b32 v97, v97, v98
        v_lshlrev_b32 v96, 7, v96
        v_lshl_add_u32 v96, v97, 4, v96
        s_and_b32 {s(T)}, {s(S_J)}, 6
        s_lshl_b32 {s(T)}, {s(T)}, 10
        v_add_u32 v96, {s(T)}, v96
        v_xor_b32 v97, 64, v96
        v_bfe_u32 v99, v0, 2, 2
        v_lshl_add_u32 v99, v98, 3, v99
        v_lshlrev_b32 v99, 5, v99
        v_and_b32 v100, 3, v0
        v_lshl_add_u32 v99, v100, 3, v99
        v_add_u32 v99, {L_WKV}, v99
        """)
    def kv_compute(self):
        a = self.a
        XF, WF = 128, 160
        LV, LD = a.label("kvv"), a.label("kvd")
        order = [2*sl + h for par in range(2) for sl in range(par, 8, 2) for h in range(2)]
        def rd(n):
            t = order[n]
            a(f"ds_read_b128 {v(XF+4*(n%8),4)}, {v(96+(t&1))} offset:{(t//2)*8192}")
            a(f"ds_read_b64_tr_b16 {v(WF+4*(n%8),2)}, v99 offset:{t*1024}")
            a(f"ds_read_b64_tr_b16 {v(WF+4*(n%8)+2,2)}, v99 offset:{t*1024+128}")
        a(f"s_bitcmp1_b32 {s(S_J)}, 0")
        a(f"s_cbranch_scc1 {LV}")
        for isv in (0, 1):
            if isv: a(f"{LV}:")
            def mm(n):
                x, w = v(XF+4*(n%8),4), v(WF+4*(n%8),4)
                A, B = (x, w) if isv else (w, x)
                a(f"v_mfma_f32_16x16x32_bf16 v[104:107], {A}, {B}, {'0' if n == 0 else 'v[104:107]'}")
            for h in range(2):
                self.await_(20, vaddr=21, val="1", off=16-16*h, sleep=0)
                if h == 0:
                    self.stamp(2); self.stamp(5, "hd")
                for n in range(8*h, 8*h+4):
                    rd(n)
                    if h: mm(n-4)
                for n in range(8*h, 8*h+4):
                    rd(n+4)
                    a("s_waitcnt lgkmcnt(12)")
                    mm(n)
            for n in range(12, 16):
                a(f"s_waitcnt lgkmcnt({3*(15-n)})")
                mm(n)
            if not isv: a(f"s_branch {LD}")
        a(f"""
        {LD}:
        s_nop 7
        v_pk_mul_f32 v[104:105], v[104:105], {s(T+8,2)} op_sel_hi:[1,0]
        v_pk_mul_f32 v[106:107], v[106:107], {s(T+8,2)} op_sel_hi:[1,0]
        v_cvt_pk_bf16_f32 v108, v104, v105
        v_cvt_pk_bf16_f32 v109, v106, v107
        s_nop 1
        v_permlane32_swap_b32 v108, v110
        v_permlane32_swap_b32 v109, v111
        s_mov_b32 exec_hi, 0
        global_store_dwordx4 v101, v[108:111], {s(S_WS,2)} sc1
        s_mov_b32 exec_hi, -1
        """)

    def phi(self, R):
        a = self.a
        TMP = 80
        a(f"s_mov_b32 {s(T)}, {f32(LOG2E)}")
        a(f"s_mov_b32 {s(T+2)}, {f32(1e-6)}")
        for i in range(0, 16, 2): a(f"v_pk_fma_f32 {v(TMP+i,2)}, {v(R+i,2)}, {s(T,2)}, v[18:19] op_sel_hi:[1,0,0]")
        for i in range(16): a(f"v_exp_f32 {v(TMP+i)}, {v(TMP+i)} clamp")
        for i in range(16): a(f"v_max_f32 {v(R+i)}, {s(T+2)}, {v(R+i)}")
        for i in range(0, 16, 2): a(f"v_pk_add_f32 {v(R+i,2)}, {v(R+i,2)}, {v(TMP+i,2)}")
        for i in range(0, 16, 2): a(f"v_cvt_pk_bf16_f32 {v(R+i//2)}, {v(R+i)}, {v(R+i+1)}")

    def roleB(self):
        a = self.a
        RB, HP, WB = S_HI, S_LO, S_W3
        SXM, SWM, SXO, SWO = U, U+1, U+2, U+3
        VX, VW, VO = 26, 240, 28
        XA, WA = 244, 248
        AK, AV, AQ = 32, 48, 64
        F = (96, 160)
        XF = 96
        X, Y = 224, 232
        V_L128, V_SX, V_L4, V_F4 = 10, 11, 12, 15
        VL, SL, SLO, SF1 = 80, 96, 60, 62
        HI, LOW = "s_setprio 3", f"s_setprio {self.o.get('bmm', 0)}"
        a.c("=========================== role B ===========================")
        a("L_roleB:")
        self.inB = True
        Lj = a.label("b")
        a(f"""
        s_lshl_b32 {s(T)}, {s(S_C)}, 8
        s_add_u32 {s(T)}, {s(T)}, {WS_ACC}
        v_lshl_add_u32 v24, v0, 2, {s(T)}
        s_mul_i32 {s(T)}, {s(S_C)}, {KVREC}
        s_add_u32 {s(T)}, {s(T)}, {WS_KV}
        v_add_u32 v101, {s(T)}, {v(V_L16)}
        v_cmp_eq_u32 vcc, 32, v0
        v_mov_b32 v112, 0x3f803f80
        s_nop 0
        v_cndmask_b32 v112, 0, v112, vcc
        v_mov_b32 v113, v112
        v_mov_b32 v114, v112
        v_mov_b32 v115, v112
        """)
        for u in range(4): a(f"v_add_u32 {v(VL+u)}, {8192*u}, v3")
        a(f"s_lshl_b32 {s(T)}, {s(S_LO)}, 6")
        a(f"v_xor_b32 v20, {s(T)}, v2")
        for u in range(3):
            a(f"""
            s_add_u32 {s(T)}, {s(S_J)}, {2+2*u}
            s_and_b32 {s(T)}, {s(T)}, 6
            s_add_u32 {s(T)}, {s(T)}, {s(S_LO)}
            s_lshl_b32 {s(SL+u)}, {s(T)}, 10
            s_lshl_b32 {s(T)}, {s(T)}, 13
            v_add_u32 {v(VL+4+u)}, {s(T)}, v20
            """)
        a(f"""
        s_add_u32 {s(T)}, {s(S_XCD)}, 1
        s_lshl_b32 {s(T)}, {s(T)}, 3
        v_add_u32 v92, {s(T)}, v0
        v_and_b32 v92, 63, v92
        v_lshlrev_b32 v92, 7, v92
        v_add_u32 v92, {WS_F1}, v92
        s_lshl_b32 {s(SL+3)}, {s(S_LO)}, 12
        s_lshl_b32 {s(SL+4)}, {s(S_G)}, 16
        s_lshl_b32 {s(SLO)}, {s(S_J)}, 7
        s_lshl_b32 {s(T)}, {s(S_LO)}, 15
        s_add_u32 {s(SLO)}, {s(SLO)}, {s(T)}
        """)
        ta = self.o.get("ta", 0)
        if ta:
            a.c("first touch (one dword per line) of this CU's share of what the die reads for the A-side projections")
            a(f"""
            s_and_b32 {s(T)}, {s(S_G)}, 3
            s_lshl_b32 {s(T+1)}, {s(T)}, 10
            s_lshl_b32 {s(T+2)}, {s(S_J)}, 7
            s_add_u32 {s(T+1)}, {s(T+1)}, {s(T+2)}
            s_lshl_b32 {s(T+2)}, {s(S_LO)}, 18
            s_add_u32 {s(T+1)}, {s(T+1)}, {s(T+2)}
            s_lshl_b32 {s(T+2)}, {s(S_C)}, 13
            s_lshl_b32 {s(T)}, {s(T)}, 2
            s_lshr_b32 {s(T+3)}, {s(S_J)}, 1
            s_add_u32 {s(T)}, {s(T)}, {s(T+3)}
            s_lshl_b32 {s(T)}, {s(T)}, 10
            s_cmp_eq_u32 {s(S_W)}, 5
            s_cselect_b32 {s(T)}, {s(T+2)}, {s(T)}
            s_cmp_ge_u32 {s(S_W)}, 6
            s_cselect_b32 {s(T)}, {s(T+1)}, {s(T)}
            s_cselect_b32 {s(T+1)}, 12, 7
            v_lshlrev_b32 v19, {s(T+1)}, v0
            v_add_u32 v19, {s(T)}, v19
            """)
        a("s_waitcnt lgkmcnt(0)")
        if ta:
            Lt4, Lt5, Lte = a.label("t"), a.label("t"), a.label("t")
            a(f"""
            s_cmp_eq_u32 {s(S_W)}, 4
            s_cbranch_scc1 {Lt4}
            s_cmp_eq_u32 {s(S_W)}, 5
            s_cbranch_scc1 {Lt5}
            {f"global_load_dword v19, v19, {s(S_WQ,2)}" if ta != 4 else ""}
            s_branch {Lte}
            {Lt5}:
            {f"global_load_dword v19, v19, {s(S_AX,2)}" if ta == 1 else ""}
            s_branch {Lte}
            {Lt4}:
            s_bitcmp1_b32 {s(S_J)}, 0
            s_cselect_b32 {s(S_WK)}, {s(S_WV)}, {s(S_WK)}
            s_cselect_b32 {s(S_WK+1)}, {s(S_WV+1)}, {s(S_WK+1)}
            s_mov_b64 exec, 0xff
            {f"global_load_dword v19, v19, {s(S_WK,2)}" if ta in (1, 3) else ""}
            s_mov_b64 exec, -1
            {Lte}:
            """)
        Lz = a.label("b")
        a.c("clear this CU's share of the state accumulators (ordered before the K/V flag)")
        a(f"""
        s_cmp_lg_u32 {s(S_W)}, 4
        s_cbranch_scc1 {Lz}
        global_store_dword v24, {v(V_ZERO)}, {s(S_WS,2)} sc1
        s_mov_b32 exec_lo, {-1 if self.o.get("pre", 1) == 1 else 0}
        s_mov_b32 exec_hi, 0xff
        global_store_dwordx4 v101, v[112:115], {s(S_WS,2)} sc1
        s_mov_b64 exec, -1
        {Lz}:
        s_lshr_b32 {s(T)}, {s(S_C)}, 2
        s_lshl_b32 {s(T)}, {s(T)}, 7
        s_and_b32 {s(T+1)}, {s(S_C)}, 3
        s_lshl_b32 {s(T+1)}, {s(T+1)}, 2
        s_add_u32 {s(T)}, {s(T)}, {s(T+1)}
        s_add_u32 {s(T)}, {s(T)}, {WS_F1}
        s_add_u32 {s(S_WV)}, {s(S_WS)}, {s(T)}
        s_addc_u32 {s(S_WV+1)}, {s(S_WS+1)}, 0
        s_load_dword s53, {s(S_WV,2)}, 0
        s_load_dword {s(S_TAG)}, {s(S_WS,2)}, {WS_G}
        """)
        a(f"s_getpc_b64 {s(S_PC,2)}")
        self.stamp(1)
        a("s_barrier")
        self.stamp(1, "hd")
        def setup():
            a.c("---- B-side setup, all in the shadow of the head")
            a(f"""
            v_mov_b32 {v(VX)}, v2
            v_xor_b32 {v(VX+1)}, 64, v2
            v_add_u32 {v(VX+1)}, 8192, {v(VX+1)}
            v_mul_u32_u24 {v(VW)}, 3072, v8
            v_add_u32 {v(VW)}, {v(VW)}, v9
            v_mov_b32 {v(VO)}, v3
            """)
            for i in range(1, 4):
                a(f"v_add_u32 {v(VW+i)}, {24576*i}, {v(VW)}")
                a(f"v_add_u32 {v(VO+i)}, {8192*i}, v3")
            self.xfrag_addr(XA, RB, 20)
            self.wfrag_addr(WA, 20)
            self.tail_addr(L_X, 0, WS_OB, 0, 20)
            a(f"""
            s_lshl_b32 {s(T)}, {s(S_W3)}, 13
            s_add_u32 {s(T)}, {s(T)}, {L_W}
            v_lshrrev_b32 v20, 5, v0
            v_lshlrev_b32 v20, 2, v20
            v_and_b32 v21, 7, v0
            v_xor_b32 v20, v20, v21
            v_and_b32 v22, 31, v0
            v_lshl_add_u32 v22, v22, 8, {s(T)}
            v_lshl_add_u32 v9, v20, 4, v22
            v_xor_b32 v14, 16, v9
            v_xor_b32 v15, 32, v9
            v_xor_b32 v17, 48, v9
            s_lshl_b32 {s(T)}, {s(S_HI)}, 14
            s_lshl_b32 {s(T+1)}, {s(S_LO)}, 12
            s_add_u32 {s(T)}, {s(T)}, {s(T+1)}
            s_add_u32 {s(T)}, {s(T)}, {L_W}
            v_lshrrev_b32 v20, 3, v0
            v_lshlrev_b32 v21, 1, v21
            v_xor_b32 v21, v21, v20
            v_lshl_add_u32 v20, v20, 8, {s(T)}
            v_lshl_add_u32 v3, v21, 4, v20
            v_xor_b32 v24, 16, v3
            """)
            a(f"""
            s_lshl_b32 {s(SXM)}, {s(WB)}, 11
            s_lshl_b32 {s(SWM)}, {s(WB)}, 12
            s_lshl_b32 {s(SXO)}, {s(S_G)}, 16
            s_lshl_b32 {s(T)}, {s(WB)}, 14
            s_add_u32 {s(SXO)}, {s(SXO)}, {s(T)}
            s_mul_i32 {s(SWO)}, {s(HP)}, {32*3072}
            s_lshl_b32 {s(T)}, {s(S_J)}, 7
            s_add_u32 {s(SWO)}, {s(SWO)}, {s(T)}
            s_mov_b32 {s(T)}, {f32(1e-6)}
            s_mov_b32 {s(T+1)}, {f32(1e-6)}
            s_mov_b32 {s(T+2)}, 0x3f803f80
            s_mov_b32 {s(T+3)}, 0x3f803f80
            """)
            for i in range(0, 16, 2):
                a(f"v_mov_b64 {v(AK+i,2)}, {s(T,2)}")
                a(f"v_mov_b64 {v(AQ+i,2)}, {s(T,2)}")
                if i < 4: a(f"v_mov_b64 {v(X+i,2)}, {s(T+2,2)}")
            a(f"""
            v_mov_b32 v18, {f32(-1e-6*LOG2E)}
            v_mov_b64 v[252:253], -1
            v_mov_b64 v[254:255], -1
            v_mov_b32 v25, 63
            v_mul_u32_u24 v250, 12288, v0
            v_lshlrev_b32 v251, 12, v0
            v_lshlrev_b32 {v(V_L128)}, 7, v0
            s_lshl_b32 {s(T)}, {s(WB)}, 10
            s_add_u32 {s(T)}, {s(T)}, {L_MISC+0x1000}
            v_add_u32 {v(V_SX)}, {s(T)}, {v(V_L16)}
            v_xor_b32 {v(X+4)}, 2048, {v(V_SX)}
            v_and_b32 v20, 15, v0
            v_bfe_u32 v21, v0, 4, 1
            v_lshlrev_b32 v22, 11, v21
            v_lshl_add_u32 {v(X+5)}, v20, 2, v22
            v_lshrrev_b32 v22, 5, v0
            v_lshl_add_u32 {v(X+6)}, v22, 8, {v(X+5)}
            s_lshl_b32 {s(T)}, {s(RB)}, 9
            v_add_u32 {v(X+6)}, {s(T)}, {v(X+6)}
            v_and_b32 v20, 31, v0
            v_min_u32 v20, 16, v20
            v_lshlrev_b32 v20, 6, v20
            v_lshl_add_u32 {v(V_L4)}, v22, 4, v20
                """)
            self.add64(SF1, S_WS, WS_F1)
        def tag():
            a(f"""
            s_waitcnt lgkmcnt(0)
            s_add_u32 {s(S_TAG)}, {s(S_TAG)}, 0x2f1b4c6d
            v_mov_b32 {v(V_TAG)}, {s(S_TAG)}
            """)
        def touch(spec):
            kind, lo, hi = spec
            if kind == "x":
                m = sum(1 << e for e in range(lo, hi)) * 0x01010101
                a(f"s_lshl_b32 {s(T)}, {s(S_C)}, 13")
                self.add64(T+2, S_BX, s(T))
                mlo = mhi = m; vr = V_L128
            else:
                base, rs, col = {"q": (S_WQKV, 3072, 0), "k": (S_WQKV, 3072, 1024), "v": (S_WQKV, 3072, 2048),
                                 "a": (S_AWO, 1024, 0), "b": (S_BWO, 1024, 0)}[kind]
                h = lo // 4
                m = sum(0xffff << (16*(e - 4*h)) for e in range(lo, hi))
                mlo, mhi = m & 0xffffffff, m >> 32
                a(f"""
                s_and_b32 {s(T)}, {s(S_G)}, 3
                s_mul_i32 {s(T)}, {s(T)}, {rs}
                s_lshl_b32 {s(T+1)}, {s(S_J)}, 7
                s_add_u32 {s(T)}, {s(T)}, {s(T+1)}
                s_add_u32 {s(T)}, {s(T)}, {h*256*rs + col}
                """)
                self.add64(T+2, base, s(T))
                vr = 250 if rs == 3072 else 251
            a(f"s_mov_b32 exec_lo, {mlo:#x}")
            a(f"s_mov_b32 exec_hi, {mhi:#x}")
            a(f"global_load_dword v19, {v(vr)}, {s(T+2,2)}")
            a("s_mov_b64 exec, -1")
        def touch_round(specs):
            Le = a.label("t")
            for w, sp in enumerate(specs):
                Ln = a.label("t")
                if w < 3:
                    a(f"s_cmp_lg_u32 {s(WB)}, {w}")
                    a(f"s_cbranch_scc1 {Ln}")
                if sp: touch(sp)
                else: a(f"global_load_dword v19, {v(V_ZERO)}, {s(S_WQKV,2)}")
                if w < 3: a(f"s_branch {Le}")
                a(f"{Ln}:")
            a(f"{Le}:")
        M4, M5, Mc, Ms = a.label("b"), a.label("b"), a.label("b"), a.label("b")
        self.stamp(2, "hd")
        a(f"""
        s_cmp_lt_u32 {s(S_W)}, 6
        s_cbranch_scc1 {M4}
        """)
        a.c("---- waves 6, 7 stream the rest of x and wq, one k-slot at a time")
        if ta == 4: a(f"global_load_dword v19, v19, {s(S_WQ,2)}")
        Ll = a.label("ld")
        a(f"""
        s_mov_b32 {s(T+6)}, 0
        s_mov_b32 s101, {self.o.get('hb', 2)}
        s_lshl_b32 {s(T+7)}, {s(S_W3)}, 2
        {Ll}:
        s_add_u32 {s(T)}, {s(S_KC0)}, {s(T+6)}
        s_and_b32 {s(T)}, {s(T)}, 7
        s_lshl_b32 {s(T+1)}, {s(T)}, 16
        s_add_u32 {s(T+1)}, {s(T+1)}, {s(SLO)}
        """)
        self.add64(T+2, S_WQ, s(T+1))
        a(f"s_lshl_b32 {s(T)}, {s(T)}, 7")
        a(f"s_add_u32 {s(T)}, {s(T)}, {s(SL+4)}")
        self.add64(T+4, S_AX, s(T))
        for u in range(4): self.emit(self.dma(VL+u, T+2, SL+3, L_W + u*1024))
        for u in range(3):
            a(f"s_mov_b32 m0, {s(SL+u)}")
            a(f"s_add_u32 {s(SL+u)}, {s(SL+u)}, 8192")
            a(f"global_load_lds_dwordx4 {v(VL+4+u)}, {s(T+4,2)}")
        a(f"""
        s_add_u32 m0, {s(T+7)}, {L_MK}
        s_mov_b64 exec, 1
        global_load_lds_dword {v(V_ZERO)}, {s(S_PC,2)}
        s_mov_b64 exec, -1
        s_add_u32 {s(T+7)}, {s(T+7)}, 16
        s_add_u32 {s(SL+3)}, {s(SL+3)}, 8192
        s_add_u32 {s(T+6)}, {s(T+6)}, 1
        """)
        a(f"""
        s_waitcnt vmcnt(48)
        s_cmp_lt_u32 {s(T+6)}, s101
        s_cbranch_scc1 {Ll}
        s_cmp_lg_u32 s101, 8
        s_cbranch_scc1 {M5}
        """)
        self.stamp(8, "hd")
        a.c("wave 6: have the first key tiles been published? (asked behind the last load)")
        a(f"""
        s_cmp_lg_u32 {s(S_W)}, 6
        s_cbranch_scc1 {Mc}
        s_mov_b64 exec, 0xffff
        """)
        self.poll4(92, S_WS, 88, sleep=self.o.get("ps1", 0))
        self.stamp(9, "hd")
        a("s_mov_b64 exec, -1")
        a(f"s_branch {Mc}")
        a(f"{M4}:")
        self.stamp(3, "hd")
        a(f"s_cmp_lg_u32 {s(S_W)}, 4")
        a(f"s_cbranch_scc1 {M5}")
        a.c("---- wave 4: this CU's 16 x 16 piece of K or V")
        a("s_setprio 3")
        a(f"v_mov_b32 v102, {L_MK}")
        self.kv_setup()
        a(f"v_add_u32 v21, {L_MK-L_SYNC+128-16}, {v(V_ALL)}")
        self.stamp(4, "hd")
        self.kv_compute()
        self.stamp(6, "hd")
        a("ds_write_b32 v102, v102 offset:112")
        a.c("publish: only this wave writes the word, so adding the difference sets it to the tag")
        a(f"s_sub_u32 s53, {s(S_TAG)}, s53")
        a(f"s_add_u32 s53, s53, 0x2f1b4c6d")
        a("s_setprio 0")
        a("s_waitcnt vmcnt(0)")
        a(f"s_atomic_add s53, {s(S_WV,2)}, 0 glc")
        self.stamp(11)
        self.stamp(7, "hd")
        a(f"{M5}:")
        setup()
        tag()
        a(f"s_cmp_lt_u32 {s(S_W)}, 6")
        a(f"s_cbranch_scc1 {Mc}")
        a.c("the rest of the stream waits until the K/V piece is on its way out")
        self.stamp(4, "hd")
        a(f"v_mov_b32 v21, {L_MK+112}")
        self.await_(20, vaddr=21, val="1", sleep=0)
        self.stamp(5, "hd")
        a(f"s_mov_b32 s101, 8")
        a(f"s_branch {Ll}")
        a(f"{Mc}:")
        a("s_barrier")
        a(f"s_mov_b32 {s(S_EPOCH)}, 8")
        rb = self.o.get("rotB", 1)
        if rb == 0: a(f"s_mov_b32 {s(S_KC0)}, 0")
        if rb == 2:
            a(f"s_and_b32 {s(S_KC0)}, {s(S_G)}, 3")
            a(f"s_lshl_b32 {s(S_KC0)}, {s(S_KC0)}, 1")
        a(f"s_lshl_b32 {s(T)}, {s(WB)}, 11")
        self.add64(SF1, SF1, s(T))
        a(f"""
        s_lshl_b32 {s(T)}, {s(S_J)}, 12
        s_add_u32 {s(T)}, {s(T)}, {WS_F2}
        """)
        self.add64(8, S_WS, s(T))
        a(f"""
        s_lshl_b32 {s(T)}, {s(S_G)}, 1
        s_add_u32 {s(T)}, {s(T)}, {s(RB)}
        s_lshl_b32 {s(T)}, {s(T)}, 1
        s_lshr_b32 {s(T+1)}, {s(S_J)}, 2
        s_add_u32 {s(T+1)}, {s(T+1)}, {s(T)}
        s_mul_i32 {s(T+1)}, {s(T+1)}, {2*KVREC}
        s_add_u32 {s(T+1)}, {s(T+1)}, {WS_KV+C4_OFF}
        """)
        self.add64(10, S_WS, s(T+1))
        a(f"""
        s_add_u32 {s(T)}, {s(T)}, {s(HP)}
        s_mul_i32 {s(T)}, {s(T)}, {2*KVREC}
        s_add_u32 {s(T)}, {s(T)}, {WS_KV+C4_OFF}
        """)
        self.add64(12, S_WS, s(T))
        self.stamp(4)
        a("s_barrier")
        self.stamp(5)
        a("s_branch L_bodyB")
        a("L_cutB:")
        a("L_bodyB:")
        a(LOW)
        if self.o.get("noB"):
            a(f"ds_write_b32 {v(V_SLOT)}, v25 offset:48")
            a(f"s_mov_b32 {s(S_EPOCH)}, {E_CLR-1}")
            self.arrive(20)
            a("s_branch L_Bend")
        vm = []
        def vmwait(label):
            n = len(vm) - 1 - max(i for i, x in enumerate(vm) if x == label)
            a(f"s_waitcnt vmcnt({n})")
            return n
        def loads(st):
            G = []
            slot = L_W + (st % 4)*16384
            if st < 8:
                pre = [f"s_add_u32 {s(T)}, {s(S_KC0)}, {st}",
                       f"s_and_b32 {s(T)}, {s(T)}, 7",
                       f"s_lshl_b32 {s(T+1)}, {s(T)}, 7",
                       f"s_add_u32 {s(T+1)}, {s(T+1)}, {s(SXO)}",
                       f"s_add_u32 {s(T+2)}, {s(S_BX)}, {s(T+1)}",
                       f"s_addc_u32 {s(T+3)}, {s(S_BX+1)}, 0"]
                G.append(pre + self.dma(VX, T+2, SXM, L_X + st*8192))
                G.append(self.dma(VX+1, T+2, SXM, L_X + st*8192 + 1024))
                pre = [f"s_mul_i32 {s(T)}, {s(T)}, {64*3072}",
                       f"s_add_u32 {s(T)}, {s(T)}, {s(SWO)}",
                       f"s_lshl_b32 {s(T+1)}, {s(RB)}, 10",
                       f"s_add_u32 {s(T)}, {s(T)}, {s(T+1)}",
                       f"s_add_u32 {s(T)}, {s(T)}, 1024",
                       f"s_add_u32 {s(T+2)}, {s(S_WQKV)}, {s(T)}",
                       f"s_addc_u32 {s(T+3)}, {s(S_WQKV+1)}, 0"]
                for i in range(4): G.append((pre if i == 0 else []) + self.dma(VW+i, T+2, SWM, slot + i*1024))
            elif st < 12:
                pre = [f"s_add_u32 {s(T)}, {s(S_KC0)}, {s(RB)}",
                       f"s_add_u32 {s(T)}, {s(T)}, {2*(st-8)}",
                       f"s_and_b32 {s(T)}, {s(T)}, 7",
                       f"s_mul_i32 {s(T)}, {s(T)}, {64*3072}",
                       f"s_add_u32 {s(T)}, {s(T)}, {s(SWO)}",
                       f"s_add_u32 {s(T+2)}, {s(S_WQKV)}, {s(T)}",
                       f"s_addc_u32 {s(T+3)}, {s(S_WQKV+1)}, 0"]
                for i in range(4): G.append((pre if i == 0 else []) + self.dma(VW+i, T+2, SWM, slot + i*1024))
            else:
                base, L = (S_AWO, L_X) if st < 16 else (S_BWO, L_W)
                u = st % 4
                pre = [f"s_add_u32 {s(T)}, {s(S_G)}, {u}",
                       f"s_and_b32 {s(T)}, {s(T)}, 3",
                       f"s_lshl_b32 {s(T)}, {s(T)}, 2",
                       f"s_add_u32 {s(T)}, {s(T)}, {s(WB)}",
                       f"s_lshl_b32 {s(T)}, {s(T)}, 8",
                       f"s_add_u32 {s(T)}, {s(T)}, {s(S_J)}",
                       f"s_lshl_b32 {s(T)}, {s(T)}, 7",
                       f"s_add_u32 {s(T+2)}, {s(base)}, {s(T)}",
                       f"s_addc_u32 {s(T+3)}, {s(base+1)}, 0"]
                for i in range(4): G.append((pre if i == 0 else []) + self.dma(VO+i, T+2, SWM, L + u*16384 + i*1024))
            return G
        done = set()
        def put(st, g):
            thr = self.o.get("thr", 5) if st < 12 else self.o.get("wthr", 4)
            if st < 4: thr = self.o.get("thr0", 4)
            done.add(st)
            if thr: g = [x if x != "s_nop 0" else f"s_waitcnt vmcnt({thr-1})" for x in g]
            self.emit(g); vm.append(st)
        def reads(st):
            R = []; B = F[st % 2]; slot = (st % 4)*16384
            if st < 8:
                for t in range(4):
                    R.append(f"ds_read_b128 {v(B+12*t,4)}, {v(XA+t)} offset:{st*8192}")
                    for k in range(2):
                        for sx in range(2):
                            R.append(f"ds_read_b64_tr_b16 {v(B+12*t+4+4*k+2*sx,2)}, {v(WA)} offset:{slot + k*8192 + t*2048 + sx*256}")
            else:
                for t in range(8):
                    R.append(f"ds_read_b128 {v(B+8*t,4)}, {v(XA+(t&3))} offset:{(2*(st-8)+t//4)*8192}")
                    for sx in range(2):
                        R.append(f"ds_read_b64_tr_b16 {v(B+8*t+4+2*sx,2)}, {v(WA)} offset:{slot + t*2048 + sx*256}")
            return R
        def mfmas(st):
            M = []; B = F[st % 2]
            if st < 8:
                for t in range(4):
                    for k, acc in enumerate((AK, AV)):
                        c = "0" if (acc == AV and st == 0 and t == 0) else v(acc,16)
                        M.append(f"v_mfma_f32_32x32x16_bf16 {v(acc,16)}, {v(B+12*t,4)}, {v(B+12*t+4+4*k,4)}, {c}")
            else:
                for t in range(8):
                    M.append(f"v_mfma_f32_32x32x16_bf16 {v(AQ,16)}, {v(B+8*t+4,4)}, {v(B+8*t,4)}, {v(AQ,16)}")
            return M
        def arrive():
            a(HI); self.arrive(20); a(LOW)
        def iteration(i, after=None):
            M = mfmas(i)
            R = reads(i+1) if i < 11 else []
            G = [(st, g) for st in self.o.get("sched", {9: [12], 10: [13], 11: [14]}).get(i, [i+4] if i < 8 else []) for g in loads(st)]
            fi = self.o.get("fi", 8)
            Lok = a.label("ok")
            self.stamp(i+1, "it")
            a("s_waitcnt lgkmcnt(14)")
            a(M[0])
            if self.o.get("pf1", 1): a(f"ds_read_b32 v21, {v(V_ALL)}")
            if G:
                self.emit(G[0][1][:-3]); G[0] = (G[0][0], G[0][1][-3:])
            if self.o.get("pf1", 1): a("s_waitcnt lgkmcnt(0)")
            else: a(f"ds_read_b32 v21, {v(V_ALL)}")
            a(M[1])
            a(f"""
            s_waitcnt lgkmcnt(0)
            {HI}
            v_cmp_gt_u32 vcc, {s(S_EPOCH)}, v21
            s_cbranch_vccz {Lok}
            """)
            self.await_(21)
            a(f"{Lok}:")
            a(LOW)
            if i == fi + 1:
                Lf = a.label("b")
                a(f"s_cmp_lg_u32 {s(WB)}, 0")
                a(f"s_cbranch_scc1 {Lf}")
                a(f"s_lshl_b32 {s(T+6)}, {s(S_G)}, 7")
                self.add64(T+6, 8, s(T+6))
                a("s_mov_b64 exec, 1")
                a(f"global_store_dword {v(V_ZERO)}, {v(V_TAG)}, {s(T+6,2)} sc1")
                a("s_mov_b64 exec, -1")
                a(f"{Lf}:")
                self.stamp(7)
            items = []
            nG, nR = len(G), len(R)
            gi = 0
            for k, x in enumerate(R):
                items.append((1.3, x))
                while gi < nG and (gi+1)*nR <= (k+1)*nG:
                    items.append((len(G[gi][1]), G[gi])); gi += 1
            items += [(len(g[1]), g) for g in G[gi:]]
            pre = [5, 0, 0, 0, 0, 0, 6]
            tot = sum(w for w, _ in items) + sum(pre)
            for k in range(7):
                acc = pre[k]
                left = (sum(w for w, _ in items) + sum(pre[k:])) / (7 - k)
                while items and (k == 6 or acc + items[0][0]/2 <= left):
                    w, x = items.pop(0); acc += w
                    if isinstance(x, str): a(x)
                    else: put(*x)
                if k < 6 and R: a(f"s_waitcnt lgkmcnt({self.o.get('lw', 3)})")
                if k < 6: a(M[k+2])
            if i < 11:
                if i == fi:
                    vmwait("part")
                    a(f"s_mov_b32 {s(S_EPOCH)}, {E_CLR-1}")
                elif i + 2 <= 11 and i < fi: vmwait(i+2)
                arrive()
            if i in self.o.get("tr", {}):
                touch_round(self.o["tr"][i]); vm.append("t")
            if after: after()
        a.c("---- B: k,v projections")
        a("s_mov_b64 exec, 0xffff")
        a(f"global_load_dwordx4 v[88:91], {v(V_L128)}, {s(SF1,2)} sc1"); vm.append("poll")
        a("s_mov_b64 exec, -1")
        G0 = [(st, g) for st in (0, 1) for g in loads(st)]
        for st, g in G0[:2]: put(st, g)
        Lr = a.label("b")
        vmwait("poll")
        a(HI)
        a("s_mov_b64 exec, 0xffff")
        self.check4(88)
        a(f"s_cbranch_scc1 {Lr}")
        self.poll4(V_L128, SF1, 88, sleep=4)
        a(f"{Lr}:")
        a("s_mov_b64 exec, -1")
        a(f"ds_write_b32 {v(V_SLOT)}, v25 offset:48")
        a(LOW)
        for st, g in G0[2:]: put(st, g)
        vmwait(0)
        a(HI)
        self.arrive(20)
        pro = self.o.get("pro", 4)
        if pro >= 3:
            for g in loads(2): put(2, g)
        self.await_(21)
        self.stamp(6)
        self.emit(reads(0))
        vmwait(1)
        self.arrive(20)
        a(LOW)
        if pro >= 4:
            for g in loads(3): put(3, g)
        if -1 in self.o.get("tr", {}):
            touch_round(self.o["tr"][-1]); vm.append("t")
        def clr():
            a.c("mark the A-side output images of the matching wave as not yet written")
            a(f"s_sub_u32 {s(T)}, {s(S_WS)}, {WS_OB-WS_OA}")
            a(f"s_subb_u32 {s(T+1)}, {s(S_WS+1)}, 0")
            a(f"global_store_dwordx4 {v(self.V_IMG)}, v[252:255], {s(T,2)} sc1")
            a(f"global_store_dwordx4 {v(self.V_IMG)}, v[252:255], {s(T,2)} offset:1024 sc1")
            vm.append("clr"); vm.append("clr")
        for i in range(8): iteration(i, clr if i == self.o.get("ci", 7) else None)
        a.c("---- B: phi(k), partial state: rows (head, e) x columns (head, d), and the column sums z")
        a(f"""
        s_lshl_b32 {s(T)}, {s(S_J)}, 1
        s_add_u32 {s(T)}, {s(T)}, {s(HP)}
        s_lshl_b32 {s(T)}, {s(T)}, 12
        s_add_u32 {s(T)}, {s(T)}, {WS_ACC}
        """)
        self.add64(T+4, S_WS, s(T))
        a("s_nop 3")
        a(HI)
        self.phi(AK)
        for i in range(8): a(f"v_cvt_pk_bf16_f32 {v(AV+i)}, {v(AV+2*i)}, {v(AV+2*i+1)}")
        D0, D1 = F[1], F[1]+16
        LK, LJ, LK2, LJ2 = a.label("k1"), a.label("kj"), a.label("k2"), a.label("kj2")
        a(f"""
        {LOW}
        s_nop 0
        v_mfma_f32_32x32x16_bf16 {v(D0,16)}, {v(AV,4)}, {v(AK,4)}, 0
        v_mfma_f32_32x32x16_bf16 {v(D0,16)}, {v(AV+4,4)}, {v(AK+4,4)}, {v(D0,16)}
        v_mfma_f32_32x32x16_bf16 {v(D1,16)}, {v(X,4)}, {v(AK,4)}, 0
        v_mfma_f32_32x32x16_bf16 {v(D1,16)}, {v(X,4)}, {v(AK+4,4)}, {v(D1,16)}
        s_nop 4
        {HI}
        s_mov_b32 exec_lo, 0xffff
        s_mov_b32 exec_hi, 0xffff
        s_cmp_eq_u32 {s(RB)}, 0
        s_cbranch_scc0 {LK}
        ds_write_b128 {v(V_SX)}, {v(D0+4,4)}
        s_not_b64 exec, exec
        ds_write_b128 {v(V_SX)}, {v(D0+12,4)}
        s_branch {LJ}
        {LK}:
        ds_write_b128 {v(V_SX)}, {v(D0,4)}
        s_not_b64 exec, exec
        ds_write_b128 {v(V_SX)}, {v(D0+8,4)}
        {LJ}:
        s_mov_b64 exec, -1
        """)
        self.softbar(20)
        a(f"""
        ds_read_b128 {v(AK,4)}, {v(X+4)}
        s_mov_b32 exec_lo, 0xffff
        s_mov_b32 exec_hi, 0xffff
        s_cmp_eq_u32 {s(RB)}, 0
        s_waitcnt lgkmcnt(0)
        s_cbranch_scc0 {LK2}
        """)
        for rbv, lab in ((0, None), (1, LK2)):
            if lab: a(f"{lab}:")
            for h in range(2):
                for i in (0, 2): a(f"v_pk_add_f32 {v(AK+i,2)}, {v(AK+i,2)}, {v(D0+8*h+4*rbv+i,2)}")
                if h == 0: a("s_not_b64 exec, exec")
            if not lab: a(f"s_branch {LJ2}")
        a(f"{LJ2}:")
        a("s_mov_b64 exec, -1")
        for i in range(4):
            a(f"global_atomic_add_f32 {v(X+6)}, {v(AK+i)}, {s(T+4,2)} offset:{64*i} sc1"); vm.append("part")
        a("s_mov_b32 exec_hi, 0")
        a(f"global_atomic_add_f32 {v(X+5)}, {v(D1)}, {s(T+4,2)} offset:1024 sc1"); vm.append("part")
        a("s_mov_b32 exec_hi, -1")
        a(LOW)
        self.stamp(3)
        a.c("---- B: q projection")
        for i in range(8, 12): iteration(i)
        todo = [st for st in range(12, 20) if st not in done]
        def more(n=1):
            for _ in range(n):
                if todo:
                    st = todo.pop(0)
                    for g in loads(st): put(st, g)
        self.stamp(1, "hop")
        a("s_nop 8")
        more()
        a(HI); self.phi(AQ); a(LOW)
        while any(st < 16 for st in todo): more()
        more(self.o.get("pre2", 0))
        self.stamp(2, "hop")
        a.c("---- B: the summed state, the normalised output images")
        D0, D1 = AK, AV
        a(f"""
        s_lshl_b32 {s(T)}, {s(S_J)}, 1
        s_add_u32 {s(T)}, {s(T)}, {s(HP)}
        s_lshl_b32 {s(T)}, {s(T)}, 12
        s_add_u32 {s(T)}, {s(T)}, {WS_ACC}
        """)
        self.add64(T+4, S_WS, s(T))
        LR = a.label("nr")
        a(f"""
        {HI}
        s_cmp_lg_u32 {s(WB)}, 1
        s_cbranch_scc1 {LR}
        s_mov_b32 exec_hi, 0
        """)
        self.poll(V_L128, 8, [0], 21, sleep=8)
        a("s_mov_b32 exec_hi, -1")
        a(f"{LR}:")
        vmwait(15)
        self.softbar(20, sleep=2)
        self.stamp(3, "hop")
        self.stamp(8)
        for i in range(4):
            a(f"global_load_dwordx4 {v(XF+4*i,4)}, {v(V_L4)}, {s(T+4,2)} offset:{2048*(i//2)+32*(i%2)} sc1"); vm.append("state")
        self.outproj_wfrags()
        self.arrive(20)
        more()
        vmwait("state")
        self.stamp(4, "hop")
        for i in range(8): a(f"v_cvt_pk_bf16_f32 {v(XF+i)}, {v(XF+2*i)}, {v(XF+2*i+1)}")
        a(f"""
        s_nop 1
        v_mfma_f32_32x32x16_bf16 {v(D0,16)}, {v(XF,4)}, {v(AQ,4)}, 0
        v_mfma_f32_32x32x16_bf16 {v(D1,16)}, {v(XF+4,4)}, {v(AQ+4,4)}, 0
        s_nop 7
        s_nop 3
        v_add_f32 {v(D0+8)}, {f32(1e-6)}, {v(D0+8)}
        v_add_f32 {v(D1+8)}, {f32(1e-6)}, {v(D1+8)}
        """)
        self.normalize([(D0, D0+8), (D1, D1+8)], 80, guard=False)
        vm.append("ob"); vm.append("ob")
        a(LOW)
        self.stamp(5, "hop")
        more()
        vmwait("ob")
        self.count(10)
        self.stamp(6, "hop")
        self.stamp(12)
        more()
        if self.o.get("touch", 0):
            a(HI)
            a("v_lshlrev_b32 v22, 10, v0")
            a(LOW)
            a("s_mov_b32 exec_hi, 0")
            a(f"global_load_dword v22, v22, {s(S_OUTB,2)}")
            a("s_mov_b32 exec_hi, -1")
        if self.o.get("pk", 1): more(4)
        self.count_peek(12, T+8)
        more(4)
        self.stamp(7, "hop")
        self.count_wait(12, T+8, 8, sleep=self.o.get("cs", 2))
        a(HI)
        self.await_(20)
        self.stamp(8, "hop")
        a.c("---- B: the group's o_B images go to LDS for the A waves")
        a(f"""
        s_lshl_b32 {s(SWM)}, {s(RB)}, 15
        s_lshl_b32 {s(SWO)}, {s(HP)}, 14
        s_lshl_b32 {s(T)}, {s(S_G)}, 13
        s_sub_u32 {s(SWO)}, {s(SWO)}, {s(T)}
        """)
        ot = self.o.get("othr", 4)
        for p in range(4):
            a(f"""
            s_add_u32 {s(T)}, {s(S_J)}, {p}
            s_and_b32 {s(T)}, {s(T)}, 3
            s_lshl_b32 {s(T)}, {s(T)}, 12
            s_add_u32 {s(T+1)}, {s(T)}, {s(SWO)}
            s_and_b32 {s(T+1)}, {s(T+1)}, 0x7fff
            s_add_u32 m0, {s(SWM)}, {s(T+1)}
            s_add_u32 {s(T)}, {s(T)}, {WS_OB-WS_OA}
            """)
            self.add64(T+2, S_IMG, s(T))
            for k in range(4):
                a(f"s_waitcnt vmcnt({ot-1})")
                a(f"global_load_lds_dwordx4 {v(V_L16)}, {s(T+2,2)} offset:{k*1024} sc1")

        self.newpage("Bend")
        for p in range(4):
            a(f"s_add_u32 {s(T)}, {s(S_J)}, {p}")
            a(f"s_and_b32 {s(T)}, {s(T)}, 3")
            a(f"s_lshl_b32 {s(T)}, {s(T)}, 12")
            self.add64(8+2*p, S_IMG, s(T))
        a(f"s_mov_b32 {s(S_PEND)}, 15")
        a(f"s_mov_b32 {s(T+9)}, 0")
        a(f"v_add_u32 v21, -16, {v(V_ALL)}")
        a(f"s_mul_i32 {s(T)}, {s(S_G)}, {8*KVREC}")
        a(f"s_add_u32 {s(T)}, {s(T)}, {WS_KV+C4_OFF+32}")
        self.add64(T+4, S_WS, s(T))
        a(HI)
        a("s_waitcnt vmcnt(0) lgkmcnt(0)")
        self.stamp(9)
        self.stamp(9, "hop")
        a.c("tell the group when this CU is about to publish (a timing hint only)")
        Ln = a.label("b")
        a(f"s_cmp_lg_u32 {s(WB)}, 1")
        a(f"s_cbranch_scc1 {Ln}")
        self.await_(20, vaddr=21, val=str(E_CLR), sleep=self.o.get("aws", 1))
        self.count(T+4)
        a(f"{Ln}:")
        a("s_barrier")
        a.c("every wave of the grid has used this launch's tag by now: advance the generation word")
        Lg = a.label("b")
        a(f"""
        s_lshl_b32 {s(T)}, s2, 2
        s_add_u32 {s(T)}, {s(T)}, {s(WB)}
        s_cmp_lg_u32 {s(T)}, 0
        s_cbranch_scc1 {Lg}
        s_mov_b64 exec, 1
        global_store_dword {v(V_ZERO)}, {v(V_TAG)}, {s(S_WS,2)} offset:{WS_G} sc1
        s_mov_b64 exec, -1
        {Lg}:
        """)
        a.c("start fetching only when the whole group is about to publish (reads that meet the writes are slow)")
        for i in range(0, 32, 2): a(f"v_mov_b64 {v(96+i,2)}, 0")
        a(f"v_and_b32 v22, 4, v0")
        a(f"v_lshl_add_u32 v22, v22, 2, v21")
        Ln = a.label("b")
        a(f"s_cmp_lg_u32 {s(WB)}, 1")
        a(f"s_cbranch_scc1 {Ln}")
        if not self.o.get("xplain"): a("s_waitcnt lgkmcnt(0)")
        a(f"s_add_u32 {s(T+8)}, {s(T+11)}, 1")
        if not self.o.get("xplain"): self.count_wait(T+4, T+8, 8, sleep=self.o.get("anns", 0))
        a(f"{Ln}:")
        a(f"s_mov_b32 {s(S_EPOCH)}, 38")
        self.arrive(20)
        a("v_mov_b32 v19, 40")
        if self.o.get("xplain") != 2: self.await_(20, vaddr=22, sleep=0)
        a(f"s_mov_b32 {s(S_EPOCH)}, 40")
        self.stamp(4)

    def finish(self):
        a = self.a
        a("L_fin:")
        if self.o.get("spin"):
            m = self.o.get("meas")
            a(f"s_mov_b32 s72, {self.o['spin']}")
            if m:
                if 13 in m[:2]:
                    a("s_waitcnt vmcnt(0)")
                    self.stamp(13)
                a(f"""
                s_waitcnt lgkmcnt(0)
                s_sub_u32 s70, s70, s68
                s_mul_i32 s70, s70, 10
                s_min_u32 s70, s70, 30000
                s_cmp_eq_u32 {s(S_W)}, {m[2]}
                s_cselect_b32 s70, s70, 0
                s_lshr_b32 s73, s2, 3
                s_cmp_eq_u32 s73, {m[3] if m[3] >= 0 else 's73'}
                s_cselect_b32 s70, s70, 0
                s_add_u32 s72, s72, s70
                """)
            a(f"""
            L_spin:
            s_memrealtime s[66:67]
            s_waitcnt lgkmcnt(0)
            s_sub_u32 s66, s66, s64
            s_cmp_lt_u32 s66, s72
            s_cbranch_scc1 L_spin
            """)
        if self.stamps:
            a("s_waitcnt vmcnt(0)")
            self.stamp(13)
            a(f"""
            s_waitcnt lgkmcnt(0)
            s_cmp_ge_u32 {s(S_W)}, 4
            s_cselect_b32 {s(S_ST+28)}, {s(T+9)}, {s(S_ST+28)}
            s_lshl_b32 {s(T)}, s2, 3
            s_add_u32 {s(T)}, {s(T)}, {s(S_W)}
            s_lshl_b32 {s(T)}, {s(T)}, 6
            s_add_u32 {s(T)}, {s(T)}, {WS_STAMP}
            v_mov_b32 v20, {s(T)}
            """)
            for i in range(16): a(f"v_mov_b32 {v(32+i)}, {s(S_ST+2*i)}")
            for i in range(4): a(f"global_store_dwordx4 v20, {v(32+4*i,4)}, {s(S_WS,2)} offset:{16*i}")
        a("L_end:")
        a("s_endpgm")

    def build(self):
        self.entry()
        self.head_A()
        self.attn()
        self.tail_A()
        self.roleB()
        self.outproj()
        self.finish()
        self.check()
        self.retry()
        self.a("L_last:")
        self.attn_fallback("L_norm")
        L = self.a.lines
        ia, ib, ic = L.index("L_cutA:"), L.index("L_roleB:"), L.index("L_cutB:")
        self.a.lines = L[:ia] + L[ib:ic] + L[ia+1:ib] + L[ic+1:]
        return self.wrap()

    def wrap(self):
        hdr = open("cdna_kernels/%s.s.ref" % NAME).read().split("; Override launch")[0]
        return hdr + f"""; Override launch geometry by editing the next line (default: block=256,
; grid=ceil(out_elems/256), lds=0). Harness parses it; keep it on one line.
; @launch grid=(256,1,1) block=(512,1,1) lds={LDS_BYTES}
.amdgcn_target "amdgcn-amd-amdhsa--gfx950"
.text
.globl {NAME}_kernel
.p2align 8
.type {NAME}_kernel,@function
{NAME}_kernel:
""" + self.a.text() + f""".section .rodata,"a"
.p2align 6
.amdhsa_kernel {NAME}_kernel
  .amdhsa_next_free_vgpr 256
  .amdhsa_next_free_sgpr 102
  .amdhsa_accum_offset 256
  .amdhsa_group_segment_fixed_size 0
  .amdhsa_kernarg_size 88
  .amdhsa_user_sgpr_count 2
  .amdhsa_user_sgpr_kernarg_segment_ptr 1
  .amdhsa_system_sgpr_workgroup_id_x 1
  .amdhsa_dx10_clamp 0
.end_amdhsa_kernel
"""

if __name__ == "__main__":
    out = sys.argv[1]
    stamps = "--stamps" in sys.argv
    opts = {}
    for x in sys.argv[2:]:
        if "=" in x:
            k, val = x.split("=", 1); opts[k] = eval(val)
    open(out, "w").write(Gen(stamps=stamps, opts=opts).build())
```

```python
import sys, struct
from asmlib import *

NAME = "concat_heads__grouped_kv_mqa__linear_attn_block__prompt"
def f32(x): return "0x%08x" % struct.unpack("<I", struct.pack("<f", x))[0]
LOG2E = 1.4426950408889634

WS_G   = 0x0
WS_F1  = 0x8000
WS_ACC = 0x10000
WS_KV  = 0x20000
C4_OFF = 576
WS_F2  = 0x60000
WS_OA  = 0x100000
WS_OB  = 0x300000
WS_STAMP = 0x800000
KVREC = 640
KVTILE = 4*KVREC
L_X   = 0
L_W   = 0x10000
L_WKV = 0x20000
L_MISC= 0x24000
L_SYNC= L_MISC + 0x3f00
LDS_BYTES = 0x28000
SPIN_MAX = 200000

S_AX, S_WQ, S_WK, S_WV, S_AWO, S_BX, S_WQKV, S_BWO = 8, 10, 12, 14, 16, 18, 20, 22
S_OUT, S_WS = 24, 26
S_W, S_G, S_J, S_C, S_TAG, S_XCD, S_KC0, S_EPOCH = 28, 29, 30, 31, 32, 33, 34, 35
T = 36
S_HI, S_LO, S_W3 = 50, 51, 52
S_IMG = 54
S_OUTB = 56
S_EX = 58
S_PEND = 59
S_PC = 0
E_CLR = 30
L_MK = L_SYNC + 80
U = 4
S_ST = 64
V_L16, V_SLOT, V_ALL, V_TAG, V_ZERO = 4, 5, 6, 7, 1

class Gen:
    def __init__(self, stamps=False, opts=None):
        self.a = Asm()
        self.stamps = stamps
        self.o = opts or {}
        self.inB = False
    def stamp(self, i, grp=None):
        if self.o.get("jit") and i != 0:
            L1, L2 = self.a.label("j"), self.a.label("j")
            self.a(f"""
            s_cselect_b32 s76, 1, 0
            s_mul_i32 s74, s74, 1664525
            s_add_u32 s74, s74, 1013904223
            s_lshr_b32 s75, s74, 24
            s_cmp_ge_u32 s75, {self.o['jit']}
            s_cbranch_scc1 {L2}
            {L1}:
            s_sleep 4
            s_sub_u32 s75, s75, 1
            s_cbranch_scc0 {L1}
            {L2}:
            s_cmp_lg_u32 s76, 0
            """)
        m = self.o.get("meas")
        if m and grp is None and i in m[:2]: self.a(f"s_memrealtime s[{68+2*m.index(i)}:{69+2*m.index(i)}]")
        if grp != self.o.get("stg") and (grp or (self.inB and self.o.get("stg") and i not in (0, 13))): return
        if self.stamps:
            self.a(f"s_memrealtime {s(S_ST+2*i,2)}")
            cyc = self.o.get("cyc", (6, 7))
            if i in cyc:
                self.a(f"s_memtime {s(S_ST+2*(14+list(cyc).index(i)),2)}")
    def add64(self, dst, base, off):
        self.a(f"s_add_u32 {s(dst)}, {s(base)}, {off}")
        self.a(f"s_addc_u32 {s(dst+1)}, {s(base+1)}, 0")
    def dma(self, vreg, pair, m0s, m0i, off=0):
        return [f"s_add_u32 m0, {s(m0s)}, {m0i}", "s_nop 0",
                f"global_load_lds_dwordx4 {v(vreg)}, {s(pair,2)}" + (f" offset:{off}" if off else "")]
    def marker(self, idx):
        self.a(f"""
        s_lshl_b32 {s(T)}, {s(S_W3)}, 2
        s_add_u32 m0, {s(T)}, {L_MK + 4*idx}
        s_mov_b64 exec, 1
        global_load_lds_dword {v(V_ZERO)}, {s(S_PC,2)}
        s_mov_b64 exec, -1
        """)
    def newpage(self, name, back=None):
        a = self.a
        a(f"s_branch L_{name}")
        a(".p2align 12")
        if back:
            a(f"L_{name}_stub:")
            a(f"s_branch {back}")
            a("s_nop 0")
        a(f"L_{name}:")
    def emit(self, L):
        for x in L: self.a(x)
    def poll(self, vaddr, pair, offs, vt, sleep=2):
        a = self.a
        Lp, Ld = a.label("poll"), a.label("polld")
        a(f"s_mov_b32 {s(T+10)}, 0")
        a(f"{Lp}:")
        for i, o in enumerate(offs):
            a(f"global_load_dword {v(vt+i)}, {v(vaddr)}, {s(pair,2)} offset:{o} sc1")
        a("s_waitcnt vmcnt(0)")
        for i in range(len(offs)):
            if i == 0:
                a(f"v_cmp_ne_u32 vcc, {s(S_TAG)}, {v(vt)}")
            else:
                a(f"v_cmp_ne_u32 {s(T+12,2)}, {s(S_TAG)}, {v(vt+i)}")
                a(f"s_or_b64 vcc, vcc, {s(T+12,2)}")
        a(f"s_add_u32 {s(T+10)}, {s(T+10)}, 1")
        a(f"s_cmp_eq_u64 vcc, 0")
        a(f"s_cbranch_scc1 {Ld}")
        if sleep: a(f"s_sleep {sleep}")
        a(f"s_cmp_lt_u32 {s(T+10)}, {SPIN_MAX}")
        a(f"s_cbranch_scc1 {Lp}")
        a(f"{Ld}:")
    def check4(self, vt):
        a = self.a
        a(f"v_cmp_ne_u32 vcc, {s(S_TAG)}, {v(vt)}")
        for i in range(1, 4):
            a(f"v_cmp_ne_u32 {s(T+12,2)}, {s(S_TAG)}, {v(vt+i)}")
            a(f"s_or_b64 vcc, vcc, {s(T+12,2)}")
        a(f"s_cmp_eq_u64 vcc, 0")
    def poll4(self, vaddr, pair, vt, sleep):
        a = self.a
        Lp, Ld = a.label("poll"), a.label("polld")
        a(f"s_mov_b32 {s(T+10)}, 0")
        a(f"{Lp}:")
        a(f"global_load_dwordx4 {v(vt,4)}, {v(vaddr)}, {s(pair,2)} sc1")
        a(f"s_add_u32 {s(T+10)}, {s(T+10)}, 1")
        a("s_waitcnt vmcnt(0)")
        self.check4(vt)
        a(f"s_cbranch_scc1 {Ld}")
        if sleep: a(f"s_sleep {sleep}")
        a(f"s_cmp_lt_u32 {s(T+10)}, {SPIN_MAX}")
        a(f"s_cbranch_scc1 {Lp}")
        a(f"{Ld}:")
    def count(self, pair):
        a = self.a
        a(f"s_mov_b32 {s(T+11)}, 1")
        a(f"s_atomic_add {s(T+11)}, {s(pair,2)}, 0 glc")
    def count_peek(self, pair, sd):
        self.a(f"s_load_dword {s(sd)}, {s(pair,2)}, 0 glc")
    def count_wait(self, pair, sd, n, sleep=8):
        a = self.a
        Lp, Ld = a.label("cw"), a.label("cwd")
        a(f"""
        s_mov_b32 {s(T+10)}, 0
        {Lp}:
        s_waitcnt lgkmcnt(0)
        s_cmp_ge_u32 {s(sd)}, {n}
        s_cbranch_scc1 {Ld}
        {f"s_sleep {sleep}" if sleep else ""}
        s_load_dword {s(sd)}, {s(pair,2)}, 0 glc
        s_add_u32 {s(T+10)}, {s(T+10)}, 1
        s_cmp_lt_u32 {s(T+10)}, {SPIN_MAX}
        s_cbranch_scc1 {Lp}
        s_waitcnt lgkmcnt(0)
        {Ld}:
        """)
    def flag(self, base, sidx, vm=0, shift=7):
        a = self.a
        a(f"s_lshl_b32 {s(T+10)}, {s(sidx)}, {shift}")
        a(f"s_add_u32 {s(T+10)}, {s(T+10)}, {base}")
        self.add64(T+12, S_WS, s(T+10))
        if vm is not None: a(f"s_waitcnt vmcnt({vm})")
        a("s_mov_b64 exec, 1")
        a(f"global_store_dword {v(V_ZERO)}, {v(V_TAG)}, {s(T+12,2)} sc1")
        a("s_mov_b64 exec, -1")
    def arrive(self, vt):
        a = self.a
        a(f"s_add_u32 {s(S_EPOCH)}, {s(S_EPOCH)}, 1")
        a(f"v_mov_b32 {v(vt)}, {s(S_EPOCH)}")
        a(f"ds_write_b32 {v(V_SLOT)}, {v(vt)}")
    def await_(self, vt, vaddr=V_ALL, val=None, off=0, sleep=1):
        a = self.a
        Lp, Ld = a.label("sb"), a.label("sbd")
        a(f"s_mov_b32 {s(T+10)}, 0")
        a(f"{Lp}:")
        a(f"ds_read_b32 {v(vt)}, {v(vaddr)} offset:{off}")
        a("s_waitcnt lgkmcnt(0)")
        a(f"v_cmp_gt_u32 vcc, {val or s(S_EPOCH)}, {v(vt)}")
        a(f"s_add_u32 {s(T+10)}, {s(T+10)}, 1")
        a(f"s_cmp_eq_u64 vcc, 0")
        a(f"s_cbranch_scc1 {Ld}")
        if sleep: a(f"s_sleep {sleep}")
        a(f"s_cmp_lt_u32 {s(T+10)}, {SPIN_MAX*8}")
        a(f"s_cbranch_scc1 {Lp}")
        a(f"{Ld}:")
    def softbar(self, vt, sleep=1):
        self.arrive(vt); self.await_(vt, sleep=sleep)

    def entry(self):
        a = self.a
        a(f"""
        s_cmpk_ge_u32 s2, 256
        s_cbranch_scc1 L_end
        """)
        self.stamp(0)
        if self.o.get("spin"): a("s_memrealtime s[64:65]")
        Lp = a.label("p")
        a.c("wave 0: pull the code and this CU's share of x into the die's L2 right away")
        a(f"""
        s_load_dwordx16 s[8:23], s[0:1], 0
        s_load_dwordx2 {s(S_WS,2)}, s[0:1], 80
        s_getpc_b64 {s(U,2)}
        L_pc:
        s_lshr_b32 {s(S_C)}, s2, 3
        v_lshl_add_u32 v23, v0, 5, {s(S_C)}
        v_lshlrev_b32 v23, 7, v23
        s_and_b32 {s(S_XCD)}, s2, 7
        s_lshl_b32 {s(S_G)}, {s(S_XCD)}, 5
        s_add_u32 {s(S_C)}, {s(S_C)}, {s(S_G)}
        v_cmp_gt_u32 vcc, L_last-L_pc, v23
        s_and_b64 exec, exec, vcc
        s_cbranch_execz {Lp}
        {f"global_load_dword v18, v23, {s(U,2)}" if self.o.get("cpf", 1) else ""}
        s_mov_b64 exec, -1
        """)
        if self.o.get("xt", 0):
            a(f"""
            s_lshl_b32 {s(S_G)}, {s(S_C)}, 13
            v_lshl_add_u32 v19, v0, 7, {s(S_G)}
            s_waitcnt lgkmcnt(0)
            global_load_dword v19, v19, {s(S_AX,2)}
            """)
            if self.o.get("kt", 1):
                a(f"""
                s_mov_b64 exec, 15
                global_load_dword v17, v23, {s(S_WK,2)}
                global_load_dword v23, v23, {s(S_WV,2)}
                """)
        a(f"""
        {Lp}:
        s_mov_b64 exec, -1
        s_load_dwordx2 {s(S_OUT,2)}, s[0:1], 64
        v_lshrrev_b32 v1, 6, v0
        v_and_b32 v0, 63, v0
        v_readfirstlane_b32 {s(S_W)}, v1
        s_lshr_b32 {s(T)}, s2, 6
        s_lshr_b32 {s(S_G)}, {s(S_C)}, 3
        s_and_b32 {s(S_J)}, {s(S_C)}, 7
        s_lshl_b32 {s(T)}, {s(T)}, 1
        s_add_u32 {s(S_KC0)}, {s(T)}, {s(S_J)}
        s_and_b32 {s(S_KC0)}, {s(S_KC0)}, {7 if self.o.get('rot', 1) else 0}
        s_mov_b32 {s(S_EPOCH)}, 0
        {"s_memtime s[74:75]" if self.o.get("jit") else ""}
        {"s_waitcnt lgkmcnt(0)" if self.o.get("jit") else ""}
        s_and_b32 {s(S_W3)}, {s(S_W)}, 3
        s_lshr_b32 {s(S_HI)}, {s(S_W3)}, 1
        s_and_b32 {s(S_LO)}, {s(S_W)}, 1
        v_mov_b32 {v(V_ZERO)}, 0
        v_lshlrev_b32 {v(V_L16)}, 4, v0
        s_cmp_ge_u32 {s(S_W)}, 4
        s_cselect_b32 {s(T)}, 11, 3
        s_cselect_b32 {s(T+1)}, 1, 13
        s_lshl_b32 {s(T+2)}, {s(S_W3)}, 2
        s_add_u32 {s(T+2)}, {s(T+2)}, {L_SYNC}
        v_min_u32 v9, {s(T)}, v0
        v_add_u32 v9, {s(T+1)}, v9
        v_and_b32 v9, 15, v9
        v_lshl_add_u32 v9, v9, 4, {s(T+2)}
        ds_write_b32 v9, {v(V_ZERO)}
        """)
        a(f"""
        v_lshrrev_b32 v8, 3, v0
        v_lshlrev_b32 v2, 10, v8
        v_and_b32 v9, 7, v0
        v_lshrrev_b32 v10, 4, v0
        v_xor_b32 v9, v9, v10
        v_lshl_add_u32 v2, v9, 4, v2
        s_lshl_b32 {s(T)}, {s(S_W)}, 2
        s_add_u32 {s(T)}, {s(T)}, {L_SYNC}
        v_mov_b32 {v(V_SLOT)}, {s(T)}
        s_and_b32 {s(T)}, {s(T)}, -16
        v_and_b32 v9, 3, v0
        v_lshl_add_u32 {v(V_ALL)}, v9, 2, {s(T)}
        v_bfe_u32 v8, v0, 2, 3
        v_lshlrev_b32 v9, 4, v9
        v_lshrrev_b32 v10, 5, v0
        v_lshl_add_u32 v9, v10, 6, v9
        v_lshl_add_u32 v3, v8, 10, v9
        s_cmp_ge_u32 {s(S_W)}, 4
        s_cbranch_scc1 L_roleB
        """)

    def xfrag_addr(self, dst, sblk, vt):
        self.a(f"""
        v_and_b32 {v(vt)}, 31, v0
        v_lshlrev_b32 {v(vt+1)}, 7, {v(vt)}
        s_lshl_b32 {s(T)}, {s(sblk)}, 12
        v_add_u32 {v(vt+1)}, {s(T)}, {v(vt+1)}
        v_bfe_u32 {v(vt)}, v0, 1, 3
        v_lshrrev_b32 {v(vt+2)}, 5, v0
        v_xor_b32 {v(vt)}, {v(vt)}, {v(vt+2)}
        v_lshl_add_u32 {v(dst)}, {v(vt)}, 4, {v(vt+1)}
        v_xor_b32 {v(dst+1)}, 32, {v(dst)}
        v_xor_b32 {v(dst+2)}, 64, {v(dst)}
        v_xor_b32 {v(dst+3)}, 0x60, {v(dst)}
        """)
    def wfrag_addr(self, dst, vt):
        self.a(f"""
        v_bfe_u32 {v(vt)}, v0, 2, 2
        v_lshlrev_b32 {v(vt)}, 6, {v(vt)}
        v_bfe_u32 {v(vt+1)}, v0, 4, 1
        v_lshl_add_u32 {v(vt)}, {v(vt+1)}, 5, {v(vt)}
        v_and_b32 {v(vt+1)}, 3, v0
        v_lshl_add_u32 {v(vt)}, {v(vt+1)}, 3, {v(vt)}
        v_lshrrev_b32 {v(vt+1)}, 5, v0
        v_lshl_add_u32 {v(vt)}, {v(vt+1)}, 10, {v(vt)}
        s_lshl_b32 {s(T)}, {s(S_LO)}, 9
        s_add_u32 {s(T)}, {s(T)}, {L_W}
        v_add_u32 {v(dst)}, {s(T)}, {v(vt)}
        """)
    V_WO, V_EXW, V_EXR, V_OUT, V_IMG = 8, 9, 3, 2, 13
    def tail_addr(self, lbase, loshift, ownimg, colbytes, vt):
        a = self.a
        a(f"""
        v_bfe_u32 {v(vt)}, v0, 2, 2
        v_lshlrev_b32 {v(vt)}, 6, {v(vt)}
        v_lshrrev_b32 {v(vt+1)}, 5, v0
        v_lshl_add_u32 {v(vt)}, {v(vt+1)}, 8, {v(vt)}
        v_and_b32 {v(vt+2)}, 1, v0
        v_lshl_add_u32 {v(vt)}, {v(vt+2)}, 5, {v(vt)}
        v_bfe_u32 {v(vt+2)}, v0, 1, 1
        v_lshl_add_u32 {v(vt)}, {v(vt+2)}, 3, {v(vt)}
        v_bfe_u32 {v(vt+2)}, v0, 4, 1
        v_lshl_add_u32 {v(vt)}, {v(vt+2)}, 4, {v(vt)}
        s_mul_i32 {s(T)}, {s(S_LO)}, {loshift}
        s_add_u32 {s(T)}, {s(T)}, {lbase}
        v_add_u32 {v(self.V_WO)}, {s(T)}, {v(vt)}
        s_lshl_b32 {s(T)}, {s(S_W3)}, 12
        s_add_u32 {s(T)}, {s(T)}, {L_WKV}
        v_add_u32 {v(self.V_EXW)}, {s(T)}, {v(V_L16)}
        v_xor_b32 {v(self.V_EXR)}, 4096, {v(self.V_EXW)}
        v_lshrrev_b32 {v(vt)}, 3, v0
        v_lshlrev_b32 {v(vt)}, 11, {v(vt)}
        v_and_b32 {v(vt+1)}, 7, v0
        v_lshl_add_u32 {v(self.V_OUT)}, {v(vt+1)}, 4, {v(vt)}
        s_lshl_b32 {s(T)}, {s(S_G)}, 1
        s_add_u32 {s(T)}, {s(T)}, {s(S_HI)}
        s_lshl_b32 {s(T+1)}, {s(T)}, 16
        s_lshl_b32 {s(T+2)}, {s(S_J)}, 1
        s_add_u32 {s(T+2)}, {s(T+2)}, {s(S_LO)}
        s_lshl_b32 {s(T+3)}, {s(S_J)}, 7
        s_add_u32 {s(T+1)}, {s(T+1)}, {s(T+3)}
        s_lshl_b32 {s(T+3)}, {s(S_LO)}, 15
        s_add_u32 {s(T+1)}, {s(T+1)}, {s(T+3)}
        s_add_u32 {s(T+1)}, {s(T+1)}, {colbytes}
        """)
        self.add64(S_OUTB, S_OUT, s(T+1))
        a(f"""
        s_lshl_b32 {s(T)}, {s(T)}, 15
        s_lshl_b32 {s(T+2)}, {s(T+2)}, 11
        s_add_u32 {s(T+2)}, {s(T+2)}, {s(T)}
        s_add_u32 {s(T+2)}, {s(T+2)}, {ownimg}
        v_add_u32 {v(self.V_IMG)}, {s(T+2)}, {v(V_L16)}
        s_lshl_b32 {s(T+1)}, {s(S_LO)}, 14
        s_add_u32 {s(T)}, {s(T)}, {s(T+1)}
        s_add_u32 {s(T)}, {s(T)}, {WS_OA}
        """)
        self.add64(S_IMG, S_WS, s(T))

    RQ, RO, RS, RKV = 16, 64, 128, 192
    RIDX, RKA, RVA = 10, 11, 12
    def head_A(self):
        a = self.a
        RQ, RO, RS, RKV, RIDX, RKA, RVA = self.RQ, self.RO, self.RS, self.RKV, self.RIDX, self.RKA, self.RVA
        XA, WA = 248, 252
        a.c("=========================== role A ===========================")
        a.c("---- what the K/V producer needs goes first")
        a(f"""
        v_xor_b32 v10, 64, v2
        v_add_u32 v10, 8192, v10
        s_and_b32 {s(T+1)}, {s(S_J)}, 6
        s_lshl_b32 {s(T+6)}, {s(S_G)}, 16
        s_lshl_b32 {s(T+2)}, {s(T+1)}, 13
        s_add_u32 {s(T+6)}, {s(T+6)}, {s(T+2)}
        s_lshl_b32 {s(T+7)}, {s(S_W)}, 14
        s_lshl_b32 {s(T+2)}, {s(T+1)}, 10
        s_add_u32 {s(T+7)}, {s(T+7)}, {s(T+2)}
        s_lshl_b32 {s(T+8)}, {s(S_W)}, 12
        s_lshl_b32 {s(T+9)}, {s(S_W)}, 1
        s_add_u32 {s(T+9)}, {s(T+9)}, {s(S_KC0)}
        s_mov_b32 {s(S_EPOCH)}, 7
        s_waitcnt lgkmcnt(0)
        """)
        self.stamp(1)
        a(f"""
        s_bitcmp1_b32 {s(S_J)}, 0
        s_cselect_b32 {s(S_WK)}, {s(S_WV)}, {s(S_WK)}
        s_cselect_b32 {s(S_WK+1)}, {s(S_WV+1)}, {s(S_WK+1)}
        """)
        for i in range(2):
            a(f"""
            s_add_u32 {s(T)}, {s(T+9)}, {i}
            s_and_b32 {s(T)}, {s(T)}, 7
            s_lshl_b32 {s(T+1)}, {s(T)}, 7
            s_add_u32 {s(T+1)}, {s(T+1)}, {s(T+6)}
            """)
            self.add64(T+2, S_AX, s(T+1))
            a(f"s_lshl_b32 {s(T)}, {s(T)}, 11")
            self.add64(T+4, S_WK, s(T))
            self.emit(self.dma(2, T+2, T+7, L_X + i*8192))
            self.emit(self.dma(10, T+2, T+7, L_X + i*8192 + 1024))
            self.emit(self.dma(V_L16, T+4, T+8, L_WKV + i*2048))
            a(f"global_load_lds_dwordx4 {v(V_L16)}, {s(T+4,2)} offset:1024")
            if i == 0: a(f"s_getpc_b64 {s(S_PC,2)}")
            self.marker(36 - 4*i)
        a("s_barrier")
        a("s_branch L_bodyA")
        a("L_cutA:")
        a("L_bodyA:")
        XF, WF = RS, RS+32
        def rd(t):
            i = t % 8
            a(f"ds_read_b128 {v(XF+4*i,4)}, {v(XA+(t&3))} offset:{(t//4)*8192}")
            a(f"ds_read_b64_tr_b16 {v(WF+4*i,2)}, {v(WA)} offset:{t*2048}")
            a(f"ds_read_b64_tr_b16 {v(WF+4*i+2,2)}, {v(WA)} offset:{t*2048+256}")
        def mm(t):
            i = t % 8
            a(f"v_mfma_f32_32x32x16_bf16 v[32:47], {v(WF+4*i,4)}, {v(XF+4*i,4)}, {'0' if t == 0 else 'v[32:47]'}")
        def qproj():
            chk = self.o.get("chk", {0: 0, 4: 1, 8: 3, 16: 5, 24: 6, 28: 7})
            self.await_(20, vaddr=52, val="1", off=128, sleep=1)
            self.await_(20, vaddr=53, val="1", off=16*chk[0], sleep=0)
            self.stamp(2)
            for t in range(4): rd(t)
            for tb in range(4, 32, 4):
                if tb not in chk:
                    for t in range(tb-4, tb):
                        rd(t+4)
                        a("s_waitcnt lgkmcnt(12)")
                        mm(t)
                    continue
                Lok, Lj = a.label("a"), a.label("a")
                ad = 54 if chk[tb] == 7 else 53
                a(f"ds_read_b32 v20, {v(ad)} offset:{16*chk[tb]}")
                a("s_waitcnt lgkmcnt(10)")
                mm(tb-4)
                a("s_waitcnt lgkmcnt(7)")
                mm(tb-3)
                a(f"""
                s_waitcnt lgkmcnt(0)
                v_cmp_gt_u32 vcc, 1, v20
                s_cmp_eq_u64 vcc, 0
                s_cbranch_scc1 {Lok}
                """)
                mm(tb-2); mm(tb-1)
                self.await_(20, vaddr=ad, val="1", off=16*chk[tb], sleep=0)
                for t in range(tb, tb+4): rd(t)
                a(f"s_branch {Lj}")
                a(f"{Lok}:")
                rd(tb); rd(tb+1)
                mm(tb-2)
                rd(tb+2); rd(tb+3)
                mm(tb-1)
                a(f"{Lj}:")
                if tb == 28: self.stamp(3)
            a.c("the first key tiles are published: their fetch overlaps the end of the projection")
            a("s_barrier")
            self.stamp(5)
            for t in range(28, 32):
                if t == 28:
                    for k in range(3): a(self.kv_ld(0, k, 8))
                a(f"s_waitcnt lgkmcnt({3*(31-t)})")
                mm(t)
        self.xfrag_addr(XA, S_HI, 20)
        self.wfrag_addr(WA, 20)
        for i in range(0, 64, 2): a(f"v_mov_b64 {v(RO+i,2)}, 0")
        for i in range(0, 4, 2): a(f"v_mov_b64 {v(RKV+36+8+i,2)}, 0")
        a(f"""
        v_and_b32 v20, 15, v0
        v_lshlrev_b32 v20, 4, v20
        v_lshrrev_b32 v21, 5, v0
        v_lshl_add_u32 v20, v21, 8, v20
        v_bfe_u32 v21, v0, 4, 1
        v_mul_u32_u24 v22, {2*KVREC}, v21
        v_add_u32 {v(RKA)}, v20, v22
        v_cmp_eq_u32 vcc, 0, v21
        v_and_b32 v22, 11, v0
        v_min_u32 v22, 1, v22
        v_lshlrev_b32 v22, 4, v22
        v_add_u32 v22, 512, v22
        v_mov_b32 {v(RIDX)}, 0xdddd
        v_cndmask_b32 {v(RVA)}, v22, v20, vcc
        s_lshl_b32 {s(T)}, {s(S_W)}, 9
        s_add_u32 {s(T)}, {s(T)}, {L_MISC}
        v_lshl_add_u32 v48, v0, 2, {s(T)}
        v_xor_b32 v49, 512, v48
        v_and_b32 v60, 1, v0
        v_mul_u32_u24 v60, 12, v60
        v_add_u32 v60, 4, v60
        v_xor_b32 v60, v60, {v(V_SLOT)}
        v_mov_b32 v61, {E_CLR}
        v_and_b32 v51, 4, v0
        v_add_u32 v52, {L_MK-L_SYNC}, {v(V_ALL)}
        v_or_b32 v53, 8, v52
        v_and_b32 v54, 3, v0
        v_cmp_eq_u32 vcc, 0, v54
        s_nop 1
        v_cndmask_b32 v54, v53, v52, vcc
        v_lshl_add_u32 v51, v51, 4, {v(V_ALL)}
        s_lshl_b32 {s(T)}, {s(S_HI)}, 15
        v_add_u32 v14, {s(T)}, {v(V_L16)}
        """)
        self.tail_addr(L_W, 512, WS_OA, 1024, 20)
        a(f"""
        s_lshl_b32 {s(T)}, {s(S_HI)}, 12
        s_add_u32 {s(T)}, {s(T)}, {L_MISC+0x1000}
        v_lshrrev_b32 v20, 5, v0
        v_lshlrev_b32 v20, 1, v20
        s_lshl_b32 {s(T+1)}, {s(S_LO)}, 2
        v_add_u32 v20, {s(T+1)}, v20
        v_and_b32 v21, 7, v0
        v_xor_b32 v20, v20, v21
        v_and_b32 v22, 31, v0
        v_lshl_add_u32 v22, v22, 7, {s(T)}
        v_lshl_add_u32 v57, v20, 4, v22
        v_xor_b32 v58, 16, v57
        v_lshrrev_b32 v20, 3, v0
        v_xor_b32 v21, v21, v20
        s_lshl_b32 {s(T+1)}, {s(S_LO)}, 11
        s_add_u32 {s(T)}, {s(T)}, {s(T+1)}
        v_lshl_add_u32 v20, v20, 7, {s(T)}
        v_lshl_add_u32 v59, v21, 4, v20
        """)
        a(f"""
        s_add_u32 {s(U+2)}, {s(S_XCD)}, 1
        s_and_b32 {s(U+2)}, {s(U+2)}, 7
        s_lshl_b32 {s(U+2)}, {s(U+2)}, 3
        s_add_u32 {s(U+2)}, {s(U+2)}, {s(S_LO)}
        s_mul_i32 {s(U+2)}, {s(U+2)}, {KVTILE}
        s_add_u32 {s(U+2)}, {s(U+2)}, {WS_KV}
        """)
        for u in range(3):
            self.add64(8+2*u, S_WS, s(U+2))
            a(f"s_add_u32 {s(U+2)}, {s(U+2)}, {2*KVTILE}")
        if self.o.get("warm", 1): a("s_branch L_attn0_stub")
        a("L_warmed:")
        qproj()
        for i in range(0, 8, 2): a(f"v_mov_b64 {v(RS+48+8+i,2)}, 0")
        for k in range(3): a(self.kv_ld(1, k, 10))
        a("s_nop 4")
        for i in range(8):
            a(f"v_cvt_pk_bf16_f32 {v(RQ+8+i)}, {v(32+2*i)}, {v(33+2*i)}")
        a(f"ds_write_b128 {v(self.V_EXW)}, {v(RQ+8,4)}")
        a(f"ds_write_b128 {v(self.V_EXW)}, {v(RQ+12,4)} offset:1024")
        a("s_waitcnt lgkmcnt(0)")
        self.stamp(4)
        a("s_barrier")

    def kv_ops(self):
        SB, SOFF = T, U+2
        return [f"s_add_u32 {s(SB)}, {s(S_WS)}, {s(SOFF)}",
                f"s_addc_u32 {s(SB+1)}, {s(S_WS+1)}, 0",
                f"s_add_u32 {s(SOFF)}, {s(SOFF)}, {2*KVTILE}",
                f"s_cmp_ge_u32 {s(SOFF)}, {WS_KV+64*KVTILE}",
                f"s_cselect_b32 {s(T+2)}, {64*KVTILE}, 0",
                f"s_sub_u32 {s(SOFF)}, {s(SOFF)}, {s(T+2)}"]
    def kv_ld(self, u, k, SB=T):
        if k == 0: return f"global_load_dwordx4 {v(self.RKV+12*u,4)}, {v(self.RKA)}, {s(SB,2)} {self.o.get('kvp','sc1')}"
        return f"global_load_dwordx4 {v(self.RKV+12*u+4*k,4)}, {v(self.RVA)}, {s(SB,2)} offset:{KVREC+(k-1)*2*KVREC} {self.o.get('kvp','sc1')}"
    def attn(self):
        a = self.a
        RQ, RO, RS, RKV, RIDX, RKA, RVA = self.RQ, self.RO, self.RS, self.RKV, self.RIDX, self.RKA, self.RVA
        SB, SOFF, SCNT, SPASS = T, U+2, U+3, U
        def K(u): return v(RKV+12*u, 4)
        def V(u, h): return v(RKV+12*u+4+4*h, 4)
        addr_ops, ld = self.kv_ops, self.kv_ld
        a.c("---- attention")
        a(f"s_setprio {self.o.get('aprio', 1)}")
        a(f"ds_read_b128 {v(RQ,4)}, {v(self.V_EXR)}")
        a(f"ds_read_b128 {v(RQ+4,4)}, {v(self.V_EXR)} offset:1024")
        for k in range(3): a(self.kv_ld(2, k, 12))
        self.arrive(50)
        a(f"s_mov_b32 {s(SCNT)}, 6")
        if self.o.get("aprof"): a("s_mov_b32 m0, 0")
        al = 1
        self.newpage("attn0", "L_opB_stub")
        a(f"s_waitcnt vmcnt(6) lgkmcnt(0)")
        self.stamp(6)
        a(f"v_mfma_f32_32x32x16_bf16 {v(RS,16)}, {K(0)}, {v(RQ,4)}, 0")
        a("s_nop 3")
        L = a.label("attn")
        p2, p1 = self.o.get("pos", (3, 10))
        EXW = v(self.V_EXW)
        def body(last):
            for i in range(p1, 16): a(f"v_exp_f32 {v(RS+48+i)}, {v(RS+48+i)}")
            for u in range(4):
                for b in range(4):
                    if self.o.get("aprof") and b == 0:
                        a(f"""
                        s_memtime s[60:61]
                        s_waitcnt lgkmcnt(0)
                        v_writelane_b32 v55, s60, m0
                        s_add_u32 m0, m0, 1
                        """)
                    fill = [[], [], []]
                    if not last or u == 0:
                        if b == 0:
                            ops = addr_ops()
                            fill[0] = ops[0:1]; fill[1] = ops[1:3]; fill[2] = ops[3:5]
                        if b == 1:
                            fill[0] = addr_ops()[5:6]; fill[1] = [ld((u+3) % 4, 0)]; fill[2] = [ld((u+3) % 4, 1)]
                        if b == 2:
                            fill[1] = [ld((u+3) % 4, 2)]; fill[2] = ["s_waitcnt vmcnt(6)"]
                    elif b == 2 and u < 3:
                        fill[2] = [f"s_waitcnt vmcnt({6-3*u})"]
                    if not last and b == 3:
                        if u == 2: fill[1] = ["ds_read_b32 v50, v51"]
                        if u == 3:
                            fill[0] = ["s_waitcnt lgkmcnt(0)", f"v_cmp_gt_u32 vcc, {s(S_EPOCH)}, v50"]
                            fill[1] = ["s_cbranch_vccnz L_check", "L_checked:", f"s_sub_u32 {s(SCNT)}, {s(SCNT)}, 1"]
                            fill[2] = [f"s_cbranch_scc0 {L}"]
                    if last and u == 3 and b >= 2:
                        k = b - 2
                        fill[0] = [f"ds_write_b128 {EXW}, {v(RO+16*k,4)} offset:{2048*k}"]
                        fill[1] = [f"ds_write_b128 {EXW}, {v(RO+16*k+4,4)} offset:{2048*k+1024}",
                                   f"ds_write_b32 v48, {v(RO+16*k+8)} offset:{256*k}"]
                        if k: fill[1].append(f"ds_write_b32 {v(V_SLOT)}, v61")
                    nu, nb = (u, b+1) if b < 3 else ((u+1) % 4, 0)
                    pu, pb = (u, b-1) if b > 0 else ((u-1) % 4, 3)
                    S = RS + 16*b
                    if not (last and u == 3 and b == 3):
                        a(f"v_mfma_f32_32x32x16_bf16 {v(RS+16*nb,16)}, {K(nu)}, {v(RQ+4*nb,4)}, 0")
                    for x in fill[0]: a(x)
                    for i in range(0, p2): a(f"v_exp_f32 {v(S+i)}, {v(S+i)}")
                    a(f"v_smfmac_f32_32x32x32_bf16 {v(RO+16*pb,16)}, {V(pu,1)}, {v(RS+16*pb+8,8)}, {v(RIDX)}")
                    for x in fill[1]: a(x)
                    for i in range(p2, p1): a(f"v_exp_f32 {v(S+i)}, {v(S+i)}")
                    a(f"v_smfmac_f32_32x32x32_bf16 {v(RO+16*b,16)}, {V(u,0)}, {v(S,8)}, {v(RIDX)}")
                    for x in fill[2]: a(x)
                    if last or (u, b) != (3, 3):
                        for i in range(p1, 16): a(f"v_exp_f32 {v(S+i)}, {v(S+i)}")
        if not al: a(".p2align 6")
        a(f"{L}:")
        body(False)
        body(True)
        def check():
            a("L_check:")
            self.await_(50, vaddr=51)
            a("s_branch L_checked")
        self.check = check
        a(f"ds_read_b32 v50, v60")
        a(f"ds_read_b32 {v(RO+8)}, v49")
        a(f"v_smfmac_f32_32x32x32_bf16 {v(RO+48,16)}, {V(3,1)}, {v(RS+48+8,8)}, {v(RIDX)}")

    def tail_A(self):
        a = self.a
        RQ, RO = self.RQ, self.RO
        self.stamp(7)
        if self.o.get("aprof"):
            a(f"""
            s_lshl_b32 s60, s2, 2
            s_add_u32 s60, s60, {s(S_W)}
            s_lshl_b32 s60, s60, 8
            s_add_u32 s60, s60, {WS_STAMP+0x40000}
            v_lshl_add_u32 v56, v0, 2, s60
            global_store_dword v56, v55, {s(S_WS,2)}
            """)
        a.c("---- pair reduction of the two key halves")
        O2, O3 = RO+32, RO+48
        def rdpart():
            a(f"""
            ds_read_b32 {v(RO+24)}, v49 offset:256
            ds_read_b128 {v(RO,4)}, {v(self.V_EXR)}
            ds_read_b128 {v(RO+4,4)}, {v(self.V_EXR)} offset:1024
            ds_read_b128 {v(RO+16,4)}, {v(self.V_EXR)} offset:2048
            ds_read_b128 {v(RO+20,4)}, {v(self.V_EXR)} offset:3072
            """)
        rdpart()
        Lok, La = a.label("x"), a.label("x")
        a(f"""
        s_mov_b32 {s(T+2)}, {f32(2.0**-20)}
        s_mov_b32 {s(T+3)}, {f32(2.0**100)}
        s_waitcnt lgkmcnt(6)
        v_cmp_gt_u32 vcc, {E_CLR}, v50
        s_cmp_eq_u64 vcc, 0
        s_cbranch_scc1 {Lok}
        """)
        self.await_(50, vaddr=60, val=str(E_CLR), sleep=0)
        a(f"ds_read_b32 {v(RO+8)}, v49")
        rdpart()
        a(f"{Lok}:")
        self.stamp(11)
        a(f"""
        s_waitcnt lgkmcnt(2)
        v_add_f32 {v(O2+8)}, {v(O2+8)}, {v(RO+8)}
        v_add_f32 {v(O3+8)}, {v(O3+8)}, {v(RO+24)}
        v_cmp_le_f32 {s(T+4,2)}, {s(T+2)}, {v(O2+8)}
        v_cmp_le_f32 {s(T+6,2)}, {s(T+2)}, {v(O3+8)}
        v_add_f32 {v(RO+9)}, {v(O2+8)}, {v(O3+8)}
        """)
        for b in range(2):
            if b: a("s_waitcnt lgkmcnt(0)")
            for i in range(0, 8, 2):
                a(f"v_pk_add_f32 {v(O2+16*b+i,2)}, {v(O2+16*b+i,2)}, {v(RO+16*b+i,2)}")
        a.c("---- the zero shift is kept only if every row sum is in range and every sum is finite")
        a(f"""
        v_pk_add_f32 {v(RO,2)}, {v(O2,2)}, {v(O2+2,2)}
        v_pk_add_f32 {v(RO+2,2)}, {v(O2+4,2)}, {v(O2+6,2)}
        v_pk_add_f32 {v(RO+4,2)}, {v(O3,2)}, {v(O3+2,2)}
        v_pk_add_f32 {v(RO+6,2)}, {v(O3+4,2)}, {v(O3+6,2)}
        v_pk_add_f32 {v(RO,2)}, {v(RO,2)}, {v(RO+2,2)}
        v_pk_add_f32 {v(RO+4,2)}, {v(RO+4,2)}, {v(RO+6,2)}
        s_and_b64 {s(T+4,2)}, {s(T+4,2)}, {s(T+6,2)}
        v_pk_add_f32 {v(RO,2)}, {v(RO,2)}, {v(RO+4,2)}
        v_fma_f32 {v(RO+9)}, {v(RO)}, 0, {v(RO+9)}
        v_fma_f32 {v(RO+9)}, {v(RO+1)}, 0, {v(RO+9)}
        v_cmp_ge_f32 vcc, {s(T+3)}, {v(RO+9)}
        s_and_b64 vcc, vcc, {s(T+4,2)}
        s_cmp_eq_u64 vcc, -1
        s_cbranch_scc0 L_fallback
        L_norm:
        """)
        self.normalize([(O2, O2+8), (O3, O3+8)], 16)
        self.stamp(8)
        a.c("---- the linear-attention half of the output projection fills the hand-off wait")
        a("s_setprio 0")
        self.newpage("opB", "L_warmed")
        a("s_barrier")
        XF, WF, ACC = 128, 160, 64
        D = 4
        def rd(u):
            i = u % 8
            a(f"ds_read_b128 {v(XF+4*i,4)}, v14 offset:{u*1024}")
            for sx in range(2):
                a(f"ds_read_b64_tr_b16 {v(WF+4*i+2*sx,2)}, {v(self.V_WO)} offset:{(2*u+sx)*1024}")
        for u in range(D): rd(u)
        for u in range(32):
            if u + D < 32:
                rd(u+D); n = 3*D
            else:
                n = 3*(31-u)
            y2 = self.o.get("y2", 14)
            if u == y2:
                a("v_mov_b32 v50, 39")
                a("s_waitcnt vmcnt(0)")
                a(f"ds_write_b32 {v(V_SLOT)}, v50")
                self.stamp(9)
            a(f"s_waitcnt lgkmcnt({n})")
            i = u % 8
            a(f"v_mfma_f32_32x32x16_bf16 {v(ACC,16)}, {v(WF+4*i,4)}, {v(XF+4*i,4)}, {'0' if u == 0 else v(ACC,16)}")
        self.stamp(10)
        a(f"s_mov_b32 {s(S_EPOCH)}, 39")
        self.add64(T+2, S_OUTB, 16384)
        a("s_nop 7")
        a("s_nop 0")
        for h in range(2):
            for i in range(4*h, 4*h+4): a(f"v_cvt_pk_bf16_f32 {v(32+i)}, {v(ACC+2*i)}, {v(ACC+2*i+1)}")
            a(f"ds_write_b128 {v(57+h)}, {v(32+4*h,4)}")
        self.softbar(50, sleep=0)
        a("ds_read_b128 v[40:43], v59")
        a("ds_read_b128 v[44:47], v59 offset:1024")
        a.c("these stores queue behind the other waves' fetches, not in front of them")
        if self.o.get("sw", 1): self.await_(50, val="40", off=16, sleep=1)
        for h in range(2):
            a(f"s_waitcnt lgkmcnt({1-h})")
            a(f"global_store_dwordx4 {v(self.V_OUT)}, {v(40+4*h,4)}, {s(T+2 if h else S_OUTB,2)} {self.o.get('osta','sc1')}")
        a("s_barrier")
        a("s_branch L_fin")

    def normalize(self, blocks, P, guard=True):
        a = self.a
        for N, R in blocks: a(f"v_rcp_f32 {v(R)}, {v(R)}")
        for b, (N, R) in enumerate(blocks):
            for i in range(0, 8, 2):
                a(f"v_pk_mul_f32 {v(N+i,2)}, {v(N+i,2)}, {v(R,2)} op_sel_hi:[1,0]")
            for i in range(4):
                a(f"v_cvt_pk_bf16_f32 {v(P+4*b+i)}, {v(N+2*i)}, {v(N+2*i+1)}")
            if guard: a(f"v_min_u32 {v(P+4*b)}, -2, {v(P+4*b)}")
            a(f"global_store_dwordx4 {v(self.V_IMG)}, {v(P+4*b,4)}, {s(S_WS,2)} offset:{1024*b} {'' if guard and self.o.get('xplain') else 'sc1'}")

    def attn_fallback(self, Lret):
        a = self.a
        RQ, RO, RS, RKV, RIDX, RKA, RVA = self.RQ+8, self.RO+32, self.RS, self.RKV, self.RIDX, self.RKA, self.RVA
        SB, SCNT = T, U+3
        NM = RS + 32
        a("L_fallback:")
        a(f"v_mov_b32 {v(RKV+20)}, 0xff800000")
        a(f"v_mov_b32 {v(RKV+21)}, 0xff800000")
        for ps in (0, 1):
            L = a.label("fb")
            self.add64(SB, S_WS, WS_KV)
            a(f"""
            s_mov_b32 {s(SCNT)}, 64
            {L}:
            global_load_dwordx4 {v(RKV,4)}, {v(RKA)}, {s(SB,2)} sc1
            """)
            if ps:
                a(f"global_load_dwordx4 {v(RKV+4,4)}, {v(RVA)}, {s(SB,2)} offset:{KVREC} sc1")
                a(f"global_load_dwordx4 {v(RKV+8,4)}, {v(RVA)}, {s(SB,2)} offset:{3*KVREC} sc1")
            self.add64(SB, SB, KVTILE)
            a("s_waitcnt vmcnt(0)")
            for b in range(2):
                c = v(NM+16*b, 16) if ps else "0"
                a(f"v_mfma_f32_32x32x16_bf16 {v(RS+16*b,16)}, {v(RKV,4)}, {v(RQ+4*b,4)}, {c}")
            a("s_nop 7")
            a("s_nop 4")
            for b in range(2):
                S = RS + 16*b
                if not ps:
                    for i in range(0, 16, 2):
                        a(f"v_max3_f32 {v(RKV+20+b)}, {v(S+i)}, {v(S+i+1)}, {v(RKV+20+b)}")
                else:
                    for i in range(16): a(f"v_exp_f32 {v(S+i)}, {v(S+i)}")
                    a("s_nop 1")
                    a(f"v_smfmac_f32_32x32x32_bf16 {v(RO+16*b,16)}, {v(RKV+4,4)}, {v(S,8)}, {v(RIDX)}")
                    a(f"v_smfmac_f32_32x32x32_bf16 {v(RO+16*b,16)}, {v(RKV+8,4)}, {v(S+8,8)}, {v(RIDX)}")
            a(f"""
            s_sub_u32 {s(SCNT)}, {s(SCNT)}, 1
            s_cmp_lg_u32 {s(SCNT)}, 0
            s_cbranch_scc1 {L}
            """)
            if not ps:
                for b in range(2):
                    m = RKV+20+b
                    a(f"""
                    v_mov_b32 {v(RKV+22)}, {v(m)}
                    s_nop 1
                    v_permlane32_swap_b32 {v(m)}, {v(RKV+22)}
                    s_nop 1
                    v_max_f32 {v(m)}, {v(m)}, {v(RKV+22)}
                    """)
                    for i in range(16): a(f"v_sub_f32 {v(NM+16*b+i)}, 0, {v(m)}")
                for i in range(32): a(f"v_mov_b32 {v(RO+i)}, 0")
        a("s_nop 7")
        a("s_nop 4")
        a(f"s_branch {Lret}")

    def outproj_wfrags(self):
        a = self.a
        for p in range(4):
            a(f"""
            s_add_u32 {s(T)}, {s(S_J)}, {p}
            s_and_b32 {s(T)}, {s(T)}, 3
            s_lshl_b32 {s(T+1)}, {s(S_LO)}, 2
            s_add_u32 {s(T)}, {s(T)}, {s(T+1)}
            s_lshl_b32 {s(T+1)}, {s(S_G)}, 1
            s_sub_u32 {s(T)}, {s(T)}, {s(T+1)}
            s_and_b32 {s(T)}, {s(T)}, 7
            s_lshl_b32 {s(T)}, {s(T)}, 13
            v_add_u32 v21, {s(T)}, {v(self.V_WO)}
            """)
            for k in range(4):
                u = 4*p + k
                for nb in range(2):
                    for sx in range(2):
                        a(f"ds_read_b64_tr_b16 {v(128+8*u+4*nb+2*sx,2)}, v21 offset:{(2*k+sx)*1024+nb*512}")
    def gather_loads(self, p):
        for k in range(4):
            self.a(f"global_load_dwordx4 {v(32+16*p+4*k,4)}, {v(V_L16)}, {s(8+2*p,2)} offset:{k*1024} sc1")
    def outproj(self):
        a = self.a
        a.c("=========================== attention half of the output projection ===========================")
        def test(p):
            I = 32 + 16*p
            a(f"""
            v_max3_u32 v16, {v(I)}, {v(I+4)}, {v(I+8)}
            v_max_u32 v16, v16, {v(I+12)}
            v_cmp_eq_u32 vcc, -1, v16
            """)
        def mms(p):
            return [f"v_mfma_f32_32x32x16_bf16 {v(96+16*nb,16)}, {v(128+8*(4*p+k)+4*nb,4)}, {v(32+4*(4*p+k),4)}, {v(96+16*nb,16)}"
                    for k in range(4) for nb in range(2)]
        def consume(p, Ls):
            test(p)
            a(f"""
            s_cmp_lg_u64 vcc, 0
            s_cbranch_scc1 {Ls}
            s_bitset0_b32 {s(S_PEND)}, {p}
            """)
            self.emit(mms(p))
            a(f"{Ls}:")
        def wr(nb, lo=0, hi=4):
            for k, ad in list(enumerate((9, 14, 15, 17)))[lo:hi]:
                a(f"ds_write_b128 {v(ad)}, {v(96+16*nb+4*k,4)} offset:{128*nb}")
        self.gather_loads(0); self.gather_loads(1)
        self.add64(T+2, S_OUTB, 16384)
        a("s_waitcnt vmcnt(4)")
        self.stamp(5)
        test(0)
        for p in range(4):
            a("s_cmp_lg_u64 vcc, 0")
            a(f"s_cbranch_scc1 L_miss")
            a(f"s_bitset0_b32 {s(S_PEND)}, {p}")
            M = mms(p)
            if p == 3: break
            a(M[0])
            if p < 2: self.gather_loads(p+2)
            if p == 1: a(f"ds_write_b32 {v(V_SLOT)}, v19")
            if p == 2: a(f"ds_read_b32 v20, v21")
            self.emit(M[1:7])
            a(f"s_waitcnt vmcnt({4 if p < 2 else 0})")
            test(p+1)
            a(M[7])
        a.c("the exchange tiles reuse LDS the A waves have finished reading")
        Lok = a.label("k")
        self.emit(M[0::2])
        a(M[1])
        a(f"""
        s_waitcnt lgkmcnt(0)
        v_cmp_gt_u32 vcc, 40, v20
        s_cmp_eq_u64 vcc, 0
        s_cbranch_scc1 {Lok}
        """)
        self.await_(20, vaddr=21, val="40", sleep=0)
        a(f"{Lok}:")
        a(M[3])
        a("s_nop 5")
        wr(0, 0, 1)
        a(M[5])
        wr(0, 1, 2)
        a(M[7])
        self.stamp(10)
        wr(0, 2, 4)
        a("s_nop 9")
        a("L_gathered:")
        wr(1)
        a("s_waitcnt lgkmcnt(0)")
        a("s_barrier")
        for i in range(2):
            for pt in range(2):
                for e, ad in enumerate((3, 24)):
                    a(f"ds_read_b128 {v(32+16*i+8*pt+4*e,4)}, {v(ad)} offset:{2048*i+8192*pt}")
        for i in range(2):
            a(f"s_waitcnt lgkmcnt({4-4*i})")
            for k in range(0, 8, 2): a(f"v_pk_add_f32 {v(32+16*i+k,2)}, {v(32+16*i+k,2)}, {v(32+16*i+8+k,2)}")
            for k in range(4): a(f"v_cvt_pk_bf16_f32 {v(64+4*i+k)}, {v(32+16*i+2*k)}, {v(32+16*i+2*k+1)}")
            a(f"global_store_dwordx4 {v(self.V_OUT)}, {v(64+4*i,4)}, {s(T+2 if i else S_OUTB,2)} {self.o.get('ostb','sc1')}")
        def retry():
            a("L_miss:")
            a(f"ds_write_b32 {v(V_SLOT)}, v19")
            a("s_waitcnt vmcnt(0)")
            a("L_retry:")
            if self.o.get("rs", 2): a(f"s_sleep {self.o.get('rs', 2)}")
            for p in range(4):
                Ls = a.label("gs")
                a(f"s_bitcmp1_b32 {s(S_PEND)}, {p}")
                a(f"s_cbranch_scc0 {Ls}")
                self.gather_loads(p)
                a(f"{Ls}:")
            a("s_waitcnt vmcnt(0)")
            for p in range(4):
                Ls = a.label("cs")
                a(f"s_bitcmp1_b32 {s(S_PEND)}, {p}")
                a(f"s_cbranch_scc0 {Ls}")
                consume(p, Ls)
            a(f"""
            s_add_u32 {s(T+9)}, {s(T+9)}, 1
            s_cmp_eq_u32 {s(S_PEND)}, 0
            s_cbranch_scc1 L_rdone
            s_cmp_lt_u32 {s(T+9)}, {SPIN_MAX}
            s_cbranch_scc1 L_retry
            L_rdone:
            """)
            self.await_(20, vaddr=21, val="40", sleep=0)
            a("s_nop 3")
            wr(0)
            a("s_branch L_gathered")
        self.retry = retry

    def kv_setup(self):
        self.a(f"""
        v_and_b32 v96, 15, v0
        v_and_b32 v97, 3, v0
        v_bfe_u32 v98, v0, 2, 1
        v_lshl_add_u32 v97, v98, 3, v97
        v_bfe_u32 v98, v0, 3, 1
        v_lshl_add_u32 v97, v98, 2, v97
        s_bitcmp1_b32 {s(S_J)}, 0
        s_cselect_b64 vcc, -1, 0
        s_cselect_b32 {s(T+8)}, 1.0, {f32(0.25*LOG2E)}
        v_cndmask_b32 v96, v96, v97, vcc
        v_lshrrev_b32 v98, 4, v0
        v_lshrrev_b32 v97, 1, v96
        v_xor_b32 v97, v97, v98
        v_lshlrev_b32 v96, 7, v96
        v_lshl_add_u32 v96, v97, 4, v96
        s_and_b32 {s(T)}, {s(S_J)}, 6
        s_lshl_b32 {s(T)}, {s(T)}, 10
        v_add_u32 v96, {s(T)}, v96
        v_xor_b32 v97, 64, v96
        v_bfe_u32 v99, v0, 2, 2
        v_lshl_add_u32 v99, v98, 3, v99
        v_lshlrev_b32 v99, 5, v99
        v_and_b32 v100, 3, v0
        v_lshl_add_u32 v99, v100, 3, v99
        v_add_u32 v99, {L_WKV}, v99
        """)
    def kv_compute(self):
        a = self.a
        XF, WF = 128, 160
        LV, LD = a.label("kvv"), a.label("kvd")
        order = [2*sl + h for par in range(2) for sl in range(par, 8, 2) for h in range(2)]
        def rd(n):
            t = order[n]
            a(f"ds_read_b128 {v(XF+4*(n%8),4)}, {v(96+(t&1))} offset:{(t//2)*8192}")
            a(f"ds_read_b64_tr_b16 {v(WF+4*(n%8),2)}, v99 offset:{t*1024}")
            a(f"ds_read_b64_tr_b16 {v(WF+4*(n%8)+2,2)}, v99 offset:{t*1024+128}")
        a(f"s_bitcmp1_b32 {s(S_J)}, 0")
        a(f"s_cbranch_scc1 {LV}")
        for isv in (0, 1):
            if isv: a(f"{LV}:")
            def mm(n):
                x, w = v(XF+4*(n%8),4), v(WF+4*(n%8),4)
                A, B = (x, w) if isv else (w, x)
                a(f"v_mfma_f32_16x16x32_bf16 v[104:107], {A}, {B}, {'0' if n == 0 else 'v[104:107]'}")
            for h in range(2):
                self.await_(20, vaddr=21, val="1", off=16-16*h, sleep=0)
                if h == 0:
                    self.stamp(2); self.stamp(5, "hd")
                for n in range(8*h, 8*h+4):
                    rd(n)
                    if h: mm(n-4)
                for n in range(8*h, 8*h+4):
                    rd(n+4)
                    a("s_waitcnt lgkmcnt(12)")
                    mm(n)
            for n in range(12, 16):
                a(f"s_waitcnt lgkmcnt({3*(15-n)})")
                mm(n)
            if not isv: a(f"s_branch {LD}")
        a(f"""
        {LD}:
        s_nop 7
        v_pk_mul_f32 v[104:105], v[104:105], {s(T+8,2)} op_sel_hi:[1,0]
        v_pk_mul_f32 v[106:107], v[106:107], {s(T+8,2)} op_sel_hi:[1,0]
        v_cvt_pk_bf16_f32 v108, v104, v105
        v_cvt_pk_bf16_f32 v109, v106, v107
        s_nop 1
        v_permlane32_swap_b32 v108, v110
        v_permlane32_swap_b32 v109, v111
        s_mov_b32 exec_hi, 0
        global_store_dwordx4 v101, v[108:111], {s(S_WS,2)} sc1
        s_mov_b32 exec_hi, -1
        """)

    def phi(self, R):
        a = self.a
        TMP = 80
        a(f"s_mov_b32 {s(T)}, {f32(LOG2E)}")
        a(f"s_mov_b32 {s(T+2)}, {f32(1e-6)}")
        for i in range(0, 16, 2): a(f"v_pk_fma_f32 {v(TMP+i,2)}, {v(R+i,2)}, {s(T,2)}, v[18:19] op_sel_hi:[1,0,0]")
        for i in range(16): a(f"v_exp_f32 {v(TMP+i)}, {v(TMP+i)} clamp")
        for i in range(16): a(f"v_max_f32 {v(R+i)}, {s(T+2)}, {v(R+i)}")
        for i in range(0, 16, 2): a(f"v_pk_add_f32 {v(R+i,2)}, {v(R+i,2)}, {v(TMP+i,2)}")
        for i in range(0, 16, 2): a(f"v_cvt_pk_bf16_f32 {v(R+i//2)}, {v(R+i)}, {v(R+i+1)}")

    def roleB(self):
        a = self.a
        RB, HP, WB = S_HI, S_LO, S_W3
        SXM, SWM, SXO, SWO = U, U+1, U+2, U+3
        VX, VW, VO = 26, 240, 28
        XA, WA = 244, 248
        AK, AV, AQ = 32, 48, 64
        F = (96, 160)
        XF = 96
        X, Y = 224, 232
        V_L128, V_SX, V_L4, V_F4 = 10, 11, 12, 15
        VL, SL, SLO, SF1 = 80, 96, 60, 62
        HI, LOW = "s_setprio 3", f"s_setprio {self.o.get('bmm', 0)}"
        a.c("=========================== role B ===========================")
        a("L_roleB:")
        self.inB = True
        Lj = a.label("b")
        a(f"""
        s_lshl_b32 {s(T)}, {s(S_C)}, 8
        s_add_u32 {s(T)}, {s(T)}, {WS_ACC}
        v_lshl_add_u32 v24, v0, 2, {s(T)}
        s_mul_i32 {s(T)}, {s(S_C)}, {KVREC}
        s_add_u32 {s(T)}, {s(T)}, {WS_KV}
        v_add_u32 v101, {s(T)}, {v(V_L16)}
        v_cmp_eq_u32 vcc, 32, v0
        v_mov_b32 v112, 0x3f803f80
        s_nop 0
        v_cndmask_b32 v112, 0, v112, vcc
        v_mov_b32 v113, v112
        v_mov_b32 v114, v112
        v_mov_b32 v115, v112
        """)
        for u in range(4): a(f"v_add_u32 {v(VL+u)}, {8192*u}, v3")
        a(f"s_lshl_b32 {s(T)}, {s(S_LO)}, 6")
        a(f"v_xor_b32 v20, {s(T)}, v2")
        for u in range(3):
            a(f"""
            s_add_u32 {s(T)}, {s(S_J)}, {2+2*u}
            s_and_b32 {s(T)}, {s(T)}, 6
            s_add_u32 {s(T)}, {s(T)}, {s(S_LO)}
            s_lshl_b32 {s(SL+u)}, {s(T)}, 10
            s_lshl_b32 {s(T)}, {s(T)}, 13
            v_add_u32 {v(VL+4+u)}, {s(T)}, v20
            """)
        a(f"""
        s_add_u32 {s(T)}, {s(S_XCD)}, 1
        s_lshl_b32 {s(T)}, {s(T)}, 3
        v_add_u32 v92, {s(T)}, v0
        v_and_b32 v92, 63, v92
        v_lshlrev_b32 v92, 7, v92
        v_add_u32 v92, {WS_F1}, v92
        s_lshl_b32 {s(SL+3)}, {s(S_LO)}, 12
        s_lshl_b32 {s(SL+4)}, {s(S_G)}, 16
        s_lshl_b32 {s(SLO)}, {s(S_J)}, 7
        s_lshl_b32 {s(T)}, {s(S_LO)}, 15
        s_add_u32 {s(SLO)}, {s(SLO)}, {s(T)}
        """)
        ta = self.o.get("ta", 0)
        if ta:
            a.c("first touch (one dword per line) of this CU's share of what the die reads for the A-side projections")
            a(f"""
            s_and_b32 {s(T)}, {s(S_G)}, 3
            s_lshl_b32 {s(T+1)}, {s(T)}, 10
            s_lshl_b32 {s(T+2)}, {s(S_J)}, 7
            s_add_u32 {s(T+1)}, {s(T+1)}, {s(T+2)}
            s_lshl_b32 {s(T+2)}, {s(S_LO)}, 18
            s_add_u32 {s(T+1)}, {s(T+1)}, {s(T+2)}
            s_lshl_b32 {s(T+2)}, {s(S_C)}, 13
            s_lshl_b32 {s(T)}, {s(T)}, 2
            s_lshr_b32 {s(T+3)}, {s(S_J)}, 1
            s_add_u32 {s(T)}, {s(T)}, {s(T+3)}
            s_lshl_b32 {s(T)}, {s(T)}, 10
            s_cmp_eq_u32 {s(S_W)}, 5
            s_cselect_b32 {s(T)}, {s(T+2)}, {s(T)}
            s_cmp_ge_u32 {s(S_W)}, 6
            s_cselect_b32 {s(T)}, {s(T+1)}, {s(T)}
            s_cselect_b32 {s(T+1)}, 12, 7
            v_lshlrev_b32 v19, {s(T+1)}, v0
            v_add_u32 v19, {s(T)}, v19
            """)
        a("s_waitcnt lgkmcnt(0)")
        if ta:
            Lt4, Lt5, Lte = a.label("t"), a.label("t"), a.label("t")
            a(f"""
            s_cmp_eq_u32 {s(S_W)}, 4
            s_cbranch_scc1 {Lt4}
            s_cmp_eq_u32 {s(S_W)}, 5
            s_cbranch_scc1 {Lt5}
            {f"global_load_dword v19, v19, {s(S_WQ,2)}" if ta != 4 else ""}
            s_branch {Lte}
            {Lt5}:
            {f"global_load_dword v19, v19, {s(S_AX,2)}" if ta == 1 else ""}
            s_branch {Lte}
            {Lt4}:
            s_bitcmp1_b32 {s(S_J)}, 0
            s_cselect_b32 {s(S_WK)}, {s(S_WV)}, {s(S_WK)}
            s_cselect_b32 {s(S_WK+1)}, {s(S_WV+1)}, {s(S_WK+1)}
            s_mov_b64 exec, 0xff
            {f"global_load_dword v19, v19, {s(S_WK,2)}" if ta in (1, 3) else ""}
            s_mov_b64 exec, -1
            {Lte}:
            """)
        Lz = a.label("b")
        a.c("clear this CU's share of the state accumulators (ordered before the K/V flag)")
        a(f"""
        s_cmp_lg_u32 {s(S_W)}, 4
        s_cbranch_scc1 {Lz}
        global_store_dword v24, {v(V_ZERO)}, {s(S_WS,2)} sc1
        s_mov_b32 exec_lo, {-1 if self.o.get("pre", 1) == 1 else 0}
        s_mov_b32 exec_hi, 0xff
        global_store_dwordx4 v101, v[112:115], {s(S_WS,2)} sc1
        s_mov_b64 exec, -1
        {Lz}:
        s_lshr_b32 {s(T)}, {s(S_C)}, 2
        s_lshl_b32 {s(T)}, {s(T)}, 7
        s_and_b32 {s(T+1)}, {s(S_C)}, 3
        s_lshl_b32 {s(T+1)}, {s(T+1)}, 2
        s_add_u32 {s(T)}, {s(T)}, {s(T+1)}
        s_add_u32 {s(T)}, {s(T)}, {WS_F1}
        s_add_u32 {s(S_WV)}, {s(S_WS)}, {s(T)}
        s_addc_u32 {s(S_WV+1)}, {s(S_WS+1)}, 0
        s_load_dword s53, {s(S_WV,2)}, 0
        s_load_dword {s(S_TAG)}, {s(S_WS,2)}, {WS_G}
        """)
        a(f"s_getpc_b64 {s(S_PC,2)}")
        self.stamp(1)
        a("s_barrier")
        self.stamp(1, "hd")
        def setup():
            a.c("---- B-side setup, all in the shadow of the head")
            a(f"""
            v_mov_b32 {v(VX)}, v2
            v_xor_b32 {v(VX+1)}, 64, v2
            v_add_u32 {v(VX+1)}, 8192, {v(VX+1)}
            v_mul_u32_u24 {v(VW)}, 3072, v8
            v_add_u32 {v(VW)}, {v(VW)}, v9
            v_mov_b32 {v(VO)}, v3
            """)
            for i in range(1, 4):
                a(f"v_add_u32 {v(VW+i)}, {24576*i}, {v(VW)}")
                a(f"v_add_u32 {v(VO+i)}, {8192*i}, v3")
            self.xfrag_addr(XA, RB, 20)
            self.wfrag_addr(WA, 20)
            self.tail_addr(L_X, 0, WS_OB, 0, 20)
            a(f"""
            s_lshl_b32 {s(T)}, {s(S_W3)}, 13
            s_add_u32 {s(T)}, {s(T)}, {L_W}
            v_lshrrev_b32 v20, 5, v0
            v_lshlrev_b32 v20, 2, v20
            v_and_b32 v21, 7, v0
            v_xor_b32 v20, v20, v21
            v_and_b32 v22, 31, v0
            v_lshl_add_u32 v22, v22, 8, {s(T)}
            v_lshl_add_u32 v9, v20, 4, v22
            v_xor_b32 v14, 16, v9
            v_xor_b32 v15, 32, v9
            v_xor_b32 v17, 48, v9
            s_lshl_b32 {s(T)}, {s(S_HI)}, 14
            s_lshl_b32 {s(T+1)}, {s(S_LO)}, 12
            s_add_u32 {s(T)}, {s(T)}, {s(T+1)}
            s_add_u32 {s(T)}, {s(T)}, {L_W}
            v_lshrrev_b32 v20, 3, v0
            v_lshlrev_b32 v21, 1, v21
            v_xor_b32 v21, v21, v20
            v_lshl_add_u32 v20, v20, 8, {s(T)}
            v_lshl_add_u32 v3, v21, 4, v20
            v_xor_b32 v24, 16, v3
            """)
            a(f"""
            s_lshl_b32 {s(SXM)}, {s(WB)}, 11
            s_lshl_b32 {s(SWM)}, {s(WB)}, 12
            s_lshl_b32 {s(SXO)}, {s(S_G)}, 16
            s_lshl_b32 {s(T)}, {s(WB)}, 14
            s_add_u32 {s(SXO)}, {s(SXO)}, {s(T)}
            s_mul_i32 {s(SWO)}, {s(HP)}, {32*3072}
            s_lshl_b32 {s(T)}, {s(S_J)}, 7
            s_add_u32 {s(SWO)}, {s(SWO)}, {s(T)}
            s_mov_b32 {s(T)}, {f32(1e-6)}
            s_mov_b32 {s(T+1)}, {f32(1e-6)}
            s_mov_b32 {s(T+2)}, 0x3f803f80
            s_mov_b32 {s(T+3)}, 0x3f803f80
            """)
            for i in range(0, 16, 2):
                a(f"v_mov_b64 {v(AK+i,2)}, {s(T,2)}")
                a(f"v_mov_b64 {v(AQ+i,2)}, {s(T,2)}")
                if i < 4: a(f"v_mov_b64 {v(X+i,2)}, {s(T+2,2)}")
            a(f"""
            v_mov_b32 v18, {f32(-1e-6*LOG2E)}
            v_mov_b64 v[252:253], -1
            v_mov_b64 v[254:255], -1
            v_mov_b32 v25, 63
            v_mul_u32_u24 v250, 12288, v0
            v_lshlrev_b32 v251, 12, v0
            v_lshlrev_b32 {v(V_L128)}, 7, v0
            s_lshl_b32 {s(T)}, {s(WB)}, 10
            s_add_u32 {s(T)}, {s(T)}, {L_MISC+0x1000}
            v_add_u32 {v(V_SX)}, {s(T)}, {v(V_L16)}
            v_xor_b32 {v(X+4)}, 2048, {v(V_SX)}
            v_and_b32 v20, 15, v0
            v_bfe_u32 v21, v0, 4, 1
            v_lshlrev_b32 v22, 11, v21
            v_lshl_add_u32 {v(X+5)}, v20, 2, v22
            v_lshrrev_b32 v22, 5, v0
            v_lshl_add_u32 {v(X+6)}, v22, 8, {v(X+5)}
            s_lshl_b32 {s(T)}, {s(RB)}, 9
            v_add_u32 {v(X+6)}, {s(T)}, {v(X+6)}
            v_and_b32 v20, 31, v0
            v_min_u32 v20, 16, v20
            v_lshlrev_b32 v20, 6, v20
            v_lshl_add_u32 {v(V_L4)}, v22, 4, v20
                """)
            self.add64(SF1, S_WS, WS_F1)
        def tag():
            a(f"""
            s_waitcnt lgkmcnt(0)
            s_add_u32 {s(S_TAG)}, {s(S_TAG)}, 0x2f1b4c6d
            v_mov_b32 {v(V_TAG)}, {s(S_TAG)}
            """)
        def touch(spec):
            kind, lo, hi = spec
            if kind == "x":
                m = sum(1 << e for e in range(lo, hi)) * 0x01010101
                a(f"s_lshl_b32 {s(T)}, {s(S_C)}, 13")
                self.add64(T+2, S_BX, s(T))
                mlo = mhi = m; vr = V_L128
            else:
                base, rs, col = {"q": (S_WQKV, 3072, 0), "k": (S_WQKV, 3072, 1024), "v": (S_WQKV, 3072, 2048),
                                 "a": (S_AWO, 1024, 0), "b": (S_BWO, 1024, 0)}[kind]
                h = lo // 4
                m = sum(0xffff << (16*(e - 4*h)) for e in range(lo, hi))
                mlo, mhi = m & 0xffffffff, m >> 32
                a(f"""
                s_and_b32 {s(T)}, {s(S_G)}, 3
                s_mul_i32 {s(T)}, {s(T)}, {rs}
                s_lshl_b32 {s(T+1)}, {s(S_J)}, 7
                s_add_u32 {s(T)}, {s(T)}, {s(T+1)}
                s_add_u32 {s(T)}, {s(T)}, {h*256*rs + col}
                """)
                self.add64(T+2, base, s(T))
                vr = 250 if rs == 3072 else 251
            a(f"s_mov_b32 exec_lo, {mlo:#x}")
            a(f"s_mov_b32 exec_hi, {mhi:#x}")
            a(f"global_load_dword v19, {v(vr)}, {s(T+2,2)}")
            a("s_mov_b64 exec, -1")
        def touch_round(specs):
            Le = a.label("t")
            for w, sp in enumerate(specs):
                Ln = a.label("t")
                if w < 3:
                    a(f"s_cmp_lg_u32 {s(WB)}, {w}")
                    a(f"s_cbranch_scc1 {Ln}")
                if sp: touch(sp)
                else: a(f"global_load_dword v19, {v(V_ZERO)}, {s(S_WQKV,2)}")
                if w < 3: a(f"s_branch {Le}")
                a(f"{Ln}:")
            a(f"{Le}:")
        M4, M5, Mc, Ms = a.label("b"), a.label("b"), a.label("b"), a.label("b")
        self.stamp(2, "hd")
        a(f"""
        s_cmp_lt_u32 {s(S_W)}, 6
        s_cbranch_scc1 {M4}
        """)
        a.c("---- waves 6, 7 stream the rest of x and wq, one k-slot at a time")
        if ta == 4: a(f"global_load_dword v19, v19, {s(S_WQ,2)}")
        Ll = a.label("ld")
        a(f"""
        s_mov_b32 {s(T+6)}, 0
        s_mov_b32 s101, {self.o.get('hb', 2)}
        s_lshl_b32 {s(T+7)}, {s(S_W3)}, 2
        {Ll}:
        s_add_u32 {s(T)}, {s(S_KC0)}, {s(T+6)}
        s_and_b32 {s(T)}, {s(T)}, 7
        s_lshl_b32 {s(T+1)}, {s(T)}, 16
        s_add_u32 {s(T+1)}, {s(T+1)}, {s(SLO)}
        """)
        self.add64(T+2, S_WQ, s(T+1))
        a(f"s_lshl_b32 {s(T)}, {s(T)}, 7")
        a(f"s_add_u32 {s(T)}, {s(T)}, {s(SL+4)}")
        self.add64(T+4, S_AX, s(T))
        for u in range(4): self.emit(self.dma(VL+u, T+2, SL+3, L_W + u*1024))
        for u in range(3):
            a(f"s_mov_b32 m0, {s(SL+u)}")
            a(f"s_add_u32 {s(SL+u)}, {s(SL+u)}, 8192")
            a(f"global_load_lds_dwordx4 {v(VL+4+u)}, {s(T+4,2)}")
        a(f"""
        s_add_u32 m0, {s(T+7)}, {L_MK}
        s_mov_b64 exec, 1
        global_load_lds_dword {v(V_ZERO)}, {s(S_PC,2)}
        s_mov_b64 exec, -1
        s_add_u32 {s(T+7)}, {s(T+7)}, 16
        s_add_u32 {s(SL+3)}, {s(SL+3)}, 8192
        s_add_u32 {s(T+6)}, {s(T+6)}, 1
        """)
        a(f"""
        s_waitcnt vmcnt(48)
        s_cmp_lt_u32 {s(T+6)}, s101
        s_cbranch_scc1 {Ll}
        s_cmp_lg_u32 s101, 8
        s_cbranch_scc1 {M5}
        """)
        self.stamp(8, "hd")
        a.c("wave 6: have the first key tiles been published? (asked behind the last load)")
        a(f"""
        s_cmp_lg_u32 {s(S_W)}, 6
        s_cbranch_scc1 {Mc}
        s_mov_b64 exec, 0xffff
        """)
        self.poll4(92, S_WS, 88, sleep=self.o.get("ps1", 0))
        self.stamp(9, "hd")
        a("s_mov_b64 exec, -1")
        a(f"s_branch {Mc}")
        a(f"{M4}:")
        self.stamp(3, "hd")
        a(f"s_cmp_lg_u32 {s(S_W)}, 4")
        a(f"s_cbranch_scc1 {M5}")
        a.c("---- wave 4: this CU's 16 x 16 piece of K or V")
        a("s_setprio 3")
        a(f"v_mov_b32 v102, {L_MK}")
        self.kv_setup()
        a(f"v_add_u32 v21, {L_MK-L_SYNC+128-16}, {v(V_ALL)}")
        self.stamp(4, "hd")
        self.kv_compute()
        self.stamp(6, "hd")
        a("ds_write_b32 v102, v102 offset:112")
        a.c("publish: only this wave writes the word, so adding the difference sets it to the tag")
        a(f"s_sub_u32 s53, {s(S_TAG)}, s53")
        a(f"s_add_u32 s53, s53, 0x2f1b4c6d")
        a("s_setprio 0")
        a("s_waitcnt vmcnt(0)")
        a(f"s_atomic_add s53, {s(S_WV,2)}, 0 glc")
        self.stamp(11)
        self.stamp(7, "hd")
        a(f"{M5}:")
        setup()
        tag()
        a(f"s_cmp_lt_u32 {s(S_W)}, 6")
        a(f"s_cbranch_scc1 {Mc}")
        a.c("the rest of the stream waits until the K/V piece is on its way out")
        self.stamp(4, "hd")
        a(f"v_mov_b32 v21, {L_MK+112}")
        self.await_(20, vaddr=21, val="1", sleep=0)
        self.stamp(5, "hd")
        a(f"s_mov_b32 s101, 8")
        a(f"s_branch {Ll}")
        a(f"{Mc}:")
        a("s_barrier")
        a(f"s_mov_b32 {s(S_EPOCH)}, 8")
        rb = self.o.get("rotB", 1)
        if rb == 0: a(f"s_mov_b32 {s(S_KC0)}, 0")
        if rb == 2:
            a(f"s_and_b32 {s(S_KC0)}, {s(S_G)}, 3")
            a(f"s_lshl_b32 {s(S_KC0)}, {s(S_KC0)}, 1")
        a(f"s_lshl_b32 {s(T)}, {s(WB)}, 11")
        self.add64(SF1, SF1, s(T))
        a(f"""
        s_lshl_b32 {s(T)}, {s(S_J)}, 12
        s_add_u32 {s(T)}, {s(T)}, {WS_F2}
        """)
        self.add64(8, S_WS, s(T))
        a(f"""
        s_lshl_b32 {s(T)}, {s(S_G)}, 1
        s_add_u32 {s(T)}, {s(T)}, {s(RB)}
        s_lshl_b32 {s(T)}, {s(T)}, 1
        s_lshr_b32 {s(T+1)}, {s(S_J)}, 2
        s_add_u32 {s(T+1)}, {s(T+1)}, {s(T)}
        s_mul_i32 {s(T+1)}, {s(T+1)}, {2*KVREC}
        s_add_u32 {s(T+1)}, {s(T+1)}, {WS_KV+C4_OFF}
        """)
        self.add64(10, S_WS, s(T+1))
        a(f"""
        s_add_u32 {s(T)}, {s(T)}, {s(HP)}
        s_mul_i32 {s(T)}, {s(T)}, {2*KVREC}
        s_add_u32 {s(T)}, {s(T)}, {WS_KV+C4_OFF}
        """)
        self.add64(12, S_WS, s(T))
        self.stamp(4)
        a("s_barrier")
        self.stamp(5)
        a("s_branch L_bodyB")
        a("L_cutB:")
        a("L_bodyB:")
        a(LOW)
        if self.o.get("noB"):
            a(f"ds_write_b32 {v(V_SLOT)}, v25 offset:48")
            a(f"s_mov_b32 {s(S_EPOCH)}, {E_CLR-1}")
            self.arrive(20)
            a("s_branch L_Bend")
        vm = []
        def vmwait(label):
            n = len(vm) - 1 - max(i for i, x in enumerate(vm) if x == label)
            a(f"s_waitcnt vmcnt({n})")
            return n
        def loads(st):
            G = []
            slot = L_W + (st % 4)*16384
            if st < 8:
                pre = [f"s_add_u32 {s(T)}, {s(S_KC0)}, {st}",
                       f"s_and_b32 {s(T)}, {s(T)}, 7",
                       f"s_lshl_b32 {s(T+1)}, {s(T)}, 7",
                       f"s_add_u32 {s(T+1)}, {s(T+1)}, {s(SXO)}",
                       f"s_add_u32 {s(T+2)}, {s(S_BX)}, {s(T+1)}",
                       f"s_addc_u32 {s(T+3)}, {s(S_BX+1)}, 0"]
                G.append(pre + self.dma(VX, T+2, SXM, L_X + st*8192))
                G.append(self.dma(VX+1, T+2, SXM, L_X + st*8192 + 1024))
                pre = [f"s_mul_i32 {s(T)}, {s(T)}, {64*3072}",
                       f"s_add_u32 {s(T)}, {s(T)}, {s(SWO)}",
                       f"s_lshl_b32 {s(T+1)}, {s(RB)}, 10",
                       f"s_add_u32 {s(T)}, {s(T)}, {s(T+1)}",
                       f"s_add_u32 {s(T)}, {s(T)}, 1024",
                       f"s_add_u32 {s(T+2)}, {s(S_WQKV)}, {s(T)}",
                       f"s_addc_u32 {s(T+3)}, {s(S_WQKV+1)}, 0"]
                for i in range(4): G.append((pre if i == 0 else []) + self.dma(VW+i, T+2, SWM, slot + i*1024))
            elif st < 12:
                pre = [f"s_add_u32 {s(T)}, {s(S_KC0)}, {s(RB)}",
                       f"s_add_u32 {s(T)}, {s(T)}, {2*(st-8)}",
                       f"s_and_b32 {s(T)}, {s(T)}, 7",
                       f"s_mul_i32 {s(T)}, {s(T)}, {64*3072}",
                       f"s_add_u32 {s(T)}, {s(T)}, {s(SWO)}",
                       f"s_add_u32 {s(T+2)}, {s(S_WQKV)}, {s(T)}",
                       f"s_addc_u32 {s(T+3)}, {s(S_WQKV+1)}, 0"]
                for i in range(4): G.append((pre if i == 0 else []) + self.dma(VW+i, T+2, SWM, slot + i*1024))
            else:
                base, L = (S_AWO, L_X) if st < 16 else (S_BWO, L_W)
                u = st % 4
                pre = [f"s_add_u32 {s(T)}, {s(S_G)}, {u}",
                       f"s_and_b32 {s(T)}, {s(T)}, 3",
                       f"s_lshl_b32 {s(T)}, {s(T)}, 2",
                       f"s_add_u32 {s(T)}, {s(T)}, {s(WB)}",
                       f"s_lshl_b32 {s(T)}, {s(T)}, 8",
                       f"s_add_u32 {s(T)}, {s(T)}, {s(S_J)}",
                       f"s_lshl_b32 {s(T)}, {s(T)}, 7",
                       f"s_add_u32 {s(T+2)}, {s(base)}, {s(T)}",
                       f"s_addc_u32 {s(T+3)}, {s(base+1)}, 0"]
                for i in range(4): G.append((pre if i == 0 else []) + self.dma(VO+i, T+2, SWM, L + u*16384 + i*1024))
            return G
        done = set()
        def put(st, g):
            thr = self.o.get("thr", 5) if st < 12 else self.o.get("wthr", 4)
            if st < 4: thr = self.o.get("thr0", 4)
            done.add(st)
            if thr: g = [x if x != "s_nop 0" else f"s_waitcnt vmcnt({thr-1})" for x in g]
            self.emit(g); vm.append(st)
        def reads(st):
            R = []; B = F[st % 2]; slot = (st % 4)*16384
            if st < 8:
                for t in range(4):
                    R.append(f"ds_read_b128 {v(B+12*t,4)}, {v(XA+t)} offset:{st*8192}")
                    for k in range(2):
                        for sx in range(2):
                            R.append(f"ds_read_b64_tr_b16 {v(B+12*t+4+4*k+2*sx,2)}, {v(WA)} offset:{slot + k*8192 + t*2048 + sx*256}")
            else:
                for t in range(8):
                    R.append(f"ds_read_b128 {v(B+8*t,4)}, {v(XA+(t&3))} offset:{(2*(st-8)+t//4)*8192}")
                    for sx in range(2):
                        R.append(f"ds_read_b64_tr_b16 {v(B+8*t+4+2*sx,2)}, {v(WA)} offset:{slot + t*2048 + sx*256}")
            return R
        def mfmas(st):
            M = []; B = F[st % 2]
            if st < 8:
                for t in range(4):
                    for k, acc in enumerate((AK, AV)):
                        c = "0" if (acc == AV and st == 0 and t == 0) else v(acc,16)
                        M.append(f"v_mfma_f32_32x32x16_bf16 {v(acc,16)}, {v(B+12*t,4)}, {v(B+12*t+4+4*k,4)}, {c}")
            else:
                for t in range(8):
                    M.append(f"v_mfma_f32_32x32x16_bf16 {v(AQ,16)}, {v(B+8*t+4,4)}, {v(B+8*t,4)}, {v(AQ,16)}")
            return M
        def arrive():
            a(HI); self.arrive(20); a(LOW)
        def iteration(i, after=None):
            M = mfmas(i)
            R = reads(i+1) if i < 11 else []
            G = [(st, g) for st in self.o.get("sched", {9: [12], 10: [13], 11: [14]}).get(i, [i+4] if i < 8 else []) for g in loads(st)]
            fi = self.o.get("fi", 8)
            Lok = a.label("ok")
            self.stamp(i+1, "it")
            a("s_waitcnt lgkmcnt(14)")
            a(M[0])
            if self.o.get("pf1", 1): a(f"ds_read_b32 v21, {v(V_ALL)}")
            if G:
                self.emit(G[0][1][:-3]); G[0] = (G[0][0], G[0][1][-3:])
            if self.o.get("pf1", 1): a("s_waitcnt lgkmcnt(0)")
            else: a(f"ds_read_b32 v21, {v(V_ALL)}")
            a(M[1])
            a(f"""
            s_waitcnt lgkmcnt(0)
            {HI}
            v_cmp_gt_u32 vcc, {s(S_EPOCH)}, v21
            s_cbranch_vccz {Lok}
            """)
            self.await_(21)
            a(f"{Lok}:")
            a(LOW)
            if i == fi + 1:
                Lf = a.label("b")
                a(f"s_cmp_lg_u32 {s(WB)}, 0")
                a(f"s_cbranch_scc1 {Lf}")
                a(f"s_lshl_b32 {s(T+6)}, {s(S_G)}, 7")
                self.add64(T+6, 8, s(T+6))
                a("s_mov_b64 exec, 1")
                a(f"global_store_dword {v(V_ZERO)}, {v(V_TAG)}, {s(T+6,2)} sc1")
                a("s_mov_b64 exec, -1")
                a(f"{Lf}:")
                self.stamp(7)
            items = []
            nG, nR = len(G), len(R)
            gi = 0
            for k, x in enumerate(R):
                items.append((1.3, x))
                while gi < nG and (gi+1)*nR <= (k+1)*nG:
                    items.append((len(G[gi][1]), G[gi])); gi += 1
            items += [(len(g[1]), g) for g in G[gi:]]
            pre = [5, 0, 0, 0, 0, 0, 6]
            tot = sum(w for w, _ in items) + sum(pre)
            for k in range(7):
                acc = pre[k]
                left = (sum(w for w, _ in items) + sum(pre[k:])) / (7 - k)
                while items and (k == 6 or acc + items[0][0]/2 <= left):
                    w, x = items.pop(0); acc += w
                    if isinstance(x, str): a(x)
                    else: put(*x)
                if k < 6 and R: a(f"s_waitcnt lgkmcnt({self.o.get('lw', 3)})")
                if k < 6: a(M[k+2])
            if i < 11:
                if i == fi:
                    vmwait("part")
                    a(f"s_mov_b32 {s(S_EPOCH)}, {E_CLR-1}")
                elif i + 2 <= 11 and i < fi: vmwait(i+2)
                arrive()
            if i in self.o.get("tr", {}):
                touch_round(self.o["tr"][i]); vm.append("t")
            if after: after()
        a.c("---- B: k,v projections")
        a("s_mov_b64 exec, 0xffff")
        a(f"global_load_dwordx4 v[88:91], {v(V_L128)}, {s(SF1,2)} sc1"); vm.append("poll")
        a("s_mov_b64 exec, -1")
        G0 = [(st, g) for st in (0, 1) for g in loads(st)]
        for st, g in G0[:2]: put(st, g)
        Lr = a.label("b")
        vmwait("poll")
        a(HI)
        a("s_mov_b64 exec, 0xffff")
        self.check4(88)
        a(f"s_cbranch_scc1 {Lr}")
        self.poll4(V_L128, SF1, 88, sleep=4)
        a(f"{Lr}:")
        a("s_mov_b64 exec, -1")
        a(f"ds_write_b32 {v(V_SLOT)}, v25 offset:48")
        a(LOW)
        for st, g in G0[2:]: put(st, g)
        vmwait(0)
        a(HI)
        self.arrive(20)
        pro = self.o.get("pro", 4)
        if pro >= 3:
            for g in loads(2): put(2, g)
        self.await_(21)
        self.stamp(6)
        self.emit(reads(0))
        vmwait(1)
        self.arrive(20)
        a(LOW)
        if pro >= 4:
            for g in loads(3): put(3, g)
        if -1 in self.o.get("tr", {}):
            touch_round(self.o["tr"][-1]); vm.append("t")
        def clr():
            a.c("mark the A-side output images of the matching wave as not yet written")
            a(f"s_sub_u32 {s(T)}, {s(S_WS)}, {WS_OB-WS_OA}")
            a(f"s_subb_u32 {s(T+1)}, {s(S_WS+1)}, 0")
            a(f"global_store_dwordx4 {v(self.V_IMG)}, v[252:255], {s(T,2)} sc1")
            a(f"global_store_dwordx4 {v(self.V_IMG)}, v[252:255], {s(T,2)} offset:1024 sc1")
            vm.append("clr"); vm.append("clr")
        for i in range(8): iteration(i, clr if i == self.o.get("ci", 7) else None)
        a.c("---- B: phi(k), partial state: rows (head, e) x columns (head, d), and the column sums z")
        a(f"""
        s_lshl_b32 {s(T)}, {s(S_J)}, 1
        s_add_u32 {s(T)}, {s(T)}, {s(HP)}
        s_lshl_b32 {s(T)}, {s(T)}, 12
        s_add_u32 {s(T)}, {s(T)}, {WS_ACC}
        """)
        self.add64(T+4, S_WS, s(T))
        a("s_nop 3")
        a(HI)
        self.phi(AK)
        for i in range(8): a(f"v_cvt_pk_bf16_f32 {v(AV+i)}, {v(AV+2*i)}, {v(AV+2*i+1)}")
        D0, D1 = F[1], F[1]+16
        LK, LJ, LK2, LJ2 = a.label("k1"), a.label("kj"), a.label("k2"), a.label("kj2")
        a(f"""
        {LOW}
        s_nop 0
        v_mfma_f32_32x32x16_bf16 {v(D0,16)}, {v(AV,4)}, {v(AK,4)}, 0
        v_mfma_f32_32x32x16_bf16 {v(D0,16)}, {v(AV+4,4)}, {v(AK+4,4)}, {v(D0,16)}
        v_mfma_f32_32x32x16_bf16 {v(D1,16)}, {v(X,4)}, {v(AK,4)}, 0
        v_mfma_f32_32x32x16_bf16 {v(D1,16)}, {v(X,4)}, {v(AK+4,4)}, {v(D1,16)}
        s_nop 4
        {HI}
        s_mov_b32 exec_lo, 0xffff
        s_mov_b32 exec_hi, 0xffff
        s_cmp_eq_u32 {s(RB)}, 0
        s_cbranch_scc0 {LK}
        ds_write_b128 {v(V_SX)}, {v(D0+4,4)}
        s_not_b64 exec, exec
        ds_write_b128 {v(V_SX)}, {v(D0+12,4)}
        s_branch {LJ}
        {LK}:
        ds_write_b128 {v(V_SX)}, {v(D0,4)}
        s_not_b64 exec, exec
        ds_write_b128 {v(V_SX)}, {v(D0+8,4)}
        {LJ}:
        s_mov_b64 exec, -1
        """)
        self.softbar(20)
        a(f"""
        ds_read_b128 {v(AK,4)}, {v(X+4)}
        s_mov_b32 exec_lo, 0xffff
        s_mov_b32 exec_hi, 0xffff
        s_cmp_eq_u32 {s(RB)}, 0
        s_waitcnt lgkmcnt(0)
        s_cbranch_scc0 {LK2}
        """)
        for rbv, lab in ((0, None), (1, LK2)):
            if lab: a(f"{lab}:")
            for h in range(2):
                for i in (0, 2): a(f"v_pk_add_f32 {v(AK+i,2)}, {v(AK+i,2)}, {v(D0+8*h+4*rbv+i,2)}")
                if h == 0: a("s_not_b64 exec, exec")
            if not lab: a(f"s_branch {LJ2}")
        a(f"{LJ2}:")
        a("s_mov_b64 exec, -1")
        for i in range(4):
            a(f"global_atomic_add_f32 {v(X+6)}, {v(AK+i)}, {s(T+4,2)} offset:{64*i} sc1"); vm.append("part")
        a("s_mov_b32 exec_hi, 0")
        a(f"global_atomic_add_f32 {v(X+5)}, {v(D1)}, {s(T+4,2)} offset:1024 sc1"); vm.append("part")
        a("s_mov_b32 exec_hi, -1")
        a(LOW)
        self.stamp(3)
        a.c("---- B: q projection")
        for i in range(8, 12): iteration(i)
        todo = [st for st in range(12, 20) if st not in done]
        def more(n=1):
            for _ in range(n):
                if todo:
                    st = todo.pop(0)
                    for g in loads(st): put(st, g)
        self.stamp(1, "hop")
        a("s_nop 8")
        more()
        a(HI); self.phi(AQ); a(LOW)
        while any(st < 16 for st in todo): more()
        more(self.o.get("pre2", 0))
        self.stamp(2, "hop")
        a.c("---- B: the summed state, the normalised output images")
        D0, D1 = AK, AV
        a(f"""
        s_lshl_b32 {s(T)}, {s(S_J)}, 1
        s_add_u32 {s(T)}, {s(T)}, {s(HP)}
        s_lshl_b32 {s(T)}, {s(T)}, 12
        s_add_u32 {s(T)}, {s(T)}, {WS_ACC}
        """)
        self.add64(T+4, S_WS, s(T))
        LR = a.label("nr")
        a(f"""
        {HI}
        s_cmp_lg_u32 {s(WB)}, 1
        s_cbranch_scc1 {LR}
        s_mov_b32 exec_hi, 0
        """)
        self.poll(V_L128, 8, [0], 21, sleep=8)
        a("s_mov_b32 exec_hi, -1")
        a(f"{LR}:")
        vmwait(15)
        self.softbar(20, sleep=2)
        self.stamp(3, "hop")
        self.stamp(8)
        for i in range(4):
            a(f"global_load_dwordx4 {v(XF+4*i,4)}, {v(V_L4)}, {s(T+4,2)} offset:{2048*(i//2)+32*(i%2)} sc1"); vm.append("state")
        self.outproj_wfrags()
        self.arrive(20)
        more()
        vmwait("state")
        self.stamp(4, "hop")
        for i in range(8): a(f"v_cvt_pk_bf16_f32 {v(XF+i)}, {v(XF+2*i)}, {v(XF+2*i+1)}")
        a(f"""
        s_nop 1
        v_mfma_f32_32x32x16_bf16 {v(D0,16)}, {v(XF,4)}, {v(AQ,4)}, 0
        v_mfma_f32_32x32x16_bf16 {v(D1,16)}, {v(XF+4,4)}, {v(AQ+4,4)}, 0
        s_nop 7
        s_nop 3
        v_add_f32 {v(D0+8)}, {f32(1e-6)}, {v(D0+8)}
        v_add_f32 {v(D1+8)}, {f32(1e-6)}, {v(D1+8)}
        """)
        self.normalize([(D0, D0+8), (D1, D1+8)], 80, guard=False)
        vm.append("ob"); vm.append("ob")
        a(LOW)
        self.stamp(5, "hop")
        more()
        vmwait("ob")
        self.count(10)
        self.stamp(6, "hop")
        self.stamp(12)
        more()
        if self.o.get("touch", 0):
            a(HI)
            a("v_lshlrev_b32 v22, 10, v0")
            a(LOW)
            a("s_mov_b32 exec_hi, 0")
            a(f"global_load_dword v22, v22, {s(S_OUTB,2)}")
            a("s_mov_b32 exec_hi, -1")
        if self.o.get("pk", 1): more(4)
        self.count_peek(12, T+8)
        more(4)
        self.stamp(7, "hop")
        self.count_wait(12, T+8, 8, sleep=self.o.get("cs", 2))
        a(HI)
        self.await_(20)
        self.stamp(8, "hop")
        a.c("---- B: the group's o_B images go to LDS for the A waves")
        a(f"""
        s_lshl_b32 {s(SWM)}, {s(RB)}, 15
        s_lshl_b32 {s(SWO)}, {s(HP)}, 14
        s_lshl_b32 {s(T)}, {s(S_G)}, 13
        s_sub_u32 {s(SWO)}, {s(SWO)}, {s(T)}
        """)
        ot = self.o.get("othr", 4)
        for p in range(4):
            a(f"""
            s_add_u32 {s(T)}, {s(S_J)}, {p}
            s_and_b32 {s(T)}, {s(T)}, 3
            s_lshl_b32 {s(T)}, {s(T)}, 12
            s_add_u32 {s(T+1)}, {s(T)}, {s(SWO)}
            s_and_b32 {s(T+1)}, {s(T+1)}, 0x7fff
            s_add_u32 m0, {s(SWM)}, {s(T+1)}
            s_add_u32 {s(T)}, {s(T)}, {WS_OB-WS_OA}
            """)
            self.add64(T+2, S_IMG, s(T))
            for k in range(4):
                a(f"s_waitcnt vmcnt({ot-1})")
                a(f"global_load_lds_dwordx4 {v(V_L16)}, {s(T+2,2)} offset:{k*1024} sc1")

        self.newpage("Bend")
        for p in range(4):
            a(f"s_add_u32 {s(T)}, {s(S_J)}, {p}")
            a(f"s_and_b32 {s(T)}, {s(T)}, 3")
            a(f"s_lshl_b32 {s(T)}, {s(T)}, 12")
            self.add64(8+2*p, S_IMG, s(T))
        a(f"s_mov_b32 {s(S_PEND)}, 15")
        a(f"s_mov_b32 {s(T+9)}, 0")
        a(f"v_add_u32 v21, -16, {v(V_ALL)}")
        a(f"s_mul_i32 {s(T)}, {s(S_G)}, {8*KVREC}")
        a(f"s_add_u32 {s(T)}, {s(T)}, {WS_KV+C4_OFF+32}")
        self.add64(T+4, S_WS, s(T))
        a(HI)
        a("s_waitcnt vmcnt(0) lgkmcnt(0)")
        self.stamp(9)
        self.stamp(9, "hop")
        a.c("tell the group when this CU is about to publish (a timing hint only)")
        Ln = a.label("b")
        a(f"s_cmp_lg_u32 {s(WB)}, 1")
        a(f"s_cbranch_scc1 {Ln}")
        self.await_(20, vaddr=21, val=str(E_CLR), sleep=self.o.get("aws", 1))
        self.count(T+4)
        a(f"{Ln}:")
        a("s_barrier")
        a.c("every wave of the grid has used this launch's tag by now: advance the generation word")
        Lg = a.label("b")
        a(f"""
        s_lshl_b32 {s(T)}, s2, 2
        s_add_u32 {s(T)}, {s(T)}, {s(WB)}
        s_cmp_lg_u32 {s(T)}, 0
        s_cbranch_scc1 {Lg}
        s_mov_b64 exec, 1
        global_store_dword {v(V_ZERO)}, {v(V_TAG)}, {s(S_WS,2)} offset:{WS_G} sc1
        s_mov_b64 exec, -1
        {Lg}:
        """)
        a.c("start fetching only when the whole group is about to publish (reads that meet the writes are slow)")
        for i in range(0, 32, 2): a(f"v_mov_b64 {v(96+i,2)}, 0")
        a(f"v_and_b32 v22, 4, v0")
        a(f"v_lshl_add_u32 v22, v22, 2, v21")
        Ln = a.label("b")
        a(f"s_cmp_lg_u32 {s(WB)}, 1")
        a(f"s_cbranch_scc1 {Ln}")
        if not self.o.get("xplain"): a("s_waitcnt lgkmcnt(0)")
        a(f"s_add_u32 {s(T+8)}, {s(T+11)}, 1")
        if not self.o.get("xplain"): self.count_wait(T+4, T+8, 8, sleep=self.o.get("anns", 0))
        a(f"{Ln}:")
        a(f"s_mov_b32 {s(S_EPOCH)}, 38")
        self.arrive(20)
        a("v_mov_b32 v19, 40")
        if self.o.get("xplain") != 2: self.await_(20, vaddr=22, sleep=0)
        a(f"s_mov_b32 {s(S_EPOCH)}, 40")
        self.stamp(4)

    def finish(self):
        a = self.a
        a("L_fin:")
        if self.o.get("spin"):
            m = self.o.get("meas")
            a(f"s_mov_b32 s72, {self.o['spin']}")
            if m:
                if 13 in m[:2]:
                    a("s_waitcnt vmcnt(0)")
                    self.stamp(13)
                a(f"""
                s_waitcnt lgkmcnt(0)
                s_sub_u32 s70, s70, s68
                s_mul_i32 s70, s70, 10
                s_min_u32 s70, s70, 30000
                s_cmp_eq_u32 {s(S_W)}, {m[2]}
                s_cselect_b32 s70, s70, 0
                s_lshr_b32 s73, s2, 3
                s_cmp_eq_u32 s73, {m[3] if m[3] >= 0 else 's73'}
                s_cselect_b32 s70, s70, 0
                s_add_u32 s72, s72, s70
                """)
            a(f"""
            L_spin:
            s_memrealtime s[66:67]
            s_waitcnt lgkmcnt(0)
            s_sub_u32 s66, s66, s64
            s_cmp_lt_u32 s66, s72
            s_cbranch_scc1 L_spin
            """)
        if self.stamps:
            a("s_waitcnt vmcnt(0)")
            self.stamp(13)
            a(f"""
            s_waitcnt lgkmcnt(0)
            s_cmp_ge_u32 {s(S_W)}, 4
            s_cselect_b32 {s(S_ST+28)}, {s(T+9)}, {s(S_ST+28)}
            s_lshl_b32 {s(T)}, s2, 3
            s_add_u32 {s(T)}, {s(T)}, {s(S_W)}
            s_lshl_b32 {s(T)}, {s(T)}, 6
            s_add_u32 {s(T)}, {s(T)}, {WS_STAMP}
            v_mov_b32 v20, {s(T)}
            """)
            for i in range(16): a(f"v_mov_b32 {v(32+i)}, {s(S_ST+2*i)}")
            for i in range(4): a(f"global_store_dwordx4 v20, {v(32+4*i,4)}, {s(S_WS,2)} offset:{16*i}")
        a("L_end:")
        a("s_endpgm")

    def build(self):
        self.entry()
        self.head_A()
        self.attn()
        self.tail_A()
        self.roleB()
        self.outproj()
        self.finish()
        self.check()
        self.retry()
        self.a("L_last:")
        self.attn_fallback("L_norm")
        L = self.a.lines
        ia, ib, ic = L.index("L_cutA:"), L.index("L_roleB:"), L.index("L_cutB:")
        self.a.lines = L[:ia] + L[ib:ic] + L[ia+1:ib] + L[ic+1:]
        return self.wrap()

    def wrap(self):
        hdr = open("cdna_kernels/%s.s.ref" % NAME).read().split("; Override launch")[0]
        return hdr + f"""; Override launch geometry by editing the next line (default: block=256,
; grid=ceil(out_elems/256), lds=0). Harness parses it; keep it on one line.
; @launch grid=(256,1,1) block=(512,1,1) lds={LDS_BYTES}
.amdgcn_target "amdgcn-amd-amdhsa--gfx950"
.text
.globl {NAME}_kernel
.p2align 8
.type {NAME}_kernel,@function
{NAME}_kernel:
""" + self.a.text() + f""".section .rodata,"a"
.p2align 6
.amdhsa_kernel {NAME}_kernel
  .amdhsa_next_free_vgpr 256
  .amdhsa_next_free_sgpr 102
  .amdhsa_accum_offset 256
  .amdhsa_group_segment_fixed_size 0
  .amdhsa_kernarg_size 88
  .amdhsa_user_sgpr_count 2
  .amdhsa_user_sgpr_kernarg_segment_ptr 1
  .amdhsa_system_sgpr_workgroup_id_x 1
  .amdhsa_dx10_clamp 0
.end_amdhsa_kernel
"""

if __name__ == "__main__":
    out = sys.argv[1]
    stamps = "--stamps" in sys.argv
    opts = {}
    for x in sys.argv[2:]:
        if "=" in x:
            k, val = x.split("=", 1); opts[k] = eval(val)
    open(out, "w").write(Gen(stamps=stamps, opts=opts).build())
```

```python
import sys, struct
from asmlib import *

NAME = "concat_heads__grouped_kv_mqa__linear_attn_block__prompt"
def f32(x): return "0x%08x" % struct.unpack("<I", struct.pack("<f", x))[0]
LOG2E = 1.4426950408889634

WS_G   = 0x0
WS_F1  = 0x8000
WS_ACC = 0x10000
WS_KV  = 0x20000
C4_OFF = 576
WS_F2  = 0x60000
WS_OA  = 0x100000
WS_OB  = 0x300000
WS_STAMP = 0x800000
KVREC = 640
KVTILE = 4*KVREC
L_X   = 0
L_W   = 0x10000
L_WKV = 0x20000
L_MISC= 0x24000
L_SYNC= L_MISC + 0x3f00
LDS_BYTES = 0x28000
SPIN_MAX = 200000

S_AX, S_WQ, S_WK, S_WV, S_AWO, S_BX, S_WQKV, S_BWO = 8, 10, 12, 14, 16, 18, 20, 22
S_OUT, S_WS = 24, 26
S_W, S_G, S_J, S_C, S_TAG, S_XCD, S_KC0, S_EPOCH = 28, 29, 30, 31, 32, 33, 34, 35
T = 36
S_HI, S_LO, S_W3 = 50, 51, 52
S_IMG = 54
S_OUTB = 56
S_EX = 58
S_PEND = 59
S_PC = 0
E_CLR = 30
L_MK = L_SYNC + 80
U = 4
S_ST = 64
V_L16, V_SLOT, V_ALL, V_TAG, V_ZERO = 4, 5, 6, 7, 1

class Gen:
    def __init__(self, stamps=False, opts=None):
        self.a = Asm()
        self.stamps = stamps
        self.o = opts or {}
        self.inB = False
    def stamp(self, i, grp=None):
        if self.o.get("jit") and i != 0:
            L1, L2 = self.a.label("j"), self.a.label("j")
            self.a(f"""
            s_cselect_b32 s76, 1, 0
            s_mul_i32 s74, s74, 1664525
            s_add_u32 s74, s74, 1013904223
            s_lshr_b32 s75, s74, 24
            s_cmp_ge_u32 s75, {self.o['jit']}
            s_cbranch_scc1 {L2}
            {L1}:
            s_sleep 4
            s_sub_u32 s75, s75, 1
            s_cbranch_scc0 {L1}
            {L2}:
            s_cmp_lg_u32 s76, 0
            """)
        m = self.o.get("meas")
        if m and grp is None and i in m[:2]: self.a(f"s_memrealtime s[{68+2*m.index(i)}:{69+2*m.index(i)}]")
        if grp != self.o.get("stg") and (grp or (self.inB and self.o.get("stg") and i not in (0, 13))): return
        if self.stamps:
            self.a(f"s_memrealtime {s(S_ST+2*i,2)}")
            cyc = self.o.get("cyc", (6, 7))
            if i in cyc:
                self.a(f"s_memtime {s(S_ST+2*(14+list(cyc).index(i)),2)}")
    def add64(self, dst, base, off):
        self.a(f"s_add_u32 {s(dst)}, {s(base)}, {off}")
        self.a(f"s_addc_u32 {s(dst+1)}, {s(base+1)}, 0")
    def dma(self, vreg, pair, m0s, m0i, off=0):
        return [f"s_add_u32 m0, {s(m0s)}, {m0i}", "s_nop 0",
                f"global_load_lds_dwordx4 {v(vreg)}, {s(pair,2)}" + (f" offset:{off}" if off else "")]
    def marker(self, idx):
        self.a(f"""
        s_lshl_b32 {s(T)}, {s(S_W3)}, 2
        s_add_u32 m0, {s(T)}, {L_MK + 4*idx}
        s_mov_b64 exec, 1
        global_load_lds_dword {v(V_ZERO)}, {s(S_PC,2)}
        s_mov_b64 exec, -1
        """)
    def newpage(self, name, back=None):
        a = self.a
        a(f"s_branch L_{name}")
        a(".p2align 12")
        if back:
            a(f"L_{name}_stub:")
            a(f"s_branch {back}")
            a("s_nop 0")
        a(f"L_{name}:")
    def emit(self, L):
        for x in L: self.a(x)
    def poll(self, vaddr, pair, offs, vt, sleep=2):
        a = self.a
        Lp, Ld = a.label("poll"), a.label("polld")
        a(f"s_mov_b32 {s(T+10)}, 0")
        a(f"{Lp}:")
        for i, o in enumerate(offs):
            a(f"global_load_dword {v(vt+i)}, {v(vaddr)}, {s(pair,2)} offset:{o} sc1")
        a("s_waitcnt vmcnt(0)")
        for i in range(len(offs)):
            if i == 0:
                a(f"v_cmp_ne_u32 vcc, {s(S_TAG)}, {v(vt)}")
            else:
                a(f"v_cmp_ne_u32 {s(T+12,2)}, {s(S_TAG)}, {v(vt+i)}")
                a(f"s_or_b64 vcc, vcc, {s(T+12,2)}")
        a(f"s_add_u32 {s(T+10)}, {s(T+10)}, 1")
        a(f"s_cmp_eq_u64 vcc, 0")
        a(f"s_cbranch_scc1 {Ld}")
        if sleep: a(f"s_sleep {sleep}")
        a(f"s_cmp_lt_u32 {s(T+10)}, {SPIN_MAX}")
        a(f"s_cbranch_scc1 {Lp}")
        a(f"{Ld}:")
    def check4(self, vt):
        a = self.a
        a(f"v_cmp_ne_u32 vcc, {s(S_TAG)}, {v(vt)}")
        for i in range(1, 4):
            a(f"v_cmp_ne_u32 {s(T+12,2)}, {s(S_TAG)}, {v(vt+i)}")
            a(f"s_or_b64 vcc, vcc, {s(T+12,2)}")
        a(f"s_cmp_eq_u64 vcc, 0")
    def poll4(self, vaddr, pair, vt, sleep):
        a = self.a
        Lp, Ld = a.label("poll"), a.label("polld")
        a(f"s_mov_b32 {s(T+10)}, 0")
        a(f"{Lp}:")
        a(f"global_load_dwordx4 {v(vt,4)}, {v(vaddr)}, {s(pair,2)} sc1")
        a(f"s_add_u32 {s(T+10)}, {s(T+10)}, 1")
        a("s_waitcnt vmcnt(0)")
        self.check4(vt)
        a(f"s_cbranch_scc1 {Ld}")
        if sleep: a(f"s_sleep {sleep}")
        a(f"s_cmp_lt_u32 {s(T+10)}, {SPIN_MAX}")
        a(f"s_cbranch_scc1 {Lp}")
        a(f"{Ld}:")
    def count(self, pair):
        a = self.a
        a(f"s_mov_b32 {s(T+11)}, 1")
        a(f"s_atomic_add {s(T+11)}, {s(pair,2)}, 0 glc")
    def count_peek(self, pair, sd):
        self.a(f"s_load_dword {s(sd)}, {s(pair,2)}, 0 glc")
    def count_wait(self, pair, sd, n, sleep=8):
        a = self.a
        Lp, Ld = a.label("cw"), a.label("cwd")
        a(f"""
        s_mov_b32 {s(T+10)}, 0
        {Lp}:
        s_waitcnt lgkmcnt(0)
        s_cmp_ge_u32 {s(sd)}, {n}
        s_cbranch_scc1 {Ld}
        {f"s_sleep {sleep}" if sleep else ""}
        s_load_dword {s(sd)}, {s(pair,2)}, 0 glc
        s_add_u32 {s(T+10)}, {s(T+10)}, 1
        s_cmp_lt_u32 {s(T+10)}, {SPIN_MAX}
        s_cbranch_scc1 {Lp}
        s_waitcnt lgkmcnt(0)
        {Ld}:
        """)
    def flag(self, base, sidx, vm=0, shift=7):
        a = self.a
        a(f"s_lshl_b32 {s(T+10)}, {s(sidx)}, {shift}")
        a(f"s_add_u32 {s(T+10)}, {s(T+10)}, {base}")
        self.add64(T+12, S_WS, s(T+10))
        if vm is not None: a(f"s_waitcnt vmcnt({vm})")
        a("s_mov_b64 exec, 1")
        a(f"global_store_dword {v(V_ZERO)}, {v(V_TAG)}, {s(T+12,2)} sc1")
        a("s_mov_b64 exec, -1")
    def arrive(self, vt):
        a = self.a
        a(f"s_add_u32 {s(S_EPOCH)}, {s(S_EPOCH)}, 1")
        a(f"v_mov_b32 {v(vt)}, {s(S_EPOCH)}")
        a(f"ds_write_b32 {v(V_SLOT)}, {v(vt)}")
    def await_(self, vt, vaddr=V_ALL, val=None, off=0, sleep=1):
        a = self.a
        Lp, Ld = a.label("sb"), a.label("sbd")
        a(f"s_mov_b32 {s(T+10)}, 0")
        a(f"{Lp}:")
        a(f"ds_read_b32 {v(vt)}, {v(vaddr)} offset:{off}")
        a("s_waitcnt lgkmcnt(0)")
        a(f"v_cmp_gt_u32 vcc, {val or s(S_EPOCH)}, {v(vt)}")
        a(f"s_add_u32 {s(T+10)}, {s(T+10)}, 1")
        a(f"s_cmp_eq_u64 vcc, 0")
        a(f"s_cbranch_scc1 {Ld}")
        if sleep: a(f"s_sleep {sleep}")
        a(f"s_cmp_lt_u32 {s(T+10)}, {SPIN_MAX*8}")
        a(f"s_cbranch_scc1 {Lp}")
        a(f"{Ld}:")
    def softbar(self, vt, sleep=1):
        self.arrive(vt); self.await_(vt, sleep=sleep)

    def entry(self):
        a = self.a
        a(f"""
        s_cmpk_ge_u32 s2, 256
        s_cbranch_scc1 L_end
        """)
        self.stamp(0)
        if self.o.get("spin"): a("s_memrealtime s[64:65]")
        Lp = a.label("p")
        a.c("wave 0: pull the code and this CU's share of x into the die's L2 right away")
        a(f"""
        s_load_dwordx16 s[8:23], s[0:1], 0
        s_load_dwordx2 {s(S_WS,2)}, s[0:1], 80
        s_getpc_b64 {s(U,2)}
        L_pc:
        s_lshr_b32 {s(S_C)}, s2, 3
        v_lshl_add_u32 v23, v0, 5, {s(S_C)}
        v_lshlrev_b32 v23, 7, v23
        s_and_b32 {s(S_XCD)}, s2, 7
        s_lshl_b32 {s(S_G)}, {s(S_XCD)}, 5
        s_add_u32 {s(S_C)}, {s(S_C)}, {s(S_G)}
        v_cmp_gt_u32 vcc, L_last-L_pc, v23
        s_and_b64 exec, exec, vcc
        s_cbranch_execz {Lp}
        {f"global_load_dword v18, v23, {s(U,2)}" if self.o.get("cpf", 1) else ""}
        s_mov_b64 exec, -1
        """)
        if self.o.get("xt", 0):
            a(f"""
            s_lshl_b32 {s(S_G)}, {s(S_C)}, 13
            v_lshl_add_u32 v19, v0, 7, {s(S_G)}
            s_waitcnt lgkmcnt(0)
            global_load_dword v19, v19, {s(S_AX,2)}
            """)
            if self.o.get("kt", 1):
                a(f"""
                s_mov_b64 exec, 15
                global_load_dword v17, v23, {s(S_WK,2)}
                global_load_dword v23, v23, {s(S_WV,2)}
                """)
        a(f"""
        {Lp}:
        s_mov_b64 exec, -1
        s_load_dwordx2 {s(S_OUT,2)}, s[0:1], 64
        v_lshrrev_b32 v1, 6, v0
        v_and_b32 v0, 63, v0
        v_readfirstlane_b32 {s(S_W)}, v1
        s_lshr_b32 {s(T)}, s2, 6
        s_lshr_b32 {s(S_G)}, {s(S_C)}, 3
        s_and_b32 {s(S_J)}, {s(S_C)}, 7
        s_lshl_b32 {s(T)}, {s(T)}, 1
        s_add_u32 {s(S_KC0)}, {s(T)}, {s(S_J)}
        s_and_b32 {s(S_KC0)}, {s(S_KC0)}, {7 if self.o.get('rot', 1) else 0}
        s_mov_b32 {s(S_EPOCH)}, 0
        {"s_memtime s[74:75]" if self.o.get("jit") else ""}
        {"s_waitcnt lgkmcnt(0)" if self.o.get("jit") else ""}
        s_and_b32 {s(S_W3)}, {s(S_W)}, 3
        s_lshr_b32 {s(S_HI)}, {s(S_W3)}, 1
        s_and_b32 {s(S_LO)}, {s(S_W)}, 1
        v_mov_b32 {v(V_ZERO)}, 0
        v_lshlrev_b32 {v(V_L16)}, 4, v0
        s_cmp_ge_u32 {s(S_W)}, 4
        s_cselect_b32 {s(T)}, 11, 3
        s_cselect_b32 {s(T+1)}, 1, 13
        s_lshl_b32 {s(T+2)}, {s(S_W3)}, 2
        s_add_u32 {s(T+2)}, {s(T+2)}, {L_SYNC}
        v_min_u32 v9, {s(T)}, v0
        v_add_u32 v9, {s(T+1)}, v9
        v_and_b32 v9, 15, v9
        v_lshl_add_u32 v9, v9, 4, {s(T+2)}
        ds_write_b32 v9, {v(V_ZERO)}
        """)
        a(f"""
        v_lshrrev_b32 v8, 3, v0
        v_lshlrev_b32 v2, 10, v8
        v_and_b32 v9, 7, v0
        v_lshrrev_b32 v10, 4, v0
        v_xor_b32 v9, v9, v10
        v_lshl_add_u32 v2, v9, 4, v2
        s_lshl_b32 {s(T)}, {s(S_W)}, 2
        s_add_u32 {s(T)}, {s(T)}, {L_SYNC}
        v_mov_b32 {v(V_SLOT)}, {s(T)}
        s_and_b32 {s(T)}, {s(T)}, -16
        v_and_b32 v9, 3, v0
        v_lshl_add_u32 {v(V_ALL)}, v9, 2, {s(T)}
        v_bfe_u32 v8, v0, 2, 3
        v_lshlrev_b32 v9, 4, v9
        v_lshrrev_b32 v10, 5, v0
        v_lshl_add_u32 v9, v10, 6, v9
        v_lshl_add_u32 v3, v8, 10, v9
        s_cmp_ge_u32 {s(S_W)}, 4
        s_cbranch_scc1 L_roleB
        """)

    def xfrag_addr(self, dst, sblk, vt):
        self.a(f"""
        v_and_b32 {v(vt)}, 31, v0
        v_lshlrev_b32 {v(vt+1)}, 7, {v(vt)}
        s_lshl_b32 {s(T)}, {s(sblk)}, 12
        v_add_u32 {v(vt+1)}, {s(T)}, {v(vt+1)}
        v_bfe_u32 {v(vt)}, v0, 1, 3
        v_lshrrev_b32 {v(vt+2)}, 5, v0
        v_xor_b32 {v(vt)}, {v(vt)}, {v(vt+2)}
        v_lshl_add_u32 {v(dst)}, {v(vt)}, 4, {v(vt+1)}
        v_xor_b32 {v(dst+1)}, 32, {v(dst)}
        v_xor_b32 {v(dst+2)}, 64, {v(dst)}
        v_xor_b32 {v(dst+3)}, 0x60, {v(dst)}
        """)
    def wfrag_addr(self, dst, vt):
        self.a(f"""
        v_bfe_u32 {v(vt)}, v0, 2, 2
        v_lshlrev_b32 {v(vt)}, 6, {v(vt)}
        v_bfe_u32 {v(vt+1)}, v0, 4, 1
        v_lshl_add_u32 {v(vt)}, {v(vt+1)}, 5, {v(vt)}
        v_and_b32 {v(vt+1)}, 3, v0
        v_lshl_add_u32 {v(vt)}, {v(vt+1)}, 3, {v(vt)}
        v_lshrrev_b32 {v(vt+1)}, 5, v0
        v_lshl_add_u32 {v(vt)}, {v(vt+1)}, 10, {v(vt)}
        s_lshl_b32 {s(T)}, {s(S_LO)}, 9
        s_add_u32 {s(T)}, {s(T)}, {L_W}
        v_add_u32 {v(dst)}, {s(T)}, {v(vt)}
        """)
    V_WO, V_EXW, V_EXR, V_OUT, V_IMG = 8, 9, 3, 2, 13
    def tail_addr(self, lbase, loshift, ownimg, colbytes, vt):
        a = self.a
        a(f"""
        v_bfe_u32 {v(vt)}, v0, 2, 2
        v_lshlrev_b32 {v(vt)}, 6, {v(vt)}
        v_lshrrev_b32 {v(vt+1)}, 5, v0
        v_lshl_add_u32 {v(vt)}, {v(vt+1)}, 8, {v(vt)}
        v_and_b32 {v(vt+2)}, 1, v0
        v_lshl_add_u32 {v(vt)}, {v(vt+2)}, 5, {v(vt)}
        v_bfe_u32 {v(vt+2)}, v0, 1, 1
        v_lshl_add_u32 {v(vt)}, {v(vt+2)}, 3, {v(vt)}
        v_bfe_u32 {v(vt+2)}, v0, 4, 1
        v_lshl_add_u32 {v(vt)}, {v(vt+2)}, 4, {v(vt)}
        s_mul_i32 {s(T)}, {s(S_LO)}, {loshift}
        s_add_u32 {s(T)}, {s(T)}, {lbase}
        v_add_u32 {v(self.V_WO)}, {s(T)}, {v(vt)}
        s_lshl_b32 {s(T)}, {s(S_W3)}, 12
        s_add_u32 {s(T)}, {s(T)}, {L_WKV}
        v_add_u32 {v(self.V_EXW)}, {s(T)}, {v(V_L16)}
        v_xor_b32 {v(self.V_EXR)}, 4096, {v(self.V_EXW)}
        v_lshrrev_b32 {v(vt)}, 3, v0
        v_lshlrev_b32 {v(vt)}, 11, {v(vt)}
        v_and_b32 {v(vt+1)}, 7, v0
        v_lshl_add_u32 {v(self.V_OUT)}, {v(vt+1)}, 4, {v(vt)}
        s_lshl_b32 {s(T)}, {s(S_G)}, 1
        s_add_u32 {s(T)}, {s(T)}, {s(S_HI)}
        s_lshl_b32 {s(T+1)}, {s(T)}, 16
        s_lshl_b32 {s(T+2)}, {s(S_J)}, 1
        s_add_u32 {s(T+2)}, {s(T+2)}, {s(S_LO)}
        s_lshl_b32 {s(T+3)}, {s(S_J)}, 7
        s_add_u32 {s(T+1)}, {s(T+1)}, {s(T+3)}
        s_lshl_b32 {s(T+3)}, {s(S_LO)}, 15
        s_add_u32 {s(T+1)}, {s(T+1)}, {s(T+3)}
        s_add_u32 {s(T+1)}, {s(T+1)}, {colbytes}
        """)
        self.add64(S_OUTB, S_OUT, s(T+1))
        a(f"""
        s_lshl_b32 {s(T)}, {s(T)}, 15
        s_lshl_b32 {s(T+2)}, {s(T+2)}, 11
        s_add_u32 {s(T+2)}, {s(T+2)}, {s(T)}
        s_add_u32 {s(T+2)}, {s(T+2)}, {ownimg}
        v_add_u32 {v(self.V_IMG)}, {s(T+2)}, {v(V_L16)}
        s_lshl_b32 {s(T+1)}, {s(S_LO)}, 14
        s_add_u32 {s(T)}, {s(T)}, {s(T+1)}
        s_add_u32 {s(T)}, {s(T)}, {WS_OA}
        """)
        self.add64(S_IMG, S_WS, s(T))

    RQ, RO, RS, RKV = 16, 64, 128, 192
    RIDX, RKA, RVA = 10, 11, 12
    def head_A(self):
        a = self.a
        RQ, RO, RS, RKV, RIDX, RKA, RVA = self.RQ, self.RO, self.RS, self.RKV, self.RIDX, self.RKA, self.RVA
        XA, WA = 248, 252
        a.c("=========================== role A ===========================")
        a.c("---- what the K/V producer needs goes first")
        a(f"""
        v_xor_b32 v10, 64, v2
        v_add_u32 v10, 8192, v10
        s_and_b32 {s(T+1)}, {s(S_J)}, 6
        s_lshl_b32 {s(T+6)}, {s(S_G)}, 16
        s_lshl_b32 {s(T+2)}, {s(T+1)}, 13
        s_add_u32 {s(T+6)}, {s(T+6)}, {s(T+2)}
        s_lshl_b32 {s(T+7)}, {s(S_W)}, 14
        s_lshl_b32 {s(T+2)}, {s(T+1)}, 10
        s_add_u32 {s(T+7)}, {s(T+7)}, {s(T+2)}
        s_lshl_b32 {s(T+8)}, {s(S_W)}, 12
        s_lshl_b32 {s(T+9)}, {s(S_W)}, 1
        s_add_u32 {s(T+9)}, {s(T+9)}, {s(S_KC0)}
        s_mov_b32 {s(S_EPOCH)}, 7
        s_waitcnt lgkmcnt(0)
        """)
        self.stamp(1)
        a(f"""
        s_bitcmp1_b32 {s(S_J)}, 0
        s_cselect_b32 {s(S_WK)}, {s(S_WV)}, {s(S_WK)}
        s_cselect_b32 {s(S_WK+1)}, {s(S_WV+1)}, {s(S_WK+1)}
        """)
        for i in range(2):
            a(f"""
            s_add_u32 {s(T)}, {s(T+9)}, {i}
            s_and_b32 {s(T)}, {s(T)}, 7
            s_lshl_b32 {s(T+1)}, {s(T)}, 7
            s_add_u32 {s(T+1)}, {s(T+1)}, {s(T+6)}
            """)
            self.add64(T+2, S_AX, s(T+1))
            a(f"s_lshl_b32 {s(T)}, {s(T)}, 11")
            self.add64(T+4, S_WK, s(T))
            self.emit(self.dma(2, T+2, T+7, L_X + i*8192))
            self.emit(self.dma(10, T+2, T+7, L_X + i*8192 + 1024))
            self.emit(self.dma(V_L16, T+4, T+8, L_WKV + i*2048))
            a(f"global_load_lds_dwordx4 {v(V_L16)}, {s(T+4,2)} offset:1024")
            if i == 0: a(f"s_getpc_b64 {s(S_PC,2)}")
            self.marker(36 - 4*i)
        a("s_barrier")
        a("s_branch L_bodyA")
        a("L_cutA:")
        a("L_bodyA:")
        XF, WF = RS, RS+32
        def rd(t):
            i = t % 8
            a(f"ds_read_b128 {v(XF+4*i,4)}, {v(XA+(t&3))} offset:{(t//4)*8192}")
            a(f"ds_read_b64_tr_b16 {v(WF+4*i,2)}, {v(WA)} offset:{t*2048}")
            a(f"ds_read_b64_tr_b16 {v(WF+4*i+2,2)}, {v(WA)} offset:{t*2048+256}")
        def mm(t):
            i = t % 8
            a(f"v_mfma_f32_32x32x16_bf16 v[32:47], {v(WF+4*i,4)}, {v(XF+4*i,4)}, {'0' if t == 0 else 'v[32:47]'}")
        def qproj():
            chk = self.o.get("chk", {0: 0, 4: 1, 8: 3, 16: 5, 24: 6, 28: 7})
            self.await_(20, vaddr=52, val="1", off=128, sleep=1)
            self.await_(20, vaddr=53, val="1", off=16*chk[0], sleep=0)
            self.stamp(2)
            for t in range(4): rd(t)
            for tb in range(4, 32, 4):
                if tb not in chk:
                    for t in range(tb-4, tb):
                        rd(t+4)
                        a("s_waitcnt lgkmcnt(12)")
                        mm(t)
                    continue
                Lok, Lj = a.label("a"), a.label("a")
                ad = 54 if chk[tb] == 7 else 53
                a(f"ds_read_b32 v20, {v(ad)} offset:{16*chk[tb]}")
                a("s_waitcnt lgkmcnt(10)")
                mm(tb-4)
                a("s_waitcnt lgkmcnt(7)")
                mm(tb-3)
                a(f"""
                s_waitcnt lgkmcnt(0)
                v_cmp_gt_u32 vcc, 1, v20
                s_cmp_eq_u64 vcc, 0
                s_cbranch_scc1 {Lok}
                """)
                mm(tb-2); mm(tb-1)
                self.await_(20, vaddr=ad, val="1", off=16*chk[tb], sleep=0)
                for t in range(tb, tb+4): rd(t)
                a(f"s_branch {Lj}")
                a(f"{Lok}:")
                rd(tb); rd(tb+1)
                mm(tb-2)
                rd(tb+2); rd(tb+3)
                mm(tb-1)
                a(f"{Lj}:")
                if tb == 28: self.stamp(3)
            a.c("the first key tiles are published: their fetch overlaps the end of the projection")
            a("s_barrier")
            self.stamp(5)
            for t in range(28, 32):
                if t == 28:
                    for k in range(3): a(self.kv_ld(0, k, 8))
                a(f"s_waitcnt lgkmcnt({3*(31-t)})")
                mm(t)
        self.xfrag_addr(XA, S_HI, 20)
        self.wfrag_addr(WA, 20)
        for i in range(0, 64, 2): a(f"v_mov_b64 {v(RO+i,2)}, 0")
        for i in range(0, 4, 2): a(f"v_mov_b64 {v(RKV+36+8+i,2)}, 0")
        a(f"""
        v_and_b32 v20, 15, v0
        v_lshlrev_b32 v20, 4, v20
        v_lshrrev_b32 v21, 5, v0
        v_lshl_add_u32 v20, v21, 8, v20
        v_bfe_u32 v21, v0, 4, 1
        v_mul_u32_u24 v22, {2*KVREC}, v21
        v_add_u32 {v(RKA)}, v20, v22
        v_cmp_eq_u32 vcc, 0, v21
        v_and_b32 v22, 11, v0
        v_min_u32 v22, 1, v22
        v_lshlrev_b32 v22, 4, v22
        v_add_u32 v22, 512, v22
        v_mov_b32 {v(RIDX)}, 0xdddd
        v_cndmask_b32 {v(RVA)}, v22, v20, vcc
        s_lshl_b32 {s(T)}, {s(S_W)}, 9
        s_add_u32 {s(T)}, {s(T)}, {L_MISC}
        v_lshl_add_u32 v48, v0, 2, {s(T)}
        v_xor_b32 v49, 512, v48
        v_and_b32 v60, 1, v0
        v_mul_u32_u24 v60, 12, v60
        v_add_u32 v60, 4, v60
        v_xor_b32 v60, v60, {v(V_SLOT)}
        v_mov_b32 v61, {E_CLR}
        v_and_b32 v51, 4, v0
        v_add_u32 v52, {L_MK-L_SYNC}, {v(V_ALL)}
        v_or_b32 v53, 8, v52
        v_and_b32 v54, 3, v0
        v_cmp_eq_u32 vcc, 0, v54
        s_nop 1
        v_cndmask_b32 v54, v53, v52, vcc
        v_lshl_add_u32 v51, v51, 4, {v(V_ALL)}
        s_lshl_b32 {s(T)}, {s(S_HI)}, 15
        v_add_u32 v14, {s(T)}, {v(V_L16)}
        """)
        self.tail_addr(L_W, 512, WS_OA, 1024, 20)
        a(f"""
        s_lshl_b32 {s(T)}, {s(S_HI)}, 12
        s_add_u32 {s(T)}, {s(T)}, {L_MISC+0x1000}
        v_lshrrev_b32 v20, 5, v0
        v_lshlrev_b32 v20, 1, v20
        s_lshl_b32 {s(T+1)}, {s(S_LO)}, 2
        v_add_u32 v20, {s(T+1)}, v20
        v_and_b32 v21, 7, v0
        v_xor_b32 v20, v20, v21
        v_and_b32 v22, 31, v0
        v_lshl_add_u32 v22, v22, 7, {s(T)}
        v_lshl_add_u32 v57, v20, 4, v22
        v_xor_b32 v58, 16, v57
        v_lshrrev_b32 v20, 3, v0
        v_xor_b32 v21, v21, v20
        s_lshl_b32 {s(T+1)}, {s(S_LO)}, 11
        s_add_u32 {s(T)}, {s(T)}, {s(T+1)}
        v_lshl_add_u32 v20, v20, 7, {s(T)}
        v_lshl_add_u32 v59, v21, 4, v20
        """)
        a(f"""
        s_add_u32 {s(U+2)}, {s(S_XCD)}, 1
        s_and_b32 {s(U+2)}, {s(U+2)}, 7
        s_lshl_b32 {s(U+2)}, {s(U+2)}, 3
        s_add_u32 {s(U+2)}, {s(U+2)}, {s(S_LO)}
        s_mul_i32 {s(U+2)}, {s(U+2)}, {KVTILE}
        s_add_u32 {s(U+2)}, {s(U+2)}, {WS_KV}
        """)
        for u in range(3):
            self.add64(8+2*u, S_WS, s(U+2))
            a(f"s_add_u32 {s(U+2)}, {s(U+2)}, {2*KVTILE}")
        if self.o.get("warm", 1): a("s_branch L_attn0_stub")
        a("L_warmed:")
        qproj()
        for i in range(0, 8, 2): a(f"v_mov_b64 {v(RS+48+8+i,2)}, 0")
        for k in range(3): a(self.kv_ld(1, k, 10))
        a("s_nop 4")
        for i in range(8):
            a(f"v_cvt_pk_bf16_f32 {v(RQ+8+i)}, {v(32+2*i)}, {v(33+2*i)}")
        a(f"ds_write_b128 {v(self.V_EXW)}, {v(RQ+8,4)}")
        a(f"ds_write_b128 {v(self.V_EXW)}, {v(RQ+12,4)} offset:1024")
        a("s_waitcnt lgkmcnt(0)")
        self.stamp(4)
        a("s_barrier")

    def kv_ops(self):
        SB, SOFF = T, U+2
        return [f"s_add_u32 {s(SB)}, {s(S_WS)}, {s(SOFF)}",
                f"s_addc_u32 {s(SB+1)}, {s(S_WS+1)}, 0",
                f"s_add_u32 {s(SOFF)}, {s(SOFF)}, {2*KVTILE}",
                f"s_cmp_ge_u32 {s(SOFF)}, {WS_KV+64*KVTILE}",
                f"s_cselect_b32 {s(T+2)}, {64*KVTILE}, 0",
                f"s_sub_u32 {s(SOFF)}, {s(SOFF)}, {s(T+2)}"]
    def kv_ld(self, u, k, SB=T):
        if k == 0: return f"global_load_dwordx4 {v(self.RKV+12*u,4)}, {v(self.RKA)}, {s(SB,2)} sc1"
        return f"global_load_dwordx4 {v(self.RKV+12*u+4*k,4)}, {v(self.RVA)}, {s(SB,2)} offset:{KVREC+(k-1)*2*KVREC} sc1"
    def attn(self):
        a = self.a
        RQ, RO, RS, RKV, RIDX, RKA, RVA = self.RQ, self.RO, self.RS, self.RKV, self.RIDX, self.RKA, self.RVA
        SB, SOFF, SCNT, SPASS = T, U+2, U+3, U
        def K(u): return v(RKV+12*u, 4)
        def V(u, h): return v(RKV+12*u+4+4*h, 4)
        addr_ops, ld = self.kv_ops, self.kv_ld
        a.c("---- attention")
        a(f"s_setprio {self.o.get('aprio', 1)}")
        a(f"ds_read_b128 {v(RQ,4)}, {v(self.V_EXR)}")
        a(f"ds_read_b128 {v(RQ+4,4)}, {v(self.V_EXR)} offset:1024")
        for k in range(3): a(self.kv_ld(2, k, 12))
        self.arrive(50)
        a(f"s_mov_b32 {s(SCNT)}, 6")
        if self.o.get("aprof"): a("s_mov_b32 m0, 0")
        al = 1
        self.newpage("attn0", "L_opB_stub")
        a(f"s_waitcnt vmcnt(6) lgkmcnt(0)")
        self.stamp(6)
        a(f"v_mfma_f32_32x32x16_bf16 {v(RS,16)}, {K(0)}, {v(RQ,4)}, 0")
        a("s_nop 3")
        L = a.label("attn")
        p2, p1 = self.o.get("pos", (3, 10))
        EXW = v(self.V_EXW)
        def body(last):
            for i in range(p1, 16): a(f"v_exp_f32 {v(RS+48+i)}, {v(RS+48+i)}")
            for u in range(4):
                for b in range(4):
                    if self.o.get("aprof") and b == 0:
                        a(f"""
                        s_memtime s[60:61]
                        s_waitcnt lgkmcnt(0)
                        v_writelane_b32 v55, s60, m0
                        s_add_u32 m0, m0, 1
                        """)
                    fill = [[], [], []]
                    if not last or u == 0:
                        if b == 0:
                            ops = addr_ops()
                            fill[0] = ops[0:1]; fill[1] = ops[1:3]; fill[2] = ops[3:5]
                        if b == 1:
                            fill[0] = addr_ops()[5:6]; fill[1] = [ld((u+3) % 4, 0)]; fill[2] = [ld((u+3) % 4, 1)]
                        if b == 2:
                            fill[1] = [ld((u+3) % 4, 2)]; fill[2] = ["s_waitcnt vmcnt(6)"]
                    elif b == 2 and u < 3:
                        fill[2] = [f"s_waitcnt vmcnt({6-3*u})"]
                    if not last and b == 3:
                        if u == 2: fill[1] = ["ds_read_b32 v50, v51"]
                        if u == 3:
                            fill[0] = ["s_waitcnt lgkmcnt(0)", f"v_cmp_gt_u32 vcc, {s(S_EPOCH)}, v50"]
                            fill[1] = ["s_cbranch_vccnz L_check", "L_checked:", f"s_sub_u32 {s(SCNT)}, {s(SCNT)}, 1"]
                            fill[2] = [f"s_cbranch_scc0 {L}"]
                    if last and u == 3 and b >= 2:
                        k = b - 2
                        fill[0] = [f"ds_write_b128 {EXW}, {v(RO+16*k,4)} offset:{2048*k}"]
                        fill[1] = [f"ds_write_b128 {EXW}, {v(RO+16*k+4,4)} offset:{2048*k+1024}",
                                   f"ds_write_b32 v48, {v(RO+16*k+8)} offset:{256*k}"]
                        if k: fill[1].append(f"ds_write_b32 {v(V_SLOT)}, v61")
                    nu, nb = (u, b+1) if b < 3 else ((u+1) % 4, 0)
                    pu, pb = (u, b-1) if b > 0 else ((u-1) % 4, 3)
                    S = RS + 16*b
                    if not (last and u == 3 and b == 3):
                        a(f"v_mfma_f32_32x32x16_bf16 {v(RS+16*nb,16)}, {K(nu)}, {v(RQ+4*nb,4)}, 0")
                    for x in fill[0]: a(x)
                    for i in range(0, p2): a(f"v_exp_f32 {v(S+i)}, {v(S+i)}")
                    a(f"v_smfmac_f32_32x32x32_bf16 {v(RO+16*pb,16)}, {V(pu,1)}, {v(RS+16*pb+8,8)}, {v(RIDX)}")
                    for x in fill[1]: a(x)
                    for i in range(p2, p1): a(f"v_exp_f32 {v(S+i)}, {v(S+i)}")
                    a(f"v_smfmac_f32_32x32x32_bf16 {v(RO+16*b,16)}, {V(u,0)}, {v(S,8)}, {v(RIDX)}")
                    for x in fill[2]: a(x)
                    if last or (u, b) != (3, 3):
                        for i in range(p1, 16): a(f"v_exp_f32 {v(S+i)}, {v(S+i)}")
        if not al: a(".p2align 6")
        a(f"{L}:")
        body(False)
        body(True)
        def check():
            a("L_check:")
            self.await_(50, vaddr=51)
            a("s_branch L_checked")
        self.check = check
        a(f"ds_read_b32 v50, v60")
        a(f"ds_read_b32 {v(RO+8)}, v49")
        a(f"v_smfmac_f32_32x32x32_bf16 {v(RO+48,16)}, {V(3,1)}, {v(RS+48+8,8)}, {v(RIDX)}")

    def tail_A(self):
        a = self.a
        RQ, RO = self.RQ, self.RO
        self.stamp(7)
        if self.o.get("aprof"):
            a(f"""
            s_lshl_b32 s60, s2, 2
            s_add_u32 s60, s60, {s(S_W)}
            s_lshl_b32 s60, s60, 8
            s_add_u32 s60, s60, {WS_STAMP+0x40000}
            v_lshl_add_u32 v56, v0, 2, s60
            global_store_dword v56, v55, {s(S_WS,2)}
            """)
        a.c("---- pair reduction of the two key halves")
        O2, O3 = RO+32, RO+48
        def rdpart():
            a(f"""
            ds_read_b32 {v(RO+24)}, v49 offset:256
            ds_read_b128 {v(RO,4)}, {v(self.V_EXR)}
            ds_read_b128 {v(RO+4,4)}, {v(self.V_EXR)} offset:1024
            ds_read_b128 {v(RO+16,4)}, {v(self.V_EXR)} offset:2048
            ds_read_b128 {v(RO+20,4)}, {v(self.V_EXR)} offset:3072
            """)
        rdpart()
        Lok, La = a.label("x"), a.label("x")
        a(f"""
        s_mov_b32 {s(T+2)}, {f32(2.0**-20)}
        s_mov_b32 {s(T+3)}, {f32(2.0**100)}
        s_waitcnt lgkmcnt(6)
        v_cmp_gt_u32 vcc, {E_CLR}, v50
        s_cmp_eq_u64 vcc, 0
        s_cbranch_scc1 {Lok}
        """)
        self.await_(50, vaddr=60, val=str(E_CLR), sleep=0)
        a(f"ds_read_b32 {v(RO+8)}, v49")
        rdpart()
        a(f"{Lok}:")
        self.stamp(11)
        a(f"""
        s_waitcnt lgkmcnt(2)
        v_add_f32 {v(O2+8)}, {v(O2+8)}, {v(RO+8)}
        v_add_f32 {v(O3+8)}, {v(O3+8)}, {v(RO+24)}
        v_cmp_le_f32 {s(T+4,2)}, {s(T+2)}, {v(O2+8)}
        v_cmp_le_f32 {s(T+6,2)}, {s(T+2)}, {v(O3+8)}
        v_add_f32 {v(RO+9)}, {v(O2+8)}, {v(O3+8)}
        """)
        for b in range(2):
            if b: a("s_waitcnt lgkmcnt(0)")
            for i in range(0, 8, 2):
                a(f"v_pk_add_f32 {v(O2+16*b+i,2)}, {v(O2+16*b+i,2)}, {v(RO+16*b+i,2)}")
        a.c("---- the zero shift is kept only if every row sum is in range and every sum is finite")
        a(f"""
        v_pk_add_f32 {v(RO,2)}, {v(O2,2)}, {v(O2+2,2)}
        v_pk_add_f32 {v(RO+2,2)}, {v(O2+4,2)}, {v(O2+6,2)}
        v_pk_add_f32 {v(RO+4,2)}, {v(O3,2)}, {v(O3+2,2)}
        v_pk_add_f32 {v(RO+6,2)}, {v(O3+4,2)}, {v(O3+6,2)}
        v_pk_add_f32 {v(RO,2)}, {v(RO,2)}, {v(RO+2,2)}
        v_pk_add_f32 {v(RO+4,2)}, {v(RO+4,2)}, {v(RO+6,2)}
        s_and_b64 {s(T+4,2)}, {s(T+4,2)}, {s(T+6,2)}
        v_pk_add_f32 {v(RO,2)}, {v(RO,2)}, {v(RO+4,2)}
        v_fma_f32 {v(RO+9)}, {v(RO)}, 0, {v(RO+9)}
        v_fma_f32 {v(RO+9)}, {v(RO+1)}, 0, {v(RO+9)}
        v_cmp_ge_f32 vcc, {s(T+3)}, {v(RO+9)}
        s_and_b64 vcc, vcc, {s(T+4,2)}
        s_cmp_eq_u64 vcc, -1
        s_cbranch_scc0 L_fallback
        L_norm:
        """)
        self.normalize([(O2, O2+8), (O3, O3+8)], 16)
        self.stamp(8)
        a.c("---- the linear-attention half of the output projection fills the hand-off wait")
        a("s_setprio 0")
        self.newpage("opB", "L_warmed")
        a("s_barrier")
        XF, WF, ACC = 128, 160, 64
        D = 4
        def rd(u):
            i = u % 8
            a(f"ds_read_b128 {v(XF+4*i,4)}, v14 offset:{u*1024}")
            for sx in range(2):
                a(f"ds_read_b64_tr_b16 {v(WF+4*i+2*sx,2)}, {v(self.V_WO)} offset:{(2*u+sx)*1024}")
        for u in range(D): rd(u)
        for u in range(32):
            if u + D < 32:
                rd(u+D); n = 3*D
            else:
                n = 3*(31-u)
            y2 = self.o.get("y2", 14)
            if u == y2:
                a("v_mov_b32 v50, 39")
                a("s_waitcnt vmcnt(0)")
                a(f"ds_write_b32 {v(V_SLOT)}, v50")
                self.stamp(9)
            a(f"s_waitcnt lgkmcnt({n})")
            i = u % 8
            a(f"v_mfma_f32_32x32x16_bf16 {v(ACC,16)}, {v(WF+4*i,4)}, {v(XF+4*i,4)}, {'0' if u == 0 else v(ACC,16)}")
        self.stamp(10)
        a(f"s_mov_b32 {s(S_EPOCH)}, 39")
        self.add64(T+2, S_OUTB, 16384)
        a("s_nop 7")
        a("s_nop 0")
        for h in range(2):
            for i in range(4*h, 4*h+4): a(f"v_cvt_pk_bf16_f32 {v(32+i)}, {v(ACC+2*i)}, {v(ACC+2*i+1)}")
            a(f"ds_write_b128 {v(57+h)}, {v(32+4*h,4)}")
        self.softbar(50, sleep=0)
        a("ds_read_b128 v[40:43], v59")
        a("ds_read_b128 v[44:47], v59 offset:1024")
        a.c("these stores queue behind the other waves' fetches, not in front of them")
        if self.o.get("sw", 1): self.await_(50, val="40", off=16, sleep=1)
        for h in range(2):
            a(f"s_waitcnt lgkmcnt({1-h})")
            a(f"global_store_dwordx4 {v(self.V_OUT)}, {v(40+4*h,4)}, {s(T+2 if h else S_OUTB,2)} {self.o.get('osta','sc1')}")
        a("s_barrier")
        a("s_branch L_fin")

    def normalize(self, blocks, P, guard=True):
        a = self.a
        for N, R in blocks: a(f"v_rcp_f32 {v(R)}, {v(R)}")
        for b, (N, R) in enumerate(blocks):
            for i in range(0, 8, 2):
                a(f"v_pk_mul_f32 {v(N+i,2)}, {v(N+i,2)}, {v(R,2)} op_sel_hi:[1,0]")
            for i in range(4):
                a(f"v_cvt_pk_bf16_f32 {v(P+4*b+i)}, {v(N+2*i)}, {v(N+2*i+1)}")
            if guard: a(f"v_min_u32 {v(P+4*b)}, -2, {v(P+4*b)}")
            a(f"global_store_dwordx4 {v(self.V_IMG)}, {v(P+4*b,4)}, {s(S_WS,2)} offset:{1024*b} {'' if guard and self.o.get('xplain') else 'sc1'}")

    def attn_fallback(self, Lret):
        a = self.a
        RQ, RO, RS, RKV, RIDX, RKA, RVA = self.RQ+8, self.RO+32, self.RS, self.RKV, self.RIDX, self.RKA, self.RVA
        SB, SCNT = T, U+3
        NM = RS + 32
        a("L_fallback:")
        a(f"v_mov_b32 {v(RKV+20)}, 0xff800000")
        a(f"v_mov_b32 {v(RKV+21)}, 0xff800000")
        for ps in (0, 1):
            L = a.label("fb")
            self.add64(SB, S_WS, WS_KV)
            a(f"""
            s_mov_b32 {s(SCNT)}, 64
            {L}:
            global_load_dwordx4 {v(RKV,4)}, {v(RKA)}, {s(SB,2)} sc1
            """)
            if ps:
                a(f"global_load_dwordx4 {v(RKV+4,4)}, {v(RVA)}, {s(SB,2)} offset:{KVREC} sc1")
                a(f"global_load_dwordx4 {v(RKV+8,4)}, {v(RVA)}, {s(SB,2)} offset:{3*KVREC} sc1")
            self.add64(SB, SB, KVTILE)
            a("s_waitcnt vmcnt(0)")
            for b in range(2):
                c = v(NM+16*b, 16) if ps else "0"
                a(f"v_mfma_f32_32x32x16_bf16 {v(RS+16*b,16)}, {v(RKV,4)}, {v(RQ+4*b,4)}, {c}")
            a("s_nop 7")
            a("s_nop 4")
            for b in range(2):
                S = RS + 16*b
                if not ps:
                    for i in range(0, 16, 2):
                        a(f"v_max3_f32 {v(RKV+20+b)}, {v(S+i)}, {v(S+i+1)}, {v(RKV+20+b)}")
                else:
                    for i in range(16): a(f"v_exp_f32 {v(S+i)}, {v(S+i)}")
                    a("s_nop 1")
                    a(f"v_smfmac_f32_32x32x32_bf16 {v(RO+16*b,16)}, {v(RKV+4,4)}, {v(S,8)}, {v(RIDX)}")
                    a(f"v_smfmac_f32_32x32x32_bf16 {v(RO+16*b,16)}, {v(RKV+8,4)}, {v(S+8,8)}, {v(RIDX)}")
            a(f"""
            s_sub_u32 {s(SCNT)}, {s(SCNT)}, 1
            s_cmp_lg_u32 {s(SCNT)}, 0
            s_cbranch_scc1 {L}
            """)
            if not ps:
                for b in range(2):
                    m = RKV+20+b
                    a(f"""
                    v_mov_b32 {v(RKV+22)}, {v(m)}
                    s_nop 1
                    v_permlane32_swap_b32 {v(m)}, {v(RKV+22)}
                    s_nop 1
                    v_max_f32 {v(m)}, {v(m)}, {v(RKV+22)}
                    """)
                    for i in range(16): a(f"v_sub_f32 {v(NM+16*b+i)}, 0, {v(m)}")
                for i in range(32): a(f"v_mov_b32 {v(RO+i)}, 0")
        a("s_nop 7")
        a("s_nop 4")
        a(f"s_branch {Lret}")

    def outproj_wfrags(self):
        a = self.a
        for p in range(4):
            a(f"""
            s_add_u32 {s(T)}, {s(S_J)}, {p}
            s_and_b32 {s(T)}, {s(T)}, 3
            s_lshl_b32 {s(T+1)}, {s(S_LO)}, 2
            s_add_u32 {s(T)}, {s(T)}, {s(T+1)}
            s_lshl_b32 {s(T+1)}, {s(S_G)}, 1
            s_sub_u32 {s(T)}, {s(T)}, {s(T+1)}
            s_and_b32 {s(T)}, {s(T)}, 7
            s_lshl_b32 {s(T)}, {s(T)}, 13
            v_add_u32 v21, {s(T)}, {v(self.V_WO)}
            """)
            for k in range(4):
                u = 4*p + k
                for nb in range(2):
                    for sx in range(2):
                        a(f"ds_read_b64_tr_b16 {v(128+8*u+4*nb+2*sx,2)}, v21 offset:{(2*k+sx)*1024+nb*512}")
    def gather_loads(self, p):
        for k in range(4):
            self.a(f"global_load_dwordx4 {v(32+16*p+4*k,4)}, {v(V_L16)}, {s(8+2*p,2)} offset:{k*1024} sc1")
    def outproj(self):
        a = self.a
        a.c("=========================== attention half of the output projection ===========================")
        def test(p):
            I = 32 + 16*p
            a(f"""
            v_max3_u32 v16, {v(I)}, {v(I+4)}, {v(I+8)}
            v_max_u32 v16, v16, {v(I+12)}
            v_cmp_eq_u32 vcc, -1, v16
            """)
        def mms(p):
            return [f"v_mfma_f32_32x32x16_bf16 {v(96+16*nb,16)}, {v(128+8*(4*p+k)+4*nb,4)}, {v(32+4*(4*p+k),4)}, {v(96+16*nb,16)}"
                    for k in range(4) for nb in range(2)]
        def consume(p, Ls):
            test(p)
            a(f"""
            s_cmp_lg_u64 vcc, 0
            s_cbranch_scc1 {Ls}
            s_bitset0_b32 {s(S_PEND)}, {p}
            """)
            self.emit(mms(p))
            a(f"{Ls}:")
        def wr(nb, lo=0, hi=4):
            for k, ad in list(enumerate((9, 14, 15, 17)))[lo:hi]:
                a(f"ds_write_b128 {v(ad)}, {v(96+16*nb+4*k,4)} offset:{128*nb}")
        self.gather_loads(0); self.gather_loads(1)
        self.add64(T+2, S_OUTB, 16384)
        a("s_waitcnt vmcnt(4)")
        self.stamp(5)
        test(0)
        for p in range(4):
            a("s_cmp_lg_u64 vcc, 0")
            a(f"s_cbranch_scc1 L_miss")
            a(f"s_bitset0_b32 {s(S_PEND)}, {p}")
            M = mms(p)
            if p == 3: break
            a(M[0])
            if p < 2: self.gather_loads(p+2)
            if p == 1: a(f"ds_write_b32 {v(V_SLOT)}, v19")
            if p == 2: a(f"ds_read_b32 v20, v21")
            self.emit(M[1:7])
            a(f"s_waitcnt vmcnt({4 if p < 2 else 0})")
            test(p+1)
            a(M[7])
        a.c("the exchange tiles reuse LDS the A waves have finished reading")
        Lok = a.label("k")
        self.emit(M[0::2])
        a(M[1])
        a(f"""
        s_waitcnt lgkmcnt(0)
        v_cmp_gt_u32 vcc, 40, v20
        s_cmp_eq_u64 vcc, 0
        s_cbranch_scc1 {Lok}
        """)
        self.await_(20, vaddr=21, val="40", sleep=0)
        a(f"{Lok}:")
        a(M[3])
        a("s_nop 5")
        wr(0, 0, 1)
        a(M[5])
        wr(0, 1, 2)
        a(M[7])
        self.stamp(10)
        wr(0, 2, 4)
        a("s_nop 9")
        a("L_gathered:")
        wr(1)
        a("s_waitcnt lgkmcnt(0)")
        a("s_barrier")
        for i in range(2):
            for pt in range(2):
                for e, ad in enumerate((3, 24)):
                    a(f"ds_read_b128 {v(32+16*i+8*pt+4*e,4)}, {v(ad)} offset:{2048*i+8192*pt}")
        for i in range(2):
            a(f"s_waitcnt lgkmcnt({4-4*i})")
            for k in range(0, 8, 2): a(f"v_pk_add_f32 {v(32+16*i+k,2)}, {v(32+16*i+k,2)}, {v(32+16*i+8+k,2)}")
            for k in range(4): a(f"v_cvt_pk_bf16_f32 {v(64+4*i+k)}, {v(32+16*i+2*k)}, {v(32+16*i+2*k+1)}")
            a(f"global_store_dwordx4 {v(self.V_OUT)}, {v(64+4*i,4)}, {s(T+2 if i else S_OUTB,2)} {self.o.get('ostb','sc1')}")
        def retry():
            a("L_miss:")
            a(f"ds_write_b32 {v(V_SLOT)}, v19")
            a("s_waitcnt vmcnt(0)")
            a("L_retry:")
            if self.o.get("rs", 2): a(f"s_sleep {self.o.get('rs', 2)}")
            for p in range(4):
                Ls = a.label("gs")
                a(f"s_bitcmp1_b32 {s(S_PEND)}, {p}")
                a(f"s_cbranch_scc0 {Ls}")
                self.gather_loads(p)
                a(f"{Ls}:")
            a("s_waitcnt vmcnt(0)")
            for p in range(4):
                Ls = a.label("cs")
                a(f"s_bitcmp1_b32 {s(S_PEND)}, {p}")
                a(f"s_cbranch_scc0 {Ls}")
                consume(p, Ls)
            a(f"""
            s_add_u32 {s(T+9)}, {s(T+9)}, 1
            s_cmp_eq_u32 {s(S_PEND)}, 0
            s_cbranch_scc1 L_rdone
            s_cmp_lt_u32 {s(T+9)}, {SPIN_MAX}
            s_cbranch_scc1 L_retry
            L_rdone:
            """)
            self.await_(20, vaddr=21, val="40", sleep=0)
            a("s_nop 3")
            wr(0)
            a("s_branch L_gathered")
        self.retry = retry

    def kv_setup(self):
        self.a(f"""
        v_and_b32 v96, 15, v0
        v_and_b32 v97, 3, v0
        v_bfe_u32 v98, v0, 2, 1
        v_lshl_add_u32 v97, v98, 3, v97
        v_bfe_u32 v98, v0, 3, 1
        v_lshl_add_u32 v97, v98, 2, v97
        s_bitcmp1_b32 {s(S_J)}, 0
        s_cselect_b64 vcc, -1, 0
        s_cselect_b32 {s(T+8)}, 1.0, {f32(0.25*LOG2E)}
        v_cndmask_b32 v96, v96, v97, vcc
        v_lshrrev_b32 v98, 4, v0
        v_lshrrev_b32 v97, 1, v96
        v_xor_b32 v97, v97, v98
        v_lshlrev_b32 v96, 7, v96
        v_lshl_add_u32 v96, v97, 4, v96
        s_and_b32 {s(T)}, {s(S_J)}, 6
        s_lshl_b32 {s(T)}, {s(T)}, 10
        v_add_u32 v96, {s(T)}, v96
        v_xor_b32 v97, 64, v96
        v_bfe_u32 v99, v0, 2, 2
        v_lshl_add_u32 v99, v98, 3, v99
        v_lshlrev_b32 v99, 5, v99
        v_and_b32 v100, 3, v0
        v_lshl_add_u32 v99, v100, 3, v99
        v_add_u32 v99, {L_WKV}, v99
        """)
    def kv_compute(self):
        a = self.a
        XF, WF = 128, 160
        LV, LD = a.label("kvv"), a.label("kvd")
        order = [2*sl + h for par in range(2) for sl in range(par, 8, 2) for h in range(2)]
        def rd(n):
            t = order[n]
            a(f"ds_read_b128 {v(XF+4*(n%8),4)}, {v(96+(t&1))} offset:{(t//2)*8192}")
            a(f"ds_read_b64_tr_b16 {v(WF+4*(n%8),2)}, v99 offset:{t*1024}")
            a(f"ds_read_b64_tr_b16 {v(WF+4*(n%8)+2,2)}, v99 offset:{t*1024+128}")
        a(f"s_bitcmp1_b32 {s(S_J)}, 0")
        a(f"s_cbranch_scc1 {LV}")
        for isv in (0, 1):
            if isv: a(f"{LV}:")
            def mm(n):
                x, w = v(XF+4*(n%8),4), v(WF+4*(n%8),4)
                A, B = (x, w) if isv else (w, x)
                a(f"v_mfma_f32_16x16x32_bf16 v[104:107], {A}, {B}, {'0' if n == 0 else 'v[104:107]'}")
            for h in range(2):
                self.await_(20, vaddr=21, val="1", off=16-16*h, sleep=0)
                if h == 0:
                    self.stamp(2); self.stamp(5, "hd")
                for n in range(8*h, 8*h+4):
                    rd(n)
                    if h: mm(n-4)
                for n in range(8*h, 8*h+4):
                    rd(n+4)
                    a("s_waitcnt lgkmcnt(12)")
                    mm(n)
            for n in range(12, 16):
                a(f"s_waitcnt lgkmcnt({3*(15-n)})")
                mm(n)
            if not isv: a(f"s_branch {LD}")
        a(f"""
        {LD}:
        s_nop 7
        v_pk_mul_f32 v[104:105], v[104:105], {s(T+8,2)} op_sel_hi:[1,0]
        v_pk_mul_f32 v[106:107], v[106:107], {s(T+8,2)} op_sel_hi:[1,0]
        v_cvt_pk_bf16_f32 v108, v104, v105
        v_cvt_pk_bf16_f32 v109, v106, v107
        s_nop 1
        v_permlane32_swap_b32 v108, v110
        v_permlane32_swap_b32 v109, v111
        s_mov_b32 exec_hi, 0
        global_store_dwordx4 v101, v[108:111], {s(S_WS,2)} sc1
        s_mov_b32 exec_hi, -1
        """)

    def phi(self, R):
        a = self.a
        TMP = 80
        a(f"s_mov_b32 {s(T)}, {f32(LOG2E)}")
        a(f"s_mov_b32 {s(T+2)}, {f32(1e-6)}")
        for i in range(0, 16, 2): a(f"v_pk_fma_f32 {v(TMP+i,2)}, {v(R+i,2)}, {s(T,2)}, v[18:19] op_sel_hi:[1,0,0]")
        for i in range(16): a(f"v_exp_f32 {v(TMP+i)}, {v(TMP+i)} clamp")
        for i in range(16): a(f"v_max_f32 {v(R+i)}, {s(T+2)}, {v(R+i)}")
        for i in range(0, 16, 2): a(f"v_pk_add_f32 {v(R+i,2)}, {v(R+i,2)}, {v(TMP+i,2)}")
        for i in range(0, 16, 2): a(f"v_cvt_pk_bf16_f32 {v(R+i//2)}, {v(R+i)}, {v(R+i+1)}")

    def roleB(self):
        a = self.a
        RB, HP, WB = S_HI, S_LO, S_W3
        SXM, SWM, SXO, SWO = U, U+1, U+2, U+3
        VX, VW, VO = 26, 240, 28
        XA, WA = 244, 248
        AK, AV, AQ = 32, 48, 64
        F = (96, 160)
        XF = 96
        X, Y = 224, 232
        V_L128, V_SX, V_L4, V_F4 = 10, 11, 12, 15
        VL, SL, SLO, SF1 = 80, 96, 60, 62
        HI, LOW = "s_setprio 3", f"s_setprio {self.o.get('bmm', 0)}"
        a.c("=========================== role B ===========================")
        a("L_roleB:")
        self.inB = True
        Lj = a.label("b")
        a(f"""
        s_lshl_b32 {s(T)}, {s(S_C)}, 8
        s_add_u32 {s(T)}, {s(T)}, {WS_ACC}
        v_lshl_add_u32 v24, v0, 2, {s(T)}
        s_mul_i32 {s(T)}, {s(S_C)}, {KVREC}
        s_add_u32 {s(T)}, {s(T)}, {WS_KV}
        v_add_u32 v101, {s(T)}, {v(V_L16)}
        v_cmp_eq_u32 vcc, 32, v0
        v_mov_b32 v112, 0x3f803f80
        s_nop 0
        v_cndmask_b32 v112, 0, v112, vcc
        v_mov_b32 v113, v112
        v_mov_b32 v114, v112
        v_mov_b32 v115, v112
        """)
        for u in range(4): a(f"v_add_u32 {v(VL+u)}, {8192*u}, v3")
        a(f"s_lshl_b32 {s(T)}, {s(S_LO)}, 6")
        a(f"v_xor_b32 v20, {s(T)}, v2")
        for u in range(3):
            a(f"""
            s_add_u32 {s(T)}, {s(S_J)}, {2+2*u}
            s_and_b32 {s(T)}, {s(T)}, 6
            s_add_u32 {s(T)}, {s(T)}, {s(S_LO)}
            s_lshl_b32 {s(SL+u)}, {s(T)}, 10
            s_lshl_b32 {s(T)}, {s(T)}, 13
            v_add_u32 {v(VL+4+u)}, {s(T)}, v20
            """)
        a(f"""
        s_add_u32 {s(T)}, {s(S_XCD)}, 1
        s_lshl_b32 {s(T)}, {s(T)}, 3
        v_add_u32 v92, {s(T)}, v0
        v_and_b32 v92, 63, v92
        v_lshlrev_b32 v92, 7, v92
        v_add_u32 v92, {WS_F1}, v92
        s_lshl_b32 {s(SL+3)}, {s(S_LO)}, 12
        s_lshl_b32 {s(SL+4)}, {s(S_G)}, 16
        s_lshl_b32 {s(SLO)}, {s(S_J)}, 7
        s_lshl_b32 {s(T)}, {s(S_LO)}, 15
        s_add_u32 {s(SLO)}, {s(SLO)}, {s(T)}
        """)
        ta = self.o.get("ta", 0)
        if ta:
            a.c("first touch (one dword per line) of this CU's share of what the die reads for the A-side projections")
            a(f"""
            s_and_b32 {s(T)}, {s(S_G)}, 3
            s_lshl_b32 {s(T+1)}, {s(T)}, 10
            s_lshl_b32 {s(T+2)}, {s(S_J)}, 7
            s_add_u32 {s(T+1)}, {s(T+1)}, {s(T+2)}
            s_lshl_b32 {s(T+2)}, {s(S_LO)}, 18
            s_add_u32 {s(T+1)}, {s(T+1)}, {s(T+2)}
            s_lshl_b32 {s(T+2)}, {s(S_C)}, 13
            s_lshl_b32 {s(T)}, {s(T)}, 2
            s_lshr_b32 {s(T+3)}, {s(S_J)}, 1
            s_add_u32 {s(T)}, {s(T)}, {s(T+3)}
            s_lshl_b32 {s(T)}, {s(T)}, 10
            s_cmp_eq_u32 {s(S_W)}, 5
            s_cselect_b32 {s(T)}, {s(T+2)}, {s(T)}
            s_cmp_ge_u32 {s(S_W)}, 6
            s_cselect_b32 {s(T)}, {s(T+1)}, {s(T)}
            s_cselect_b32 {s(T+1)}, 12, 7
            v_lshlrev_b32 v19, {s(T+1)}, v0
            v_add_u32 v19, {s(T)}, v19
            """)
        a("s_waitcnt lgkmcnt(0)")
        if ta:
            Lt4, Lt5, Lte = a.label("t"), a.label("t"), a.label("t")
            a(f"""
            s_cmp_eq_u32 {s(S_W)}, 4
            s_cbranch_scc1 {Lt4}
            s_cmp_eq_u32 {s(S_W)}, 5
            s_cbranch_scc1 {Lt5}
            {f"global_load_dword v19, v19, {s(S_WQ,2)}" if ta != 4 else ""}
            s_branch {Lte}
            {Lt5}:
            {f"global_load_dword v19, v19, {s(S_AX,2)}" if ta == 1 else ""}
            s_branch {Lte}
            {Lt4}:
            s_bitcmp1_b32 {s(S_J)}, 0
            s_cselect_b32 {s(S_WK)}, {s(S_WV)}, {s(S_WK)}
            s_cselect_b32 {s(S_WK+1)}, {s(S_WV+1)}, {s(S_WK+1)}
            s_mov_b64 exec, 0xff
            {f"global_load_dword v19, v19, {s(S_WK,2)}" if ta in (1, 3) else ""}
            s_mov_b64 exec, -1
            {Lte}:
            """)
        Lz = a.label("b")
        a.c("clear this CU's share of the state accumulators (ordered before the K/V flag)")
        a(f"""
        s_cmp_lg_u32 {s(S_W)}, 4
        s_cbranch_scc1 {Lz}
        global_store_dword v24, {v(V_ZERO)}, {s(S_WS,2)} sc1
        s_mov_b32 exec_lo, {-1 if self.o.get("pre", 1) == 1 else 0}
        s_mov_b32 exec_hi, 0xff
        global_store_dwordx4 v101, v[112:115], {s(S_WS,2)} sc1
        s_mov_b64 exec, -1
        {Lz}:
        s_lshr_b32 {s(T)}, {s(S_C)}, 2
        s_lshl_b32 {s(T)}, {s(T)}, 7
        s_and_b32 {s(T+1)}, {s(S_C)}, 3
        s_lshl_b32 {s(T+1)}, {s(T+1)}, 2
        s_add_u32 {s(T)}, {s(T)}, {s(T+1)}
        s_add_u32 {s(T)}, {s(T)}, {WS_F1}
        s_add_u32 {s(S_WV)}, {s(S_WS)}, {s(T)}
        s_addc_u32 {s(S_WV+1)}, {s(S_WS+1)}, 0
        s_load_dword s53, {s(S_WV,2)}, 0
        s_load_dword {s(S_TAG)}, {s(S_WS,2)}, {WS_G}
        """)
        a(f"s_getpc_b64 {s(S_PC,2)}")
        self.stamp(1)
        a("s_barrier")
        self.stamp(1, "hd")
        def setup():
            a.c("---- B-side setup, all in the shadow of the head")
            a(f"""
            v_mov_b32 {v(VX)}, v2
            v_xor_b32 {v(VX+1)}, 64, v2
            v_add_u32 {v(VX+1)}, 8192, {v(VX+1)}
            v_mul_u32_u24 {v(VW)}, 3072, v8
            v_add_u32 {v(VW)}, {v(VW)}, v9
            v_mov_b32 {v(VO)}, v3
            """)
            for i in range(1, 4):
                a(f"v_add_u32 {v(VW+i)}, {24576*i}, {v(VW)}")
                a(f"v_add_u32 {v(VO+i)}, {8192*i}, v3")
            self.xfrag_addr(XA, RB, 20)
            self.wfrag_addr(WA, 20)
            self.tail_addr(L_X, 0, WS_OB, 0, 20)
            a(f"""
            s_lshl_b32 {s(T)}, {s(S_W3)}, 13
            s_add_u32 {s(T)}, {s(T)}, {L_W}
            v_lshrrev_b32 v20, 5, v0
            v_lshlrev_b32 v20, 2, v20
            v_and_b32 v21, 7, v0
            v_xor_b32 v20, v20, v21
            v_and_b32 v22, 31, v0
            v_lshl_add_u32 v22, v22, 8, {s(T)}
            v_lshl_add_u32 v9, v20, 4, v22
            v_xor_b32 v14, 16, v9
            v_xor_b32 v15, 32, v9
            v_xor_b32 v17, 48, v9
            s_lshl_b32 {s(T)}, {s(S_HI)}, 14
            s_lshl_b32 {s(T+1)}, {s(S_LO)}, 12
            s_add_u32 {s(T)}, {s(T)}, {s(T+1)}
            s_add_u32 {s(T)}, {s(T)}, {L_W}
            v_lshrrev_b32 v20, 3, v0
            v_lshlrev_b32 v21, 1, v21
            v_xor_b32 v21, v21, v20
            v_lshl_add_u32 v20, v20, 8, {s(T)}
            v_lshl_add_u32 v3, v21, 4, v20
            v_xor_b32 v24, 16, v3
            """)
            a(f"""
            s_lshl_b32 {s(SXM)}, {s(WB)}, 11
            s_lshl_b32 {s(SWM)}, {s(WB)}, 12
            s_lshl_b32 {s(SXO)}, {s(S_G)}, 16
            s_lshl_b32 {s(T)}, {s(WB)}, 14
            s_add_u32 {s(SXO)}, {s(SXO)}, {s(T)}
            s_mul_i32 {s(SWO)}, {s(HP)}, {32*3072}
            s_lshl_b32 {s(T)}, {s(S_J)}, 7
            s_add_u32 {s(SWO)}, {s(SWO)}, {s(T)}
            s_mov_b32 {s(T)}, {f32(1e-6)}
            s_mov_b32 {s(T+1)}, {f32(1e-6)}
            s_mov_b32 {s(T+2)}, 0x3f803f80
            s_mov_b32 {s(T+3)}, 0x3f803f80
            """)
            for i in range(0, 16, 2):
                a(f"v_mov_b64 {v(AK+i,2)}, {s(T,2)}")
                a(f"v_mov_b64 {v(AQ+i,2)}, {s(T,2)}")
                if i < 4: a(f"v_mov_b64 {v(X+i,2)}, {s(T+2,2)}")
            a(f"""
            v_mov_b32 v18, {f32(-1e-6*LOG2E)}
            v_mov_b64 v[252:253], -1
            v_mov_b64 v[254:255], -1
            v_mov_b32 v25, 63
            v_mul_u32_u24 v250, 12288, v0
            v_lshlrev_b32 v251, 12, v0
            v_lshlrev_b32 {v(V_L128)}, 7, v0
            s_lshl_b32 {s(T)}, {s(WB)}, 10
            s_add_u32 {s(T)}, {s(T)}, {L_MISC+0x1000}
            v_add_u32 {v(V_SX)}, {s(T)}, {v(V_L16)}
            v_xor_b32 {v(X+4)}, 2048, {v(V_SX)}
            v_and_b32 v20, 15, v0
            v_bfe_u32 v21, v0, 4, 1
            v_lshlrev_b32 v22, 11, v21
            v_lshl_add_u32 {v(X+5)}, v20, 2, v22
            v_lshrrev_b32 v22, 5, v0
            v_lshl_add_u32 {v(X+6)}, v22, 8, {v(X+5)}
            s_lshl_b32 {s(T)}, {s(RB)}, 9
            v_add_u32 {v(X+6)}, {s(T)}, {v(X+6)}
            v_and_b32 v20, 31, v0
            v_min_u32 v20, 16, v20
            v_lshlrev_b32 v20, 6, v20
            v_lshl_add_u32 {v(V_L4)}, v22, 4, v20
                """)
            self.add64(SF1, S_WS, WS_F1)
        def tag():
            a(f"""
            s_waitcnt lgkmcnt(0)
            s_add_u32 {s(S_TAG)}, {s(S_TAG)}, 0x2f1b4c6d
            v_mov_b32 {v(V_TAG)}, {s(S_TAG)}
            """)
        def touch(spec):
            kind, lo, hi = spec
            if kind == "x":
                m = sum(1 << e for e in range(lo, hi)) * 0x01010101
                a(f"s_lshl_b32 {s(T)}, {s(S_C)}, 13")
                self.add64(T+2, S_BX, s(T))
                mlo = mhi = m; vr = V_L128
            else:
                base, rs, col = {"q": (S_WQKV, 3072, 0), "k": (S_WQKV, 3072, 1024), "v": (S_WQKV, 3072, 2048),
                                 "a": (S_AWO, 1024, 0), "b": (S_BWO, 1024, 0)}[kind]
                h = lo // 4
                m = sum(0xffff << (16*(e - 4*h)) for e in range(lo, hi))
                mlo, mhi = m & 0xffffffff, m >> 32
                a(f"""
                s_and_b32 {s(T)}, {s(S_G)}, 3
                s_mul_i32 {s(T)}, {s(T)}, {rs}
                s_lshl_b32 {s(T+1)}, {s(S_J)}, 7
                s_add_u32 {s(T)}, {s(T)}, {s(T+1)}
                s_add_u32 {s(T)}, {s(T)}, {h*256*rs + col}
                """)
                self.add64(T+2, base, s(T))
                vr = 250 if rs == 3072 else 251
            a(f"s_mov_b32 exec_lo, {mlo:#x}")
            a(f"s_mov_b32 exec_hi, {mhi:#x}")
            a(f"global_load_dword v19, {v(vr)}, {s(T+2,2)}")
            a("s_mov_b64 exec, -1")
        def touch_round(specs):
            Le = a.label("t")
            for w, sp in enumerate(specs):
                Ln = a.label("t")
                if w < 3:
                    a(f"s_cmp_lg_u32 {s(WB)}, {w}")
                    a(f"s_cbranch_scc1 {Ln}")
                if sp: touch(sp)
                else: a(f"global_load_dword v19, {v(V_ZERO)}, {s(S_WQKV,2)}")
                if w < 3: a(f"s_branch {Le}")
                a(f"{Ln}:")
            a(f"{Le}:")
        M4, M5, Mc, Ms = a.label("b"), a.label("b"), a.label("b"), a.label("b")
        self.stamp(2, "hd")
        a(f"""
        s_cmp_lt_u32 {s(S_W)}, 6
        s_cbranch_scc1 {M4}
        """)
        a.c("---- waves 6, 7 stream the rest of x and wq, one k-slot at a time")
        if ta == 4: a(f"global_load_dword v19, v19, {s(S_WQ,2)}")
        Ll = a.label("ld")
        a(f"""
        s_mov_b32 {s(T+6)}, 0
        s_mov_b32 s101, {self.o.get('hb', 2)}
        s_lshl_b32 {s(T+7)}, {s(S_W3)}, 2
        {Ll}:
        s_add_u32 {s(T)}, {s(S_KC0)}, {s(T+6)}
        s_and_b32 {s(T)}, {s(T)}, 7
        s_lshl_b32 {s(T+1)}, {s(T)}, 16
        s_add_u32 {s(T+1)}, {s(T+1)}, {s(SLO)}
        """)
        self.add64(T+2, S_WQ, s(T+1))
        a(f"s_lshl_b32 {s(T)}, {s(T)}, 7")
        a(f"s_add_u32 {s(T)}, {s(T)}, {s(SL+4)}")
        self.add64(T+4, S_AX, s(T))
        for u in range(4): self.emit(self.dma(VL+u, T+2, SL+3, L_W + u*1024))
        for u in range(3):
            a(f"s_mov_b32 m0, {s(SL+u)}")
            a(f"s_add_u32 {s(SL+u)}, {s(SL+u)}, 8192")
            a(f"global_load_lds_dwordx4 {v(VL+4+u)}, {s(T+4,2)}")
        a(f"""
        s_add_u32 m0, {s(T+7)}, {L_MK}
        s_mov_b64 exec, 1
        global_load_lds_dword {v(V_ZERO)}, {s(S_PC,2)}
        s_mov_b64 exec, -1
        s_add_u32 {s(T+7)}, {s(T+7)}, 16
        s_add_u32 {s(SL+3)}, {s(SL+3)}, 8192
        s_add_u32 {s(T+6)}, {s(T+6)}, 1
        """)
        a(f"""
        s_waitcnt vmcnt(48)
        s_cmp_lt_u32 {s(T+6)}, s101
        s_cbranch_scc1 {Ll}
        s_cmp_lg_u32 s101, 8
        s_cbranch_scc1 {M5}
        """)
        self.stamp(8, "hd")
        a.c("wave 6: have the first key tiles been published? (asked behind the last load)")
        a(f"""
        s_cmp_lg_u32 {s(S_W)}, 6
        s_cbranch_scc1 {Mc}
        s_mov_b64 exec, 0xffff
        """)
        self.poll4(92, S_WS, 88, sleep=self.o.get("ps1", 0))
        self.stamp(9, "hd")
        a("s_mov_b64 exec, -1")
        a(f"s_branch {Mc}")
        a(f"{M4}:")
        self.stamp(3, "hd")
        a(f"s_cmp_lg_u32 {s(S_W)}, 4")
        a(f"s_cbranch_scc1 {M5}")
        a.c("---- wave 4: this CU's 16 x 16 piece of K or V")
        a("s_setprio 3")
        a(f"v_mov_b32 v102, {L_MK}")
        self.kv_setup()
        a(f"v_add_u32 v21, {L_MK-L_SYNC+128-16}, {v(V_ALL)}")
        self.stamp(4, "hd")
        self.kv_compute()
        self.stamp(6, "hd")
        a("ds_write_b32 v102, v102 offset:112")
        a.c("publish: only this wave writes the word, so adding the difference sets it to the tag")
        a(f"s_sub_u32 s53, {s(S_TAG)}, s53")
        a(f"s_add_u32 s53, s53, 0x2f1b4c6d")
        a("s_setprio 0")
        a("s_waitcnt vmcnt(0)")
        a(f"s_atomic_add s53, {s(S_WV,2)}, 0 glc")
        self.stamp(11)
        self.stamp(7, "hd")
        a(f"{M5}:")
        setup()
        tag()
        a(f"s_cmp_lt_u32 {s(S_W)}, 6")
        a(f"s_cbranch_scc1 {Mc}")
        a.c("the rest of the stream waits until the K/V piece is on its way out")
        self.stamp(4, "hd")
        a(f"v_mov_b32 v21, {L_MK+112}")
        self.await_(20, vaddr=21, val="1", sleep=0)
        self.stamp(5, "hd")
        a(f"s_mov_b32 s101, 8")
        a(f"s_branch {Ll}")
        a(f"{Mc}:")
        a("s_barrier")
        a(f"s_mov_b32 {s(S_EPOCH)}, 8")
        rb = self.o.get("rotB", 1)
        if rb == 0: a(f"s_mov_b32 {s(S_KC0)}, 0")
        if rb == 2:
            a(f"s_and_b32 {s(S_KC0)}, {s(S_G)}, 3")
            a(f"s_lshl_b32 {s(S_KC0)}, {s(S_KC0)}, 1")
        a(f"s_lshl_b32 {s(T)}, {s(WB)}, 11")
        self.add64(SF1, SF1, s(T))
        a(f"""
        s_lshl_b32 {s(T)}, {s(S_J)}, 12
        s_add_u32 {s(T)}, {s(T)}, {WS_F2}
        """)
        self.add64(8, S_WS, s(T))
        a(f"""
        s_lshl_b32 {s(T)}, {s(S_G)}, 1
        s_add_u32 {s(T)}, {s(T)}, {s(RB)}
        s_lshl_b32 {s(T)}, {s(T)}, 1
        s_lshr_b32 {s(T+1)}, {s(S_J)}, 2
        s_add_u32 {s(T+1)}, {s(T+1)}, {s(T)}
        s_mul_i32 {s(T+1)}, {s(T+1)}, {2*KVREC}
        s_add_u32 {s(T+1)}, {s(T+1)}, {WS_KV+C4_OFF}
        """)
        self.add64(10, S_WS, s(T+1))
        a(f"""
        s_add_u32 {s(T)}, {s(T)}, {s(HP)}
        s_mul_i32 {s(T)}, {s(T)}, {2*KVREC}
        s_add_u32 {s(T)}, {s(T)}, {WS_KV+C4_OFF}
        """)
        self.add64(12, S_WS, s(T))
        self.stamp(4)
        a("s_barrier")
        self.stamp(5)
        a("s_branch L_bodyB")
        a("L_cutB:")
        a("L_bodyB:")
        a(LOW)
        if self.o.get("noB"):
            a(f"ds_write_b32 {v(V_SLOT)}, v25 offset:48")
            a(f"s_mov_b32 {s(S_EPOCH)}, {E_CLR-1}")
            self.arrive(20)
            a("s_branch L_Bend")
        vm = []
        def vmwait(label):
            n = len(vm) - 1 - max(i for i, x in enumerate(vm) if x == label)
            a(f"s_waitcnt vmcnt({n})")
            return n
        def loads(st):
            G = []
            slot = L_W + (st % 4)*16384
            if st < 8:
                pre = [f"s_add_u32 {s(T)}, {s(S_KC0)}, {st}",
                       f"s_and_b32 {s(T)}, {s(T)}, 7",
                       f"s_lshl_b32 {s(T+1)}, {s(T)}, 7",
                       f"s_add_u32 {s(T+1)}, {s(T+1)}, {s(SXO)}",
                       f"s_add_u32 {s(T+2)}, {s(S_BX)}, {s(T+1)}",
                       f"s_addc_u32 {s(T+3)}, {s(S_BX+1)}, 0"]
                G.append(pre + self.dma(VX, T+2, SXM, L_X + st*8192))
                G.append(self.dma(VX+1, T+2, SXM, L_X + st*8192 + 1024))
                pre = [f"s_mul_i32 {s(T)}, {s(T)}, {64*3072}",
                       f"s_add_u32 {s(T)}, {s(T)}, {s(SWO)}",
                       f"s_lshl_b32 {s(T+1)}, {s(RB)}, 10",
                       f"s_add_u32 {s(T)}, {s(T)}, {s(T+1)}",
                       f"s_add_u32 {s(T)}, {s(T)}, 1024",
                       f"s_add_u32 {s(T+2)}, {s(S_WQKV)}, {s(T)}",
                       f"s_addc_u32 {s(T+3)}, {s(S_WQKV+1)}, 0"]
                for i in range(4): G.append((pre if i == 0 else []) + self.dma(VW+i, T+2, SWM, slot + i*1024))
            elif st < 12:
                pre = [f"s_add_u32 {s(T)}, {s(S_KC0)}, {s(RB)}",
                       f"s_add_u32 {s(T)}, {s(T)}, {2*(st-8)}",
                       f"s_and_b32 {s(T)}, {s(T)}, 7",
                       f"s_mul_i32 {s(T)}, {s(T)}, {64*3072}",
                       f"s_add_u32 {s(T)}, {s(T)}, {s(SWO)}",
                       f"s_add_u32 {s(T+2)}, {s(S_WQKV)}, {s(T)}",
                       f"s_addc_u32 {s(T+3)}, {s(S_WQKV+1)}, 0"]
                for i in range(4): G.append((pre if i == 0 else []) + self.dma(VW+i, T+2, SWM, slot + i*1024))
            else:
                base, L = (S_AWO, L_X) if st < 16 else (S_BWO, L_W)
                u = st % 4
                pre = [f"s_add_u32 {s(T)}, {s(S_G)}, {u}",
                       f"s_and_b32 {s(T)}, {s(T)}, 3",
                       f"s_lshl_b32 {s(T)}, {s(T)}, 2",
                       f"s_add_u32 {s(T)}, {s(T)}, {s(WB)}",
                       f"s_lshl_b32 {s(T)}, {s(T)}, 8",
                       f"s_add_u32 {s(T)}, {s(T)}, {s(S_J)}",
                       f"s_lshl_b32 {s(T)}, {s(T)}, 7",
                       f"s_add_u32 {s(T+2)}, {s(base)}, {s(T)}",
                       f"s_addc_u32 {s(T+3)}, {s(base+1)}, 0"]
                for i in range(4): G.append((pre if i == 0 else []) + self.dma(VO+i, T+2, SWM, L + u*16384 + i*1024))
            return G
        done = set()
        def put(st, g):
            thr = self.o.get("thr", 5) if st < 12 else self.o.get("wthr", 4)
            if st < 4: thr = self.o.get("thr0", 4)
            done.add(st)
            if thr: g = [x if x != "s_nop 0" else f"s_waitcnt vmcnt({thr-1})" for x in g]
            self.emit(g); vm.append(st)
        def reads(st):
            R = []; B = F[st % 2]; slot = (st % 4)*16384
            if st < 8:
                for t in range(4):
                    R.append(f"ds_read_b128 {v(B+12*t,4)}, {v(XA+t)} offset:{st*8192}")
                    for k in range(2):
                        for sx in range(2):
                            R.append(f"ds_read_b64_tr_b16 {v(B+12*t+4+4*k+2*sx,2)}, {v(WA)} offset:{slot + k*8192 + t*2048 + sx*256}")
            else:
                for t in range(8):
                    R.append(f"ds_read_b128 {v(B+8*t,4)}, {v(XA+(t&3))} offset:{(2*(st-8)+t//4)*8192}")
                    for sx in range(2):
                        R.append(f"ds_read_b64_tr_b16 {v(B+8*t+4+2*sx,2)}, {v(WA)} offset:{slot + t*2048 + sx*256}")
            return R
        def mfmas(st):
            M = []; B = F[st % 2]
            if st < 8:
                for t in range(4):
                    for k, acc in enumerate((AK, AV)):
                        c = "0" if (acc == AV and st == 0 and t == 0) else v(acc,16)
                        M.append(f"v_mfma_f32_32x32x16_bf16 {v(acc,16)}, {v(B+12*t,4)}, {v(B+12*t+4+4*k,4)}, {c}")
            else:
                for t in range(8):
                    M.append(f"v_mfma_f32_32x32x16_bf16 {v(AQ,16)}, {v(B+8*t+4,4)}, {v(B+8*t,4)}, {v(AQ,16)}")
            return M
        def arrive():
            a(HI); self.arrive(20); a(LOW)
        def iteration(i, after=None):
            M = mfmas(i)
            R = reads(i+1) if i < 11 else []
            G = [(st, g) for st in self.o.get("sched", {9: [12], 10: [13], 11: [14]}).get(i, [i+4] if i < 8 else []) for g in loads(st)]
            fi = self.o.get("fi", 8)
            Lok = a.label("ok")
            self.stamp(i+1, "it")
            a("s_waitcnt lgkmcnt(14)")
            a(M[0])
            if self.o.get("pf1", 1): a(f"ds_read_b32 v21, {v(V_ALL)}")
            if G:
                self.emit(G[0][1][:-3]); G[0] = (G[0][0], G[0][1][-3:])
            if self.o.get("pf1", 1): a("s_waitcnt lgkmcnt(0)")
            else: a(f"ds_read_b32 v21, {v(V_ALL)}")
            a(M[1])
            a(f"""
            s_waitcnt lgkmcnt(0)
            {HI}
            v_cmp_gt_u32 vcc, {s(S_EPOCH)}, v21
            s_cbranch_vccz {Lok}
            """)
            self.await_(21)
            a(f"{Lok}:")
            a(LOW)
            if i == fi + 1:
                Lf = a.label("b")
                a(f"s_cmp_lg_u32 {s(WB)}, 0")
                a(f"s_cbranch_scc1 {Lf}")
                a(f"s_lshl_b32 {s(T+6)}, {s(S_G)}, 7")
                self.add64(T+6, 8, s(T+6))
                a("s_mov_b64 exec, 1")
                a(f"global_store_dword {v(V_ZERO)}, {v(V_TAG)}, {s(T+6,2)} sc1")
                a("s_mov_b64 exec, -1")
                a(f"{Lf}:")
                self.stamp(7)
            items = []
            nG, nR = len(G), len(R)
            gi = 0
            for k, x in enumerate(R):
                items.append((1.3, x))
                while gi < nG and (gi+1)*nR <= (k+1)*nG:
                    items.append((len(G[gi][1]), G[gi])); gi += 1
            items += [(len(g[1]), g) for g in G[gi:]]
            pre = [5, 0, 0, 0, 0, 0, 6]
            tot = sum(w for w, _ in items) + sum(pre)
            for k in range(7):
                acc = pre[k]
                left = (sum(w for w, _ in items) + sum(pre[k:])) / (7 - k)
                while items and (k == 6 or acc + items[0][0]/2 <= left):
                    w, x = items.pop(0); acc += w
                    if isinstance(x, str): a(x)
                    else: put(*x)
                if k < 6 and R: a(f"s_waitcnt lgkmcnt({self.o.get('lw', 3)})")
                if k < 6: a(M[k+2])
            if i < 11:
                if i == fi:
                    vmwait("part")
                    a(f"s_mov_b32 {s(S_EPOCH)}, {E_CLR-1}")
                elif i + 2 <= 11 and i < fi: vmwait(i+2)
                arrive()
            if i in self.o.get("tr", {}):
                touch_round(self.o["tr"][i]); vm.append("t")
            if after: after()
        a.c("---- B: k,v projections")
        a("s_mov_b64 exec, 0xffff")
        a(f"global_load_dwordx4 v[88:91], {v(V_L128)}, {s(SF1,2)} sc1"); vm.append("poll")
        a("s_mov_b64 exec, -1")
        G0 = [(st, g) for st in (0, 1) for g in loads(st)]
        if -2 in self.o.get("tr", {}):
            touch_round(self.o["tr"][-2]); vm.append("t0")
        else:
            for st, g in G0[:2]: put(st, g)
            G0 = G0[2:]
        Lr = a.label("b")
        vmwait("poll")
        a(HI)
        a("s_mov_b64 exec, 0xffff")
        self.check4(88)
        a(f"s_cbranch_scc1 {Lr}")
        self.poll4(V_L128, SF1, 88, sleep=4)
        a(f"{Lr}:")
        a("s_mov_b64 exec, -1")
        a(f"ds_write_b32 {v(V_SLOT)}, v25 offset:48")
        a(LOW)
        if -2 in self.o.get("tr", {}): vmwait("t0")
        for st, g in G0: put(st, g)
        vmwait(0)
        a(HI)
        self.arrive(20)
        pro = self.o.get("pro", 4)
        if pro >= 3:
            for g in loads(2): put(2, g)
        self.await_(21)
        self.stamp(6)
        self.emit(reads(0))
        vmwait(1)
        self.arrive(20)
        a(LOW)
        if pro >= 4:
            for g in loads(3): put(3, g)
        if -1 in self.o.get("tr", {}):
            touch_round(self.o["tr"][-1]); vm.append("t")
        def clr():
            a.c("mark the A-side output images of the matching wave as not yet written")
            a(f"s_sub_u32 {s(T)}, {s(S_WS)}, {WS_OB-WS_OA}")
            a(f"s_subb_u32 {s(T+1)}, {s(S_WS+1)}, 0")
            a(f"global_store_dwordx4 {v(self.V_IMG)}, v[252:255], {s(T,2)} sc1")
            a(f"global_store_dwordx4 {v(self.V_IMG)}, v[252:255], {s(T,2)} offset:1024 sc1")
            vm.append("clr"); vm.append("clr")
        for i in range(8): iteration(i, clr if i == self.o.get("ci", 7) else None)
        a.c("---- B: phi(k), partial state: rows (head, e) x columns (head, d), and the column sums z")
        a(f"""
        s_lshl_b32 {s(T)}, {s(S_J)}, 1
        s_add_u32 {s(T)}, {s(T)}, {s(HP)}
        s_lshl_b32 {s(T)}, {s(T)}, 12
        s_add_u32 {s(T)}, {s(T)}, {WS_ACC}
        """)
        self.add64(T+4, S_WS, s(T))
        a("s_nop 3")
        a(HI)
        self.phi(AK)
        for i in range(8): a(f"v_cvt_pk_bf16_f32 {v(AV+i)}, {v(AV+2*i)}, {v(AV+2*i+1)}")
        D0, D1 = F[1], F[1]+16
        LK, LJ, LK2, LJ2 = a.label("k1"), a.label("kj"), a.label("k2"), a.label("kj2")
        a(f"""
        {LOW}
        s_nop 0
        v_mfma_f32_32x32x16_bf16 {v(D0,16)}, {v(AV,4)}, {v(AK,4)}, 0
        v_mfma_f32_32x32x16_bf16 {v(D0,16)}, {v(AV+4,4)}, {v(AK+4,4)}, {v(D0,16)}
        v_mfma_f32_32x32x16_bf16 {v(D1,16)}, {v(X,4)}, {v(AK,4)}, 0
        v_mfma_f32_32x32x16_bf16 {v(D1,16)}, {v(X,4)}, {v(AK+4,4)}, {v(D1,16)}
        s_nop 4
        {HI}
        s_mov_b32 exec_lo, 0xffff
        s_mov_b32 exec_hi, 0xffff
        s_cmp_eq_u32 {s(RB)}, 0
        s_cbranch_scc0 {LK}
        ds_write_b128 {v(V_SX)}, {v(D0+4,4)}
        s_not_b64 exec, exec
        ds_write_b128 {v(V_SX)}, {v(D0+12,4)}
        s_branch {LJ}
        {LK}:
        ds_write_b128 {v(V_SX)}, {v(D0,4)}
        s_not_b64 exec, exec
        ds_write_b128 {v(V_SX)}, {v(D0+8,4)}
        {LJ}:
        s_mov_b64 exec, -1
        """)
        self.softbar(20)
        a(f"""
        ds_read_b128 {v(AK,4)}, {v(X+4)}
        s_mov_b32 exec_lo, 0xffff
        s_mov_b32 exec_hi, 0xffff
        s_cmp_eq_u32 {s(RB)}, 0
        s_waitcnt lgkmcnt(0)
        s_cbranch_scc0 {LK2}
        """)
        for rbv, lab in ((0, None), (1, LK2)):
            if lab: a(f"{lab}:")
            for h in range(2):
                for i in (0, 2): a(f"v_pk_add_f32 {v(AK+i,2)}, {v(AK+i,2)}, {v(D0+8*h+4*rbv+i,2)}")
                if h == 0: a("s_not_b64 exec, exec")
            if not lab: a(f"s_branch {LJ2}")
        a(f"{LJ2}:")
        a("s_mov_b64 exec, -1")
        for i in range(4):
            a(f"global_atomic_add_f32 {v(X+6)}, {v(AK+i)}, {s(T+4,2)} offset:{64*i} sc1"); vm.append("part")
        a("s_mov_b32 exec_hi, 0")
        a(f"global_atomic_add_f32 {v(X+5)}, {v(D1)}, {s(T+4,2)} offset:1024 sc1"); vm.append("part")
        a("s_mov_b32 exec_hi, -1")
        a(LOW)
        self.stamp(3)
        a.c("---- B: q projection")
        for i in range(8, 12): iteration(i)
        todo = [st for st in range(12, 20) if st not in done]
        def more(n=1):
            for _ in range(n):
                if todo:
                    st = todo.pop(0)
                    for g in loads(st): put(st, g)
        self.stamp(1, "hop")
        a("s_nop 8")
        more()
        a(HI); self.phi(AQ); a(LOW)
        while any(st < 16 for st in todo): more()
        more(self.o.get("pre2", 0))
        self.stamp(2, "hop")
        a.c("---- B: the summed state, the normalised output images")
        D0, D1 = AK, AV
        a(f"""
        s_lshl_b32 {s(T)}, {s(S_J)}, 1
        s_add_u32 {s(T)}, {s(T)}, {s(HP)}
        s_lshl_b32 {s(T)}, {s(T)}, 12
        s_add_u32 {s(T)}, {s(T)}, {WS_ACC}
        """)
        self.add64(T+4, S_WS, s(T))
        LR = a.label("nr")
        a(f"""
        {HI}
        s_cmp_lg_u32 {s(WB)}, 1
        s_cbranch_scc1 {LR}
        s_mov_b32 exec_hi, 0
        """)
        self.poll(V_L128, 8, [0], 21, sleep=8)
        a("s_mov_b32 exec_hi, -1")
        a(f"{LR}:")
        vmwait(15)
        self.softbar(20, sleep=2)
        self.stamp(3, "hop")
        self.stamp(8)
        for i in range(4):
            a(f"global_load_dwordx4 {v(XF+4*i,4)}, {v(V_L4)}, {s(T+4,2)} offset:{2048*(i//2)+32*(i%2)} sc1"); vm.append("state")
        self.outproj_wfrags()
        self.arrive(20)
        more()
        vmwait("state")
        self.stamp(4, "hop")
        for i in range(8): a(f"v_cvt_pk_bf16_f32 {v(XF+i)}, {v(XF+2*i)}, {v(XF+2*i+1)}")
        a(f"""
        s_nop 1
        v_mfma_f32_32x32x16_bf16 {v(D0,16)}, {v(XF,4)}, {v(AQ,4)}, 0
        v_mfma_f32_32x32x16_bf16 {v(D1,16)}, {v(XF+4,4)}, {v(AQ+4,4)}, 0
        s_nop 7
        s_nop 3
        v_add_f32 {v(D0+8)}, {f32(1e-6)}, {v(D0+8)}
        v_add_f32 {v(D1+8)}, {f32(1e-6)}, {v(D1+8)}
        """)
        self.normalize([(D0, D0+8), (D1, D1+8)], 80, guard=False)
        vm.append("ob"); vm.append("ob")
        a(LOW)
        self.stamp(5, "hop")
        more()
        vmwait("ob")
        self.count(10)
        self.stamp(6, "hop")
        self.stamp(12)
        more()
        if self.o.get("touch", 0):
            a(HI)
            a("v_lshlrev_b32 v22, 10, v0")
            a(LOW)
            a("s_mov_b32 exec_hi, 0")
            a(f"global_load_dword v22, v22, {s(S_OUTB,2)}")
            a("s_mov_b32 exec_hi, -1")
        if self.o.get("pk", 1): more(4)
        self.count_peek(12, T+8)
        more(4)
        self.stamp(7, "hop")
        self.count_wait(12, T+8, 8, sleep=self.o.get("cs", 2))
        a(HI)
        self.await_(20)
        self.stamp(8, "hop")
        a.c("---- B: the group's o_B images go to LDS for the A waves")
        a(f"""
        s_lshl_b32 {s(SWM)}, {s(RB)}, 15
        s_lshl_b32 {s(SWO)}, {s(HP)}, 14
        s_lshl_b32 {s(T)}, {s(S_G)}, 13
        s_sub_u32 {s(SWO)}, {s(SWO)}, {s(T)}
        """)
        ot = self.o.get("othr", 4)
        for p in range(4):
            a(f"""
            s_add_u32 {s(T)}, {s(S_J)}, {p}
            s_and_b32 {s(T)}, {s(T)}, 3
            s_lshl_b32 {s(T)}, {s(T)}, 12
            s_add_u32 {s(T+1)}, {s(T)}, {s(SWO)}
            s_and_b32 {s(T+1)}, {s(T+1)}, 0x7fff
            s_add_u32 m0, {s(SWM)}, {s(T+1)}
            s_add_u32 {s(T)}, {s(T)}, {WS_OB-WS_OA}
            """)
            self.add64(T+2, S_IMG, s(T))
            for k in range(4):
                a(f"s_waitcnt vmcnt({ot-1})")
                a(f"global_load_lds_dwordx4 {v(V_L16)}, {s(T+2,2)} offset:{k*1024} sc1")

        self.newpage("Bend")
        for p in range(4):
            a(f"s_add_u32 {s(T)}, {s(S_J)}, {p}")
            a(f"s_and_b32 {s(T)}, {s(T)}, 3")
            a(f"s_lshl_b32 {s(T)}, {s(T)}, 12")
            self.add64(8+2*p, S_IMG, s(T))
        a(f"s_mov_b32 {s(S_PEND)}, 15")
        a(f"s_mov_b32 {s(T+9)}, 0")
        a(f"v_add_u32 v21, -16, {v(V_ALL)}")
        a(f"s_mul_i32 {s(T)}, {s(S_G)}, {8*KVREC}")
        a(f"s_add_u32 {s(T)}, {s(T)}, {WS_KV+C4_OFF+32}")
        self.add64(T+4, S_WS, s(T))
        a(HI)
        a("s_waitcnt vmcnt(0) lgkmcnt(0)")
        self.stamp(9)
        self.stamp(9, "hop")
        a.c("tell the group when this CU is about to publish (a timing hint only)")
        Ln = a.label("b")
        a(f"s_cmp_lg_u32 {s(WB)}, 1")
        a(f"s_cbranch_scc1 {Ln}")
        self.await_(20, vaddr=21, val=str(E_CLR), sleep=self.o.get("aws", 1))
        self.count(T+4)
        a(f"{Ln}:")
        a("s_barrier")
        a.c("every wave of the grid has used this launch's tag by now: advance the generation word")
        Lg = a.label("b")
        a(f"""
        s_lshl_b32 {s(T)}, s2, 2
        s_add_u32 {s(T)}, {s(T)}, {s(WB)}
        s_cmp_lg_u32 {s(T)}, 0
        s_cbranch_scc1 {Lg}
        s_mov_b64 exec, 1
        global_store_dword {v(V_ZERO)}, {v(V_TAG)}, {s(S_WS,2)} offset:{WS_G} sc1
        s_mov_b64 exec, -1
        {Lg}:
        """)
        a.c("start fetching only when the whole group is about to publish (reads that meet the writes are slow)")
        for i in range(0, 32, 2): a(f"v_mov_b64 {v(96+i,2)}, 0")
        a(f"v_and_b32 v22, 4, v0")
        a(f"v_lshl_add_u32 v22, v22, 2, v21")
        Ln = a.label("b")
        a(f"s_cmp_lg_u32 {s(WB)}, 1")
        a(f"s_cbranch_scc1 {Ln}")
        if not self.o.get("xplain"): a("s_waitcnt lgkmcnt(0)")
        a(f"s_add_u32 {s(T+8)}, {s(T+11)}, 1")
        if not self.o.get("xplain"): self.count_wait(T+4, T+8, 8, sleep=self.o.get("anns", 0))
        a(f"{Ln}:")
        a(f"s_mov_b32 {s(S_EPOCH)}, 38")
        self.arrive(20)
        a("v_mov_b32 v19, 40")
        if self.o.get("xplain") != 2: self.await_(20, vaddr=22, sleep=0)
        a(f"s_mov_b32 {s(S_EPOCH)}, 40")
        self.stamp(4)

    def finish(self):
        a = self.a
        a("L_fin:")
        if self.o.get("spin"):
            m = self.o.get("meas")
            a(f"s_mov_b32 s72, {self.o['spin']}")
            if m:
                if 13 in m[:2]:
                    a("s_waitcnt vmcnt(0)")
                    self.stamp(13)
                a(f"""
                s_waitcnt lgkmcnt(0)
                s_sub_u32 s70, s70, s68
                s_mul_i32 s70, s70, 10
                s_min_u32 s70, s70, 30000
                s_cmp_eq_u32 {s(S_W)}, {m[2]}
                s_cselect_b32 s70, s70, 0
                s_lshr_b32 s73, s2, 3
                s_cmp_eq_u32 s73, {m[3] if m[3] >= 0 else 's73'}
                s_cselect_b32 s70, s70, 0
                s_add_u32 s72, s72, s70
                """)
            a(f"""
            L_spin:
            s_memrealtime s[66:67]
            s_waitcnt lgkmcnt(0)
            s_sub_u32 s66, s66, s64
            s_cmp_lt_u32 s66, s72
            s_cbranch_scc1 L_spin
            """)
        if self.stamps:
            a("s_waitcnt vmcnt(0)")
            self.stamp(13)
            a(f"""
            s_waitcnt lgkmcnt(0)
            s_cmp_ge_u32 {s(S_W)}, 4
            s_cselect_b32 {s(S_ST+28)}, {s(T+9)}, {s(S_ST+28)}
            s_lshl_b32 {s(T)}, s2, 3
            s_add_u32 {s(T)}, {s(T)}, {s(S_W)}
            s_lshl_b32 {s(T)}, {s(T)}, 6
            s_add_u32 {s(T)}, {s(T)}, {WS_STAMP}
            v_mov_b32 v20, {s(T)}
            """)
            for i in range(16): a(f"v_mov_b32 {v(32+i)}, {s(S_ST+2*i)}")
            for i in range(4): a(f"global_store_dwordx4 v20, {v(32+4*i,4)}, {s(S_WS,2)} offset:{16*i}")
        a("L_end:")
        a("s_endpgm")

    def build(self):
        self.entry()
        self.head_A()
        self.attn()
        self.tail_A()
        self.roleB()
        self.outproj()
        self.finish()
        self.check()
        self.retry()
        self.a("L_last:")
        self.attn_fallback("L_norm")
        L = self.a.lines
        ia, ib, ic = L.index("L_cutA:"), L.index("L_roleB:"), L.index("L_cutB:")
        self.a.lines = L[:ia] + L[ib:ic] + L[ia+1:ib] + L[ic+1:]
        return self.wrap()

    def wrap(self):
        hdr = open("cdna_kernels/%s.s.ref" % NAME).read().split("; Override launch")[0]
        return hdr + f"""; Override launch geometry by editing the next line (default: block=256,
; grid=ceil(out_elems/256), lds=0). Harness parses it; keep it on one line.
; @launch grid=(256,1,1) block=(512,1,1) lds={LDS_BYTES}
;
; One persistent workgroup per CU: c = 8*g + j owns rows 64g..64g+63 and heads 4j..4j+3 of both branches.
;   waves 0-3 (role A): q projection, MQA attention, then the linear-attention half of the output projection
;   waves 4-7 (role B): K/V piece, operand streaming, the linear-attention branch (it runs beside the attention
;                       loop), then the attention half of the output projection
; Attention: S^T = K Q^T (log2e/4 folded into K), P = exp2(S) in place; P V and the row sums come from sparse
;   MFMAs whose index picks the high (bf16) half of every fp32 P register, with a row of ones next to V^T.
;   Softmax guard: the first pass shifts by zero; it is kept only if every row sum lies in [2^-20, 2^100] and
;   every accumulator is finite. Otherwise the wave redoes its rows with the true row maximum (L_fallback).
; Hand-offs between workgroups (all through d_ws, write-through stores and L1-bypassing loads, any placement):
;   K/V tiles      data, drain, then a flag set to this launch's tag (generation word at ws+0 plus a constant)
;   k^T v, sum k   float atomics into accumulators cleared before the K/V flag, drain, tagged flag
;   o_B images     data, drain, counter cleared before the K/V flag
;   o_A images     slots marked "not written" earlier in the launch; the reader re-fetches what is still marked
; Every wait loop is bounded.
.amdgcn_target "amdgcn-amd-amdhsa--gfx950"
.text
.globl {NAME}_kernel
.p2align 8
.type {NAME}_kernel,@function
{NAME}_kernel:
""" + self.a.text() + f""".section .rodata,"a"
.p2align 6
.amdhsa_kernel {NAME}_kernel
  .amdhsa_next_free_vgpr 256
  .amdhsa_next_free_sgpr 102
  .amdhsa_accum_offset 256
  .amdhsa_group_segment_fixed_size 0
  .amdhsa_kernarg_size 88
  .amdhsa_user_sgpr_count 2
  .amdhsa_user_sgpr_kernarg_segment_ptr 1
  .amdhsa_system_sgpr_workgroup_id_x 1
  .amdhsa_dx10_clamp 0
.end_amdhsa_kernel
"""

if __name__ == "__main__":
    out = sys.argv[1]
    stamps = "--stamps" in sys.argv
    opts = {}
    for x in sys.argv[2:]:
        if "=" in x:
            k, val = x.split("=", 1); opts[k] = eval(val)
    open(out, "w").write(Gen(stamps=stamps, opts=opts).build())
```
